```python
import torch

def _softmax(x, axis=-1):
    return torch.softmax(x, dim=axis)
def _gelu(x):
    return torch.nn.functional.gelu(x, approximate="tanh")
def _silu(x):
    return torch.nn.functional.silu(x)
def _sigmoid(x):
    return torch.sigmoid(x)
def _layernorm(x, axis=-1, eps=1e-5):
    m = x.mean(dim=axis, keepdim=True)
    v = x.var(dim=axis, keepdim=True, unbiased=False)
    return (x - m) / torch.sqrt(v + eps)
def _scatter_add(tgt, idx, src, axis=0):
    return tgt.clone().index_add_(axis, idx, src)
def _segment_sum(src, seg, n):
    out = torch.zeros((n,) + src.shape[1:], dtype=src.dtype)
    return out.index_add_(0, seg, src)
def _pad(x, pw):
    flat = tuple(v for pair in reversed(pw) for v in pair)
    return torch.nn.functional.pad(x, flat)

kernel_name = 'parallel_sum__sliding_local_dilated__glu_gated_geglu__prompt'

def setup_inputs():

    _w = (lambda a: (lambda t: t.to(torch.bfloat16) if t.is_floating_point() else t)(torch.as_tensor(a)))
    def _A_setup():
        B, S, D = 1, 2048, 640
        return {
            "x": _w((lambda *s: torch.randn(*s, dtype=torch.bfloat16) * 0.05)(B, S, D)),
            "wqkv": _w((lambda *s: torch.randn(*s, dtype=torch.bfloat16) * 0.05)(D, 3 * D)),
            "wo": _w((lambda *s: torch.randn(*s, dtype=torch.bfloat16) * 0.05)(D, D)),
        }
    _A_in = _A_setup()

    def _B_setup():
        B, S, Dm, Df = 1, 2048, 640, 1536
        return {
            "x": _w((lambda *s: torch.randn(*s, dtype=torch.bfloat16) * 0.05)(B, S, Dm)),
            "w_gate": _w((lambda *s: torch.randn(*s, dtype=torch.bfloat16) * 0.8)(Dm, Df) * (Dm ** -0.5)),
            "w_up": _w((lambda *s: torch.randn(*s, dtype=torch.bfloat16) * 0.8)(Dm, Df) * (Dm ** -0.5)),
            "w_down": _w((lambda *s: torch.randn(*s, dtype=torch.bfloat16) * 0.8)(Df, Dm) * (Df ** -0.5)),
        }
    _B_in = _B_setup()

    return {
        "A_x": _A_in["x"],
        "A_wqkv": _A_in["wqkv"],
        "A_wo": _A_in["wo"],
        "B_x": _B_in["x"],
        "B_w_gate": _B_in["w_gate"],
        "B_w_up": _B_in["w_up"],
        "B_w_down": _B_in["w_down"],
    }

def reference(A_x, A_wqkv, A_wo, B_x, B_w_gate, B_w_up, B_w_down):
    def _A_ref(x, wqkv, wo):
        B, S, D = x.shape
        H = 32; Dh = D // H
        W, dil = 8, 2
        qkv = (lambda x, *d: x.permute(*d))((x @ wqkv).reshape(B, S, 3, H, Dh), 2, 0, 3, 1, 4)
        q, k, v = qkv[0], qkv[1], qkv[2]
        scale = Dh ** -0.5
        pos = torch.arange(S)
        off = torch.arange(W) * dil
        idx = pos[:, None] - off[None, :]
        mask = idx >= 0
        idx_c = torch.where(mask, idx, 0).reshape(-1)
        kg = k[:, :, idx_c, :].reshape(B, H, S, W, Dh)
        vg = v[:, :, idx_c, :].reshape(B, H, S, W, Dh)
        logits = torch.einsum("bhsd,bhswd->bhsw", q, kg) * scale
        logits = torch.where(mask[None, None, :, :], logits, -1e9)
        attn = _softmax(logits, axis=-1)
        o = torch.einsum("bhsw,bhswd->bhsd", attn, vg)
        return (lambda x, *d: x.permute(*d))(o, 0, 2, 1, 3).reshape(B, S, D) @ wo

    def _B_ref(x, w_gate, w_up, w_down):
        g = torch.einsum("bsd,df->bsf", x, w_gate)
        u = torch.einsum("bsd,df->bsf", x, w_up)
        h = _gelu(g) * u
        return torch.einsum("bsf,fd->bsd", h, w_down)

    x = A_x
    xn = _layernorm(x, axis=-1)
    return x + _A_ref(xn, A_wqkv, A_wo) + _B_ref(xn, B_w_gate, B_w_up, B_w_down)
```

```python
NAME = "parallel_sum__sliding_local_dilated__glu_gated_geglu__prompt"
class Asm:
    NL = [0]
    def __init__(self): self.l = []
    def __call__(self, s, *a):
        if a: s = s % a
        for line in s.split("\n"):
            line = line.strip()
            if line: self.l.append(("" if line.endswith(":") else "    ") + line)
    def label(self, p="L"):
        Asm.NL[0] += 1; return "%s_%d" % (p, Asm.NL[0])
    def text(self): return "\n".join(self.l) + "\n"
    def srd(self, d, base, nbytes):
        self("s_mov_b32 s%d, s%d" % (d, base)); self("s_and_b32 s%d, s%d, 0xffff" % (d + 1, base + 1))
        self("s_mov_b32 s%d, 0x%x" % (d + 2, nbytes)); self("s_mov_b32 s%d, 0x00020000" % (d + 3))
def kernel_head(name):
    return ".globl %s\n.p2align 8\n.type %s,@function\n%s:\n" % (name, name, name)
def kernel_desc(name, vgpr, sgpr=102, accum=None):
    if accum is None: accum = min(256, (vgpr + 3) // 4 * 4)
    return (".p2align 6\n.amdhsa_kernel %s\n  .amdhsa_next_free_vgpr %d\n  .amdhsa_next_free_sgpr %d\n  .amdhsa_accum_offset %d\n"
            "  .amdhsa_group_segment_fixed_size 0\n  .amdhsa_kernarg_size 80\n  .amdhsa_user_sgpr_count 2\n"
            "  .amdhsa_user_sgpr_kernarg_segment_ptr 1\n  .amdhsa_system_sgpr_workgroup_id_x 1\n.end_amdhsa_kernel\n" % (name, vgpr, sgpr, accum))
def module(kernels, header=""):
    s = header
    for (n, b, g, bl, lds, v, sg, ac) in kernels:
        s += "; @launch kernel=%s grid=(%d,1,1) block=(%d,1,1) lds=%d\n" % (n, g, bl, lds)
    s += '.amdgcn_target "amdgcn-amd-amdhsa--gfx950"\n.text\n'
    seen = set()
    for (n, b, g, bl, lds, v, sg, ac) in kernels:
        if n in seen: continue
        seen.add(n); s += kernel_head(n) + b
    s += '.section .rodata,"a"\n'
    seen = set()
    for (n, b, g, bl, lds, v, sg, ac) in kernels:
        if n in seen: continue
        seen.add(n); s += kernel_desc(n, v, sg, ac)
    return s
```

```python
import sys
from asmlib import *
ACT_OFF = 0
W2P_OFF = 16 << 20
STAMP_OFF = 128 << 20
WS_BYTES = 256 << 20

def stamp(a, on, idx, base=80):
    if on: a("%s s[%d:%d]" % ("s_memtime" if on == 2 else "s_memrealtime", base + 2 * idx, base + 2 * idx + 1))
def stamp_flush(a, on, n, ws_srd, wg_sreg, slot0, total, base=80, vt=1):
    if not on: return
    L = a.label("L_st")
    a("s_waitcnt lgkmcnt(0)")
    a("v_cmp_eq_u32 vcc, 0, v0"); a("s_and_saveexec_b64 s[78:79], vcc"); a("s_cbranch_execz %s" % L)
    a("s_mul_i32 s77, s%d, %d" % (wg_sreg, total * 8)); a("s_add_u32 s77, s77, %d" % (STAMP_OFF + slot0 * 8)); a("v_mov_b32 v%d, s77" % vt)
    for j in range(n):
        a("v_mov_b32 v%d, s%d" % (vt + 1 + (vt + 1) % 2, base + 2 * j)); a("v_mov_b32 v%d, s%d" % (vt + 2 + (vt + 1) % 2, base + 2 * j + 1))
        e = vt + 1 + (vt + 1) % 2
        a("buffer_store_dwordx2 v[%d:%d], v%d, s[%d:%d], 0 offen offset:%d" % (e, e + 1, vt, ws_srd, ws_srd + 3, 8 * j))
        a("s_nop 1")
    a("%s:" % L); a("s_mov_b64 exec, -1")

def gen_k2(st=False, D=4, st_slot0=0, st_total=4, rot_on=True):
    a = Asm()
    a("s_cmp_ge_u32 s2, 256"); a("s_cbranch_scc1 K2_end")
    stamp(a, st, 0)
    a("s_load_dwordx2 s[4:5], s[0:1], 0")
    a("s_load_dwordx2 s[6:7], s[0:1], 56")
    a("s_load_dwordx2 s[24:25], s[0:1], 72")
    a("v_lshrrev_b32 v1, 6, v0"); a("v_and_b32 v2, 63, v0")
    a("v_readfirstlane_b32 s26, v1")
    a("s_and_b32 s27, s2, 7"); a("s_lshr_b32 s28, s2, 3")
    a("s_lshr_b32 s29, s28, 2"); a("s_and_b32 s30, s28, 3")
    a("s_lshr_b32 s31, s27, 1"); a("s_lshl_b32 s31, s31, 3"); a("s_add_u32 s31, s31, s29")
    a("s_and_b32 s32, s27, 1"); a("s_lshl_b32 s32, s32, 2"); a("s_add_u32 s32, s32, s30")
    if rot_on == 2:
        a("s_lshl_b32 s33, s30, 2")
    elif rot_on:
        a("s_lshl_b32 s33, s30, 1"); a("s_add_u32 s33, s33, s29"); a("s_lshl_b32 s33, s33, 1")
        a("s_sub_u32 s34, s33, 17"); a("s_cmp_ge_u32 s33, 17"); a("s_cselect_b32 s33, s34, s33")
    else: a("s_mov_b32 s33, 0")
    a("s_mul_i32 s34, s26, 17")
    a("s_mul_i32 s35, s31, 68"); a("s_add_u32 s35, s35, s34"); a("s_lshl_b32 s35, s35, 12")
    if ACT_OFF: a("s_add_u32 s35, s35, %d" % ACT_OFF)
    a("s_mul_i32 s36, s32, 68"); a("s_add_u32 s36, s36, s34"); a("s_mul_i32 s36, s36, 5120"); a("s_add_u32 s36, s36, %d" % W2P_OFF)
    VA, VW0, VW1, VX, VL = 4, 8, 9, 10, 11
    a("v_lshlrev_b32 v%d, 4, v2" % VW0); a("v_add_u32 v%d, 4096, v%d" % (VW1, VW0))
    for i in range(4):
        a("v_add_u32 v3, %d, v1" % i); a("v_and_b32 v3, 3, v3"); a("v_lshl_add_u32 v%d, v3, 10, v%d" % (VA + i, VW0))
    a("s_waitcnt lgkmcnt(0)")
    a.srd(8, 24, WS_BYTES); a.srd(16, 4, 2621440); a.srd(20, 6, 2621440)
    ACC = 16; STG = 96; XR = 240
    def issue(i):
        b = STG + (i % D) * 36
        a("s_lshl_b32 s37, s33, 12"); a("s_add_u32 s37, s37, s35")
        a("s_mul_i32 s38, s33, 5120"); a("s_add_u32 s38, s38, s36")
        for t in range(5):
            a("buffer_load_dwordx4 v[%d:%d], v%d, s[8:11], s38 offen offset:%d" % (b + 16 + 4 * t, b + 19 + 4 * t, VW0 if t < 4 else VW1, 1024 * (t % 4)))
            if t < 4: a("buffer_load_dwordx4 v[%d:%d], v%d, s[8:11], s37 offen" % (b + 4 * t, b + 3 + 4 * t, VA + t))
        a("s_add_u32 s33, s33, 1"); a("s_cmp_eq_u32 s33, 17"); a("s_cselect_b32 s33, 0, s33")
    for i in range(D): issue(i)
    a("v_and_b32 v3, 15, v2"); a("v_lshl_add_u32 v3, v1, 4, v3"); a("v_mul_u32_u24 v3, 1280, v3")
    a("v_lshrrev_b32 v12, 4, v2"); a("v_mul_u32_u24 v12, 40, v12"); a("v_add_u32 v%d, v3, v12" % VX)
    a("s_mul_i32 s39, s31, %d" % (64 * 1280)); a("s_mul_i32 s40, s32, 160"); a("s_add_u32 s39, s39, s40")
    nx = 0
    for i in range(17):
        b = STG + (i % D) * 36
        rem = min(D - 1, 16 - i)
        a("s_waitcnt vmcnt(%d)" % (9 * rem + nx))
        if i == 0: stamp(a, st, 1)
        for t in range(5):
            for q in range(4):
                c = ACC + (q * 5 + t) * 4
                a("v_mfma_f32_16x16x32_bf16 v[%d:%d], v[%d:%d], v[%d:%d], %s" % (c, c + 3, b + 16 + 4 * t, b + 19 + 4 * t, b + 4 * q, b + 3 + 4 * q, "0" if i == 0 else "v[%d:%d]" % (c, c + 3)))
        if i + D < 17: issue(i + D)
        if i + D == 16:
            a("buffer_load_dwordx4 v[%d:%d], v%d, s[16:19], s39 offen" % (XR, XR + 3, VX))
            a("buffer_load_dwordx4 v[%d:%d], v%d, s[16:19], s39 offen offset:16" % (XR + 4, XR + 7, VX))
            a("buffer_load_dwordx2 v[%d:%d], v%d, s[16:19], s39 offen offset:32" % (XR + 8, XR + 9, VX))
            nx = 3
    stamp(a, st, 2)
    for q in range(1, 4):
        a("v_add_u32 v3, %d, v1" % q); a("v_and_b32 v3, 3, v3"); a("v_mul_u32_u24 v3, 15360, v3"); a("v_add_u32 v%d, v3, v%d" % (12 + q, VW0))
    a("v_mul_u32_u24 v3, 15360, v1"); a("v_add_u32 v%d, v3, v%d" % (VL, VW0))
    a("s_nop 1")
    for q in range(1, 4):
        for t in range(5):
            c = ACC + (q * 5 + t) * 4
            a("ds_write_b128 v%d, v[%d:%d] offset:%d" % (12 + q, c, c + 3, (q - 1) * 5120 + t * 1024))
    a("s_waitcnt lgkmcnt(0)"); a("s_barrier")
    for t in range(5):
        for s in range(3):
            r = STG + (t * 3 + s) * 4
            a("ds_read_b128 v[%d:%d], v%d offset:%d" % (r, r + 3, VL, s * 5120 + t * 1024))
    a("s_waitcnt vmcnt(0)")
    for t in range(5):
        for p in range(2):
            xr = XR + 2 * t + p; c = ACC + t * 4 + 2 * p
            a("v_lshlrev_b32 v3, 16, v%d" % xr); a("v_and_b32 v12, 0xffff0000, v%d" % xr)
            a("v_add_f32 v%d, v%d, v3" % (c, c)); a("v_add_f32 v%d, v%d, v12" % (c + 1, c + 1))
    for t in range(5):
        a("s_waitcnt lgkmcnt(%d)" % (12 - 3 * t))
        for s in range(3):
            for r in range(4):
                a("v_add_f32 v%d, v%d, v%d" % (ACC + t * 4 + r, ACC + t * 4 + r, STG + (t * 3 + s) * 4 + r))
        a("v_cvt_pk_bf16_f32 v%d, v%d, v%d" % (XR + 2 * t, ACC + t * 4, ACC + t * 4 + 1))
        a("v_cvt_pk_bf16_f32 v%d, v%d, v%d" % (XR + 2 * t + 1, ACC + t * 4 + 2, ACC + t * 4 + 3))
    a("buffer_store_dwordx4 v[%d:%d], v%d, s[20:23], s39 offen" % (XR, XR + 3, VX))
    a("buffer_store_dwordx4 v[%d:%d], v%d, s[20:23], s39 offen offset:16" % (XR + 4, XR + 7, VX))
    a("buffer_store_dwordx2 v[%d:%d], v%d, s[20:23], s39 offen offset:32" % (XR + 8, XR + 9, VX))
    if st: a("s_waitcnt vmcnt(0)")
    stamp(a, st, 3)
    stamp_flush(a, st, 4, 8, 2, st_slot0, st_total)
    a("K2_end:"); a("s_endpgm")
    return ("k2_kernel", a.text(), 256, 256, 61440, 252, 96, None)

if __name__ == "__main__":
    what = sys.argv[1]
    if what == "k2":
        D = int(sys.argv[2]); rot = int(sys.argv[3])
        rep = int(sys.argv[4]) if len(sys.argv) > 4 else 1
        open("k2.s", "w").write(module([gen_k2(True, D, rot_on=rot)] * rep))
```

```python
import sys
from asmlib import *
from gen import *
XN_OFF = 24 << 20
XBYTES = 2621440

class Q:
    def __init__(s, cap): s.q = []; s.cap = cap
    def issue(s, tag): s.q.append(tag)
    def need(s, *tags):
        idx = -1
        for i, t in enumerate(s.q):
            if t in tags: idx = i
        if idx < 0: return None
        n = min(len(s.q) - 1 - idx, s.cap)
        s.q = s.q[len(s.q) - n:] if n else []
        return n
    def clear(s): s.q = []
def wait(a, vm=None, lg=None):
    p = []
    if vm is not None: p.append("vmcnt(%d)" % vm)
    if lg is not None: p.append("lgkmcnt(%d)" % lg)
    if p: a("s_waitcnt " + " ".join(p))

def bf16_round(a, v, t):
    a("v_cvt_pk_bf16_f32 v%d, v%d, v%d" % (v, v, v)); a("v_lshlrev_b32 v%d, 16, v%d" % (v, v))

def w2_pack_job(a, sjob, lds_base_s, V, srd_src, srd_ws, s_wo, s_wd, st):
    L = V
    a("s_lshr_b32 s%d, s%d, 1" % (st, sjob)); a("s_and_b32 s%d, s%d, 1" % (st + 1, sjob))
    a("s_sub_u32 s%d, s%d, 80" % (st + 2, st)); a("s_cmp_lt_u32 s%d, 80" % st)
    a("s_cselect_b32 s%d, s%d, s%d" % (st + 2, st, st + 2))
    a("s_cselect_b32 s%d, s%d, s%d" % (srd_src, s_wo, s_wd)); a("s_cselect_b32 s%d, s%d, s%d" % (srd_src + 1, s_wo + 1, s_wd + 1))
    a("s_cselect_b32 s%d, 0x%x, 0x%x" % (srd_src + 2, 819200, 819200));
    a("s_cselect_b32 s%d, 0, 0x118000" % (st + 3)); a("s_add_u32 s%d, s%d, s%d" % (srd_src + 2, srd_src + 2, st + 3))
    a("s_and_b32 s%d, s%d, 0xffff" % (srd_src + 1, srd_src + 1)); a("s_mov_b32 s%d, 0x00020000" % (srd_src + 3))
    a("s_mul_i32 s%d, s%d, 10240" % (st + 2, st + 2)); a("s_mul_i32 s%d, s%d, 640" % (st + 3, st + 1)); a("s_add_u32 s%d, s%d, s%d" % (st + 2, st + 2, st + 3))
    for i in range(5):
        a("v_add_u32 v%d, %d, v%d" % (V + 1, 64 * i, L)); a("v_mul_u32_u24 v%d, 1639, v%d" % (V + 2, V + 1)); a("v_lshrrev_b32 v%d, 16, v%d" % (V + 2, V + 2))
        a("v_mul_u32_u24 v%d, 640, v%d" % (V + 2, V + 2)); a("v_lshl_add_u32 v%d, v%d, 4, v%d" % (V + 2, V + 1, V + 2))
        a("s_add_u32 m0, s%d, %d" % (lds_base_s, 1024 * i)); a("s_nop 0")
        a("buffer_load_dwordx4 v%d, s[%d:%d], s%d offen lds" % (V + 2, srd_src, srd_src + 3, st + 2))
    a("v_lshrrev_b32 v%d, 4, v%d" % (V + 1, L)); a("v_mul_u32_u24 v%d, 160, v%d" % (V + 2, V + 1))
    a("v_bfe_u32 v%d, v%d, 2, 2" % (V + 3, L)); a("v_mul_u32_u24 v%d, 640, v%d" % (V + 3, V + 3)); a("v_add_u32 v%d, v%d, v%d" % (V + 2, V + 2, V + 3))
    a("v_and_b32 v%d, 3, v%d" % (V + 3, L)); a("v_mul_u32_u24 v%d, 40, v%d" % (V + 3, V + 3)); a("v_add3_u32 v%d, v%d, v%d, s%d" % (V + 2, V + 2, V + 3, lds_base_s))
    a("s_mov_b32 s%d, %d" % (st + 3, 68 * 5120)); a("v_mul_lo_u32 v%d, v%d, s%d" % (V + 1, V + 1, st + 3))
    a("v_and_b32 v%d, 15, v%d" % (V + 3, L)); a("v_lshl_add_u32 v%d, v%d, 4, v%d" % (V + 1, V + 3, V + 1))
    a("s_mul_i32 s%d, s%d, 272" % (st + 3, st + 1)); a("s_lshr_b32 s%d, s%d, 2" % (st + 4, st)); a("s_add_u32 s%d, s%d, s%d" % (st + 3, st + 3, st + 4))
    a("s_mul_i32 s%d, s%d, 5120" % (st + 3, st + 3)); a("s_and_b32 s%d, s%d, 3" % (st + 4, st)); a("s_lshl_b32 s%d, s%d, 8" % (st + 4, st + 4))
    a("s_add_u32 s%d, s%d, s%d" % (st + 3, st + 3, st + 4)); a("s_add_u32 s%d, s%d, %d" % (st + 3, st + 3, W2P_OFF)); a("s_add_u32 s%d, s%d, 4096" % (st + 4, st + 3))
    a("s_waitcnt vmcnt(0)")
    for i in range(5):
        for tt in range(2):
            a("ds_read_b64_tr_b16 v[%d:%d], v%d offset:%d" % (V + 4 + 4 * i + 2 * tt, V + 5 + 4 * i + 2 * tt, V + 2, 8 * i + 2560 * tt))
    for i in range(5):
        a("s_waitcnt lgkmcnt(%d)" % (8 - 2 * i))
        a("buffer_store_dwordx4 v[%d:%d], v%d, s[%d:%d], s%d offen offset:%d" % (V + 4 + 4 * i, V + 7 + 4 * i, V + 1, srd_ws, srd_ws + 3, st + 3 if i < 4 else st + 4, 1024 * (i % 4)))

def gen_k0():
    a = Asm()
    a("s_cmp_ge_u32 s2, 256"); a("s_cbranch_scc1 K0_end")
    a("s_load_dwordx2 s[4:5], s[0:1], 0"); a("s_load_dwordx2 s[6:7], s[0:1], 16"); a("s_load_dwordx2 s[8:9], s[0:1], 48"); a("s_load_dwordx2 s[12:13], s[0:1], 72")
    a("v_lshrrev_b32 v1, 6, v0"); a("v_and_b32 v40, 63, v0"); a("v_readfirstlane_b32 s32, v1")
    a("s_waitcnt lgkmcnt(0)")
    a.srd(16, 4, XBYTES); a.srd(28, 12, WS_BYTES)
    a("v_lshrrev_b32 v2, 5, v0"); a("v_mul_u32_u24 v2, 1280, v2"); a("v_and_b32 v3, 31, v0"); a("v_lshl_add_u32 v2, v3, 3, v2")
    a("s_mul_i32 s33, s2, %d" % (8 * 1280))
    for i in range(5): a("buffer_load_dwordx2 v[%d:%d], v2, s[16:19], s33 offen offset:%d" % (4 + 2 * i, 5 + 2 * i, 256 * i))
    a("s_waitcnt vmcnt(0)")
    for i in range(10):
        a("v_lshlrev_b32 v%d, 16, v%d" % (16 + 2 * i, 4 + i)); a("v_and_b32 v%d, 0xffff0000, v%d" % (17 + 2 * i, 4 + i))
    a("v_mov_b32 v36, 0")
    for i in range(20): a("v_add_f32 v36, v36, v%d" % (16 + i))
    def red(v):
        for o in (0x041F, 0x081F, 0x101F, 0x201F, 0x401F):
            a("ds_swizzle_b32 v38, v%d offset:0x%x" % (v, o)); a("s_waitcnt lgkmcnt(0)"); a("v_add_f32 v%d, v%d, v38" % (v, v))
    red(36)
    a("v_mul_f32 v36, 0x3acccccd, v36")
    a("v_mov_b32 v37, 0")
    for i in range(20): a("v_sub_f32 v39, v%d, v36" % (16 + i)); a("v_fmac_f32 v37, v39, v39")
    red(37)
    a("v_mul_f32 v37, 0x3acccccd, v37")
    bf16_round(a, 36, 0); bf16_round(a, 37, 0)
    a("v_add_f32 v37, 0x3727c5ac, v37"); bf16_round(a, 37, 0)
    a("v_sqrt_f32 v37, v37"); a("s_nop 0"); bf16_round(a, 37, 0)
    a("v_rcp_f32 v37, v37"); a("s_nop 0")
    for i in range(20):
        a("v_sub_f32 v%d, v%d, v36" % (16 + i, 16 + i)); bf16_round(a, 16 + i, 0); a("v_mul_f32 v%d, v%d, v37" % (16 + i, 16 + i))
    for i in range(10): a("v_cvt_pk_bf16_f32 v%d, v%d, v%d" % (4 + i, 16 + 2 * i, 17 + 2 * i))
    a("s_add_u32 s33, s33, %d" % XN_OFF)
    for i in range(5): a("buffer_store_dwordx2 v[%d:%d], v2, s[28:31], s33 offen offset:%d" % (4 + 2 * i, 5 + 2 * i, 256 * i))
    a("s_lshl_b32 s34, s2, 2"); a("s_add_u32 s34, s34, s32")
    a("s_cmp_ge_u32 s34, 544"); a("s_cbranch_scc1 K0_end")
    a("s_mul_i32 s35, s32, 5120")
    w2_pack_job(a, 34, 35, 40, 20, 28, 6, 8, 40)
    a("K0_end:"); a("s_endpgm")
    return ("k0_kernel", a.text(), 256, 256, 20480, 72, 64, None)

GA = -2.0 * 0.7978845608028654 * 1.4426950408889634
GB = GA * 0.044715
import struct
def f2h(x): return "0x%08x" % struct.unpack("<I", struct.pack("<f", x))[0]

def k1_prologue(a, st, rot):
    a("s_cmp_ge_u32 s2, 256"); a("s_cbranch_scc1 K1_end")
    stamp(a, st, 0)
    a("s_load_dwordx2 s[6:7], s[0:1], 8"); a("s_load_dwordx4 s[8:11], s[0:1], 32"); a("s_load_dwordx2 s[12:13], s[0:1], 72")
    a("v_lshrrev_b32 v1, 6, v0"); a("v_and_b32 v2, 63, v0"); a("v_readfirstlane_b32 s32, v1")
    a("s_and_b32 s33, s2, 7"); a("s_lshr_b32 s34, s2, 3")
    a("s_and_b32 s35, s34, 7"); a("s_lshr_b32 s34, s34, 3")
    a("s_and_b32 s36, s33, 1"); a("s_lshl_b32 s36, s36, 3"); a("s_add_u32 s36, s36, s35")
    a("s_and_b32 s37, s33, 6"); a("s_and_b32 s68, s34, 1"); a("s_add_u32 s37, s37, s68")
    if rot:
        a("s_mul_i32 s68, s35, 30"); a("s_lshr_b32 s68, s68, 3")
        a("s_mul_i32 s39, s68, 205"); a("s_lshr_b32 s39, s39, 11")
        a("s_mul_i32 s38, s39, 10"); a("s_sub_u32 s38, s68, s38")
        a("s_mul_i32 s68, s34, 5"); a("s_lshr_b32 s68, s68, 1"); a("s_add_u32 s38, s38, s68")
        a("s_sub_u32 s68, s38, 10"); a("s_cmp_ge_u32 s38, 10"); a("s_cselect_b32 s38, s68, s38")
    else:
        a("s_mov_b32 s38, 0"); a("s_mov_b32 s39, 0")
    a("s_waitcnt lgkmcnt(0)")
    a("s_add_u32 s4, s12, %d" % XN_OFF); a("s_addc_u32 s5, s13, 0")
    a.srd(16, 4, XBYTES); a.srd(28, 12, WS_BYTES)
    for j in range(10):
        a("s_lshl_b32 s%d, s38, 7" % (50 + j))
        if j < 9: a("s_add_u32 s38, s38, 1"); a("s_cmp_eq_u32 s38, 10"); a("s_cselect_b32 s38, 0, s38")
    a("s_cmp_ge_u32 s34, 2"); a("s_cbranch_scc1 K1_att")

def k1_ffn(a, st, fill_per_gap=3):
    SL = 16896; NS = 8
    a.srd(20, 8, 1966080); a.srd(24, 10, 1966080)
    for j in range(10): a("s_mul_i32 s%d, s%d, 1536" % (40 + j, 50 + j))
    a("s_and_b32 s68, s32, 3"); a("s_lshr_b32 s69, s32, 2")
    a("s_lshl_b32 s70, s36, 1"); a("s_lshr_b32 s71, s68, 1"); a("s_add_u32 s70, s70, s71"); a("s_mul_i32 s70, s70, 68")
    a("s_mul_i32 s71, s37, 6"); a("s_add_u32 s70, s70, s71"); a("s_add_u32 s70, s70, s69"); a("s_add_u32 s70, s70, 20"); a("s_lshl_b32 s70, s70, 12")
    a("s_and_b32 s71, s68, 1"); a("s_lshl_b32 s71, s71, 11"); a("s_add_u32 s70, s70, s71")
    if ACT_OFF: a("s_add_u32 s70, s70, %d" % ACT_OFF)
    for p in range(3):
        a("s_lshl_b32 s%d, s39, 7" % (60 + p)); a("s_lshl_b32 s71, s39, 13"); a("s_add_u32 s%d, s70, s71" % (63 + p))
        if p < 2: a("s_add_u32 s39, s39, 1"); a("s_cmp_eq_u32 s39, 3"); a("s_cselect_b32 s39, 0, s39")
    a("s_lshr_b32 s66, s32, 1"); a("s_lshl_b32 s66, s66, 2"); a("s_and_b32 s71, s32, 1"); a("s_add_u32 s66, s66, s71"); a("s_mul_i32 s66, s66, 1056")
    a("s_mul_i32 s67, s32, 1040")
    VWO, VXO, VWR, VWR2, VXR, VXR2, VST, VA_, VB_, VS2 = 3, 4, 5, 6, 7, 8, 9, 10, 11, 12
    T = [13, 14, 15, 1]
    WF = 16; ACC = [32, 64]; X = 96
    a("v_lshrrev_b32 v13, 4, v2"); a("v_lshlrev_b32 v13, 2, v13")
    a("v_bfe_u32 v14, v2, 3, 1"); a("v_add_u32 v13, v13, v14")
    a("s_lshr_b32 s71, s32, 1"); a("s_lshl_b32 s71, s71, 4"); a("s_and_b32 s72, s32, 1"); a("s_lshl_b32 s72, s72, 1"); a("s_add_u32 s71, s71, s72")
    a("v_add_u32 v13, s71, v13"); a("v_mul_u32_u24 v13, 3072, v13")
    a("v_and_b32 v14, 7, v2"); a("v_lshlrev_b32 v14, 4, v14")
    a("s_mul_i32 s71, s37, 384"); a("v_add3_u32 v%d, v13, v14, s71" % VWO)
    a("v_lshrrev_b32 v13, 4, v2"); a("v_lshlrev_b32 v13, 5, v13"); a("v_bfe_u32 v15, v2, 3, 1"); a("v_add_u32 v13, v13, v15")
    a("s_lshl_b32 s71, s32, 1"); a("s_lshl_b32 s72, s36, 7"); a("s_add_u32 s71, s71, s72")
    a("v_add_u32 v13, s71, v13"); a("v_mul_u32_u24 v13, 1280, v13"); a("v_add_u32 v%d, v13, v14" % VXO)
    slots = []
    for j in range(10): slots += [("X", 0, j), ("W", 0, j)]
    for p in (1, 2):
        for j in range(10): slots.append(("W", p, j))
    vm = Q(63); lg = Q(15)
    def dma_groups(n):
        t, p, j = slots[n]; base = (n % NS) * SL
        if t == "X":
            g1 = ["s_add_u32 m0, s67, %d" % base, "s_add_u32 s69, s%d, 20480" % (50 + j), "buffer_load_dwordx4 v%d, s[16:19], s%d offen lds" % (VXO, 50 + j)]
            g2 = ["s_add_u32 m0, s67, %d" % (base + 8 * 1040), "s_nop 0", "buffer_load_dwordx4 v%d, s[16:19], s69 offen lds" % VXO]
        else:
            g1 = ["s_add_u32 m0, s66, %d" % base, "s_add_u32 s68, s%d, s%d" % (40 + j, 60 + p), "buffer_load_dwordx4 v%d, s[20:23], s68 offen lds" % VWO]
            g2 = ["s_add_u32 m0, s66, %d" % (base + 2112), "s_nop 0", "buffer_load_dwordx4 v%d, s[24:27], s68 offen lds" % VWO]
        return [(g1, ("slot", n)), (g2, ("slot", n))]
    def emit_dma(g):
        for s in g[0]: a(s)
        vm.issue(g[1])
    for n in range(NS):
        for g in dma_groups(n): emit_dma(g)
    issued = NS
    a("v_bfe_u32 v13, v2, 4, 1"); a("v_lshlrev_b32 v13, 1, v13"); a("v_bfe_u32 v14, v2, 3, 1"); a("v_add_u32 v13, v13, v14"); a("v_mul_u32_u24 v13, 1056, v13")
    a("v_lshrrev_b32 v14, 5, v2"); a("v_lshlrev_b32 v14, 2, v14"); a("v_bfe_u32 v15, v2, 2, 1"); a("v_add_u32 v14, v14, v15"); a("v_lshl_add_u32 v13, v14, 7, v13")
    a("v_and_b32 v14, 1, v2"); a("v_lshlrev_b32 v14, 4, v14"); a("v_bfe_u32 v15, v2, 1, 1"); a("v_lshl_add_u32 v14, v15, 3, v14")
    a("s_lshr_b32 s71, s32, 2"); a("s_lshl_b32 s71, s71, 6")
    a("v_add3_u32 v%d, v13, v14, s71" % VWR); a("v_add_u32 v%d, %d, v%d" % (VWR2, 4 * SL, VWR))
    a("v_bfe_u32 v13, v2, 1, 4"); a("v_mul_u32_u24 v13, 1040, v13"); a("v_and_b32 v14, 1, v2"); a("v_lshl_add_u32 v13, v14, 7, v13")
    a("v_lshrrev_b32 v14, 5, v2"); a("v_lshl_add_u32 v13, v14, 4, v13")
    a("s_and_b32 s71, s32, 3"); a("s_lshl_b32 s71, s71, 8"); a("v_add_u32 v%d, s71, v13" % VXR); a("v_add_u32 v%d, %d, v%d" % (VXR2, 4 * SL, VXR))
    a("v_bfe_u32 v13, v2, 4, 1"); a("v_lshlrev_b32 v13, 10, v13"); a("v_lshrrev_b32 v14, 5, v2"); a("v_lshl_add_u32 v13, v14, 8, v13")
    a("v_and_b32 v14, 15, v2"); a("v_lshl_add_u32 v%d, v14, 4, v13" % VST)
    a("v_mov_b32 v%d, %s" % (VA_, f2h(GA))); a("v_mov_b32 v%d, %s" % (VB_, f2h(GB))); a("v_mov_b32 v%d, 1.0" % VS2)
    def need(s): return 2 * s + 1 if s < 10 else 10 + s
    def wreads(g):
        s_, m = g // 8, g % 8; n = need(s_); pos = n % NS
        vb = VWR if pos < 4 else VWR2; off = (pos % 4) * SL + 4 * (m >> 1) * 1056 + 32 * (m & 1)
        b = WF + (g % 4) * 4
        for t in range(2):
            a("ds_read_b64_tr_b16 v[%d:%d], v%d offset:%d" % (b + 2 * t, b + 2 * t + 1, vb, off + 256 * t)); lg.issue(("w", g))
    def xreads(j):
        pos = (2 * j) % NS; vb = VXR if pos < 4 else VXR2
        for s in range(4):
            r = X + (4 * j + s) * 4
            a("ds_read_b128 v[%d:%d], v%d offset:%d" % (r, r + 3, vb, (pos % 4) * SL + 32 * s)); lg.issue(("x", j, s))
    def epilogue(p):
        out = []; base = ACC[p % 2]
        for tile in range(2):
            c = base + 16 * tile
            for i in range(0, 8, 2):
                G = [c + i, c + i + 1]; U = [c + 8 + i, c + 9 + i]; t = T[0:2]
                seq = [lambda k: "v_mul_f32 v%d, v%d, v%d" % (t[k], G[k], G[k]),
                       lambda k: "v_fma_f32 v%d, v%d, v%d, v%d" % (t[k], t[k], VB_, VA_),
                       lambda k: "v_mul_f32 v%d, v%d, v%d" % (t[k], t[k], G[k]),
                       lambda k: "v_exp_f32 v%d, v%d" % (t[k], t[k]),
                       lambda k: "v_mul_f32 v%d, v%d, v%d" % (G[k], G[k], U[k]),
                       lambda k: "v_fma_f32 v%d, v%d, v%d, v%d" % (t[k], t[k], VS2, VS2),
                       lambda k: "v_rcp_f32 v%d, v%d" % (t[k], t[k])]
                for f in seq:
                    for k in range(2): out.append((f(k), None))
                out.append(("v_mul_f32 v%d, v%d, v%d" % (G[0], G[0], t[0]), None))
                out.append(("v_mul_f32 v%d, v%d, v%d" % (G[1], G[1], t[1]), None))
                out.append(("v_cvt_pk_bf16_f32 v%d, v%d, v%d" % (c + 8 + i // 2, G[0], G[1]), None))
            out.append(("buffer_store_dwordx4 v[%d:%d], v%d, s[28:31], s%d offen offset:%d" % (c + 8, c + 11, VST, 63 + p, 512 * tile), "st"))
        return out
    wait(a, vm=vm.need(("slot", need(0)))); a("s_barrier")
    stamp(a, st, 1)
    xreads(0)
    for g in range(4): wreads(g)
    dq = []; fq = []
    for g in range(240):
        s_, m = g // 8, g % 8; p, j = s_ // 10, s_ % 10
        if g % 80 == 3 and p >= 1: fq = epilogue(p - 1)
        wait(a, lg=lg.need(("w", g), ("x", j, m >> 1)))
        c = ACC[p % 2] + 16 * (m & 1); b = WF + (g % 4) * 4; xr = X + (4 * j + (m >> 1)) * 4
        a("v_mfma_f32_32x32x16_bf16 v[%d:%d], v[%d:%d], v[%d:%d], %s" % (c, c + 15, b, b + 3, xr, xr + 3, "0" if (j == 0 and m < 2) else "v[%d:%d]" % (c, c + 15)))
        g4 = g + 4
        if g4 < 240:
            if g4 % 8 == 0:
                s2 = g4 // 8
                while dq: emit_dma(dq.pop(0))
                wait(a, vm=vm.need(("slot", need(s2)))); a("s_barrier")
                while issued <= need(s2 - 1) + NS - 1 and issued < 40:
                    dq += dma_groups(issued); issued += 1
                wreads(g4)
                if s2 < 10: xreads(s2)
            else:
                wreads(g4)
                if dq: emit_dma(dq.pop(0))
        for _ in range(fill_per_gap):
            if fq:
                ins, tag = fq.pop(0); a(ins)
                if tag: vm.issue(tag)
        if g % 80 == 79: assert not fq
        if st and g == 79: stamp(a, st, 2)
    stamp(a, st, 3)
    a("s_nop 7"); a("s_nop 7")
    for ins, tag in epilogue(2): a(ins)
    if st: a("s_waitcnt vmcnt(0)")
    stamp(a, st, 4)
    a("s_branch K1_fin")

def k1_att(a, st):
    a("K1_att:")
    WSL = 15360; NW = 5; XB = NW * WSL; XSL = 18432; NX = 3
    RS = 496
    a.srd(20, 6, 2457600)
    for j in range(10): a("s_mul_i32 s%d, s%d, 1920" % (40 + j, 50 + j))
    a("s_cmp_eq_u32 s32, 7")
    for i in range(3): a("s_cselect_b32 s%d, s%d, s%d" % (72 + i, 16 + i, 20 + i))
    a("s_mov_b32 s75, 0x00020000")
    a("s_lshl_b32 s66, s32, 10")
    VW0, VF0, VF1, VX0, VX1 = 3, 4, 5, 6, 7
    VWR = [8, 9, 10, 11]
    VXR = [12, 13, 14, 15]
    ACC = 16; FR = [88, 124]; TT = 160
    def wvoff(dst, blk_add):
        a("s_lshl_b32 s68, s32, 6"); a("s_add_u32 s68, s68, %d" % blk_add); a("v_add_u32 v%d, s68, v2" % TT)
        a("v_mul_u32_u24 v%d, 2185, v%d" % (TT + 1, TT)); a("v_lshrrev_b32 v%d, 16, v%d" % (TT + 1, TT + 1))
        a("v_mul_u32_u24 v%d, 30, v%d" % (TT + 2, TT + 1)); a("v_sub_u32 v%d, v%d, v%d" % (TT + 2, TT, TT + 2))
        a("v_mul_u32_u24 v%d, 205, v%d" % (TT + 3, TT + 2)); a("v_lshrrev_b32 v%d, 11, v%d" % (TT + 3, TT + 3))
        a("v_mul_u32_u24 v%d, 1120, v%d" % (TT + 3, TT + 3)); a("v_lshl_add_u32 v%d, v%d, 4, v%d" % (TT + 3, TT + 2, TT + 3))
        a("v_bfe_u32 v%d, v%d, 2, 2" % (TT + 4, TT + 1)); a("v_lshlrev_b32 v%d, 3, v%d" % (TT + 4, TT + 4))
        a("v_bfe_u32 v%d, v%d, 4, 1" % (TT + 5, TT + 1)); a("v_lshl_add_u32 v%d, v%d, 2, v%d" % (TT + 4, TT + 5, TT + 4))
        a("v_and_b32 v%d, 3, v%d" % (TT + 5, TT + 1)); a("v_add_u32 v%d, v%d, v%d" % (TT + 4, TT + 4, TT + 5))
        a("v_mul_u32_u24 v%d, 3840, v%d" % (TT + 4, TT + 4)); a("s_mul_i32 s68, s37, 160")
        a("v_add3_u32 v%d, v%d, v%d, s68" % (dst, TT + 4, TT + 3))
    def xvoff(dst, sblk):
        a("s_lshl_b32 s68, s%d, 3" % sblk); a("s_lshl_b32 s69, s36, 7"); a("s_add_u32 s68, s68, s69"); a("s_sub_u32 s68, s68, 16")
        a("s_and_b32 s69, s%d, 1" % sblk); a("s_lshl_b32 s69, s69, 2")
        a("v_lshrrev_b32 v%d, 4, v2" % TT); a("v_add_u32 v%d, s69, v%d" % (TT, TT)); a("v_and_b32 v%d, 7, v2" % (TT + 1)); a("v_xor_b32 v%d, v%d, v%d" % (TT, TT, TT + 1))
        a("v_lshrrev_b32 v%d, 3, v2" % (TT + 1)); a("v_mul_u32_u24 v%d, 1280, v%d" % (TT + 1, TT + 1)); a("v_lshl_add_u32 v%d, v%d, 4, v%d" % (TT, TT, TT + 1))
        a("s_mul_i32 s69, s68, 1280"); a("s_cmp_lt_i32 s68, 0"); a("s_cselect_b32 s69, 0x7ff00000, s69")
        a("v_add_u32 v%d, s69, v%d" % (dst, TT))
    wvoff(VW0, 0)
    xvoff(VX0, 32)
    a("s_add_u32 s70, s32, 9"); xvoff(VX1, 70)
    a("s_cmp_eq_u32 s32, 7"); a("s_cbranch_scc1 K1_att_w7")
    wvoff(VF0, 512); a("v_mov_b32 v%d, v%d" % (VF1, VF0)); a("s_branch K1_att_w7d")
    a("K1_att_w7:")
    a("s_mov_b32 s70, 8"); xvoff(VF0, 70); a("s_mov_b32 s70, 17"); xvoff(VF1, 70)
    a("K1_att_w7d:")
    vm = Q(63); lg = Q(15)
    def groups(gm):
        c, hf = gm >> 1, gm & 1
        wb = (gm % NW) * WSL; xb = XB + (c % NX) * XSL + hf * 9216
        g1 = ["s_add_u32 m0, s66, %d" % wb, "s_add_u32 s68, s%d, %d" % (40 + c, hf * 122880), "buffer_load_dwordx4 v%d, s[20:23], s68 offen lds" % VW0]
        g2 = ["s_add_u32 s69, s66, %d" % (wb + 8192), "s_cmp_eq_u32 s32, 7", "s_cselect_b32 m0, %d, s69" % (xb + 8192), "s_cselect_b32 s68, s%d, s68" % (50 + c),
              "buffer_load_dwordx4 v%d, s[72:75], s68 offen lds" % (VF1 if hf else VF0)]
        g3 = ["s_add_u32 m0, s66, %d" % xb, "s_nop 0", "buffer_load_dwordx4 v%d, s[16:19], s%d offen lds" % (VX1 if hf else VX0, 50 + c)]
        return [(g1, ("g", gm)), (g2, ("g", gm)), (g3, ("g", gm))]
    def emit_dma(g):
        for s in g[0]: a(s)
        vm.issue(g[1])
    for gm in range(5):
        for g in groups(gm): emit_dma(g)
    a("s_and_b32 s68, s32, 3"); a("s_lshr_b32 s69, s32, 2")
    a("v_lshrrev_b32 v%d, 2, v2" % TT); a("v_mul_u32_u24 v%d, 480, v%d" % (TT, TT)); a("v_and_b32 v%d, 3, v2" % (TT + 1)); a("v_lshl_add_u32 v%d, v%d, 3, v%d" % (TT, TT + 1, TT))
    a("s_lshl_b32 s70, s68, 7"); a("s_lshl_b32 s71, s69, 6"); a("s_add_u32 s60, s70, s71"); a("s_xor_b32 s61, s60, 64")
    a("v_add_u32 v%d, s60, v%d" % (VWR[0], TT)); a("v_add_u32 v%d, %d, v%d" % (VWR[1], 3 * WSL, VWR[0]))
    a("v_add_u32 v%d, s61, v%d" % (VWR[2], TT)); a("v_add_u32 v%d, %d, v%d" % (VWR[3], 3 * WSL, VWR[2]))
    a("v_bfe_u32 v%d, v2, 1, 3" % TT); a("v_lshrrev_b32 v%d, 4, v2" % (TT + 1)); a("v_xor_b32 v%d, v%d, v%d" % (TT, TT, TT + 1)); a("v_lshlrev_b32 v%d, 4, v%d" % (TT, TT))
    a("v_and_b32 v%d, 15, v2" % (TT + 1)); a("v_lshl_add_u32 v%d, v%d, 7, v%d" % (TT, TT + 1, TT))
    a("v_add_u32 v%d, %d, v%d" % (VXR[2], XB, TT)); a("v_xor_b32 v%d, 64, v%d" % (VXR[3], VXR[2]))
    a("s_lshl_b32 s70, s69, 13"); a("s_add_u32 s70, s70, 2048")
    a("v_add_u32 v%d, s70, v%d" % (VXR[0], VXR[2])); a("v_add_u32 v%d, s70, v%d" % (VXR[1], VXR[3]))
    def reads(s_):
        out = []; fb = FR[s_ % 2]; pos = s_ % NW; c = s_ >> 1; kh = s_ & 1
        xo = (c % NX) * XSL
        def xr(u): return ("ds_read_b128 v[%d:%d], v%d offset:%d" % (fb + 16 + 4 * u, fb + 19 + 4 * u, VXR[kh] if u < 4 else VXR[2 + kh], xo + (2048 * u if u < 4 else 0)))
        def wr(t, tt): return ("ds_read_b64_tr_b16 v[%d:%d], v%d offset:%d" % (fb + 4 * t + 2 * tt, fb + 4 * t + 2 * tt + 1, VWR[2 * (t >> 1) + (1 if pos >= 3 else 0)], (pos % 3) * WSL + 7680 * tt + 32 * (t & 1)))
        for t in range(4): out += [wr(t, 0), wr(t, 1), xr(t)]
        out.append(xr(4))
        return out
    wait(a, vm=vm.need(("g", 1))); a("s_barrier")
    stamp(a, st, 1)
    for r in reads(0): a(r)
    for s_ in range(20):
        fb = FR[s_ % 2]
        mf = []
        for t in range(4):
            for u in range(4): mf.append((ACC + (t * 4 + u) * 4, t, u))
            if t < 2: mf.append((ACC + 64 + 4 * t, t, 4))
        a("s_waitcnt lgkmcnt(0)")
        rq = []; dq = []
        for i, (c, t, u) in enumerate(mf):
            a("v_mfma_f32_16x16x32_bf16 v[%d:%d], v[%d:%d], v[%d:%d], %s" % (c, c + 3, fb + 4 * t, fb + 4 * t + 3, fb + 16 + 4 * u, fb + 19 + 4 * u, "0" if s_ == 0 else "v[%d:%d]" % (c, c + 3)))
            if i == 1 and s_ < 19:
                wait(a, vm=vm.need(("g", (s_ + 1) | 1))); a("s_barrier")
                rq = reads(s_ + 1)
                if s_ + 5 < 20: dq = groups(s_ + 5)
            if rq: a(rq.pop(0))
            elif dq: emit_dma(dq.pop(0))
        assert not rq and not dq
    stamp(a, st, 2)
    a("v_and_b32 v%d, 15, v2" % TT); a("v_mul_u32_u24 v%d, %d, v%d" % (TT, RS, TT)); a("v_lshrrev_b32 v%d, 4, v2" % (TT + 1)); a("v_lshl_add_u32 v%d, v%d, 3, v%d" % (TT, TT + 1, TT))
    a("v_add_u32 v%d, s60, v%d" % (TT + 2, TT))
    a("s_lshr_b32 s69, s32, 2"); a("s_mul_i32 s70, s69, %d" % (64 * RS)); a("s_add_u32 s70, s70, %d" % (16 * RS))
    a("v_add_u32 v%d, s70, v%d" % (TT + 3, TT + 2)); a("s_sub_u32 s71, s61, s60"); a("v_add_u32 v%d, s71, v%d" % (TT + 4, TT + 3))
    a("s_barrier")
    def wr_tile(t, u):
        c = ACC + (t * 4 + u) * 4 if u < 4 else ACC + 64 + 4 * t
        a("v_cvt_pk_bf16_f32 v%d, v%d, v%d" % (c, c, c + 1)); a("v_cvt_pk_bf16_f32 v%d, v%d, v%d" % (c + 1, c + 2, c + 3))
        vb = (TT + 3 if t < 2 else TT + 4) if u < 4 else TT + 2
        a("ds_write_b64 v%d, v[%d:%d] offset:%d" % (vb, c, c + 1, (16 * RS * u if u < 4 else 0) + 32 * (t & 1)))
    for t in (0, 2):
        for u in range(5 if t < 2 else 4): wr_tile(t, u)
    a("s_cmp_eq_u32 s32, 7"); a("s_cbranch_scc1 K1_att_s1")
    for u in range(5): wr_tile(1, u)
    a("K1_att_s1:")
    a("s_cmp_eq_u32 s32, 3"); a("s_cbranch_scc1 K1_att_s3")
    for u in range(4): wr_tile(3, u)
    a("K1_att_s3:")
    AQ, AV, VI = TT, TT + 1, TT + 2
    def rowaddr(dst, hh, bq, par, i):
        a("v_bfe_u32 v%d, v2, %d, 1" % (TT + 8, bq)); a("v_lshlrev_b32 v%d, 3, v%d" % (TT + 8, TT + 8))
        a("v_bfe_u32 v%d, v2, %d, 1" % (TT + 9, par)); a("v_add_u32 v%d, v%d, v%d" % (TT + 8, TT + 8, TT + 9))
        a("v_bfe_u32 v%d, v2, %d, 2" % (TT + 9, i)); a("v_lshl_add_u32 v%d, v%d, 1, v%d" % (TT + 8, TT + 9, TT + 8))
        a("v_mul_u32_u24 v%d, %d, v%d" % (TT + 10, RS, TT + 8))
        a("v_bfe_u32 v%d, v2, %d, 2" % (TT + 9, hh)); a("v_mul_u32_u24 v%d, 40, v%d" % (TT + 9, TT + 9))
        a("v_add3_u32 v%d, v%d, v%d, s70" % (dst, TT + 10, TT + 9))
    a("s_mul_i32 s70, s32, %d" % (16 * RS))
    rowaddr(AV, 0, 4, 5, 2)
    rowaddr(AQ, 2, 4, 5, 0)
    a("v_and_b32 v%d, 3, v2" % VI)
    SO = TT + 12
    a("s_mul_i32 s71, s37, 20"); a("v_lshrrev_b32 v%d, 3, v%d" % (TT + 9, TT + 9)); a("v_add_u32 v%d, s71, v%d" % (TT + 9, TT + 9))
    for dp in range(5):
        a("v_add_u32 v%d, %d, v%d" % (TT + 10, dp, TT + 9))
        a("v_lshrrev_b32 v%d, 3, v%d" % (TT + 11, TT + 10)); a("v_lshlrev_b32 v%d, 12, v%d" % (TT + 11, TT + 11))
        a("v_lshl_add_u32 v%d, v%d, 4, v%d" % (TT + 11, TT + 8, TT + 11))
        a("v_bfe_u32 v%d, v%d, 1, 2" % (SO + dp, TT + 10)); a("v_lshl_add_u32 v%d, v%d, 8, v%d" % (TT + 11, SO + dp, TT + 11))
        a("v_and_b32 v%d, 1, v%d" % (TT + 10, TT + 10)); a("v_lshl_add_u32 v%d, v%d, 3, v%d" % (SO + dp, TT + 10, TT + 11))
    a("s_lshl_b32 s71, s36, 1"); a("s_lshr_b32 s69, s32, 2"); a("s_add_u32 s71, s71, s69"); a("s_mul_i32 s71, s71, %d" % (68 * 4096))
    a("s_and_b32 s69, s32, 3"); a("s_lshl_b32 s69, s69, 10"); a("s_add_u32 s71, s71, s69")
    if ACT_OFF: a("s_add_u32 s71, s71, %d" % ACT_OFF)
    for k in range(1, 4): a("v_cmp_gt_u32 s[%d:%d], %d, v%d" % (60 + 2 * k, 61 + 2 * k, k, VI))
    a("s_waitcnt lgkmcnt(0)"); a("s_barrier")
    QR = 16; KR = 26; VR = 56; S = 88; O = 100; P = 120; Z = 128
    for dp in range(5): a("ds_read_b64 v[%d:%d], v%d offset:%d" % (QR + 2 * dp, QR + 2 * dp + 1, AQ, 16 * RS + 8 * dp)); lg.issue(("q", dp))
    for kb in range(3):
        for dp in range(5):
            a("ds_read_b64 v[%d:%d], v%d offset:%d" % (KR + 10 * kb + 2 * dp, KR + 10 * kb + 2 * dp + 1, AQ, 8 * kb * RS + 160 + 8 * dp)); lg.issue(("k", kb, dp))
    vq = [(kb, dp) for dp in range(5) for kb in range(3)]
    for kb in range(3):
        wait(a, lg=lg.need(("k", kb, 4)))
        for _ in range(5):
            k2, d2 = vq.pop(0)
            a("ds_read_b64_tr_b16 v[%d:%d], v%d offset:%d" % (VR + 10 * k2 + 2 * d2, VR + 10 * k2 + 2 * d2 + 1, AV, 8 * k2 * RS + 320 + 8 * d2)); lg.issue(("v", k2, d2))
    for dp in range(5):
        for kb in range(3):
            a("v_mfma_f32_4x4x4_16b_bf16 v[%d:%d], v[%d:%d], v[%d:%d], %s" % (S + 4 * kb, S + 4 * kb + 3, KR + 10 * kb + 2 * dp, KR + 10 * kb + 2 * dp + 1, QR + 2 * dp, QR + 2 * dp + 1,
                                                                             "0" if dp == 0 else "v[%d:%d]" % (S + 4 * kb, S + 4 * kb + 3)))
    a("s_nop 4")
    a("s_or_b32 s69, s36, s32"); a("s_cmp_lg_u32 s69, 0"); a("s_cbranch_scc1 K1_att_nomask")
    a("v_lshlrev_b32 v%d, 1, v%d" % (Z, VI)); a("v_sub_u32 v%d, v%d, v%d" % (Z, TT + 8, Z))
    a("v_mov_b32 v%d, 0xff800000" % (Z + 1))
    for k in range(1, 8):
        a("v_cmp_gt_u32 vcc, %d, v%d" % (16 - 2 * k, Z)); a("s_nop 1"); a("v_cndmask_b32 v%d, v%d, v%d, vcc" % (S + k, S + k, Z + 1))
    a("K1_att_nomask:")
    for k in range(1, 4): a("v_cndmask_b32 v%d, v%d, v%d, s[%d:%d]" % (S + k, S + k + 8, S + k, 60 + 2 * k, 61 + 2 * k))
    a("v_max3_f32 v%d, v%d, v%d, v%d" % (Z, S + 1, S + 2, S + 3)); a("v_max3_f32 v%d, v%d, v%d, v%d" % (Z + 1, S + 4, S + 5, S + 6))
    a("v_max3_f32 v%d, v%d, v%d, v%d" % (Z, Z, S + 7, S + 8)); a("v_max_f32 v%d, v%d, v%d" % (Z, Z, Z + 1))
    a("s_mov_b32 s69, %s" % f2h(20 ** -0.5 * 1.4426950408889634))
    a("v_mul_f32 v%d, s69, v%d" % (Z, Z))
    for k in range(1, 9): a("v_fma_f32 v%d, v%d, s69, -v%d" % (S + k, S + k, Z))
    for k in range(1, 9): a("v_exp_f32 v%d, v%d" % (S + k, S + k))
    a("v_add_f32 v%d, v%d, v%d" % (Z, S + 1, S + 2)); a("v_add_f32 v%d, v%d, v%d" % (Z + 1, S + 3, S + 4)); a("v_add_f32 v%d, v%d, v%d" % (Z + 2, S + 5, S + 6)); a("v_add_f32 v%d, v%d, v%d" % (Z + 3, S + 7, S + 8))
    a("v_add_f32 v%d, v%d, v%d" % (Z, Z, Z + 1)); a("v_add_f32 v%d, v%d, v%d" % (Z + 2, Z + 2, Z + 3)); a("v_add_f32 v%d, v%d, v%d" % (Z, Z, Z + 2))
    a("v_rcp_f32 v%d, v%d" % (Z, Z)); a("v_mov_b32 v%d, 0" % S)
    for k in range(1, 9): a("v_mul_f32 v%d, v%d, v%d" % (S + k, S + k, Z))
    for k in range(1, 4):
        a("v_cndmask_b32 v%d, v%d, 0, s[%d:%d]" % (S + k + 8, S + k, 60 + 2 * k, 61 + 2 * k))
        a("v_cndmask_b32 v%d, 0, v%d, s[%d:%d]" % (S + k, S + k, 60 + 2 * k, 61 + 2 * k))
    for j in range(6): a("v_cvt_pk_bf16_f32 v%d, v%d, v%d" % (P + j, S + 2 * j, S + 2 * j + 1))
    a("s_waitcnt lgkmcnt(0)"); a("s_nop 0")
    for kb in range(3):
        for dp in range(5):
            a("v_mfma_f32_4x4x4_16b_bf16 v[%d:%d], v[%d:%d], v[%d:%d], %s" % (O + 4 * dp, O + 4 * dp + 3, VR + 10 * kb + 2 * dp, VR + 10 * kb + 2 * dp + 1, P + 2 * kb, P + 2 * kb + 1,
                                                                             "0" if kb == 0 else "v[%d:%d]" % (O + 4 * dp, O + 4 * dp + 3)))
    a("s_nop 4")
    for dp in range(5):
        a("v_cvt_pk_bf16_f32 v%d, v%d, v%d" % (O + 4 * dp, O + 4 * dp, O + 4 * dp + 1)); a("v_cvt_pk_bf16_f32 v%d, v%d, v%d" % (O + 4 * dp + 1, O + 4 * dp + 2, O + 4 * dp + 3))
        a("buffer_store_dwordx2 v[%d:%d], v%d, s[28:31], s71 offen" % (O + 4 * dp, O + 4 * dp + 1, SO + dp))
    stamp(a, st, 3)
    if st: a("s_waitcnt vmcnt(0)")
    stamp(a, st, 4)

def gen_k1(st=False, rot=1, st_slot0=0, st_total=5):
    a = Asm()
    k1_prologue(a, st, rot)
    k1_ffn(a, st)
    k1_att(a, st)
    a("K1_fin:")
    stamp_flush(a, st, 5, 28, 2, st_slot0, st_total)
    a("K1_end:"); a("s_endpgm")
    return ("k1_kernel", a.text(), 256, 512, 135168, 256, 100, None)

HEADER = open("cdna_kernels/%s.s.ref" % NAME).read().split("; Override")[0] if __import__("os").path.exists("cdna_kernels/%s.s.ref" % NAME) else ""
if __name__ == "__main__":
    st = int(sys.argv[1]); rot = int(sys.argv[2]); out = sys.argv[3]
    ks = [gen_k0(), gen_k1(bool(st), rot, 0, 9), gen_k2(bool(st), 4, 5, 9, rot_on=0)]
    open(out, "w").write(module(ks, HEADER))
```

```python
import sys
from asmlib import *
from gen import *
XN_OFF = 24 << 20
XBYTES = 2621440

class Q:
    def __init__(s, cap): s.q = []; s.cap = cap
    def issue(s, tag): s.q.append(tag)
    def need(s, *tags):
        idx = -1
        for i, t in enumerate(s.q):
            if t in tags: idx = i
        if idx < 0: return None
        n = min(len(s.q) - 1 - idx, s.cap)
        s.q = s.q[len(s.q) - n:] if n else []
        return n
    def clear(s): s.q = []
def wait(a, vm=None, lg=None):
    p = []
    if vm is not None: p.append("vmcnt(%d)" % vm)
    if lg is not None: p.append("lgkmcnt(%d)" % lg)
    if p: a("s_waitcnt " + " ".join(p))

def bf16_round(a, v, t):
    a("v_cvt_pk_bf16_f32 v%d, v%d, v%d" % (v, v, v)); a("v_lshlrev_b32 v%d, 16, v%d" % (v, v))

def w2_pack_job(a, sjob, lds_base_s, V, srd_src, srd_ws, s_wo, s_wd, st):
    L = V
    a("s_lshr_b32 s%d, s%d, 1" % (st, sjob)); a("s_and_b32 s%d, s%d, 1" % (st + 1, sjob))
    a("s_sub_u32 s%d, s%d, 80" % (st + 2, st)); a("s_cmp_lt_u32 s%d, 80" % st)
    a("s_cselect_b32 s%d, s%d, s%d" % (st + 2, st, st + 2))
    a("s_cselect_b32 s%d, s%d, s%d" % (srd_src, s_wo, s_wd)); a("s_cselect_b32 s%d, s%d, s%d" % (srd_src + 1, s_wo + 1, s_wd + 1))
    a("s_cselect_b32 s%d, 0x%x, 0x%x" % (srd_src + 2, 819200, 819200));
    a("s_cselect_b32 s%d, 0, 0x118000" % (st + 3)); a("s_add_u32 s%d, s%d, s%d" % (srd_src + 2, srd_src + 2, st + 3))
    a("s_and_b32 s%d, s%d, 0xffff" % (srd_src + 1, srd_src + 1)); a("s_mov_b32 s%d, 0x00020000" % (srd_src + 3))
    a("s_mul_i32 s%d, s%d, 10240" % (st + 2, st + 2)); a("s_mul_i32 s%d, s%d, 640" % (st + 3, st + 1)); a("s_add_u32 s%d, s%d, s%d" % (st + 2, st + 2, st + 3))
    for i in range(5):
        a("v_add_u32 v%d, %d, v%d" % (V + 1, 64 * i, L)); a("v_mul_u32_u24 v%d, 1639, v%d" % (V + 2, V + 1)); a("v_lshrrev_b32 v%d, 16, v%d" % (V + 2, V + 2))
        a("v_mul_u32_u24 v%d, 640, v%d" % (V + 2, V + 2)); a("v_lshl_add_u32 v%d, v%d, 4, v%d" % (V + 2, V + 1, V + 2))
        a("s_add_u32 m0, s%d, %d" % (lds_base_s, 1024 * i)); a("s_nop 0")
        a("buffer_load_dwordx4 v%d, s[%d:%d], s%d offen lds" % (V + 2, srd_src, srd_src + 3, st + 2))
    a("v_lshrrev_b32 v%d, 4, v%d" % (V + 1, L)); a("v_mul_u32_u24 v%d, 160, v%d" % (V + 2, V + 1))
    a("v_bfe_u32 v%d, v%d, 2, 2" % (V + 3, L)); a("v_mul_u32_u24 v%d, 640, v%d" % (V + 3, V + 3)); a("v_add_u32 v%d, v%d, v%d" % (V + 2, V + 2, V + 3))
    a("v_and_b32 v%d, 3, v%d" % (V + 3, L)); a("v_mul_u32_u24 v%d, 40, v%d" % (V + 3, V + 3)); a("v_add3_u32 v%d, v%d, v%d, s%d" % (V + 2, V + 2, V + 3, lds_base_s))
    a("s_mov_b32 s%d, %d" % (st + 3, 68 * 5120)); a("v_mul_lo_u32 v%d, v%d, s%d" % (V + 1, V + 1, st + 3))
    a("v_and_b32 v%d, 15, v%d" % (V + 3, L)); a("v_lshl_add_u32 v%d, v%d, 4, v%d" % (V + 1, V + 3, V + 1))
    a("s_mul_i32 s%d, s%d, 272" % (st + 3, st + 1)); a("s_lshr_b32 s%d, s%d, 2" % (st + 4, st)); a("s_add_u32 s%d, s%d, s%d" % (st + 3, st + 3, st + 4))
    a("s_mul_i32 s%d, s%d, 5120" % (st + 3, st + 3)); a("s_and_b32 s%d, s%d, 3" % (st + 4, st)); a("s_lshl_b32 s%d, s%d, 8" % (st + 4, st + 4))
    a("s_add_u32 s%d, s%d, s%d" % (st + 3, st + 3, st + 4)); a("s_add_u32 s%d, s%d, %d" % (st + 3, st + 3, W2P_OFF)); a("s_add_u32 s%d, s%d, 4096" % (st + 4, st + 3))
    a("s_waitcnt vmcnt(0)")
    for i in range(5):
        for tt in range(2):
            a("ds_read_b64_tr_b16 v[%d:%d], v%d offset:%d" % (V + 4 + 4 * i + 2 * tt, V + 5 + 4 * i + 2 * tt, V + 2, 8 * i + 2560 * tt))
    for i in range(5):
        a("s_waitcnt lgkmcnt(%d)" % (8 - 2 * i))
        a("buffer_store_dwordx4 v[%d:%d], v%d, s[%d:%d], s%d offen offset:%d" % (V + 4 + 4 * i, V + 7 + 4 * i, V + 1, srd_ws, srd_ws + 3, st + 3 if i < 4 else st + 4, 1024 * (i % 4)))

def gen_k0(st=False):
    a = Asm()
    a("s_cmp_ge_u32 s2, 256"); a("s_cbranch_scc1 K0_end")
    stamp(a, st, 0)
    a("s_load_dwordx2 s[4:5], s[0:1], 0"); a("s_load_dwordx2 s[6:7], s[0:1], 16"); a("s_load_dwordx2 s[8:9], s[0:1], 48"); a("s_load_dwordx2 s[12:13], s[0:1], 72")
    a("v_lshrrev_b32 v1, 6, v0"); a("v_and_b32 v40, 63, v0"); a("v_readfirstlane_b32 s32, v1")
    a("s_waitcnt lgkmcnt(0)")
    a.srd(16, 4, XBYTES); a.srd(28, 12, WS_BYTES)
    a("v_lshrrev_b32 v2, 5, v0"); a("v_mul_u32_u24 v2, 1280, v2"); a("v_and_b32 v3, 31, v0"); a("v_lshl_add_u32 v2, v3, 3, v2")
    a("s_mul_i32 s33, s2, %d" % (8 * 1280))
    for i in range(5): a("buffer_load_dwordx2 v[%d:%d], v2, s[16:19], s33 offen offset:%d" % (4 + 2 * i, 5 + 2 * i, 256 * i))
    a("s_waitcnt vmcnt(0)")
    for i in range(10):
        a("v_lshlrev_b32 v%d, 16, v%d" % (16 + 2 * i, 4 + i)); a("v_and_b32 v%d, 0xffff0000, v%d" % (17 + 2 * i, 4 + i))
    a("v_mov_b32 v36, 0")
    for i in range(20): a("v_add_f32 v36, v36, v%d" % (16 + i))
    def red(v):
        for o in (0x041F, 0x081F, 0x101F, 0x201F, 0x401F):
            a("ds_swizzle_b32 v38, v%d offset:0x%x" % (v, o)); a("s_waitcnt lgkmcnt(0)"); a("v_add_f32 v%d, v%d, v38" % (v, v))
    red(36)
    a("v_mul_f32 v36, 0x3acccccd, v36")
    a("v_mov_b32 v37, 0")
    for i in range(20): a("v_sub_f32 v39, v%d, v36" % (16 + i)); a("v_fmac_f32 v37, v39, v39")
    red(37)
    a("v_mul_f32 v37, 0x3acccccd, v37")
    bf16_round(a, 36, 0); bf16_round(a, 37, 0)
    a("v_add_f32 v37, 0x3727c5ac, v37"); bf16_round(a, 37, 0)
    a("v_sqrt_f32 v37, v37"); a("s_nop 0"); bf16_round(a, 37, 0)
    a("v_rcp_f32 v37, v37"); a("s_nop 0")
    for i in range(20):
        a("v_sub_f32 v%d, v%d, v36" % (16 + i, 16 + i)); bf16_round(a, 16 + i, 0); a("v_mul_f32 v%d, v%d, v37" % (16 + i, 16 + i))
    for i in range(10): a("v_cvt_pk_bf16_f32 v%d, v%d, v%d" % (4 + i, 16 + 2 * i, 17 + 2 * i))
    a("s_add_u32 s33, s33, %d" % XN_OFF)
    for i in range(5): a("buffer_store_dwordx2 v[%d:%d], v2, s[28:31], s33 offen offset:%d" % (4 + 2 * i, 5 + 2 * i, 256 * i))
    stamp_flush(a, st, 1, 28, 2, 9, 10)
    a("s_lshl_b32 s34, s2, 2"); a("s_add_u32 s34, s34, s32")
    a("s_cmp_ge_u32 s34, 544"); a("s_cbranch_scc1 K0_end")
    a("s_mul_i32 s35, s32, 5120")
    w2_pack_job(a, 34, 35, 40, 20, 28, 6, 8, 40)
    a("K0_end:"); a("s_endpgm")
    return ("k0_kernel", a.text(), 256, 256, 20480, 72, 96, None)

GA = -2.0 * 0.7978845608028654 * 1.4426950408889634
GB = GA * 0.044715
import struct
def f2h(x): return "0x%08x" % struct.unpack("<I", struct.pack("<f", x))[0]

def k1_prologue(a, st, rot):
    a("s_cmp_ge_u32 s2, 256"); a("s_cbranch_scc1 K1_end")
    stamp(a, st, 0)
    a("s_load_dwordx2 s[6:7], s[0:1], 8"); a("s_load_dwordx4 s[8:11], s[0:1], 32"); a("s_load_dwordx2 s[12:13], s[0:1], 72")
    a("v_lshrrev_b32 v1, 6, v0"); a("v_and_b32 v2, 63, v0"); a("v_readfirstlane_b32 s32, v1")
    a("s_and_b32 s33, s2, 7"); a("s_lshr_b32 s34, s2, 3")
    a("s_and_b32 s35, s34, 7"); a("s_lshr_b32 s34, s34, 3")
    a("s_and_b32 s36, s33, 1"); a("s_lshl_b32 s36, s36, 3"); a("s_add_u32 s36, s36, s35")
    a("s_and_b32 s37, s33, 6"); a("s_and_b32 s68, s34, 1"); a("s_add_u32 s37, s37, s68")
    if rot:
        a("s_mul_i32 s68, s35, 30"); a("s_lshr_b32 s68, s68, 3")
        a("s_mul_i32 s39, s68, 205"); a("s_lshr_b32 s39, s39, 11")
        a("s_mul_i32 s38, s39, 10"); a("s_sub_u32 s38, s68, s38")
        a("s_mul_i32 s68, s34, 5"); a("s_lshr_b32 s68, s68, 1"); a("s_add_u32 s38, s38, s68")
        a("s_sub_u32 s68, s38, 10"); a("s_cmp_ge_u32 s38, 10"); a("s_cselect_b32 s38, s68, s38")
    else:
        a("s_mov_b32 s38, 0"); a("s_mov_b32 s39, 0")
    a("s_waitcnt lgkmcnt(0)")
    a("s_add_u32 s4, s12, %d" % XN_OFF); a("s_addc_u32 s5, s13, 0")
    a.srd(16, 4, XBYTES); a.srd(28, 12, WS_BYTES)
    for j in range(10):
        a("s_lshl_b32 s%d, s38, 7" % (50 + j))
        if j < 9: a("s_add_u32 s38, s38, 1"); a("s_cmp_eq_u32 s38, 10"); a("s_cselect_b32 s38, 0, s38")
    a("s_cmp_ge_u32 s34, 2"); a("s_cbranch_scc1 K1_att")

def k1_ffn(a, st, fill_per_gap=3):
    SL = 16896; NS = 8
    a.srd(20, 8, 1966080); a.srd(24, 10, 1966080)
    for j in range(10): a("s_mul_i32 s%d, s%d, 1536" % (40 + j, 50 + j))
    a("s_and_b32 s68, s32, 3"); a("s_lshr_b32 s69, s32, 2")
    a("s_lshl_b32 s70, s36, 1"); a("s_lshr_b32 s71, s68, 1"); a("s_add_u32 s70, s70, s71"); a("s_mul_i32 s70, s70, 68")
    a("s_mul_i32 s71, s37, 6"); a("s_add_u32 s70, s70, s71"); a("s_add_u32 s70, s70, s69"); a("s_add_u32 s70, s70, 20"); a("s_lshl_b32 s70, s70, 12")
    a("s_and_b32 s71, s68, 1"); a("s_lshl_b32 s71, s71, 11"); a("s_add_u32 s70, s70, s71")
    if ACT_OFF: a("s_add_u32 s70, s70, %d" % ACT_OFF)
    for p in range(3):
        a("s_lshl_b32 s%d, s39, 7" % (60 + p)); a("s_lshl_b32 s71, s39, 13"); a("s_add_u32 s%d, s70, s71" % (63 + p))
        if p < 2: a("s_add_u32 s39, s39, 1"); a("s_cmp_eq_u32 s39, 3"); a("s_cselect_b32 s39, 0, s39")
    a("s_lshr_b32 s66, s32, 1"); a("s_lshl_b32 s66, s66, 2"); a("s_and_b32 s71, s32, 1"); a("s_add_u32 s66, s66, s71"); a("s_mul_i32 s66, s66, 1056")
    a("s_mul_i32 s67, s32, 1040")
    VWO, VXO, VWR, VWR2, VXR, VXR2, VST, VA_, VB_, VS2 = 3, 4, 5, 6, 7, 8, 9, 10, 11, 12
    T = [13, 14, 15, 1]
    WF = 16; ACC = [32, 64]; X = 96
    a("v_lshrrev_b32 v13, 4, v2"); a("v_lshlrev_b32 v13, 2, v13")
    a("v_bfe_u32 v14, v2, 3, 1"); a("v_add_u32 v13, v13, v14")
    a("s_lshr_b32 s71, s32, 1"); a("s_lshl_b32 s71, s71, 4"); a("s_and_b32 s72, s32, 1"); a("s_lshl_b32 s72, s72, 1"); a("s_add_u32 s71, s71, s72")
    a("v_add_u32 v13, s71, v13"); a("v_mul_u32_u24 v13, 3072, v13")
    a("v_and_b32 v14, 7, v2"); a("v_lshlrev_b32 v14, 4, v14")
    a("s_mul_i32 s71, s37, 384"); a("v_add3_u32 v%d, v13, v14, s71" % VWO)
    a("v_lshrrev_b32 v13, 4, v2"); a("v_lshlrev_b32 v13, 5, v13"); a("v_bfe_u32 v15, v2, 3, 1"); a("v_add_u32 v13, v13, v15")
    a("s_lshl_b32 s71, s32, 1"); a("s_lshl_b32 s72, s36, 7"); a("s_add_u32 s71, s71, s72")
    a("v_add_u32 v13, s71, v13"); a("v_mul_u32_u24 v13, 1280, v13"); a("v_add_u32 v%d, v13, v14" % VXO)
    slots = []
    for j in range(10): slots += [("X", 0, j), ("W", 0, j)]
    for p in (1, 2):
        for j in range(10): slots.append(("W", p, j))
    vm = Q(63); lg = Q(15)
    def dma_groups(n):
        t, p, j = slots[n]; base = (n % NS) * SL
        if t == "X":
            g1 = ["s_add_u32 m0, s67, %d" % base, "s_add_u32 s69, s%d, 20480" % (50 + j), "buffer_load_dwordx4 v%d, s[16:19], s%d offen lds" % (VXO, 50 + j)]
            g2 = ["s_add_u32 m0, s67, %d" % (base + 8 * 1040), "s_nop 0", "buffer_load_dwordx4 v%d, s[16:19], s69 offen lds" % VXO]
        else:
            g1 = ["s_add_u32 m0, s66, %d" % base, "s_add_u32 s68, s%d, s%d" % (40 + j, 60 + p), "buffer_load_dwordx4 v%d, s[20:23], s68 offen lds" % VWO]
            g2 = ["s_add_u32 m0, s66, %d" % (base + 2112), "s_nop 0", "buffer_load_dwordx4 v%d, s[24:27], s68 offen lds" % VWO]
        return [(g1, ("slot", n)), (g2, ("slot", n))]
    def emit_dma(g):
        for s in g[0]: a(s)
        vm.issue(g[1])
    for n in range(NS):
        for g in dma_groups(n): emit_dma(g)
    issued = NS
    a("v_bfe_u32 v13, v2, 4, 1"); a("v_lshlrev_b32 v13, 1, v13"); a("v_bfe_u32 v14, v2, 3, 1"); a("v_add_u32 v13, v13, v14"); a("v_mul_u32_u24 v13, 1056, v13")
    a("v_lshrrev_b32 v14, 5, v2"); a("v_lshlrev_b32 v14, 2, v14"); a("v_bfe_u32 v15, v2, 2, 1"); a("v_add_u32 v14, v14, v15"); a("v_lshl_add_u32 v13, v14, 7, v13")
    a("v_and_b32 v14, 1, v2"); a("v_lshlrev_b32 v14, 4, v14"); a("v_bfe_u32 v15, v2, 1, 1"); a("v_lshl_add_u32 v14, v15, 3, v14")
    a("s_lshr_b32 s71, s32, 2"); a("s_lshl_b32 s71, s71, 6")
    a("v_add3_u32 v%d, v13, v14, s71" % VWR); a("v_add_u32 v%d, %d, v%d" % (VWR2, 4 * SL, VWR))
    a("v_bfe_u32 v13, v2, 1, 4"); a("v_mul_u32_u24 v13, 1040, v13"); a("v_and_b32 v14, 1, v2"); a("v_lshl_add_u32 v13, v14, 7, v13")
    a("v_lshrrev_b32 v14, 5, v2"); a("v_lshl_add_u32 v13, v14, 4, v13")
    a("s_and_b32 s71, s32, 3"); a("s_lshl_b32 s71, s71, 8"); a("v_add_u32 v%d, s71, v13" % VXR); a("v_add_u32 v%d, %d, v%d" % (VXR2, 4 * SL, VXR))
    a("v_bfe_u32 v13, v2, 4, 1"); a("v_lshlrev_b32 v13, 10, v13"); a("v_lshrrev_b32 v14, 5, v2"); a("v_lshl_add_u32 v13, v14, 8, v13")
    a("v_and_b32 v14, 15, v2"); a("v_lshl_add_u32 v%d, v14, 4, v13" % VST)
    a("v_mov_b32 v%d, %s" % (VA_, f2h(GA))); a("v_mov_b32 v%d, %s" % (VB_, f2h(GB))); a("v_mov_b32 v%d, 1.0" % VS2)
    def need(s): return 2 * s + 1 if s < 10 else 10 + s
    def wreads(g):
        s_, m = g // 8, g % 8; n = need(s_); pos = n % NS
        vb = VWR if pos < 4 else VWR2; off = (pos % 4) * SL + 4 * (m >> 1) * 1056 + 32 * (m & 1)
        b = WF + (g % 4) * 4
        for t in range(2):
            a("ds_read_b64_tr_b16 v[%d:%d], v%d offset:%d" % (b + 2 * t, b + 2 * t + 1, vb, off + 256 * t)); lg.issue(("w", g))
    def xreads(j):
        pos = (2 * j) % NS; vb = VXR if pos < 4 else VXR2
        for s in range(4):
            r = X + (4 * j + s) * 4
            a("ds_read_b128 v[%d:%d], v%d offset:%d" % (r, r + 3, vb, (pos % 4) * SL + 32 * s)); lg.issue(("x", j, s))
    def epilogue(p):
        out = []; base = ACC[p % 2]
        for tile in range(2):
            c = base + 16 * tile
            for i in range(0, 8, 2):
                G = [c + i, c + i + 1]; U = [c + 8 + i, c + 9 + i]; t = T[0:2]
                seq = [lambda k: "v_mul_f32 v%d, v%d, v%d" % (t[k], G[k], G[k]),
                       lambda k: "v_fma_f32 v%d, v%d, v%d, v%d" % (t[k], t[k], VB_, VA_),
                       lambda k: "v_mul_f32 v%d, v%d, v%d" % (t[k], t[k], G[k]),
                       lambda k: "v_exp_f32 v%d, v%d" % (t[k], t[k]),
                       lambda k: "v_mul_f32 v%d, v%d, v%d" % (G[k], G[k], U[k]),
                       lambda k: "v_fma_f32 v%d, v%d, v%d, v%d" % (t[k], t[k], VS2, VS2),
                       lambda k: "v_rcp_f32 v%d, v%d" % (t[k], t[k])]
                for f in seq:
                    for k in range(2): out.append((f(k), None))
                out.append(("v_mul_f32 v%d, v%d, v%d" % (G[0], G[0], t[0]), None))
                out.append(("v_mul_f32 v%d, v%d, v%d" % (G[1], G[1], t[1]), None))
                out.append(("v_cvt_pk_bf16_f32 v%d, v%d, v%d" % (c + 8 + i // 2, G[0], G[1]), None))
            out.append(("buffer_store_dwordx4 v[%d:%d], v%d, s[28:31], s%d offen offset:%d" % (c + 8, c + 11, VST, 63 + p, 512 * tile), "st"))
        return out
    wait(a, vm=vm.need(("slot", need(0)))); a("s_barrier")
    stamp(a, st, 1)
    xreads(0)
    for g in range(4): wreads(g)
    dq = []; fq = []
    for g in range(240):
        s_, m = g // 8, g % 8; p, j = s_ // 10, s_ % 10
        if g % 80 == 3 and p >= 1: fq = epilogue(p - 1)
        wait(a, lg=lg.need(("w", g), ("x", j, m >> 1)))
        c = ACC[p % 2] + 16 * (m & 1); b = WF + (g % 4) * 4; xr = X + (4 * j + (m >> 1)) * 4
        a("v_mfma_f32_32x32x16_bf16 v[%d:%d], v[%d:%d], v[%d:%d], %s" % (c, c + 15, b, b + 3, xr, xr + 3, "0" if (j == 0 and m < 2) else "v[%d:%d]" % (c, c + 15)))
        g4 = g + 4
        if g4 < 240:
            if g4 % 8 == 0:
                s2 = g4 // 8
                while dq: emit_dma(dq.pop(0))
                wait(a, vm=vm.need(("slot", need(s2)))); a("s_barrier")
                while issued <= need(s2 - 1) + NS - 1 and issued < 40:
                    dq += dma_groups(issued); issued += 1
                wreads(g4)
                if s2 < 10: xreads(s2)
            else:
                wreads(g4)
                if dq: emit_dma(dq.pop(0))
        for _ in range(fill_per_gap):
            if fq:
                ins, tag = fq.pop(0); a(ins)
                if tag: vm.issue(tag)
        if g % 80 == 79: assert not fq
        if st and g == 79: stamp(a, st, 2)
    stamp(a, st, 3)
    a("s_nop 7"); a("s_nop 7")
    for ins, tag in epilogue(2): a(ins)
    if st: a("s_waitcnt vmcnt(0)")
    stamp(a, st, 4)
    a("s_branch K1_fin")

def k1_att(a, st):
    a("K1_att:")
    WSL = 15360; NW = 5; XB = NW * WSL; XSL = 18432; NX = 3
    RS = 496
    a.srd(20, 6, 2457600)
    for j in range(10): a("s_mul_i32 s%d, s%d, 1920" % (40 + j, 50 + j))
    a("s_cmp_eq_u32 s32, 7")
    for i in range(3): a("s_cselect_b32 s%d, s%d, s%d" % (72 + i, 16 + i, 20 + i))
    a("s_mov_b32 s75, 0x00020000")
    a("s_lshl_b32 s66, s32, 10")
    VW0, VF0, VF1, VX0, VX1 = 3, 4, 5, 6, 7
    VWR = [8, 9, 10, 11]
    VXR = [12, 13, 14, 15]
    ACC = 16; FR = [88, 124]; TT = 160
    def wvoff(dst, blk_add):
        a("s_lshl_b32 s68, s32, 6"); a("s_add_u32 s68, s68, %d" % blk_add); a("v_add_u32 v%d, s68, v2" % TT)
        a("v_mul_u32_u24 v%d, 2185, v%d" % (TT + 1, TT)); a("v_lshrrev_b32 v%d, 16, v%d" % (TT + 1, TT + 1))
        a("v_mul_u32_u24 v%d, 30, v%d" % (TT + 2, TT + 1)); a("v_sub_u32 v%d, v%d, v%d" % (TT + 2, TT, TT + 2))
        a("v_mul_u32_u24 v%d, 205, v%d" % (TT + 3, TT + 2)); a("v_lshrrev_b32 v%d, 11, v%d" % (TT + 3, TT + 3))
        a("v_mul_u32_u24 v%d, 1120, v%d" % (TT + 3, TT + 3)); a("v_lshl_add_u32 v%d, v%d, 4, v%d" % (TT + 3, TT + 2, TT + 3))
        a("v_bfe_u32 v%d, v%d, 2, 2" % (TT + 4, TT + 1)); a("v_lshlrev_b32 v%d, 3, v%d" % (TT + 4, TT + 4))
        a("v_bfe_u32 v%d, v%d, 4, 1" % (TT + 5, TT + 1)); a("v_lshl_add_u32 v%d, v%d, 2, v%d" % (TT + 4, TT + 5, TT + 4))
        a("v_and_b32 v%d, 3, v%d" % (TT + 5, TT + 1)); a("v_add_u32 v%d, v%d, v%d" % (TT + 4, TT + 4, TT + 5))
        a("v_mul_u32_u24 v%d, 3840, v%d" % (TT + 4, TT + 4)); a("s_mul_i32 s68, s37, 160")
        a("v_add3_u32 v%d, v%d, v%d, s68" % (dst, TT + 4, TT + 3))
    def xvoff(dst, sblk):
        a("s_lshl_b32 s68, s%d, 3" % sblk); a("s_lshl_b32 s69, s36, 7"); a("s_add_u32 s68, s68, s69"); a("s_sub_u32 s68, s68, 16")
        a("s_and_b32 s69, s%d, 1" % sblk); a("s_lshl_b32 s69, s69, 2")
        a("v_lshrrev_b32 v%d, 4, v2" % TT); a("v_add_u32 v%d, s69, v%d" % (TT, TT)); a("v_and_b32 v%d, 7, v2" % (TT + 1)); a("v_xor_b32 v%d, v%d, v%d" % (TT, TT, TT + 1))
        a("v_lshrrev_b32 v%d, 3, v2" % (TT + 1)); a("v_mul_u32_u24 v%d, 1280, v%d" % (TT + 1, TT + 1)); a("v_lshl_add_u32 v%d, v%d, 4, v%d" % (TT, TT, TT + 1))
        a("s_mul_i32 s69, s68, 1280"); a("s_cmp_lt_i32 s68, 0"); a("s_cselect_b32 s69, 0x7ff00000, s69")
        a("v_add_u32 v%d, s69, v%d" % (dst, TT))
    wvoff(VW0, 0)
    xvoff(VX0, 32)
    a("s_add_u32 s70, s32, 9"); xvoff(VX1, 70)
    a("s_cmp_eq_u32 s32, 7"); a("s_cbranch_scc1 K1_att_w7")
    wvoff(VF0, 512); a("v_mov_b32 v%d, v%d" % (VF1, VF0)); a("s_branch K1_att_w7d")
    a("K1_att_w7:")
    a("s_mov_b32 s70, 8"); xvoff(VF0, 70); a("s_mov_b32 s70, 17"); xvoff(VF1, 70)
    a("K1_att_w7d:")
    vm = Q(63); lg = Q(15)
    def groups(gm):
        c, hf = gm >> 1, gm & 1
        wb = (gm % NW) * WSL; xb = XB + (c % NX) * XSL + hf * 9216
        g1 = ["s_add_u32 m0, s66, %d" % wb, "s_add_u32 s68, s%d, %d" % (40 + c, hf * 122880), "buffer_load_dwordx4 v%d, s[20:23], s68 offen lds" % VW0]
        g2 = ["s_add_u32 s69, s66, %d" % (wb + 8192), "s_cmp_eq_u32 s32, 7", "s_cselect_b32 m0, %d, s69" % (xb + 8192), "s_cselect_b32 s68, s%d, s68" % (50 + c),
              "buffer_load_dwordx4 v%d, s[72:75], s68 offen lds" % (VF1 if hf else VF0)]
        g3 = ["s_add_u32 m0, s66, %d" % xb, "s_nop 0", "buffer_load_dwordx4 v%d, s[16:19], s%d offen lds" % (VX1 if hf else VX0, 50 + c)]
        return [(g1, ("g", gm)), (g2, ("g", gm)), (g3, ("g", gm))]
    def emit_dma(g):
        for s in g[0]: a(s)
        vm.issue(g[1])
    for gm in range(5):
        for g in groups(gm): emit_dma(g)
    a("s_and_b32 s68, s32, 3"); a("s_lshr_b32 s69, s32, 2")
    a("v_lshrrev_b32 v%d, 2, v2" % TT); a("v_mul_u32_u24 v%d, 480, v%d" % (TT, TT)); a("v_and_b32 v%d, 3, v2" % (TT + 1)); a("v_lshl_add_u32 v%d, v%d, 3, v%d" % (TT, TT + 1, TT))
    a("s_lshl_b32 s70, s68, 7"); a("s_lshl_b32 s71, s69, 6"); a("s_add_u32 s60, s70, s71"); a("s_xor_b32 s61, s60, 64")
    a("v_add_u32 v%d, s60, v%d" % (VWR[0], TT)); a("v_add_u32 v%d, %d, v%d" % (VWR[1], 3 * WSL, VWR[0]))
    a("v_add_u32 v%d, s61, v%d" % (VWR[2], TT)); a("v_add_u32 v%d, %d, v%d" % (VWR[3], 3 * WSL, VWR[2]))
    a("v_bfe_u32 v%d, v2, 1, 3" % TT); a("v_lshrrev_b32 v%d, 4, v2" % (TT + 1)); a("v_xor_b32 v%d, v%d, v%d" % (TT, TT, TT + 1)); a("v_lshlrev_b32 v%d, 4, v%d" % (TT, TT))
    a("v_and_b32 v%d, 15, v2" % (TT + 1)); a("v_lshl_add_u32 v%d, v%d, 7, v%d" % (TT, TT + 1, TT))
    a("v_add_u32 v%d, %d, v%d" % (VXR[2], XB, TT)); a("v_xor_b32 v%d, 64, v%d" % (VXR[3], VXR[2]))
    a("s_lshl_b32 s70, s69, 13"); a("s_add_u32 s70, s70, 2048")
    a("v_add_u32 v%d, s70, v%d" % (VXR[0], VXR[2])); a("v_add_u32 v%d, s70, v%d" % (VXR[1], VXR[3]))
    def reads(s_):
        out = []; fb = FR[s_ % 2]; pos = s_ % NW; c = s_ >> 1; kh = s_ & 1
        xo = (c % NX) * XSL
        def xr(u): return ("ds_read_b128 v[%d:%d], v%d offset:%d" % (fb + 16 + 4 * u, fb + 19 + 4 * u, VXR[kh] if u < 4 else VXR[2 + kh], xo + (2048 * u if u < 4 else 0)))
        def wr(t, tt): return ("ds_read_b64_tr_b16 v[%d:%d], v%d offset:%d" % (fb + 4 * t + 2 * tt, fb + 4 * t + 2 * tt + 1, VWR[2 * (t >> 1) + (1 if pos >= 3 else 0)], (pos % 3) * WSL + 7680 * tt + 32 * (t & 1)))
        for t in range(4): out += [wr(t, 0), wr(t, 1), xr(t)]
        out.append(xr(4))
        return out
    wait(a, vm=vm.need(("g", 1))); a("s_barrier")
    stamp(a, st, 1)
    for r in reads(0): a(r)
    for s_ in range(20):
        fb = FR[s_ % 2]
        mf = []
        for t in range(4):
            for u in range(4): mf.append((ACC + (t * 4 + u) * 4, t, u))
            if t < 2: mf.append((ACC + 64 + 4 * t, t, 4))
        a("s_waitcnt lgkmcnt(0)")
        rq = []; dq = []
        for i, (c, t, u) in enumerate(mf):
            a("v_mfma_f32_16x16x32_bf16 v[%d:%d], v[%d:%d], v[%d:%d], %s" % (c, c + 3, fb + 4 * t, fb + 4 * t + 3, fb + 16 + 4 * u, fb + 19 + 4 * u, "0" if s_ == 0 else "v[%d:%d]" % (c, c + 3)))
            if i == 1 and s_ < 19:
                wait(a, vm=vm.need(("g", (s_ + 1) | 1))); a("s_barrier")
                rq = reads(s_ + 1)
                if s_ + 5 < 20: dq = groups(s_ + 5)
            if rq: a(rq.pop(0))
            elif dq: emit_dma(dq.pop(0))
        assert not rq and not dq
    stamp(a, st, 2)
    a("v_and_b32 v%d, 15, v2" % TT); a("v_mul_u32_u24 v%d, %d, v%d" % (TT, RS, TT)); a("v_lshrrev_b32 v%d, 4, v2" % (TT + 1)); a("v_lshl_add_u32 v%d, v%d, 3, v%d" % (TT, TT + 1, TT))
    a("v_add_u32 v%d, s60, v%d" % (TT + 2, TT))
    a("s_lshr_b32 s69, s32, 2"); a("s_mul_i32 s70, s69, %d" % (64 * RS)); a("s_add_u32 s70, s70, %d" % (16 * RS))
    a("v_add_u32 v%d, s70, v%d" % (TT + 3, TT + 2)); a("s_sub_u32 s71, s61, s60"); a("v_add_u32 v%d, s71, v%d" % (TT + 4, TT + 3))
    a("s_barrier")
    def wr_tile(t, u):
        c = ACC + (t * 4 + u) * 4 if u < 4 else ACC + 64 + 4 * t
        a("v_cvt_pk_bf16_f32 v%d, v%d, v%d" % (c, c, c + 1)); a("v_cvt_pk_bf16_f32 v%d, v%d, v%d" % (c + 1, c + 2, c + 3))
        vb = (TT + 3 if t < 2 else TT + 4) if u < 4 else TT + 2
        a("ds_write_b64 v%d, v[%d:%d] offset:%d" % (vb, c, c + 1, (16 * RS * u if u < 4 else 0) + 32 * (t & 1)))
    for t in (0, 2):
        for u in range(5 if t < 2 else 4): wr_tile(t, u)
    a("s_cmp_eq_u32 s32, 7"); a("s_cbranch_scc1 K1_att_s1")
    for u in range(5): wr_tile(1, u)
    a("K1_att_s1:")
    a("s_cmp_eq_u32 s32, 3"); a("s_cbranch_scc1 K1_att_s3")
    for u in range(4): wr_tile(3, u)
    a("K1_att_s3:")
    AQ, AV, VI = TT, TT + 1, TT + 2
    def rowaddr(dst, hh, bq, par, i):
        a("v_bfe_u32 v%d, v2, %d, 1" % (TT + 8, bq)); a("v_lshlrev_b32 v%d, 3, v%d" % (TT + 8, TT + 8))
        a("v_bfe_u32 v%d, v2, %d, 1" % (TT + 9, par)); a("v_add_u32 v%d, v%d, v%d" % (TT + 8, TT + 8, TT + 9))
        a("v_bfe_u32 v%d, v2, %d, 2" % (TT + 9, i)); a("v_lshl_add_u32 v%d, v%d, 1, v%d" % (TT + 8, TT + 9, TT + 8))
        a("v_mul_u32_u24 v%d, %d, v%d" % (TT + 10, RS, TT + 8))
        a("v_bfe_u32 v%d, v2, %d, 2" % (TT + 9, hh)); a("v_mul_u32_u24 v%d, 40, v%d" % (TT + 9, TT + 9))
        a("v_add3_u32 v%d, v%d, v%d, s70" % (dst, TT + 10, TT + 9))
    a("s_mul_i32 s70, s32, %d" % (16 * RS))
    rowaddr(AV, 0, 4, 5, 2)
    rowaddr(AQ, 2, 4, 5, 0)
    a("v_and_b32 v%d, 3, v2" % VI)
    SO = TT + 12
    a("s_mul_i32 s71, s37, 20"); a("v_lshrrev_b32 v%d, 3, v%d" % (TT + 9, TT + 9)); a("v_add_u32 v%d, s71, v%d" % (TT + 9, TT + 9))
    for dp in range(5):
        a("v_add_u32 v%d, %d, v%d" % (TT + 10, dp, TT + 9))
        a("v_lshrrev_b32 v%d, 3, v%d" % (TT + 11, TT + 10)); a("v_lshlrev_b32 v%d, 12, v%d" % (TT + 11, TT + 11))
        a("v_lshl_add_u32 v%d, v%d, 4, v%d" % (TT + 11, TT + 8, TT + 11))
        a("v_bfe_u32 v%d, v%d, 1, 2" % (SO + dp, TT + 10)); a("v_lshl_add_u32 v%d, v%d, 8, v%d" % (TT + 11, SO + dp, TT + 11))
        a("v_and_b32 v%d, 1, v%d" % (TT + 10, TT + 10)); a("v_lshl_add_u32 v%d, v%d, 3, v%d" % (SO + dp, TT + 10, TT + 11))
    a("s_lshl_b32 s71, s36, 1"); a("s_lshr_b32 s69, s32, 2"); a("s_add_u32 s71, s71, s69"); a("s_mul_i32 s71, s71, %d" % (68 * 4096))
    a("s_and_b32 s69, s32, 3"); a("s_lshl_b32 s69, s69, 10"); a("s_add_u32 s71, s71, s69")
    if ACT_OFF: a("s_add_u32 s71, s71, %d" % ACT_OFF)
    for k in range(1, 4): a("v_cmp_gt_u32 s[%d:%d], %d, v%d" % (60 + 2 * k, 61 + 2 * k, k, VI))
    a("s_waitcnt lgkmcnt(0)"); a("s_barrier")
    QR = 16; KR = 26; VR = 56; S = 88; O = 100; P = 120; Z = 128
    for dp in range(5): a("ds_read_b64 v[%d:%d], v%d offset:%d" % (QR + 2 * dp, QR + 2 * dp + 1, AQ, 16 * RS + 8 * dp)); lg.issue(("q", dp))
    for kb in range(3):
        for dp in range(5):
            a("ds_read_b64 v[%d:%d], v%d offset:%d" % (KR + 10 * kb + 2 * dp, KR + 10 * kb + 2 * dp + 1, AQ, 8 * kb * RS + 160 + 8 * dp)); lg.issue(("k", kb, dp))
    vq = [(kb, dp) for dp in range(5) for kb in range(3)]
    for kb in range(3):
        wait(a, lg=lg.need(("k", kb, 4)))
        for _ in range(5):
            k2, d2 = vq.pop(0)
            a("ds_read_b64_tr_b16 v[%d:%d], v%d offset:%d" % (VR + 10 * k2 + 2 * d2, VR + 10 * k2 + 2 * d2 + 1, AV, 8 * k2 * RS + 320 + 8 * d2)); lg.issue(("v", k2, d2))
    for dp in range(5):
        for kb in range(3):
            a("v_mfma_f32_4x4x4_16b_bf16 v[%d:%d], v[%d:%d], v[%d:%d], %s" % (S + 4 * kb, S + 4 * kb + 3, KR + 10 * kb + 2 * dp, KR + 10 * kb + 2 * dp + 1, QR + 2 * dp, QR + 2 * dp + 1,
                                                                             "0" if dp == 0 else "v[%d:%d]" % (S + 4 * kb, S + 4 * kb + 3)))
    a("s_nop 4")
    a("s_or_b32 s69, s36, s32"); a("s_cmp_lg_u32 s69, 0"); a("s_cbranch_scc1 K1_att_nomask")
    a("v_lshlrev_b32 v%d, 1, v%d" % (Z, VI)); a("v_sub_u32 v%d, v%d, v%d" % (Z, TT + 8, Z))
    a("v_mov_b32 v%d, 0xff800000" % (Z + 1))
    for k in range(1, 8):
        a("v_cmp_gt_u32 vcc, %d, v%d" % (16 - 2 * k, Z)); a("s_nop 1"); a("v_cndmask_b32 v%d, v%d, v%d, vcc" % (S + k, S + k, Z + 1))
    a("K1_att_nomask:")
    for k in range(1, 4): a("v_cndmask_b32 v%d, v%d, v%d, s[%d:%d]" % (S + k, S + k + 8, S + k, 60 + 2 * k, 61 + 2 * k))
    a("v_max3_f32 v%d, v%d, v%d, v%d" % (Z, S + 1, S + 2, S + 3)); a("v_max3_f32 v%d, v%d, v%d, v%d" % (Z + 1, S + 4, S + 5, S + 6))
    a("v_max3_f32 v%d, v%d, v%d, v%d" % (Z, Z, S + 7, S + 8)); a("v_max_f32 v%d, v%d, v%d" % (Z, Z, Z + 1))
    a("s_mov_b32 s69, %s" % f2h(20 ** -0.5 * 1.4426950408889634))
    a("v_mul_f32 v%d, s69, v%d" % (Z, Z))
    for k in range(1, 9): a("v_fma_f32 v%d, v%d, s69, -v%d" % (S + k, S + k, Z))
    for k in range(1, 9): a("v_exp_f32 v%d, v%d" % (S + k, S + k))
    a("v_add_f32 v%d, v%d, v%d" % (Z, S + 1, S + 2)); a("v_add_f32 v%d, v%d, v%d" % (Z + 1, S + 3, S + 4)); a("v_add_f32 v%d, v%d, v%d" % (Z + 2, S + 5, S + 6)); a("v_add_f32 v%d, v%d, v%d" % (Z + 3, S + 7, S + 8))
    a("v_add_f32 v%d, v%d, v%d" % (Z, Z, Z + 1)); a("v_add_f32 v%d, v%d, v%d" % (Z + 2, Z + 2, Z + 3)); a("v_add_f32 v%d, v%d, v%d" % (Z, Z, Z + 2))
    a("v_rcp_f32 v%d, v%d" % (Z, Z)); a("v_mov_b32 v%d, 0" % S)
    for k in range(1, 9): a("v_mul_f32 v%d, v%d, v%d" % (S + k, S + k, Z))
    for k in range(1, 4):
        a("v_cndmask_b32 v%d, v%d, 0, s[%d:%d]" % (S + k + 8, S + k, 60 + 2 * k, 61 + 2 * k))
        a("v_cndmask_b32 v%d, 0, v%d, s[%d:%d]" % (S + k, S + k, 60 + 2 * k, 61 + 2 * k))
    for j in range(6): a("v_cvt_pk_bf16_f32 v%d, v%d, v%d" % (P + j, S + 2 * j, S + 2 * j + 1))
    a("s_waitcnt lgkmcnt(0)"); a("s_nop 0")
    for kb in range(3):
        for dp in range(5):
            a("v_mfma_f32_4x4x4_16b_bf16 v[%d:%d], v[%d:%d], v[%d:%d], %s" % (O + 4 * dp, O + 4 * dp + 3, VR + 10 * kb + 2 * dp, VR + 10 * kb + 2 * dp + 1, P + 2 * kb, P + 2 * kb + 1,
                                                                             "0" if kb == 0 else "v[%d:%d]" % (O + 4 * dp, O + 4 * dp + 3)))
    a("s_nop 4")
    for dp in range(5):
        a("v_cvt_pk_bf16_f32 v%d, v%d, v%d" % (O + 4 * dp, O + 4 * dp, O + 4 * dp + 1)); a("v_cvt_pk_bf16_f32 v%d, v%d, v%d" % (O + 4 * dp + 1, O + 4 * dp + 2, O + 4 * dp + 3))
        a("buffer_store_dwordx2 v[%d:%d], v%d, s[28:31], s71 offen" % (O + 4 * dp, O + 4 * dp + 1, SO + dp))
    stamp(a, st, 3)
    if st: a("s_waitcnt vmcnt(0)")
    stamp(a, st, 4)

def gen_k1(st=False, rot=1, st_slot0=0, st_total=5):
    a = Asm()
    k1_prologue(a, st, rot)
    k1_ffn(a, st)
    k1_att(a, st)
    a("K1_fin:")
    stamp_flush(a, st, 5, 28, 2, st_slot0, st_total)
    a("K1_end:"); a("s_endpgm")
    return ("k1_kernel", a.text(), 256, 512, 135168, 256, 100, None)

HEADER = open("cdna_kernels/%s.s.ref" % NAME).read().split("; Override")[0] if __import__("os").path.exists("cdna_kernels/%s.s.ref" % NAME) else ""
if __name__ == "__main__":
    st = int(sys.argv[1]); rot = int(sys.argv[2]); out = sys.argv[3]
    ks = [gen_k0(st), gen_k1(st, rot, 0, 10), gen_k2(st, 4, 5, 10, rot_on=0)]
    open(out, "w").write(module(ks, HEADER))
```

```python
import sys, struct
from asmlib import *
from gen import *
from gen1 import Q, wait, f2h, GA, GB, HEADER
XBYTES = 2621440
RAW = 176
OOB = 0x7ff00000
class Cfg:
    st = 0; rotp = 1; rotk = 0; xbar = 1; pref = 0; sc1 = ""; fused = 0
C = Cfg()

def bfr(a, v):
    a("v_cvt_pk_bf16_f32 v%d, v%d, v%d" % (v, v, v)); a("v_lshlrev_b32 v%d, 16, v%d" % (v, v))

def stats_finish(a, pairs):
    def each(f):
        for s, q in pairs: f(s, q)
    each(lambda s, q: a("v_mul_f32 v%d, 0x3acccccd, v%d" % (s, s)))
    each(lambda s, q: a("v_mul_f32 v%d, 0x3acccccd, v%d" % (q, q)))
    each(lambda s, q: a("v_fma_f32 v%d, -v%d, v%d, v%d" % (q, s, s, q)))
    each(lambda s, q: a("v_max_f32 v%d, 0, v%d" % (q, q)))
    each(lambda s, q: bfr(a, q)); each(lambda s, q: bfr(a, s))
    each(lambda s, q: a("v_add_f32 v%d, 0x3727c5ac, v%d" % (q, q)))
    each(lambda s, q: bfr(a, q))
    each(lambda s, q: a("v_sqrt_f32 v%d, v%d" % (q, q))); a("s_nop 0")
    each(lambda s, q: bfr(a, q))
    each(lambda s, q: a("v_rcp_f32 v%d, v%d" % (q, q))); a("s_nop 0")
    each(lambda s, q: a("v_mul_f32 v%d, -v%d, v%d" % (s, s, q)))
def dpp_reduce(a, regs, steps):
    for m in steps:
        if len(regs) < 3: a("s_nop 1")
        for r in regs: a("v_add_f32_dpp v%d, v%d, v%d %s row_mask:0xf bank_mask:0xf" % (r, r, r, m))
def norm_ops(r, c, rs, T):
    out = []
    for d in range(0, 4, 2):
        out += ["v_lshlrev_b32 v%d, 16, v%d" % (T[0], r + d), "v_and_b32 v%d, 0xffff0000, v%d" % (T[1], r + d),
                "v_lshlrev_b32 v%d, 16, v%d" % (T[2], r + d + 1), "v_and_b32 v%d, 0xffff0000, v%d" % (T[3], r + d + 1)]
        out += ["v_fma_f32 v%d, v%d, v%d, v%d" % (T[i], T[i], rs, c) for i in range(4)]
        out += ["v_cvt_pk_bf16_f32 v%d, v%d, v%d" % (r + d, T[0], T[1]), "v_cvt_pk_bf16_f32 v%d, v%d, v%d" % (r + d + 1, T[2], T[3])]
    return out

def prologue(a, vm):
    st = C.st
    a("s_cmp_ge_u32 s2, 256"); a("s_cbranch_scc1 K1_end")
    stamp(a, st, 0)
    a("s_load_dwordx4 s[4:7], s[0:1], 0"); a("s_load_dwordx4 s[8:11], s[0:1], 32"); a("s_load_dwordx2 s[12:13], s[0:1], 72")
    a("s_load_dwordx2 s[14:15], s[0:1], 16"); a("s_load_dwordx2 s[96:97], s[0:1], 48")
    a("v_lshrrev_b32 v1, 6, v0"); a("v_and_b32 v2, 63, v0"); a("v_readfirstlane_b32 s32, v1")
    a("s_and_b32 s33, s2, 7"); a("s_lshr_b32 s34, s2, 3")
    a("s_and_b32 s35, s34, 7"); a("s_lshr_b32 s34, s34, 3")
    a("s_and_b32 s36, s33, 1"); a("s_lshl_b32 s36, s36, 3"); a("s_add_u32 s36, s36, s35")
    a("s_and_b32 s37, s33, 6"); a("s_and_b32 s68, s34, 1"); a("s_add_u32 s37, s37, s68")
    a("s_mul_i32 s38, s34, 5"); a("s_lshr_b32 s38, s38, 1")
    if C.rotk == 1:
        a("s_and_b32 s68, s35, 1"); a("s_mul_i32 s68, s68, 5"); a("s_add_u32 s38, s38, s68")
    if C.rotk == 2:
        a("s_lshr_b32 s69, s34, 1"); a("s_and_b32 s68, s35, s69"); a("s_mul_i32 s68, s68, 5"); a("s_add_u32 s38, s38, s68")
    if C.rotk == 3:
        a("s_mul_i32 s68, s35, 11"); a("s_lshr_b32 s68, s68, 5"); a("s_mul_i32 s68, s68, 3"); a("s_sub_u32 s68, s35, s68")
        a("s_lshr_b32 s69, s34, 1"); a("s_mul_i32 s68, s68, s69"); a("s_mul_i32 s68, s68, 3"); a("s_add_u32 s38, s38, s68")
    if C.rotk: a("s_sub_u32 s68, s38, 10"); a("s_cmp_ge_u32 s38, 10"); a("s_cselect_b32 s38, s68, s38")
    a("s_mov_b32 s76, s38")
    if C.rotp:
        a("s_mul_i32 s68, s35, 11"); a("s_lshr_b32 s68, s68, 5"); a("s_mul_i32 s68, s68, 3"); a("s_sub_u32 s39, s35, s68")
    else: a("s_mov_b32 s39, 0")
    a("v_lshrrev_b32 v3, 3, v2"); a("v_lshl_add_u32 v3, v1, 4, v3"); a("s_lshl_b32 s68, s36, 7"); a("v_add_u32 v3, s68, v3"); a("v_mul_u32_u24 v3, 1280, v3")
    a("v_and_b32 v4, 7, v2"); a("v_lshl_add_u32 v3, v4, 4, v3"); a("v_add_u32 v4, 10240, v3")
    for j in range(10):
        a("s_lshl_b32 s%d, s38, 7" % (50 + j))
        if j < 9: a("s_add_u32 s38, s38, 1"); a("s_cmp_eq_u32 s38, 10"); a("s_cselect_b32 s38, 0, s38")
    a("s_waitcnt lgkmcnt(0)")
    a.srd(16, 4, XBYTES)
    for j in range(10):
        for h in range(2):
            a("buffer_load_dwordx4 v[%d:%d], v%d, s[16:19], s%d offen" % (RAW + 8 * j + 4 * h, RAW + 8 * j + 4 * h + 3, 3 + h, 50 + j)); vm.issue(("x", j))
        if C.xbar and j % 2 == 1 and j < 9: a("s_barrier")
        if j == 1 and C.pref:
            a("s_getpc_b64 s[68:69]"); a("v_lshlrev_b32 v5, 7, v0"); a("v_mov_b32 v7, s69"); a("v_add_co_u32 v6, vcc, s68, v5"); a("s_nop 1"); a("v_addc_co_u32 v7, vcc, 0, v7, vcc")
            a("v_cmp_gt_u32 vcc, CODE_LINES, v0"); a("s_and_saveexec_b64 s[68:69], vcc"); a("s_cbranch_execz K1_pf")
            a("global_load_dword v16, v[6:7], off")
            a("K1_pf:"); a("s_mov_b64 exec, -1")
    a.srd(28, 12, WS_BYTES)
    a("s_mov_b32 s33, 0x3f803f80")
    a("s_cmp_ge_u32 s34, 2"); a("s_cbranch_scc1 K1_att")

def x_stats(a, vm, dq, emit_dma, S):
    for r in S: a("v_mov_b32 v%d, 0" % r)
    for j in range(10):
        wait(a, vm=vm.need(("x", j)))
        for d in range(4):
            for h in range(2):
                r = RAW + 8 * j + 4 * h + d
                a("v_dot2c_f32_bf16 v%d, s33, v%d" % (S[2 * h], r)); a("v_dot2c_f32_bf16 v%d, v%d, v%d" % (S[2 * h + 1], r, r))
        for _ in range(2):
            if dq and j >= 2: emit_dma(dq.pop(0))
    a("s_nop 2")
    dpp_reduce(a, S, ["quad_perm:[1,0,3,2]", "quad_perm:[2,3,0,1]", "row_half_mirror"])
    stats_finish(a, [(S[0], S[1]), (S[2], S[3])])
    while dq: emit_dma(dq.pop(0))

def xw_addr(a, V0, V1, base, T):
    a("v_lshrrev_b32 v%d, 4, v2" % T); a("v_and_b32 v%d, 7, v2" % (T + 1)); a("v_xor_b32 v%d, v%d, v%d" % (T, T, T + 1)); a("v_lshlrev_b32 v%d, 4, v%d" % (T, T))
    a("v_lshrrev_b32 v%d, 3, v2" % (T + 1)); a("v_lshl_add_u32 v%d, v%d, 7, v%d" % (T, T + 1, T))
    a("s_lshl_b32 s71, s32, 11"); a("s_add_u32 s71, s71, %d" % base); a("v_add_u32 v%d, s71, v%d" % (V0, T))
    a("v_xor_b32 v%d, 64, v%d" % (V1, V0)); a("v_add_u32 v%d, 1024, v%d" % (V1, V1))
def xr_base(a, T):
    a("v_bfe_u32 v%d, v2, 1, 3" % T); a("v_lshrrev_b32 v%d, 4, v2" % (T + 1)); a("v_xor_b32 v%d, v%d, v%d" % (T, T, T + 1)); a("v_lshlrev_b32 v%d, 4, v%d" % (T, T))
    a("v_and_b32 v%d, 15, v2" % (T + 1)); a("v_lshl_add_u32 v%d, v%d, 7, v%d" % (T, T + 1, T))

def pack_setup(stage_base, V):
    pre = []
    p = pre.append
    p("s_and_b32 s98, s2, 127"); p("s_mul_i32 s98, s98, 6"); p("s_add_u32 s98, s98, s32")
    p("s_cmp_lt_u32 s32, 6"); p("s_cselect_b32 s98, s98, 1000")
    p("s_lshr_b32 s99, s98, 3")
    p("s_sub_u32 s100, s99, 20"); p("s_cmp_lt_u32 s99, 20"); p("s_cselect_b32 s100, s99, s100")
    p("s_cselect_b32 s72, s14, s96"); p("s_cselect_b32 s73, s15, s97"); p("s_cselect_b32 s74, 0, 0x118000")
    p("s_add_u32 s74, s74, 819200"); p("s_and_b32 s73, s73, 0xffff"); p("s_mov_b32 s75, 0x00020000")
    p("s_mul_i32 s100, s100, 40960"); p("s_bfe_u32 s101, s98, 0x20001"); p("s_mul_i32 s101, s101, 5120"); p("s_add_u32 s100, s100, s101")
    p("s_and_b32 s101, s98, 1"); p("s_mul_i32 s101, s101, 640"); p("s_add_u32 s100, s100, s101")
    p("s_mul_i32 s101, s32, 5120"); p("s_add_u32 s101, s101, %d" % stage_base); p("s_cmp_lt_u32 s32, 6"); p("s_cselect_b32 s101, s101, 0x30000")
    loads = []
    for i in range(5):
        loads.append(["v_add_u32 v%d, %d, v2" % (V + 1, 64 * i), "v_mul_u32_u24 v%d, 1639, v%d" % (V, V + 1), "v_lshrrev_b32 v%d, 16, v%d" % (V, V),
                      "v_mul_u32_u24 v%d, 640, v%d" % (V, V), "v_lshl_add_u32 v%d, v%d, 4, v%d" % (V, V + 1, V),
                      "v_cmp_lt_u32 vcc, 159, v%d" % (V + 1), "v_add_u32 v%d, 15360, v%d" % (V + 1, V), "s_add_u32 m0, s101, %d" % (1024 * i),
                      "v_cndmask_b32 v%d, v%d, v%d, vcc" % (V, V, V + 1),
                      "buffer_load_dwordx4 v%d, s[72:75], s100 offen lds" % V])
    mid = []
    p = mid.append
    p("v_lshrrev_b32 v%d, 4, v2" % (V + 1)); p("v_mul_u32_u24 v%d, 160, v%d" % (V, V + 1))
    p("s_mov_b32 s100, %d" % (68 * 5120)); p("v_mul_lo_u32 v%d, v%d, s100" % (V + 1, V + 1))
    return pre, loads, mid

def k1_ffn(a, vm):
    st = C.st
    SL = 16896; NS = 7; XB = NS * SL; assert XB % 128 == 0
    a.srd(20, 8, 1966080); a.srd(24, 10, 1966080)
    for j in range(10): a("s_mul_i32 s%d, s%d, 1536" % (40 + j, 50 + j))
    a("s_and_b32 s68, s32, 3"); a("s_lshr_b32 s69, s32, 2")
    a("s_lshl_b32 s70, s36, 1"); a("s_lshr_b32 s71, s68, 1"); a("s_add_u32 s70, s70, s71"); a("s_mul_i32 s70, s70, 68")
    a("s_mul_i32 s71, s37, 6"); a("s_add_u32 s70, s70, s71"); a("s_add_u32 s70, s70, s69"); a("s_add_u32 s70, s70, 20"); a("s_lshl_b32 s70, s70, 12")
    a("s_and_b32 s71, s68, 1"); a("s_lshl_b32 s71, s71, 11"); a("s_add_u32 s70, s70, s71")
    if ACT_OFF: a("s_add_u32 s70, s70, %d" % ACT_OFF)
    for p in range(3):
        a("s_lshl_b32 s%d, s39, 7" % (60 + p)); a("s_lshl_b32 s71, s39, 13"); a("s_add_u32 s%d, s70, s71" % (63 + p))
        if p < 2: a("s_add_u32 s39, s39, 1"); a("s_cmp_eq_u32 s39, 3"); a("s_cselect_b32 s39, 0, s39")
    a("s_lshl_b32 s66, s69, 3"); a("s_add_u32 s66, s66, s68"); a("s_mul_i32 s66, s66, 1056")
    VWO, VWR, VWR2, VXR0, VXR1, VXW0, VXW1, VST, VA_, VB_ = 3, 4, 5, 6, 7, 8, 9, 6, 7, 8
    S = [10, 11, 12, 13]; T = [14, 15, 1, 64]; TE = [14, 15]; PV = 10
    WF = 16; ACC = [32, 64]; X = 96
    a("v_lshrrev_b32 v13, 5, v2"); a("v_lshlrev_b32 v13, 4, v13"); a("v_bfe_u32 v14, v2, 4, 1"); a("v_lshl_add_u32 v13, v14, 2, v13")
    a("v_bfe_u32 v14, v2, 3, 1"); a("v_add_u32 v13, v13, v14")
    a("s_lshl_b32 s71, s69, 5"); a("s_lshr_b32 s72, s68, 1"); a("s_lshl_b32 s72, s72, 3"); a("s_add_u32 s71, s71, s72"); a("s_and_b32 s72, s68, 1"); a("s_lshl_b32 s72, s72, 1"); a("s_add_u32 s71, s71, s72")
    a("v_add_u32 v13, s71, v13"); a("v_mul_u32_u24 v13, 3072, v13")
    a("v_and_b32 v14, 7, v2"); a("v_lshlrev_b32 v14, 4, v14")
    a("s_mul_i32 s71, s37, 384"); a("v_add3_u32 v%d, v13, v14, s71" % VWO)
    lg = Q(15)
    def dma_groups(n):
        p, j = n // 10, n % 10; base = (n % NS) * SL
        g1 = ["s_add_u32 m0, s66, %d" % base, "s_add_u32 s68, s%d, s%d" % (40 + j, 60 + p), "buffer_load_dwordx4 v%d, s[20:23], s68 offen lds" % VWO]
        g2 = ["s_add_u32 m0, s66, %d" % (base + 4224), "s_nop 0", "buffer_load_dwordx4 v%d, s[24:27], s68 offen lds" % VWO]
        return [(g1, ("slot", n)), (g2, ("slot", n))]
    def emit_dma(g):
        for s in g[0]: a(s)
        vm.issue(g[1])
    a("v_bfe_u32 v13, v2, 3, 2"); a("v_mul_u32_u24 v13, 1056, v13")
    a("v_lshrrev_b32 v14, 5, v2"); a("v_lshlrev_b32 v14, 2, v14"); a("v_bfe_u32 v15, v2, 2, 1"); a("v_add_u32 v14, v14, v15"); a("v_lshl_add_u32 v13, v14, 7, v13")
    a("v_and_b32 v14, 3, v2"); a("v_lshlrev_b32 v14, 3, v14"); a("s_lshl_b32 s71, s69, 6")
    a("v_add3_u32 v%d, v13, v14, s71" % VWR); a("v_add_u32 v%d, %d, v%d" % (VWR2, 4 * SL, VWR))
    xr_base(a, 13)
    a("s_and_b32 s71, s32, 3"); a("s_lshl_b32 s71, s71, 12"); a("s_add_u32 s71, s71, %d" % XB); a("v_add_u32 v%d, s71, v13" % VXR0); a("v_xor_b32 v%d, 64, v%d" % (VXR1, VXR0))
    xw_addr(a, VXW0, VXW1, XB, 13)
    dq = []
    for n in range(NS): dq += dma_groups(n)
    issued = NS
    x_stats(a, vm, dq, emit_dma, S)
    stamp(a, st, 1)
    def wreads(g):
        s_, u = g // 8, g % 8; pos = s_ % NS; kk, wt = u >> 2, u & 3
        vb = VWR if pos < 4 else VWR2; off = (pos % 4) * SL + (kk * 2 + (wt >> 1)) * 4224 + 32 * (wt & 1)
        b = WF + (g % 4) * 4
        for t in range(2):
            a("ds_read_b64_tr_b16 v[%d:%d], v%d offset:%d" % (b + 2 * t, b + 2 * t + 1, vb, off + 256 * t)); lg.issue(("w", g))
    def xreads(j):
        for kk in range(2):
            for tt in range(2):
                r = X + 16 * j + (kk * 2 + tt) * 4
                a("ds_read_b128 v[%d:%d], v%d offset:%d" % (r, r + 3, VXR1 if kk else VXR0, (j % 2) * 16384 + 2048 * tt)); lg.issue(("x", j, kk))
    def xnorm(j):
        out = []
        for h in range(2):
            r = RAW + 8 * j + 4 * h
            out += [(s, None) for s in norm_ops(r, S[2 * h], S[2 * h + 1], T)]
            out.append(("ds_write_b128 v%d, v[%d:%d] offset:%d" % (VXW1 if h else VXW0, r, r + 3, (j % 2) * 16384), ("lg", ("xw", j))))
        return out
    def epilogue(p):
        out = []; base = ACC[p % 2]
        for tt in range(2):
            D = base + (4 + tt) * 4
            for a_ in range(2):
                for r in range(0, 4, 2):
                    G = [base + (a_ * 2 + tt) * 4 + r + k for k in range(2)]; U = [base + ((2 + a_) * 2 + tt) * 4 + r + k for k in range(2)]; t = TE
                    seq = [lambda k: "v_mul_f32 v%d, v%d, v%d" % (t[k], G[k], G[k]),
                           lambda k: "v_fma_f32 v%d, v%d, v%d, v%d" % (t[k], t[k], VB_, VA_),
                           lambda k: "v_mul_f32 v%d, v%d, v%d" % (t[k], t[k], G[k]),
                           lambda k: "v_exp_f32 v%d, v%d" % (t[k], t[k]),
                           lambda k: "v_mul_f32 v%d, v%d, v%d" % (G[k], G[k], U[k]),
                           lambda k: "v_add_f32 v%d, 1.0, v%d" % (t[k], t[k]),
                           lambda k: "v_rcp_f32 v%d, v%d" % (t[k], t[k]),
                           lambda k: "v_mul_f32 v%d, v%d, v%d" % (G[k], G[k], t[k])]
                    for f in seq:
                        for k in range(2): out.append((f(k), None))
                    out.append(("v_cvt_pk_bf16_f32 v%d, v%d, v%d" % (D + 2 * a_ + r // 2, G[0], G[1]), None))
            out.append(("buffer_store_dwordx4 v[%d:%d], v%d, s[28:31], s%d offen offset:%d %s" % (D, D + 3, VST, 63 + p, 1024 * tt, C.sc1), ("vm", "st")))
        return out
    def emit_f(item):
        ins, tag = item
        if ins.startswith("WAITVM"): wait(a, vm=vm.need(tag)); return
        if ins.startswith("WAITLG"): wait(a, lg=lg.need(tag)); return
        a(ins)
        if tag: (vm if tag[0] == "vm" else lg).issue(tag[1])
    ppre, ploads, pmid = pack_setup(XB, PV)
    def pack1():
        out = [("\n".join(ppre), None)]
        for l in ploads: out += [(s, None) for s in l[:-3]] + [("\n".join(l[-3:]), ("vm", "pk"))]
        return out
    def pack2(R):
        out = [(s, None) for s in pmid]
        V = PV
        out += [(s, None) for s in ["v_bfe_u32 v%d, v2, 2, 2" % (V + 2), "v_mul_u32_u24 v%d, 640, v%d" % (V + 2, V + 2), "v_add_u32 v%d, v%d, v%d" % (V, V, V + 2),
                "v_and_b32 v%d, 3, v2" % (V + 2), "v_mul_u32_u24 v%d, 40, v%d" % (V + 2, V + 2), "v_add3_u32 v%d, v%d, v%d, s101" % (V, V, V + 2),
                "v_and_b32 v%d, 15, v2" % (V + 2), "v_lshl_add_u32 v%d, v%d, 4, v%d" % (V + 1, V + 2, V + 1),
                "s_and_b32 s100, s98, 1", "s_mul_i32 s100, s100, 272", "s_add_u32 s100, s100, s99", "s_mul_i32 s100, s100, 5120",
                "s_bfe_u32 s101, s98, 0x20001", "s_lshl_b32 s101, s101, 8", "s_add_u32 s100, s100, s101", "s_add_u32 s100, s100, %d" % W2P_OFF,
                "s_cmp_lt_u32 s98, 544\ns_cselect_b32 s100, s100, 0x%x" % OOB, "s_add_u32 s101, s100, 4096"]]
        out.append(("WAITVM", "pk"))
        for i in range(5):
            for tt in range(2): out.append(("ds_read_b64_tr_b16 v[%d:%d], v%d offset:%d" % (R + 4 * i + 2 * tt, R + 4 * i + 2 * tt + 1, V, 8 * i + 2560 * tt), ("lg", ("pk", i))))
        out += [("s_nop 0", None)] * 6
        for i in range(5):
            out.append(("WAITLG", ("pk", i)))
            out.append(("buffer_store_dwordx4 v[%d:%d], v%d, s[28:31], s%d offen offset:%d %s" % (R + 4 * i, R + 4 * i + 3, V + 1, 100 if i < 4 else 101, 1024 * (i % 4), C.sc1), ("vm", "pst")))
        return out
    for it in xnorm(0): emit_f(it)
    wait(a, vm=vm.need(("slot", 0)), lg=lg.need(("xw", 0))); a("s_barrier")
    xreads(0)
    for g in range(4): wreads(g)
    fq = xnorm(1)
    for _ in range(20): emit_f(fq.pop(0))
    dq = []
    for g in range(240):
        s_, u = g // 8, g % 8; p, j = s_ // 10, s_ % 10; kk, wt = u >> 2, u & 3
        if g == 80:
            fq += [("v_lshlrev_b32 v%d, 4, v2" % VST, None), ("v_mov_b32 v%d, %s" % (VA_, f2h(GA)), None), ("v_mov_b32 v%d, %s" % (VB_, f2h(GB)), None)] + pack1()
        if g % 80 == 3 and p >= 1: fq += epilogue(p - 1)
        if g == 146: assert not fq; fq += pack2(ACC[0])
        wait(a, lg=lg.need(("w", g), ("x", j, kk)))
        b = WF + (g % 4) * 4
        nf = 3 if p == 0 else 2
        for tt in range(2):
            c = ACC[p % 2] + (wt * 2 + tt) * 4; xr = X + 16 * j + (kk * 2 + tt) * 4
            a("v_mfma_f32_16x16x32_bf16 v[%d:%d], v[%d:%d], v[%d:%d], %s" % (c, c + 3, b, b + 3, xr, xr + 3, "0" if (j == 0 and kk == 0) else "v[%d:%d]" % (c, c + 3)))
            if tt == 0:
                for _ in range(nf):
                    if fq: emit_f(fq.pop(0))
        g4 = g + 4
        if g4 < 240:
            if g4 % 8 == 0:
                s2 = g4 // 8
                while dq: emit_dma(dq.pop(0))
                if s2 < 10:
                    while fq: emit_f(fq.pop(0))
                wait(a, vm=vm.need(("slot", s2)), lg=lg.need(("xw", s2))); a("s_barrier")
                while issued <= s2 - 2 + NS and issued < 30:
                    dq += dma_groups(issued); issued += 1
                wreads(g4)
                if s2 < 10: xreads(s2)
                if s2 < 9: fq += xnorm(s2 + 1)
            else:
                wreads(g4)
                if dq: emit_dma(dq.pop(0))
        for _ in range(nf):
            if fq: emit_f(fq.pop(0))
        if g % 80 == 79: assert not fq, (g, len(fq))
        if g == 79: stamp(a, st, 2)
    stamp(a, st, 3)
    a("s_nop 7")
    for it in epilogue(2): emit_f(it)
    if st: a("s_waitcnt vmcnt(0)")
    stamp(a, st, 4)
    a("s_branch K1_fin")

def k1_att(a, vm):
    st = C.st
    a("K1_att:")
    WSL = 16384; NW = 6; XB = NW * WSL; HB = XB + 32768
    RS = 496
    VW0, VW1, VXW0, VXW1 = 3, 4, 5, 6
    VWR = [8, 9, 10, 11]; VXR = [12, 13, 14, 15]
    S = [16, 17, 18, 19]; T = [20, 21, 22, 23]; TT = 24; HS = [30, 31]
    ACC = 32; FR = [104, 140]; HR = 104
    a("v_lshrrev_b32 v%d, 5, v2" % TT); a("v_lshl_add_u32 v%d, v1, 1, v%d" % (TT, TT))
    a("v_mul_u32_u24 v%d, 1280, v%d" % (TT + 1, TT)); a("v_and_b32 v%d, 7, v2" % (TT + 2)); a("v_lshl_add_u32 v%d, v%d, 4, v%d" % (TT + 1, TT + 2, TT + 1))
    a("s_lshl_b32 s68, s36, 7"); a("s_sub_u32 s68, s68, 16"); a("s_mul_i32 s68, s68, 1280"); a("s_cmp_eq_u32 s36, 0"); a("s_cselect_b32 s68, 0x%x, s68" % OOB)
    a("v_add_u32 v%d, s68, v%d" % (TT + 1, TT + 1)); a("v_bfe_u32 v%d, v2, 3, 2" % (TT + 3)); a("v_mov_b32 v%d, 0x%x" % (TT + 5, OOB))
    for i in range(3):
        a("s_add_u32 s68, s76, %d" % (4 * i)); a("v_add_u32 v%d, s68, v%d" % (TT + 4, TT + 3))
        a("v_subrev_u32 v7, 10, v%d" % (TT + 4)); a("v_min_u32 v%d, v%d, v7" % (TT + 4, TT + 4))
        a("v_lshl_add_u32 v%d, v%d, 7, v%d" % (TT + 4, TT + 4, TT + 1))
        if i == 2: a("v_cmp_gt_u32 vcc, 2, v%d" % (TT + 3)); a("s_nop 1"); a("v_cndmask_b32 v%d, v%d, v%d, vcc" % (TT + 4, TT + 5, TT + 4))
        a("buffer_load_dwordx4 v[%d:%d], v%d, s[16:19], 0 offen" % (HR + 4 * i, HR + 4 * i + 3, TT + 4)); vm.issue("halo")
    a("v_lshrrev_b32 v7, 1, v%d" % TT); a("v_xor_b32 v7, v7, v%d" % (TT + 2)); a("v_lshlrev_b32 v7, 4, v7"); a("v_lshl_add_u32 v7, v%d, 7, v7" % TT)
    a("v_lshl_add_u32 v7, v%d, 11, v7" % (TT + 3)); a("v_add_u32 v7, %d, v7" % HB)
    a.srd(20, 6, 2457600)
    for j in range(10): a("s_mul_i32 s%d, s%d, 1920" % (40 + j, 50 + j))
    a("s_lshl_b32 s66, s32, 10")
    def wvoff(dst, blk_add):
        a("v_add_u32 v%d, %d, v0" % (TT, blk_add))
        a("v_mul_u32_u24 v%d, 2185, v%d" % (TT + 1, TT)); a("v_lshrrev_b32 v%d, 16, v%d" % (TT + 1, TT + 1))
        a("v_mul_u32_u24 v%d, 30, v%d" % (TT + 2, TT + 1)); a("v_sub_u32 v%d, v%d, v%d" % (TT + 2, TT, TT + 2))
        a("v_mul_u32_u24 v%d, 205, v%d" % (TT + 3, TT + 2)); a("v_lshrrev_b32 v%d, 11, v%d" % (TT + 3, TT + 3))
        a("v_mul_u32_u24 v%d, 1120, v%d" % (TT + 3, TT + 3)); a("v_lshl_add_u32 v%d, v%d, 4, v%d" % (TT + 3, TT + 2, TT + 3))
        a("v_bfe_u32 v%d, v%d, 2, 2" % (TT + 4, TT + 1)); a("v_lshlrev_b32 v%d, 3, v%d" % (TT + 4, TT + 4))
        a("v_bfe_u32 v%d, v%d, 4, 1" % (TT + 2, TT + 1)); a("v_lshl_add_u32 v%d, v%d, 2, v%d" % (TT + 4, TT + 2, TT + 4))
        a("v_and_b32 v%d, 3, v%d" % (TT + 2, TT + 1)); a("v_add_u32 v%d, v%d, v%d" % (TT + 4, TT + 4, TT + 2))
        a("v_mul_u32_u24 v%d, 3840, v%d" % (TT + 4, TT + 4)); a("s_mul_i32 s68, s37, 160")
        a("v_add3_u32 v%d, v%d, v%d, s68" % (dst, TT + 4, TT + 3))
        if blk_add: a("v_cmp_gt_u32 vcc, 960, v%d" % TT); a("s_nop 1"); a("v_cndmask_b32 v%d, v%d, v%d, vcc" % (dst, TT + 5, dst))
    wvoff(VW0, 0); wvoff(VW1, 512)
    lg = Q(15)
    def groups(gm):
        c, hf = gm >> 1, gm & 1; wb = (gm % NW) * WSL
        g1 = ["s_add_u32 m0, s66, %d" % wb, "s_add_u32 s68, s%d, %d" % (40 + c, hf * 122880), "buffer_load_dwordx4 v%d, s[20:23], s68 offen lds" % VW0]
        g2 = ["s_add_u32 m0, s66, %d" % (wb + 8192), "s_nop 0", "buffer_load_dwordx4 v%d, s[20:23], s68 offen lds" % VW1]
        return [(g1, ("g", gm)), (g2, ("g", gm))]
    def emit_dma(g):
        for s in g[0]: a(s)
        vm.issue(g[1])
    a("s_and_b32 s68, s32, 3"); a("s_lshr_b32 s69, s32, 2")
    a("v_lshrrev_b32 v%d, 2, v2" % TT); a("v_mul_u32_u24 v%d, 480, v%d" % (TT, TT)); a("v_and_b32 v%d, 3, v2" % (TT + 1)); a("v_lshl_add_u32 v%d, v%d, 3, v%d" % (TT, TT + 1, TT))
    a("s_lshl_b32 s70, s68, 7"); a("s_lshl_b32 s71, s69, 6"); a("s_add_u32 s60, s70, s71"); a("s_xor_b32 s61, s60, 64")
    a("v_add_u32 v%d, s60, v%d" % (VWR[0], TT)); a("v_add_u32 v%d, %d, v%d" % (VWR[1], 3 * WSL, VWR[0]))
    a("v_add_u32 v%d, s61, v%d" % (VWR[2], TT)); a("v_add_u32 v%d, %d, v%d" % (VWR[3], 3 * WSL, VWR[2]))
    xr_base(a, TT)
    a("v_add_u32 v%d, %d, v%d" % (VXR[2], HB, TT)); a("v_xor_b32 v%d, 64, v%d" % (VXR[3], VXR[2]))
    a("s_lshl_b32 s70, s69, 13"); a("s_add_u32 s70, s70, %d" % XB)
    a("v_add_u32 v%d, s70, v%d" % (VXR[0], TT)); a("v_xor_b32 v%d, 64, v%d" % (VXR[1], VXR[0]))
    xw_addr(a, VXW0, VXW1, XB, TT)
    dq = []
    for gm in range(NW): dq += groups(gm)
    x_stats(a, vm, dq, emit_dma, S)
    def xnorm(j, h):
        r = RAW + 8 * j + 4 * h
        return norm_ops(r, S[2 * h], S[2 * h + 1], T) + ["ds_write_b128 v%d, v[%d:%d] offset:%d" % (VXW1 if h else VXW0, r, r + 3, (j % 2) * 16384)]
    wait(a, vm=vm.need("halo"))
    for r in HS: a("v_mov_b32 v%d, 0" % r)
    for d in range(12): a("v_dot2c_f32_bf16 v%d, s33, v%d" % (HS[0], HR + d)); a("v_dot2c_f32_bf16 v%d, v%d, v%d" % (HS[1], HR + d, HR + d))
    a("s_nop 0")
    dpp_reduce(a, HS, ["quad_perm:[1,0,3,2]", "quad_perm:[2,3,0,1]", "row_half_mirror", "row_mirror"])
    for i in range(2): a("ds_swizzle_b32 v%d, v%d offset:0x401f" % (TT + i, HS[i]))
    for s in xnorm(0, 0) + xnorm(0, 1): a(s)
    a("s_waitcnt lgkmcnt(2)")
    for i in range(2): a("v_add_f32 v%d, v%d, v%d" % (HS[i], HS[i], TT + i))
    stats_finish(a, [(HS[0], HS[1])])
    for i in range(3):
        for s in norm_ops(HR + 4 * i, HS[0], HS[1], T): a(s)
        a("ds_write_b128 v7, v[%d:%d] offset:%d" % (HR + 4 * i, HR + 4 * i + 3, 8192 * i))
    stamp(a, st, 1)
    def reads(s_):
        out = []; fb = FR[s_ % 2]; pos = s_ % NW; c = s_ >> 1; kh = s_ & 1
        def xr(u): return ("ds_read_b128 v[%d:%d], v%d offset:%d" % (fb + 16 + 4 * u, fb + 19 + 4 * u, VXR[kh] if u < 4 else VXR[2 + kh], (c % 2) * 16384 + 2048 * u if u < 4 else 2048 * c))
        def wr(t, tt): return ("ds_read_b64_tr_b16 v[%d:%d], v%d offset:%d" % (fb + 4 * t + 2 * tt, fb + 4 * t + 2 * tt + 1, VWR[2 * (t >> 1) + (1 if pos >= 3 else 0)], (pos % 3) * WSL + 7680 * tt + 32 * (t & 1)))
        for t in range(4): out += [wr(t, 0), wr(t, 1), xr(t)]
        out.append(xr(4))
        return out
    wait(a, vm=vm.need(("g", 0)), lg=0); a("s_barrier")
    for r in reads(0): a(r)
    for s in xnorm(1, 0): a(s)
    for s_ in range(20):
        fb = FR[s_ % 2]
        mf = []
        for t in range(4):
            for u in range(4): mf.append((ACC + (t * 4 + u) * 4, t, u))
            if t < 2: mf.append((ACC + 64 + 4 * t, t, 4))
        a("s_waitcnt lgkmcnt(0)")
        rq = []; dq = []; fq = []
        for i, (c, t, u) in enumerate(mf):
            a("v_mfma_f32_16x16x32_bf16 v[%d:%d], v[%d:%d], v[%d:%d], %s" % (c, c + 3, fb + 4 * t, fb + 4 * t + 3, fb + 16 + 4 * u, fb + 19 + 4 * u, "0" if s_ == 0 else "v[%d:%d]" % (c, c + 3)))
            if i == 1 and s_ < 19:
                wait(a, vm=vm.need(("g", s_ + 1))); a("s_barrier")
                rq = reads(s_ + 1)
                if s_ + NW < 20: dq = groups(s_ + NW)
            if i == 0 and (s_ + 3) >> 1 < 10: fq = xnorm((s_ + 3) >> 1, (s_ + 3) & 1)
            if rq: a(rq.pop(0))
            elif dq: emit_dma(dq.pop(0))
            for _ in range(2 if i % 2 else 1):
                if fq: a(fq.pop(0))
        assert not rq and not dq and not fq
    stamp(a, st, 2)
    TT = 160
    a("v_and_b32 v%d, 15, v2" % TT); a("v_mul_u32_u24 v%d, %d, v%d" % (TT, RS, TT)); a("v_lshrrev_b32 v%d, 4, v2" % (TT + 1)); a("v_lshl_add_u32 v%d, v%d, 3, v%d" % (TT, TT + 1, TT))
    a("v_add_u32 v%d, s60, v%d" % (TT + 2, TT))
    a("s_lshr_b32 s69, s32, 2"); a("s_mul_i32 s70, s69, %d" % (64 * RS)); a("s_add_u32 s70, s70, %d" % (16 * RS))
    a("v_add_u32 v%d, s70, v%d" % (TT + 3, TT + 2)); a("s_sub_u32 s71, s61, s60"); a("v_add_u32 v%d, s71, v%d" % (TT + 4, TT + 3))
    a("s_barrier")
    def wr_tile(t, u):
        c = ACC + (t * 4 + u) * 4 if u < 4 else ACC + 64 + 4 * t
        a("v_cvt_pk_bf16_f32 v%d, v%d, v%d" % (c, c, c + 1)); a("v_cvt_pk_bf16_f32 v%d, v%d, v%d" % (c + 1, c + 2, c + 3))
        vb = (TT + 3 if t < 2 else TT + 4) if u < 4 else TT + 2
        a("ds_write_b64 v%d, v[%d:%d] offset:%d" % (vb, c, c + 1, (16 * RS * u if u < 4 else 0) + 32 * (t & 1)))
    for t in (0, 2):
        for u in range(5 if t < 2 else 4): wr_tile(t, u)
    a("s_cmp_eq_u32 s32, 7"); a("s_cbranch_scc1 K1_att_s1")
    for u in range(5): wr_tile(1, u)
    a("K1_att_s1:")
    a("s_cmp_eq_u32 s32, 3"); a("s_cbranch_scc1 K1_att_s3")
    for u in range(4): wr_tile(3, u)
    a("K1_att_s3:")
    AQ, AV, VI = TT, TT + 1, TT + 2
    def rowaddr(dst, hh, bq, par, i):
        a("v_bfe_u32 v%d, v2, %d, 1" % (TT + 8, bq)); a("v_lshlrev_b32 v%d, 3, v%d" % (TT + 8, TT + 8))
        a("v_bfe_u32 v%d, v2, %d, 1" % (TT + 9, par)); a("v_add_u32 v%d, v%d, v%d" % (TT + 8, TT + 8, TT + 9))
        a("v_bfe_u32 v%d, v2, %d, 2" % (TT + 9, i)); a("v_lshl_add_u32 v%d, v%d, 1, v%d" % (TT + 8, TT + 9, TT + 8))
        a("v_mul_u32_u24 v%d, %d, v%d" % (TT + 10, RS, TT + 8))
        a("v_bfe_u32 v%d, v2, %d, 2" % (TT + 9, hh)); a("v_mul_u32_u24 v%d, 40, v%d" % (TT + 9, TT + 9))
        a("v_add3_u32 v%d, v%d, v%d, s70" % (dst, TT + 10, TT + 9))
    a("s_mul_i32 s70, s32, %d" % (16 * RS))
    rowaddr(AV, 0, 4, 5, 2)
    rowaddr(AQ, 2, 4, 5, 0)
    a("v_and_b32 v%d, 3, v2" % VI)
    SO = TT + 12
    a("s_mul_i32 s71, s37, 20"); a("v_lshrrev_b32 v%d, 3, v%d" % (TT + 9, TT + 9)); a("v_add_u32 v%d, s71, v%d" % (TT + 9, TT + 9))
    for dp in range(5):
        a("v_add_u32 v%d, %d, v%d" % (TT + 10, dp, TT + 9))
        a("v_lshrrev_b32 v%d, 3, v%d" % (TT + 11, TT + 10)); a("v_lshlrev_b32 v%d, 12, v%d" % (TT + 11, TT + 11))
        a("v_lshl_add_u32 v%d, v%d, 4, v%d" % (TT + 11, TT + 8, TT + 11))
        a("v_and_b32 v%d, 3, v%d" % (SO + dp, TT + 10)); a("v_lshl_add_u32 v%d, v%d, 8, v%d" % (TT + 11, SO + dp, TT + 11))
        a("v_bfe_u32 v%d, v%d, 2, 1" % (TT + 10, TT + 10)); a("v_lshl_add_u32 v%d, v%d, 3, v%d" % (SO + dp, TT + 10, TT + 11))
    a("s_lshl_b32 s71, s36, 1"); a("s_lshr_b32 s69, s32, 2"); a("s_add_u32 s71, s71, s69"); a("s_mul_i32 s71, s71, %d" % (68 * 4096))
    a("s_and_b32 s69, s32, 3"); a("s_lshl_b32 s69, s69, 10"); a("s_add_u32 s71, s71, s69")
    if ACT_OFF: a("s_add_u32 s71, s71, %d" % ACT_OFF)
    for k in range(1, 4): a("v_cmp_gt_u32 s[%d:%d], %d, v%d" % (60 + 2 * k, 61 + 2 * k, k, VI))
    a("s_waitcnt lgkmcnt(0)"); a("s_barrier")
    QR = 16; KR = 26; VR = 56; S = 88; O = 100; P = 120; Z = 128
    lg.clear()
    for dp in range(5): a("ds_read_b64 v[%d:%d], v%d offset:%d" % (QR + 2 * dp, QR + 2 * dp + 1, AQ, 16 * RS + 8 * dp)); lg.issue(("q", dp))
    for kb in range(3):
        for dp in range(5):
            a("ds_read_b64 v[%d:%d], v%d offset:%d" % (KR + 10 * kb + 2 * dp, KR + 10 * kb + 2 * dp + 1, AQ, 8 * kb * RS + 160 + 8 * dp)); lg.issue(("k", kb, dp))
    vq = [(kb, dp) for dp in range(5) for kb in range(3)]
    for kb in range(3):
        wait(a, lg=lg.need(("k", kb, 4)))
        for _ in range(5):
            k2, d2 = vq.pop(0)
            a("ds_read_b64_tr_b16 v[%d:%d], v%d offset:%d" % (VR + 10 * k2 + 2 * d2, VR + 10 * k2 + 2 * d2 + 1, AV, 8 * k2 * RS + 320 + 8 * d2)); lg.issue(("v", k2, d2))
    for dp in range(5):
        for kb in range(3):
            a("v_mfma_f32_4x4x4_16b_bf16 v[%d:%d], v[%d:%d], v[%d:%d], %s" % (S + 4 * kb, S + 4 * kb + 3, KR + 10 * kb + 2 * dp, KR + 10 * kb + 2 * dp + 1, QR + 2 * dp, QR + 2 * dp + 1,
                                                                             "0" if dp == 0 else "v[%d:%d]" % (S + 4 * kb, S + 4 * kb + 3)))
    a("s_nop 4")
    a("s_or_b32 s69, s36, s32"); a("s_cmp_lg_u32 s69, 0"); a("s_cbranch_scc1 K1_att_nomask")
    a("v_lshlrev_b32 v%d, 1, v%d" % (Z, VI)); a("v_sub_u32 v%d, v%d, v%d" % (Z, TT + 8, Z))
    a("v_mov_b32 v%d, 0xff800000" % (Z + 1))
    for k in range(1, 8):
        a("v_cmp_gt_u32 vcc, %d, v%d" % (16 - 2 * k, Z)); a("s_nop 1"); a("v_cndmask_b32 v%d, v%d, v%d, vcc" % (S + k, S + k, Z + 1))
    a("K1_att_nomask:")
    for k in range(1, 4): a("v_cndmask_b32 v%d, v%d, v%d, s[%d:%d]" % (S + k, S + k + 8, S + k, 60 + 2 * k, 61 + 2 * k))
    a("v_max3_f32 v%d, v%d, v%d, v%d" % (Z, S + 1, S + 2, S + 3)); a("v_max3_f32 v%d, v%d, v%d, v%d" % (Z + 1, S + 4, S + 5, S + 6))
    a("v_max3_f32 v%d, v%d, v%d, v%d" % (Z, Z, S + 7, S + 8)); a("v_max_f32 v%d, v%d, v%d" % (Z, Z, Z + 1))
    a("s_mov_b32 s69, %s" % f2h(20 ** -0.5 * 1.4426950408889634))
    a("v_mul_f32 v%d, s69, v%d" % (Z, Z))
    for k in range(1, 9): a("v_fma_f32 v%d, v%d, s69, -v%d" % (S + k, S + k, Z))
    for k in range(1, 9): a("v_exp_f32 v%d, v%d" % (S + k, S + k))
    a("v_add_f32 v%d, v%d, v%d" % (Z, S + 1, S + 2)); a("v_add_f32 v%d, v%d, v%d" % (Z + 1, S + 3, S + 4)); a("v_add_f32 v%d, v%d, v%d" % (Z + 2, S + 5, S + 6)); a("v_add_f32 v%d, v%d, v%d" % (Z + 3, S + 7, S + 8))
    a("v_add_f32 v%d, v%d, v%d" % (Z, Z, Z + 1)); a("v_add_f32 v%d, v%d, v%d" % (Z + 2, Z + 2, Z + 3)); a("v_add_f32 v%d, v%d, v%d" % (Z, Z, Z + 2))
    a("v_rcp_f32 v%d, v%d" % (Z, Z)); a("v_mov_b32 v%d, 0" % S)
    for k in range(1, 9): a("v_mul_f32 v%d, v%d, v%d" % (S + k, S + k, Z))
    for k in range(1, 4):
        a("v_cndmask_b32 v%d, v%d, 0, s[%d:%d]" % (S + k + 8, S + k, 60 + 2 * k, 61 + 2 * k))
        a("v_cndmask_b32 v%d, 0, v%d, s[%d:%d]" % (S + k, S + k, 60 + 2 * k, 61 + 2 * k))
    for j in range(6): a("v_cvt_pk_bf16_f32 v%d, v%d, v%d" % (P + j, S + 2 * j, S + 2 * j + 1))
    a("s_waitcnt lgkmcnt(0)"); a("s_nop 0")
    for kb in range(3):
        for dp in range(5):
            a("v_mfma_f32_4x4x4_16b_bf16 v[%d:%d], v[%d:%d], v[%d:%d], %s" % (O + 4 * dp, O + 4 * dp + 3, VR + 10 * kb + 2 * dp, VR + 10 * kb + 2 * dp + 1, P + 2 * kb, P + 2 * kb + 1,
                                                                             "0" if kb == 0 else "v[%d:%d]" % (O + 4 * dp, O + 4 * dp + 3)))
    a("s_nop 4")
    for dp in range(5):
        a("v_cvt_pk_bf16_f32 v%d, v%d, v%d" % (O + 4 * dp, O + 4 * dp, O + 4 * dp + 1)); a("v_cvt_pk_bf16_f32 v%d, v%d, v%d" % (O + 4 * dp + 1, O + 4 * dp + 2, O + 4 * dp + 3))
        a("buffer_store_dwordx2 v[%d:%d], v%d, s[28:31], s71 offen %s" % (O + 4 * dp, O + 4 * dp + 1, SO + dp, C.sc1))
    stamp(a, st, 3)
    if st: a("s_waitcnt vmcnt(0)")
    stamp(a, st, 4)

import copy
def gen_k1(st_slot0=0, st_total=9):
    a = Asm(); vm = Q(63)
    prologue(a, vm)
    vm2 = copy.deepcopy(vm)
    k1_ffn(a, vm)
    k1_att(a, vm2)
    a("K1_fin:")
    stamp_flush(a, C.st, 5, 28, 2, st_slot0, st_total)
    a("K1_end:"); a("s_endpgm")
    return ("k1_kernel", a.text().replace("CODE_LINES", "(K2_end-K1_pf)/128"), 256, 512, 155648, 256, 102, None)

if __name__ == "__main__":
    out = sys.argv[1]
    for kv in sys.argv[2:]:
        k, v = kv.split("="); setattr(C, k, int(v) if v.lstrip("-").isdigit() else v)
    ks = [gen_k1(), gen_k2(C.st, 4, 5, 9, rot_on=0)]
    open(out, "w").write(module(ks, HEADER))
```

```python
import sys, struct, copy
from asmlib import *
from gen import *
from gen1 import Q, wait, f2h, GA, GB, HEADER
from gen2 import bfr, stats_finish, dpp_reduce, norm_ops, xr_base
XBYTES = 2621440
def raw(j): return 40 if j == 0 else 96 + 16 * j
OOB = 0x7ff00000
class Cfg:
    st = 0; rotp = 1; rotk = 0; xbar = 1; pref = 0; sc1 = ""; fused = 0; dstart = 2; dbg = 0
C = Cfg()
def R(n, k=4):
    return ("a[%d:%d]" % (n - 256, n - 256 + k - 1)) if n >= 256 else ("v[%d:%d]" % (n, n + k - 1))
def cost(ins):
    n = 0
    for l in ins.split("\n"):
        n += 1
        if l.startswith("v_exp") or l.startswith("v_rcp"): n += 1
        if l.startswith("ds_write_b128"): n += 4
    return n
def ismem(ins): return ins.startswith("ds_") or ins.startswith("buffer_")

import re
def deps(ins):
    if "\n" in ins or not ins.startswith("v_") or "vcc" in ins or " s" in ins: return None
    regs = re.findall(r"[va]\d+", ins.split(" ", 1)[1])
    return {regs[0]}, set(regs[1:])

class Sched:
    def __init__(s, a, vm, lg): s.a = a; s.vm = vm; s.lg = lg; s.fq = []; s.dq = []; s.debt = 0.0
    def emit(s, item):
        ins, tag = item[0], item[1]
        if ins == "WAITVM": wait(s.a, vm=s.vm.need(tag)); return
        if ins == "WAITLG": wait(s.a, lg=s.lg.need(tag)); return
        if (C.dbg & 1) and ins.startswith("ds_write_b128"): return
        if (C.dbg & 2) and ins.startswith("v_") and deps(ins): return
        if (C.dbg & 4) and ins.startswith("ds_read_b128"): return
        if (C.dbg & 8) and ins.startswith("buffer_"): return
        if (C.dbg & 16) and ins.startswith("ds_read_b64_tr"): return
        s.a(ins)
        if tag:
            for _ in range(item[2] if len(item) > 2 else 1): (s.vm if tag[0] == "vm" else s.lg).issue(tag[1])
    def gap(s, must=(), slots=2):
        first = True
        for it in must:
            s.emit(it); slots -= cost(it[0]); first = False
        if s.dq and first and slots > 0:
            it = s.dq.pop(0); s.emit(it); slots -= cost(it[0]); first = False
        lastw = None
        while s.fq and slots > 0:
            pick = None; W = set(); Rr = set()
            for idx, it in enumerate(s.fq[:14]):
                n = cost(it[0]); d = deps(it[0])
                if d is None:
                    if idx == 0 and not ("m0" in it[0] and s.dq) and not (ismem(it[0]) and not first) and (n <= slots or (first and n > 2)): pick = 0
                    break
                w, r = d
                if n <= slots and not (r & W) and not (w & W) and not (w & Rr) and not (lastw is not None and lastw in r):
                    pick = idx; break
                W |= w; Rr |= r
            if pick is None: break
            it = s.fq.pop(pick); s.emit(it); slots -= cost(it[0]); first = False
            lastw = next(iter(deps(it[0])[0])) if (cost(it[0]) == 2 and deps(it[0])) else None
    def fcost(s): return sum(cost(it[0]) for it in s.fq) + sum(cost(it[0]) for it in s.dq)
    def flush_d(s):
        while s.dq: s.emit(s.dq.pop(0))
    def flush_f(s):
        while s.fq: s.emit(s.fq.pop(0))

def prologue(a, vm):
    st = C.st
    a("s_cmp_ge_u32 s2, 256"); a("s_cbranch_scc1 K1_end")
    stamp(a, st, 0)
    a("s_load_dwordx4 s[4:7], s[0:1], 0"); a("s_load_dwordx4 s[8:11], s[0:1], 32"); a("s_load_dwordx2 s[12:13], s[0:1], 72")
    a("s_load_dwordx2 s[14:15], s[0:1], 16"); a("s_load_dwordx2 s[96:97], s[0:1], 48")
    a("v_lshrrev_b32 v1, 6, v0"); a("v_and_b32 v2, 63, v0"); a("v_readfirstlane_b32 s32, v1")
    a("s_and_b32 s33, s2, 7"); a("s_lshr_b32 s34, s2, 3")
    a("s_and_b32 s35, s34, 7"); a("s_lshr_b32 s34, s34, 3")
    a("s_and_b32 s36, s33, 1"); a("s_lshl_b32 s36, s36, 3"); a("s_add_u32 s36, s36, s35")
    a("s_and_b32 s37, s33, 6"); a("s_and_b32 s68, s34, 1"); a("s_add_u32 s37, s37, s68")
    a("s_mul_i32 s38, s34, 5"); a("s_lshr_b32 s38, s38, 1")
    if C.rotk == 1:
        a("s_and_b32 s68, s35, 1"); a("s_mul_i32 s68, s68, 5"); a("s_add_u32 s38, s38, s68")
    if C.rotk == 2:
        a("s_lshr_b32 s69, s34, 1"); a("s_and_b32 s68, s35, s69"); a("s_mul_i32 s68, s68, 5"); a("s_add_u32 s38, s38, s68")
    if C.rotk: a("s_sub_u32 s68, s38, 10"); a("s_cmp_ge_u32 s38, 10"); a("s_cselect_b32 s38, s68, s38")
    a("s_mov_b32 s76, s38")
    if C.rotp:
        a("s_mul_i32 s68, s35, 11"); a("s_lshr_b32 s68, s68, 5"); a("s_mul_i32 s68, s68, 3"); a("s_sub_u32 s39, s35, s68")
    else: a("s_mov_b32 s39, 0")
    a("v_lshrrev_b32 v3, 3, v2"); a("v_lshl_add_u32 v3, v1, 5, v3"); a("s_lshl_b32 s68, s36, 7"); a("v_add_u32 v3, s68, v3"); a("v_mul_u32_u24 v3, 1280, v3")
    a("v_and_b32 v4, 7, v2"); a("v_lshl_add_u32 v3, v4, 4, v3")
    for h in range(1, 4): a("v_add_u32 v%d, %d, v3" % (3 + h, 10240 * h))
    for j in range(10):
        a("s_lshl_b32 s%d, s38, 7" % (50 + j))
        if j < 9: a("s_add_u32 s38, s38, 1"); a("s_cmp_eq_u32 s38, 10"); a("s_cselect_b32 s38, 0, s38")
    a("s_waitcnt lgkmcnt(0)")
    a.srd(16, 4, XBYTES)
    for j in range(10):
        for h in range(4):
            a("buffer_load_dwordx4 %s, v%d, s[16:19], s%d offen" % (R(raw(j) + 4 * h), 3 + h, 50 + j)); vm.issue(("x", j))
        if C.xbar and j % 2 == 1 and j < 9: a("s_barrier")
        if j == 1 and C.pref:
            a("s_getpc_b64 s[68:69]"); a("v_lshlrev_b32 v7, 7, v0"); a("v_mov_b32 v9, s69"); a("v_add_co_u32 v8, vcc, s68, v7"); a("s_nop 1"); a("v_addc_co_u32 v9, vcc, 0, v9, vcc")
            a("global_load_dword v16, v[8:9], off"); vm.issue("pf")
            a("K1_pf:")
    a.srd(28, 12, WS_BYTES)
    a("s_mov_b32 s33, 0x3f803f80")
    a("s_cmp_ge_u32 s34, 2"); a("s_cbranch_scc1 K1_att")

def x_stats(a, sc, S, park=None):
    for r in S: a("v_mov_b32 v%d, 0" % r)
    for j in range(10):
        wait(a, vm=sc.vm.need(("x", j)))
        for d in range(4):
            for h in range(4):
                r = raw(j) + 4 * h + d
                a("v_dot2c_f32_bf16 v%d, s33, v%d" % (S[2 * h], r)); a("v_dot2c_f32_bf16 v%d, v%d, v%d" % (S[2 * h + 1], r, r))
            if sc.dq and j >= C.dstart:
                if "m0" in sc.dq[0][0]: sc.emit(sc.dq.pop(0))
                sc.emit(sc.dq.pop(0))
        if park and j in park and j < 9:
            for d in range(16): a("v_accvgpr_write_b32 a%d, v%d" % (park[j] - 256 + d, raw(j) + d))
    a("s_nop 2")
    dpp_reduce(a, S, ["quad_perm:[1,0,3,2]", "quad_perm:[2,3,0,1]", "row_half_mirror"])
    stats_finish(a, [(S[2 * h], S[2 * h + 1]) for h in range(4)])
    sc.flush_d()

def xw_addr(a, V0, V1, base, T):
    a("v_lshrrev_b32 v%d, 4, v2" % T); a("v_and_b32 v%d, 7, v2" % (T + 1)); a("v_xor_b32 v%d, v%d, v%d" % (T, T, T + 1)); a("v_lshlrev_b32 v%d, 4, v%d" % (T, T))
    a("v_lshrrev_b32 v%d, 3, v2" % (T + 1)); a("v_lshl_add_u32 v%d, v%d, 7, v%d" % (T, T + 1, T))
    a("s_lshl_b32 s71, s32, 12"); a("s_add_u32 s71, s71, %d" % base); a("v_add_u32 v%d, s71, v%d" % (V0, T))
    a("v_xor_b32 v%d, 64, v%d" % (V1, V0)); a("v_add_u32 v%d, 1024, v%d" % (V1, V1))

def k1_ffn(a, vm):
    st = C.st
    SL = 16896; NS = 7; XB = NS * SL
    lg = Q(15); sc = Sched(a, vm, lg)
    a("s_and_b32 s68, s32, 1"); a("s_lshr_b32 s69, s32, 1")
    a("s_cmp_eq_u32 s68, 0"); a("s_cselect_b32 s8, s8, s10"); a("s_cselect_b32 s9, s9, s11")
    a.srd(20, 8, 1966080)
    for j in range(10): a("s_mul_i32 s%d, s%d, 1536" % (40 + j, 50 + j))
    a("s_lshl_b32 s70, s36, 1"); a("s_add_u32 s70, s70, s68"); a("s_mul_i32 s70, s70, 68")
    a("s_mul_i32 s71, s37, 6"); a("s_add_u32 s70, s70, s71"); a("s_add_u32 s70, s70, s69"); a("s_add_u32 s70, s70, 20"); a("s_lshl_b32 s70, s70, 12")
    if ACT_OFF: a("s_add_u32 s70, s70, %d" % ACT_OFF)
    for p in range(3):
        a("s_lshl_b32 s%d, s39, 7" % (60 + p)); a("s_lshl_b32 s71, s39, 13"); a("s_add_u32 s%d, s70, s71" % (63 + p))
        if p < 2: a("s_add_u32 s39, s39, 1"); a("s_cmp_eq_u32 s39, 3"); a("s_cselect_b32 s39, 0, s39")
    a("s_mul_i32 s66, s32, 4224")
    VWO = [3, 4, 5, 6]; VWR, VWR2, VXR0, VXR1, VXW0, VXW1 = 7, 8, 9, 10, 11, 12
    VST, VA_, VB_ = 9, 10, 11
    WF = 16; ACC = [40, 104]
    S = list(range(104, 112)); T = [13, 14, 15, 1]; TE = [232, 233, 234, 235]; PV = 12; PR = 236
    def X(j, kk, tt): return (256 + 32 * j if j < 8 else 168 + 32 * (j - 8)) + (kk * 4 + tt) * 4
    a("v_lshrrev_b32 v13, 5, v2"); a("v_lshlrev_b32 v13, 4, v13"); a("v_bfe_u32 v14, v2, 4, 1"); a("v_lshl_add_u32 v13, v14, 2, v13")
    a("v_bfe_u32 v14, v2, 3, 1"); a("s_lshl_b32 s71, s69, 5"); a("v_add3_u32 v13, v13, v14, s71"); a("v_mul_u32_u24 v13, 3072, v13")
    a("v_and_b32 v14, 7, v2"); a("v_lshlrev_b32 v14, 4, v14")
    a("s_mul_i32 s71, s37, 384"); a("v_add3_u32 v%d, v13, v14, s71" % VWO[0])
    for i in range(1, 4): a("v_add_u32 v%d, %d, v%d" % (VWO[i], (8 * (i >> 1) + 2 * (i & 1)) * 3072 - 1056 * i, VWO[0]))
    def dma(n):
        p, j = n // 10, n % 10; base = (n % NS) * SL
        out = []
        for i in range(4):
            ld = "buffer_load_dwordx4 v%d, s[20:23], s68 offen offset:%d lds" % (VWO[i], 1056 * i)
            if i == 0: out.append(("s_add_u32 m0, s66, %d\ns_add_u32 s68, s%d, s%d" % (base, 40 + j, 60 + p), None))
            out.append((ld, ("vm", ("slot", n))))
        return out
    a("v_bfe_u32 v13, v2, 3, 2"); a("v_mul_u32_u24 v13, 1056, v13")
    a("v_lshrrev_b32 v14, 5, v2"); a("v_lshlrev_b32 v14, 2, v14"); a("v_bfe_u32 v15, v2, 2, 1"); a("v_add_u32 v14, v14, v15"); a("v_lshl_add_u32 v13, v14, 7, v13")
    a("v_and_b32 v14, 3, v2"); a("v_lshlrev_b32 v14, 3, v14"); a("s_lshl_b32 s71, s69, 6")
    a("v_add3_u32 v%d, v13, v14, s71" % VWR); a("v_add_u32 v%d, %d, v%d" % (VWR2, 4 * SL, VWR))
    xr_base(a, 13)
    a("s_lshl_b32 s71, s68, 13"); a("s_add_u32 s71, s71, %d" % XB); a("v_add_u32 v%d, s71, v13" % VXR0); a("v_xor_b32 v%d, 64, v%d" % (VXR1, VXR0))
    xw_addr(a, VXW0, VXW1, XB, 13)
    for n in range(NS): sc.dq += dma(n)
    issued = NS
    x_stats(a, sc, S)
    stamp(a, st, 1)
    def wreads(g):
        s_, u = g // 8, g % 8; pos = s_ % NS; kk, wt = u >> 2, u & 3
        vb = VWR if pos < 4 else VWR2; off = (pos % 4) * SL + (kk * 2 + (wt >> 1)) * 4224 + 32 * (wt & 1)
        b = WF + (g % 6) * 4
        return [("ds_read_b64_tr_b16 %s, v%d offset:%d" % (R(b + 2 * t, 2), vb, off + 256 * t), ("lg", ("w", g // 2))) for t in range(2)]
    def xreads(j):
        return [("ds_read_b128 %s, v%d offset:%d" % (R(X(j, kk, tt)), VXR1 if kk else VXR0, (j % 2) * 16384 + 2048 * tt), ("lg", ("x", j, kk))) for kk in range(2) for tt in range(4)]
    def xnorm(j):
        out = []
        for h in range(4): out += [(s, None) for s in norm_ops(raw(j) + 4 * h, S[2 * h], S[2 * h + 1], T)]
        return out
    def xwrite(j):
        return [("ds_write_b128 v%d, %s offset:%d" % (VXW1 if h & 1 else VXW0, R(raw(j) + 4 * h), (j % 2) * 16384 + 2048 * (h >> 1)), ("lg", ("xw", j))) for h in range(4)]
    def epilogue(p):
        out = []; base = ACC[p % 2]
        for tt in range(4):
            D = base + (8 + tt) * 4
            for a_ in range(2):
                G = [base + (a_ * 4 + tt) * 4 + k for k in range(4)]; U = [base + ((2 + a_) * 4 + tt) * 4 + k for k in range(4)]; t = TE
                f_sq = lambda k: "v_mul_f32 v%d, v%d, v%d" % (t[k], G[k], G[k])
                f_fm = lambda k: "v_fma_f32 v%d, v%d, v%d, v%d" % (t[k], t[k], VB_, VA_)
                f_m2 = lambda k: "v_mul_f32 v%d, v%d, v%d" % (t[k], t[k], G[k])
                f_ex = lambda k: "v_exp_f32 v%d, v%d" % (t[k], t[k])
                f_gu = lambda k: "v_mul_f32 v%d, v%d, v%d" % (G[k], G[k], U[k])
                f_ad = lambda k: "v_add_f32 v%d, 1.0, v%d" % (t[k], t[k])
                f_rc = lambda k: "v_rcp_f32 v%d, v%d" % (t[k], t[k])
                f_fi = lambda k: "v_mul_f32 v%d, v%d, v%d" % (G[k], G[k], t[k])
                for f in (f_sq, f_fm, f_m2, f_ex, f_gu, f_ad, f_rc, f_fi):
                    for k in range(4): out.append((f(k), None))
                out.append(("v_cvt_pk_bf16_f32 v%d, v%d, v%d" % (D + 2 * a_, G[0], G[1]), None))
                out.append(("v_cvt_pk_bf16_f32 v%d, v%d, v%d" % (D + 2 * a_ + 1, G[2], G[3]), None))
            out.append(("buffer_store_dwordx4 %s, v%d, s[28:31], s%d offen offset:%d %s" % (R(D), VST, 63 + p, 1024 * tt, C.sc1), ("vm", "st")))
        return out
    def pack1():
        pre = ["s_mul_i32 s98, s2, 3", "s_add_u32 s98, s98, s32", "s_cmp_lt_u32 s32, 3", "s_cselect_b32 s98, s98, 500", "s_lshr_b32 s99, s98, 2",
               "s_sub_u32 s100, s99, 20", "s_cmp_lt_u32 s99, 20", "s_cselect_b32 s100, s99, s100",
               "s_cselect_b32 s72, s14, s96", "s_cselect_b32 s73, s15, s97", "s_cselect_b32 s74, 0, 0x118000"]
        pre2 = ["s_add_u32 s74, s74, 819200", "s_and_b32 s73, s73, 0xffff", "s_mov_b32 s75, 0x00020000",
                "s_mul_i32 s100, s100, 40960", "s_and_b32 s101, s98, 3", "s_mul_i32 s101, s101, 5120", "s_add_u32 s100, s100, s101",
                "s_mul_i32 s101, s32, 10240", "s_add_u32 s101, s101, %d" % XB, "s_cmp_lt_u32 s32, 3\ns_cselect_b32 s101, s101, 0x30000"]
        out = [("\n".join(pre), None)] + [(s, None) for s in pre2]
        for tt in range(2):
            for o, n in ((0, 4), (4096, 1)):
                g = ["s_add_u32 m0, s101, %d" % (5120 * tt + o), "s_add_u32 s67, s100, %d" % (20480 * tt + o)]
                g += ["buffer_load_dwordx4 v%d, s[72:75], s67 offen offset:%d lds" % (VST, 1024 * i) for i in range(n)]
                out.append(("\n".join(g), ("vm", "pk"), n))
        return out
    def pack2():
        V = PV
        out = [(s, None) for s in ["v_lshrrev_b32 v%d, 4, v2" % (V + 1), "v_mul_u32_u24 v%d, 160, v%d" % (V, V + 1), "s_mov_b32 s100, %d" % (68 * 5120), "v_mul_lo_u32 v%d, v%d, s100" % (V + 1, V + 1),
                "v_bfe_u32 v%d, v2, 2, 2" % (V + 2), "v_mul_u32_u24 v%d, 1280, v%d" % (V + 2, V + 2), "v_add_u32 v%d, v%d, v%d" % (V, V, V + 2),
                "v_and_b32 v%d, 3, v2" % (V + 2), "v_mul_u32_u24 v%d, 40, v%d" % (V + 2, V + 2), "v_add3_u32 v%d, v%d, v%d, s101" % (V, V, V + 2),
                "v_and_b32 v%d, 15, v2" % (V + 2), "v_lshl_add_u32 v%d, v%d, 4, v%d" % (V + 1, V + 2, V + 1), "v_add_u32 v%d, 4096, v%d" % (V + 2, V + 1),
                "s_mul_i32 s100, s99, 5120", "s_and_b32 s101, s98, 3", "s_lshl_b32 s101, s101, 8", "s_add_u32 s100, s100, s101", "s_add_u32 s100, s100, %d" % W2P_OFF,
                "s_cmp_lt_u32 s98, 272\ns_cselect_b32 s100, s100, 0x%x" % OOB, "s_add_u32 s101, s100, %d" % (272 * 5120)]]
        out.append(("WAITVM", "pk"))
        for hf in range(2):
            for i in range(5):
                for tt in range(2): out.append(("ds_read_b64_tr_b16 %s, v%d offset:%d" % (R(PR + 4 * i + 2 * tt, 2), V, 8 * i + 5120 * tt + 640 * hf), ("lg", ("pk", hf, i))))
            out += [("s_nop 0", None)] * 9
            for i in range(5):
                out.append(("WAITLG", ("pk", hf, i)))
                out.append(("buffer_store_dwordx4 %s, v%d, s[28:31], s%d offen offset:%d %s" % (R(PR + 4 * i), V + 1 if i < 4 else V + 2, 100 + hf, 1024 * (i % 4), C.sc1), ("vm", "pst")))
            out += [("s_nop 0", None)] * 2
        return out
    n0 = xnorm(0); w0 = xwrite(0); n1 = xnorm(1); w1 = xwrite(1)
    for h in range(4):
        for it in n0[20 * h:20 * h + 20] + [w0[h]]: sc.emit(it)
    for it in n1[:40] + w1[:2]: sc.emit(it)
    wait(a, vm=vm.need(("slot", 0)), lg=lg.need(("xw", 0))); a("s_barrier")
    xq = xreads(0)
    for it in wreads(0) + xq[:4] + wreads(1) + wreads(2) + wreads(3) + xq[4:]: sc.emit(it)
    for it in n1[40:] + w1[2:]: sc.emit(it)
    sc.fq = xnorm(2)
    xq = []
    wait(a, lg=lg.need(("w", 0), ("x", 0, 0)))
    for P in range(120):
        s_ = P // 4; p, j = s_ // 10, s_ % 10; kk = (P >> 1) & 1
        if P == 40:
            sc.fq += [("v_lshlrev_b32 v%d, 4, v2" % VST, None), ("v_mov_b32 v%d, %s" % (VA_, f2h(GA)), None), ("v_mov_b32 v%d, %s" % (VB_, f2h(GB)), None)]
        if P % 40 == 1 and p >= 1: sc.fq += epilogue(p - 1)
        if P == 41: sc.fq += pack1()
        if P == 81: sc.fq += pack2()
        Pn = P + 2
        bar = Pn < 120 and Pn % 4 == 0
        wr = (wreads(2 * Pn) + wreads(2 * Pn + 1)) if Pn < 120 else []
        for i in range(8):
            g = 2 * P + (i >> 2); wt = g & 3; tt = i & 3
            c = ACC[p % 2] + (wt * 4 + tt) * 4; b = WF + (g % 6) * 4
            if i == 0 and bar:
                s2 = Pn // 4
                sc.flush_d()
                if s2 < 10: sc.flush_f()
            a("v_mfma_f32_16x16x32_bf16 %s, %s, %s, %s" % (R(c), R(b), R(X(j, kk, tt)), "0" if (j == 0 and kk == 0) else R(c)))
            if i == 0 and bar:
                wait(a, vm=vm.need(("slot", s2)), lg=lg.need(("xw", s2))); a("s_barrier")
                while issued <= s2 - 2 + NS and issued < 30:
                    sc.dq += dma(issued); issued += 1
                if s2 < 10: xq = xreads(s2)
                if s2 < 9: xq += xwrite(s2 + 1)
                if s2 < 8: sc.fq += xnorm(s2 + 2)
                continue
            must = []
            if wr and (i % 2 == 1): must.append(wr.pop(0))
            elif xq: must.append(xq.pop(0))
            slots = 2
            if p == 0 or (P == 40 - 2): left = ((4 - (Pn % 4)) * 8 - i) if True else 0
            else: left = (39 - P % 40) * 8 + 8 - i - 8
            need_rate = sc.fcost() / max(left, 1) + 0.75
            if need_rate > 2: slots = int(need_rate + 0.99)
            if i == 7: slots -= 1
            sc.gap(must, slots)
        if P + 1 < 120:
            s3 = (P + 1) // 4
            wait(a, lg=lg.need(("w", P + 1), ("x", s3 % 10, ((P + 1) >> 1) & 1)))
        if P % 40 == 39: assert not sc.fq, (P, len(sc.fq))
        if P == 39: stamp(a, st, 2)
    stamp(a, st, 3)
    a("s_nop 7")
    for it in epilogue(2): sc.emit(it)
    if st: a("s_waitcnt vmcnt(0)")
    stamp(a, st, 4)
    a("s_branch K1_fin")

def k1_att(a, vm):
    st = C.st
    a("K1_att:")
    WSL = 16384; NW = 6; XB = NW * WSL; HB = XB + 32768
    RS = 496
    lg = Q(15); sc = Sched(a, vm, lg)
    VWO = [3, 4, 5, 6]; VWR = [7, 8]; VXR = [9, 10, 11, 12]; VXW0, VXW1, VH = 13, 14, 15
    S = list(range(96, 104)); T = [104, 105, 106, 107]; RB = 108; TT = 16; HS = [30, 31]; HR = 56
    FR = [256, 308]; park = {6: 360, 7: 376, 8: 392, 9: 408}
    def acc(t, u):
        i = t * 9 + u
        return 16 + 4 * i if i < 20 else 192 + 4 * (i - 20)
    a("v_lshrrev_b32 v%d, 4, v0" % TT)
    a("v_mul_u32_u24 v%d, 1280, v%d" % (TT + 1, TT)); a("v_and_b32 v%d, 7, v2" % (TT + 2)); a("v_lshl_add_u32 v%d, v%d, 4, v%d" % (TT + 1, TT + 2, TT + 1))
    a("s_lshl_b32 s68, s36, 7"); a("s_sub_u32 s68, s68, 16"); a("s_mul_i32 s68, s68, 1280"); a("s_cmp_eq_u32 s36, 0"); a("s_cselect_b32 s68, 0x%x, s68" % OOB)
    a("v_add_u32 v%d, s68, v%d" % (TT + 1, TT + 1)); a("v_bfe_u32 v%d, v2, 3, 1" % (TT + 3)); a("v_mov_b32 v%d, 0x%x" % (TT + 5, OOB))
    for i in range(5):
        a("s_add_u32 s68, s76, %d" % (2 * i)); a("v_add_u32 v%d, s68, v%d" % (TT + 4, TT + 3))
        a("v_subrev_u32 v%d, 10, v%d" % (TT + 6, TT + 4)); a("v_min_u32 v%d, v%d, v%d" % (TT + 4, TT + 4, TT + 6))
        a("v_lshl_add_u32 v%d, v%d, 7, v%d" % (TT + 4, TT + 4, TT + 1))
        a("buffer_load_dwordx4 %s, v%d, s[16:19], 0 offen" % (R(HR + 4 * i), TT + 4)); vm.issue("halo")
    a("v_lshrrev_b32 v%d, 1, v%d" % (VH, TT)); a("v_xor_b32 v%d, v%d, v%d" % (VH, VH, TT + 2)); a("v_lshlrev_b32 v%d, 4, v%d" % (VH, VH)); a("v_lshl_add_u32 v%d, v%d, 7, v%d" % (VH, TT, VH))
    a("v_lshl_add_u32 v%d, v%d, 11, v%d" % (VH, TT + 3, VH)); a("v_add_u32 v%d, %d, v%d" % (VH, HB, VH))
    a.srd(20, 6, 2457600)
    for j in range(10): a("s_mul_i32 s%d, s%d, 1920" % (40 + j, 50 + j))
    a("s_lshl_b32 s66, s32, 12")
    for i in range(4):
        a("s_lshl_b32 s68, s32, 8"); a("s_add_u32 s68, s68, %d" % (64 * i)); a("v_add_u32 v%d, s68, v2" % TT)
        a("v_mul_u32_u24 v%d, 2185, v%d" % (TT + 1, TT)); a("v_lshrrev_b32 v%d, 16, v%d" % (TT + 1, TT + 1))
        a("v_mul_u32_u24 v%d, 30, v%d" % (TT + 2, TT + 1)); a("v_sub_u32 v%d, v%d, v%d" % (TT + 2, TT, TT + 2))
        a("v_mul_u32_u24 v%d, 205, v%d" % (TT + 3, TT + 2)); a("v_lshrrev_b32 v%d, 11, v%d" % (TT + 3, TT + 3))
        a("v_mul_u32_u24 v%d, 1120, v%d" % (TT + 3, TT + 3)); a("v_lshl_add_u32 v%d, v%d, 4, v%d" % (TT + 3, TT + 2, TT + 3))
        a("v_bfe_u32 v%d, v%d, 2, 2" % (TT + 4, TT + 1)); a("v_lshlrev_b32 v%d, 3, v%d" % (TT + 4, TT + 4))
        a("v_bfe_u32 v%d, v%d, 4, 1" % (TT + 2, TT + 1)); a("v_lshl_add_u32 v%d, v%d, 2, v%d" % (TT + 4, TT + 2, TT + 4))
        a("v_and_b32 v%d, 3, v%d" % (TT + 2, TT + 1)); a("v_add_u32 v%d, v%d, v%d" % (TT + 4, TT + 4, TT + 2))
        a("v_mul_u32_u24 v%d, 3840, v%d" % (TT + 4, TT + 4)); a("s_mul_i32 s68, s37, 160"); a("s_sub_u32 s68, s68, %d" % (1024 * i))
        a("v_add3_u32 v%d, v%d, v%d, s68" % (VWO[i], TT + 4, TT + 3))
        if i == 3: a("v_cmp_gt_u32 vcc, 960, v%d" % TT); a("s_nop 1"); a("v_cndmask_b32 v%d, v%d, v%d, vcc" % (VWO[i], TT + 5, VWO[i]))
    def dma(gm):
        c, hf = gm >> 1, gm & 1; out = []
        for i in range(4):
            ld = "buffer_load_dwordx4 v%d, s[20:23], s68 offen offset:%d lds" % (VWO[i], 1024 * i)
            if i == 0: out.append(("s_add_u32 m0, s66, %d\ns_add_u32 s68, s%d, %d" % ((gm % NW) * WSL, 40 + c, hf * 122880), None))
            out.append((ld, ("vm", ("g", gm))))
        return out
    a("v_lshrrev_b32 v%d, 2, v2" % TT); a("v_mul_u32_u24 v%d, 480, v%d" % (TT, TT)); a("v_and_b32 v%d, 3, v2" % (TT + 1)); a("v_lshl_add_u32 v%d, v%d, 3, v%d" % (TT, TT + 1, TT))
    a("s_lshl_b32 s60, s32, 7")
    a("v_add_u32 v%d, s60, v%d" % (VWR[0], TT)); a("v_add_u32 v%d, %d, v%d" % (VWR[1], 3 * WSL, VWR[0]))
    xr_base(a, TT)
    a("v_add_u32 v%d, %d, v%d" % (VXR[2], HB, TT)); a("v_xor_b32 v%d, 64, v%d" % (VXR[3], VXR[2]))
    a("v_add_u32 v%d, %d, v%d" % (VXR[0], XB, TT)); a("v_xor_b32 v%d, 64, v%d" % (VXR[1], VXR[0]))
    xw_addr(a, VXW0, VXW1, XB, TT)
    for gm in range(NW): sc.dq += dma(gm)
    x_stats(a, sc, S, park)
    def loc(j): return raw(j - 4) if j in park else raw(j)
    def xnorm(j, hs):
        out = []
        for h in hs:
            r = loc(j) + 4 * h
            if j in park: out += [("v_accvgpr_read_b32 v%d, a%d" % (r + d, park[j] - 256 + 4 * h + d), None) for d in range(4)]
            out += [(s, None) for s in norm_ops(r, S[2 * h], S[2 * h + 1], T)]
        return out
    def xwrite(j, hs):
        return [("ds_write_b128 v%d, %s offset:%d" % (VXW1 if h & 1 else VXW0, R(loc(j) + 4 * h), (j % 2) * 16384 + 2048 * (h >> 1)), None) for h in hs]
    def half(n): return n >> 1, ((2, 3) if n & 1 else (0, 1))
    wait(a, vm=vm.need("halo"))
    for r in HS: a("v_mov_b32 v%d, 0" % r)
    for d in range(20): a("v_dot2c_f32_bf16 v%d, s33, v%d" % (HS[0], HR + d)); a("v_dot2c_f32_bf16 v%d, v%d, v%d" % (HS[1], HR + d, HR + d))
    a("s_nop 0")
    dpp_reduce(a, HS, ["quad_perm:[1,0,3,2]", "quad_perm:[2,3,0,1]", "row_half_mirror", "row_mirror"])
    stats_finish(a, [(HS[0], HS[1])])
    for i in range(5):
        for s in norm_ops(HR + 4 * i, HS[0], HS[1], T): a(s)
        a("ds_write_b128 v%d, %s offset:%d" % (VH, R(HR + 4 * i), 4096 * i))
    for h in range(4):
        for it in xnorm(0, (h,)) + xwrite(0, (h,)): sc.emit(it)
    for it in xnorm(1, (0, 1)) + xwrite(1, (0, 1)): sc.emit(it)
    stamp(a, st, 1)
    def reads(s_):
        out = []; fb = FR[s_ % 2]; pos = s_ % NW; c = s_ >> 1; kh = s_ & 1
        def xr(u): return ("ds_read_b128 %s, v%d offset:%d" % (R(fb + 16 + 4 * u), VXR[kh] if u else VXR[2 + kh], (c % 2) * 16384 + 2048 * (u - 1) if u else 2048 * c), None)
        def wr(t, tt): return ("ds_read_b64_tr_b16 %s, v%d offset:%d" % (R(fb + 4 * t + 2 * tt, 2), VWR[1 if pos >= 3 else 0], (pos % 3) * WSL + 7680 * tt + 32 * t), None)
        out += [wr(0, 0), wr(0, 1)] + [xr(u) for u in range(9)]
        for t in range(1, 4): out += [wr(t, 0), wr(t, 1)]
        return out
    wait(a, vm=vm.need(("g", 0)), lg=2); a("s_barrier")
    for it in reads(0): sc.emit(it)
    for d in range(16): a("v_accvgpr_write_b32 a%d, v%d" % (park[9] - 256 + d, raw(9) + d))
    for it in xnorm(1, (2, 3)): sc.emit(it)
    for s_ in range(20):
        fb = FR[s_ % 2]
        a("s_waitcnt lgkmcnt(0)")
        rq = []
        for i in range(36):
            t, u = i // 9, i % 9; c = acc(t, u)
            a("v_mfma_f32_16x16x32_bf16 %s, %s, %s, %s" % (R(c), R(fb + 4 * t), R(fb + 16 + 4 * u), "0" if s_ == 0 else R(c)))
            if i == 0 and s_ < 19:
                wait(a, vm=vm.need(("g", s_ + 1))); a("s_barrier")
                rq = reads(s_ + 1)
                if s_ + NW < 20: sc.dq += dma(s_ + NW)
                if s_ + 3 < 20: rq += xwrite(*half(s_ + 3))
                if s_ + 4 < 20: sc.fq += xnorm(*half(s_ + 4))
                continue
            left = 36 - i
            rate = (sc.fcost() + len(rq) + 1) / left
            sc.gap([rq.pop(0)] if (rq and i % 4 != 0) else [], (2 if rate <= 2 else int(rate + 0.99)) - (1 if i == 35 else 0))
        sc.flush_d(); sc.flush_f()
        assert not rq and not sc.dq and not sc.fq, (s_, len(sc.fq))
    stamp(a, st, 2)
    TT = 96
    a("v_and_b32 v%d, 15, v2" % TT); a("v_mul_u32_u24 v%d, %d, v%d" % (TT, RS, TT)); a("v_lshrrev_b32 v%d, 4, v2" % (TT + 1)); a("v_lshl_add_u32 v%d, v%d, 3, v%d" % (TT, TT + 1, TT))
    a("v_add_u32 v%d, s60, v%d" % (TT + 3, TT))
    a("s_barrier")
    def wr_tile(t, u):
        c = acc(t, u)
        a("v_cvt_pk_bf16_f32 v%d, v%d, v%d" % (c, c, c + 1)); a("v_cvt_pk_bf16_f32 v%d, v%d, v%d" % (c + 1, c + 2, c + 3))
        a("ds_write_b64 v%d, %s offset:%d" % (TT + 3, R(c, 2), 16 * RS * u + 32 * t))
    for t in range(3):
        for u in range(9): wr_tile(t, u)
    a("s_cmp_eq_u32 s32, 3"); a("s_cbranch_scc1 K1_att_s3")
    for u in range(9): wr_tile(3, u)
    a("K1_att_s3:")
    AQ, AV, VI = TT, TT + 1, TT + 2
    def rowaddr(dst, hh, bq, par, i):
        a("v_bfe_u32 v%d, v2, %d, 1" % (TT + 8, bq)); a("v_lshlrev_b32 v%d, 3, v%d" % (TT + 8, TT + 8))
        a("v_bfe_u32 v%d, v2, %d, 1" % (TT + 9, par)); a("v_add_u32 v%d, v%d, v%d" % (TT + 8, TT + 8, TT + 9))
        a("v_bfe_u32 v%d, v2, %d, 2" % (TT + 9, i)); a("v_lshl_add_u32 v%d, v%d, 1, v%d" % (TT + 8, TT + 9, TT + 8))
        a("v_mul_u32_u24 v%d, %d, v%d" % (TT + 10, RS, TT + 8))
        a("v_bfe_u32 v%d, v2, %d, 2" % (TT + 9, hh)); a("v_mul_u32_u24 v%d, 40, v%d" % (TT + 9, TT + 9))
        a("v_add3_u32 v%d, v%d, v%d, s70" % (dst, TT + 10, TT + 9))
    a("s_mul_i32 s70, s32, %d" % (32 * RS))
    rowaddr(AV, 0, 4, 5, 2)
    rowaddr(AQ, 2, 4, 5, 0)
    a("v_and_b32 v%d, 3, v2" % VI)
    SO = TT + 12
    a("s_mul_i32 s71, s37, 20"); a("v_lshrrev_b32 v%d, 3, v%d" % (TT + 9, TT + 9)); a("v_add_u32 v%d, s71, v%d" % (TT + 9, TT + 9))
    for dp in range(5):
        a("v_add_u32 v%d, %d, v%d" % (TT + 10, dp, TT + 9))
        a("v_lshrrev_b32 v%d, 3, v%d" % (TT + 11, TT + 10)); a("v_lshlrev_b32 v%d, 12, v%d" % (TT + 11, TT + 11))
        a("v_lshl_add_u32 v%d, v%d, 4, v%d" % (TT + 11, TT + 8, TT + 11))
        a("v_and_b32 v%d, 3, v%d" % (SO + dp, TT + 10)); a("v_lshl_add_u32 v%d, v%d, 8, v%d" % (TT + 11, SO + dp, TT + 11))
        a("v_bfe_u32 v%d, v%d, 2, 1" % (TT + 10, TT + 10)); a("v_lshl_add_u32 v%d, v%d, 3, v%d" % (SO + dp, TT + 10, TT + 11))
    a("s_lshl_b32 s71, s36, 1"); a("s_lshr_b32 s69, s32, 1"); a("s_add_u32 s71, s71, s69"); a("s_mul_i32 s71, s71, %d" % (68 * 4096))
    a("s_and_b32 s69, s32, 1"); a("s_lshl_b32 s69, s69, 11"); a("s_add_u32 s71, s71, s69")
    if ACT_OFF: a("s_add_u32 s71, s71, %d" % ACT_OFF)
    for k in range(1, 4): a("v_cmp_gt_u32 s[%d:%d], %d, v%d" % (60 + 2 * k, 61 + 2 * k, k, VI))
    a("s_mov_b32 s69, %s" % f2h(20 ** -0.5 * 1.4426950408889634))
    a("s_waitcnt lgkmcnt(0)"); a("s_barrier")
    lg.clear()
    QR = [256, 336]; Sx = [16, 48]; O = [120, 140]
    def KR(e, kb): return QR[e] + 10 + 10 * kb
    def VR(e, kb): return QR[e] + 40 + 10 * kb
    for e in range(2):
        for dp in range(5): a("ds_read_b64 %s, v%d offset:%d" % (R(QR[e] + 2 * dp, 2), AQ, (16 + 16 * e) * RS + 8 * dp)); lg.issue(("k", e))
        for kb in range(3):
            for dp in range(5): a("ds_read_b64 %s, v%d offset:%d" % (R(KR(e, kb) + 2 * dp, 2), AQ, (8 * kb + 16 * e) * RS + 160 + 8 * dp)); lg.issue(("k", e))
    for e in range(2):
        wait(a, lg=lg.need(("k", e)))
        for dp in range(5):
            for kb in range(3):
                a("v_mfma_f32_4x4x4_16b_bf16 %s, %s, %s, %s" % (R(Sx[e] + 4 * kb), R(KR(e, kb) + 2 * dp, 2), R(QR[e] + 2 * dp, 2), "0" if dp == 0 else R(Sx[e] + 4 * kb)))
                a("ds_read_b64_tr_b16 %s, v%d offset:%d" % (R(VR(e, kb) + 2 * dp, 2), AV, (8 * kb + 16 * e) * RS + 320 + 8 * dp)); lg.issue(("v", e))
    a("s_nop 3")
    a("s_or_b32 s68, s36, s32"); a("s_cmp_lg_u32 s68, 0"); a("s_cbranch_scc1 K1_att_nomask")
    S_ = Sx[0]; Z = S_ + 20
    a("v_lshlrev_b32 v%d, 1, v%d" % (Z, VI)); a("v_sub_u32 v%d, v%d, v%d" % (Z, TT + 8, Z))
    a("v_mov_b32 v%d, 0xff800000" % (Z + 1))
    for k in range(1, 8):
        a("v_cmp_gt_u32 vcc, %d, v%d" % (16 - 2 * k, Z)); a("s_nop 1"); a("v_cndmask_b32 v%d, v%d, v%d, vcc" % (S_ + k, S_ + k, Z + 1))
    a("K1_att_nomask:")
    def soft(S):
        Z = S + 20; P = S + 12; o = []
        o += ["v_cndmask_b32 v%d, v%d, v%d, s[%d:%d]" % (S + k, S + k + 8, S + k, 60 + 2 * k, 61 + 2 * k) for k in range(1, 4)]
        o += ["v_max3_f32 v%d, v%d, v%d, v%d" % (Z + 1, S + 4, S + 5, S + 6), "v_max3_f32 v%d, v%d, v%d, v%d" % (Z, S + 1, S + 2, S + 3),
              "v_max3_f32 v%d, v%d, v%d, v%d" % (Z + 1, Z + 1, S + 7, S + 8), "v_max_f32 v%d, v%d, v%d" % (Z, Z, Z + 1), "v_mul_f32 v%d, s69, v%d" % (Z, Z)]
        o += ["v_fma_f32 v%d, v%d, s69, -v%d" % (S + k, S + k, Z) for k in range(1, 9)]
        o += ["v_exp_f32 v%d, v%d" % (S + k, S + k) for k in range(1, 9)]
        o += ["v_add_f32 v%d, v%d, v%d" % (Z, S + 1, S + 2), "v_add_f32 v%d, v%d, v%d" % (Z + 1, S + 3, S + 4), "v_add_f32 v%d, v%d, v%d" % (Z + 2, S + 5, S + 6), "v_add_f32 v%d, v%d, v%d" % (Z + 3, S + 7, S + 8),
              "v_add_f32 v%d, v%d, v%d" % (Z, Z, Z + 1), "v_add_f32 v%d, v%d, v%d" % (Z + 2, Z + 2, Z + 3), "v_add_f32 v%d, v%d, v%d" % (Z, Z, Z + 2),
              "v_rcp_f32 v%d, v%d" % (Z, Z), "v_mov_b32 v%d, 0" % S]
        o += ["v_mul_f32 v%d, v%d, v%d" % (S + k, S + k, Z) for k in range(1, 9)]
        for k in range(1, 4):
            o += ["v_cndmask_b32 v%d, v%d, 0, s[%d:%d]" % (S + k + 8, S + k, 60 + 2 * k, 61 + 2 * k), "v_cndmask_b32 v%d, 0, v%d, s[%d:%d]" % (S + k, S + k, 60 + 2 * k, 61 + 2 * k)]
        o += ["v_cvt_pk_bf16_f32 v%d, v%d, v%d" % (P + j, S + 2 * j, S + 2 * j + 1) for j in range(6)]
        return o
    for x, y in zip(soft(Sx[0]), soft(Sx[1])): a(x); a(y)
    a("s_waitcnt lgkmcnt(0)"); a("s_nop 0")
    for e in range(2):
        for kb in range(3):
            for dp in range(5):
                a("v_mfma_f32_4x4x4_16b_bf16 %s, %s, %s, %s" % (R(O[e] + 4 * dp), R(VR(e, kb) + 2 * dp, 2), R(Sx[e] + 12 + 2 * kb, 2), "0" if kb == 0 else R(O[e] + 4 * dp)))
    for e in range(2):
        for dp in range(5):
            c = O[e] + 4 * dp
            a("v_cvt_pk_bf16_f32 v%d, v%d, v%d" % (c, c, c + 1)); a("v_cvt_pk_bf16_f32 v%d, v%d, v%d" % (c + 1, c + 2, c + 3))
            a("buffer_store_dwordx2 %s, v%d, s[28:31], s71 offen offset:%d %s" % (R(c, 2), SO + dp, 1024 * e, C.sc1))
    stamp(a, st, 3)
    if st: a("s_waitcnt vmcnt(0)")
    stamp(a, st, 4)

def gen_k1(st_slot0=0, st_total=9):
    a = Asm(); vm = Q(63)
    prologue(a, vm)
    vm2 = copy.deepcopy(vm)
    k1_ffn(a, vm)
    k1_att(a, vm2)
    a("K1_fin:")
    stamp_flush(a, C.st, 5, 28, 2, st_slot0, st_total)
    a("K1_end:"); a("s_endpgm")
    return ("k1_kernel", a.text(), 256, 256, 151552, 512, 102, 256)

if __name__ == "__main__":
    out = sys.argv[1]
    for kv in sys.argv[2:]:
        k, v = kv.split("="); setattr(C, k, int(v) if v.lstrip("-").isdigit() else v)
    ks = [gen_k1(), gen_k2(C.st, 4, 5, 9, rot_on=0)]
    open(out, "w").write(module(ks, HEADER))
```

```python
import sys, struct, copy
from asmlib import *
from gen import *
from gen1 import Q, wait, f2h, GA, GB, HEADER
from gen2 import bfr, stats_finish, dpp_reduce, norm_ops, xr_base
XBYTES = 2621440
XNP_OFF = 24 << 20
CNT_OFF = 28 << 20
OOB = 0x7ff00000
class Cfg:
    st = 0; rotp = 1; rotk = 0; xbar = 1; pref = 0; sc1 = ""; fused = 0; dbg = 0; early = 3; slp = 2; nlate = 5; xsc = 'sc1'; p0st = 0; lateafter = 0
C = Cfg()
def R(n, k=4):
    return ("a[%d:%d]" % (n - 256, n - 256 + k - 1)) if n >= 256 else ("v[%d:%d]" % (n, n + k - 1))
def cost(ins):
    n = 0
    for l in ins.split("\n"):
        n += 1
        if l.startswith("v_exp") or l.startswith("v_rcp"): n += 1
        if l.startswith("ds_write_b128"): n += 4
    return n
def ismem(ins): return ins.startswith("ds_") or ins.startswith("buffer_")

import re
def deps(ins):
    if "\n" in ins or not ins.startswith("v_") or "vcc" in ins or " s" in ins: return None
    regs = re.findall(r"[va]\d+", ins.split(" ", 1)[1])
    return {regs[0]}, set(regs[1:])

class Sched:
    def __init__(s, a, vm, lg): s.a = a; s.vm = vm; s.lg = lg; s.fq = []; s.dq = []; s.debt = 0.0
    def emit(s, item):
        ins, tag = item[0], item[1]
        if ins == "WAITVM": wait(s.a, vm=s.vm.need(tag)); return
        if ins == "WAITLG": wait(s.a, lg=s.lg.need(tag)); return
        if (C.dbg & 1) and ins.startswith("ds_write_b128"): return
        if (C.dbg & 2) and ins.startswith("v_") and deps(ins): return
        if (C.dbg & 4) and ins.startswith("ds_read_b128"): return
        if (C.dbg & 8) and ins.startswith("buffer_"): return
        if (C.dbg & 16) and ins.startswith("ds_read_b64_tr"): return
        s.a(ins)
        if tag:
            for _ in range(item[2] if len(item) > 2 else 1): (s.vm if tag[0] == "vm" else s.lg).issue(tag[1])
    def gap(s, must=(), slots=2):
        first = True
        for it in must:
            s.emit(it); slots -= cost(it[0]); first = False
        if s.dq and first and slots > 0:
            it = s.dq.pop(0); s.emit(it); slots -= cost(it[0]); first = False
        lastw = None
        while s.fq and slots > 0:
            pick = None; W = set(); Rr = set()
            for idx, it in enumerate(s.fq[:14]):
                n = cost(it[0]); d = deps(it[0])
                if d is None:
                    if idx == 0 and not ("m0" in it[0] and s.dq) and not (ismem(it[0]) and not first) and (n <= slots or (first and n > 2)): pick = 0
                    break
                w, r = d
                if n <= slots and not (r & W) and not (w & W) and not (w & Rr) and not (lastw is not None and lastw in r):
                    pick = idx; break
                W |= w; Rr |= r
            if pick is None: break
            it = s.fq.pop(pick); s.emit(it); slots -= cost(it[0]); first = False
            lastw = next(iter(deps(it[0])[0])) if (cost(it[0]) == 2 and deps(it[0])) else None
    def fcost(s): return sum(cost(it[0]) for it in s.fq) + sum(cost(it[0]) for it in s.dq)
    def flush_d(s):
        while s.dq: s.emit(s.dq.pop(0))
    def flush_f(s):
        while s.fq: s.emit(s.fq.pop(0))


RP = 200
def prologue(a, vm):
    st = C.st
    a("s_cmp_ge_u32 s2, 256"); a("s_cbranch_scc1 K1_end")
    stamp(a, st, 0)
    a("s_load_dwordx4 s[4:7], s[0:1], 0"); a("s_load_dwordx4 s[8:11], s[0:1], 32"); a("s_load_dwordx2 s[12:13], s[0:1], 72")
    a("s_load_dwordx2 s[14:15], s[0:1], 16"); a("s_load_dwordx4 s[96:99], s[0:1], 48"); a("s_load_dwordx2 s[24:25], s[0:1], 64")
    a("v_lshrrev_b32 v1, 6, v0"); a("v_and_b32 v2, 63, v0"); a("v_readfirstlane_b32 s32, v1")
    a("s_and_b32 s33, s2, 7"); a("s_lshr_b32 s34, s2, 3")
    a("s_and_b32 s35, s34, 7"); a("s_lshr_b32 s34, s34, 3")
    a("s_and_b32 s36, s33, 1"); a("s_lshl_b32 s36, s36, 3"); a("s_add_u32 s36, s36, s35")
    a("s_lshr_b32 s76, s33, 1"); a("s_lshl_b32 s76, s76, 2"); a("s_add_u32 s76, s76, s34")
    a("s_lshl_b32 s68, s36, 4"); a("s_add_u32 s68, s68, s76"); a("s_mul_i32 s68, s68, 10240")
    a("v_lshrrev_b32 v3, 3, v2"); a("v_mul_u32_u24 v4, 1280, v3"); a("v_and_b32 v5, 7, v2"); a("v_lshl_add_u32 v4, v5, 4, v4"); a("v_add_u32 v4, s68, v4")
    a("s_mul_i32 s67, s32, 3"); a("s_min_u32 s67, s67, 7"); a("s_lshl_b32 s69, s67, 7")
    a("s_waitcnt lgkmcnt(0)")
    a.srd(16, 4, XBYTES)
    a("s_lshl_b32 s68, s76, 2"); a("s_add_u32 s68, s68, s32"); a("s_cmp_lg_u32 s68, 3"); a("s_cbranch_scc1 K1_noinit")
    a.srd(28, 12, WS_BYTES)
    a("s_and_b32 s25, s25, 0xffff"); a("s_movk_i32 s26, 256"); a("s_mov_b32 s27, 0x00020000")
    a("s_lshl_b32 s68, s36, 10"); a("s_add_u32 s68, s68, %d" % CNT_OFF); a("v_lshlrev_b32 v6, 8, v2"); a("v_mov_b32 v7, 0"); a("s_mov_b64 exec, 15")
    a("buffer_store_dword v7, v6, s[28:31], s68 offen sc1")
    a("s_mov_b64 exec, -1")
    a("K1_noinit:")
    for i in range(10):
        a("buffer_load_dwordx4 %s, v4, s[16:19], s69 offen" % R(RP + 4 * i)); vm.issue("x")
        if i < 9: a("s_add_u32 s69, s69, 128"); a("s_cmp_eq_u32 s69, 1280"); a("s_cselect_b32 s69, 0, s69")
    a.srd(28, 12, WS_BYTES)
    a("s_and_b32 s25, s25, 0xffff"); a("s_movk_i32 s26, 256"); a("s_mov_b32 s27, 0x00020000")
    a("s_lshl_b32 s68, s76, 2"); a("s_add_u32 s68, s68, s32"); a("s_cmp_lg_u32 s68, 3"); a("s_cbranch_scc1 K1_noinit2")
    a("s_lshl_b32 s68, s36, 4"); a("v_mov_b32 v7, 1"); a("s_mov_b64 exec, 1")
    a("s_waitcnt vmcnt(10)")
    a("buffer_store_dword v7, off, s[24:27], s68 sc1")
    a("s_mov_b64 exec, -1")
    a("K1_noinit2:")
    a("s_and_b32 s37, s33, 6"); a("s_and_b32 s68, s34, 1"); a("s_add_u32 s37, s37, s68")
    a("s_mul_i32 s38, s34, 5"); a("s_lshr_b32 s38, s38, 1")
    if C.rotk == 1:
        a("s_and_b32 s68, s35, 1"); a("s_mul_i32 s68, s68, 5"); a("s_add_u32 s38, s38, s68")
    if C.rotk == 2:
        a("s_lshr_b32 s69, s34, 1"); a("s_and_b32 s68, s35, s69"); a("s_mul_i32 s68, s68, 5"); a("s_add_u32 s38, s38, s68")
    if C.rotk == 9: a("s_mov_b32 s38, 0")
    if C.rotk == 4:
        a("s_cmp_ge_u32 s34, 2"); a("s_cselect_b32 s69, 10, 30"); a("s_mul_i32 s68, s35, s69"); a("s_lshr_b32 s68, s68, 3")
        a("s_mul_i32 s39, s68, 205"); a("s_lshr_b32 s39, s39, 11"); a("s_mul_i32 s69, s39, 10"); a("s_sub_u32 s68, s68, s69"); a("s_add_u32 s38, s38, s68")
    if C.rotk: a("s_sub_u32 s68, s38, 10"); a("s_cmp_ge_u32 s38, 10"); a("s_cselect_b32 s38, s68, s38")
    if C.rotk == 4: pass
    elif C.rotp:
        a("s_mul_i32 s68, s35, 11"); a("s_lshr_b32 s68, s68, 5"); a("s_mul_i32 s68, s68, 3"); a("s_sub_u32 s39, s35, s68")
    else: a("s_mov_b32 s39, 0")
    a("s_mov_b32 s3, s39")
    a("s_mul_i32 s70, s36, 163840"); a("s_add_u32 s70, s70, %d" % XNP_OFF)
    a("s_cmp_ge_u32 s34, 2"); a("s_movk_i32 s68, 0x3c00"); a("s_cselect_b32 s71, s68, 0x3000"); a("s_lshl_b32 s71, s71, 4")
    for j in range(10):
        a("s_mul_i32 s%d, s38, s71" % (40 + j)); a("s_lshl_b32 s68, s38, 14"); a("s_add_u32 s%d, s70, s68" % (50 + j))
        if j < 9: a("s_add_u32 s38, s38, 1"); a("s_cmp_eq_u32 s38, 10"); a("s_cselect_b32 s38, 0, s38")
    a("v_lshrrev_b32 v6, 2, v5"); a("v_lshlrev_b32 v6, 13, v6"); a("v_and_b32 v5, 3, v5"); a("v_lshl_add_u32 v6, v5, 8, v6"); a("v_lshl_add_u32 v240, v3, 4, v6")
    a("s_lshl_b32 s38, s67, 14"); a("s_add_u32 s38, s38, s70"); a("s_lshr_b32 s68, s76, 1"); a("s_lshl_b32 s68, s68, 10"); a("s_add_u32 s38, s38, s68")
    a("s_and_b32 s68, s76, 1"); a("s_lshl_b32 s68, s68, 7"); a("s_add_u32 s38, s38, s68")
    a("s_mov_b32 s33, 0x3f803f80")
    a("s_cmp_ge_u32 s34, 2"); a("s_cbranch_scc1 K1_att")

def poll(a, name, voff, target, srd=28, first_loaded=False):
    a("s_mov_b32 s68, 0")
    if first_loaded: a("s_branch %s_chk" % name)
    a("%s:" % name)
    a("buffer_load_dword v241, v%d, s[%d:%d], 0 offen sc1" % (voff, srd, srd + 3))
    a("s_add_u32 s68, s68, 1")
    a("s_waitcnt vmcnt(0)")
    a("%s_chk:" % name)
    a("v_cmp_gt_u32 vcc, %d, v241" % target)
    a("s_nop 4")
    a("s_cbranch_vccz %s_ok" % name)
    if C.slp: a("s_sleep %d" % C.slp)
    a("s_cmp_lt_u32 s68, 0x8000"); a("s_cbranch_scc1 %s" % name)
    a("%s_ok:" % name)

def p0(a, sc, late, role):
    vm = sc.vm
    S = [242, 243]; T = [244, 245, 246, 247]
    a("v_mov_b32 v%d, 0" % S[0]); a("v_mov_b32 v%d, 0" % S[1])
    wait(a, vm=vm.need("x"))
    if C.p0st: stamp(a, C.st, 2)
    for d in range(40): a("v_dot2c_f32_bf16 v%d, s33, v%d" % (S[0], RP + d)); a("v_dot2c_f32_bf16 v%d, v%d, v%d" % (S[1], RP + d, RP + d))
    a("s_nop 0")
    dpp_reduce(a, S, ["quad_perm:[1,0,3,2]", "quad_perm:[2,3,0,1]", "row_half_mirror"])
    s_, q = S
    a("v_mul_f32 v%d, 0x3acccccd, v%d" % (s_, s_)); a("v_mul_f32 v%d, 0x3acccccd, v%d" % (q, q))
    a("v_fma_f32 v%d, -v%d, v%d, v%d" % (q, s_, s_, q)); a("v_max_f32 v%d, 0, v%d" % (q, q))
    bfr(a, q); bfr(a, s_)
    a("v_add_f32 v%d, 0x3727c5ac, v%d" % (q, q)); bfr(a, q)
    a("v_sqrt_f32 v%d, v%d" % (q, q)); a("s_nop 0"); bfr(a, q)
    a("v_rcp_f32 v%d, v%d" % (q, q))
    for i in range(3):
        for d in range(0, 4, 2):
            r = RP + 4 * i + d
            for op, o in (("v_sub_f32 v%d, v%d, v%d", s_), ("v_mul_f32 v%d, v%d, v%d", q)):
                a("v_lshlrev_b32 v%d, 16, v%d" % (T[0], r)); a("v_and_b32 v%d, 0xffff0000, v%d" % (T[1], r))
                a("v_lshlrev_b32 v%d, 16, v%d" % (T[2], r + 1)); a("v_and_b32 v%d, 0xffff0000, v%d" % (T[3], r + 1))
                for k in range(4): a(op % (T[k], T[k], o))
                a("v_cvt_pk_bf16_f32 v%d, v%d, v%d" % (r, T[0], T[1])); a("v_cvt_pk_bf16_f32 v%d, v%d, v%d" % (r + 1, T[2], T[3]))
        a("buffer_store_dwordx4 %s, v240, s[28:31], s38 offen sc1" % R(RP + 4 * i)); vm.issue("xst")
        if i < 2: a("s_add_u32 s38, s38, 16384")
    if C.p0st: stamp(a, C.st, 3)
    a("s_lshl_b32 s69, s36, 4")
    if role == "att": a("s_min_u32 s68, s69, 16"); a("v_min_u32 v243, 1, v2"); a("v_mul_u32_u24 v243, s68, v243"); a("v_sub_u32 v243, s69, v243")
    else: a("v_mov_b32 v243, s69")
    a("s_cmp_lg_u32 s32, 0"); a("s_cbranch_scc1 P0_%s_nord" % role)
    a("buffer_load_dword v241, v243, s[24:27], 0 offen sc1")
    a("P0_%s_nord:" % role)
    if C.lateafter: a("s_waitcnt vmcnt(0)"); vm.clear()
    else:
        for it in late: sc.emit(it)
        wait(a, vm=vm.need("xst"))
    a("s_barrier")
    if C.p0st: stamp(a, C.st, 4)
    a("s_cmp_lg_u32 s32, 0"); a("s_cbranch_scc1 P0_%s_skip" % role)
    a("s_mov_b64 exec, 3")
    poll(a, "P0_%s_rdy" % role, 243, 1, 24, True)
    a("v_lshlrev_b32 v243, 6, v243"); a("v_add_u32 v243, %d, v243" % CNT_OFF); a("v_mov_b32 v242, 1"); a("s_mov_b64 exec, 1")
    a("buffer_atomic_add v242, v243, s[28:31], 0 offen sc1")
    a("s_mov_b64 exec, -1")
    a("P0_%s_skip:" % role)
    if C.lateafter:
        for it in late: sc.emit(it)
    a("s_cmp_lg_u32 s32, 0"); a("s_cbranch_scc1 P0_%s_skip2" % role)
    a("s_mov_b64 exec, 3")
    poll(a, "P0_%s_poll" % role, 243, 16)
    a("s_mov_b64 exec, -1")
    a("P0_%s_skip2:" % role)
    a("s_barrier")

def k1_ffn(a, vm):
    st = 0 if C.p0st else C.st
    SL = 16896
    lg = Q(15); sc = Sched(a, vm, lg)
    a("s_and_b32 s68, s32, 1"); a("s_lshr_b32 s69, s32, 1")
    a("s_cmp_eq_u32 s68, 0"); a("s_cselect_b32 s8, s8, s10"); a("s_cselect_b32 s9, s9, s11")
    a.srd(20, 8, 1966080)
    a("s_lshl_b32 s60, s39, 7")
    a("s_mul_i32 s66, s32, 4224"); a("s_lshl_b32 s67, s32, 12")
    VWO = [3, 4, 5, 6]; VWR, VWR2, VXR, VXO, VST, VA_, VB_ = 7, 8, 9, 10, 11, 12, 13
    WF = 16; ACC = [40, 104]; TE = [232, 233, 234, 235]
    def X(j, kk, tt): return (256 + 32 * j if j < 8 else 168 + 32 * (j - 8)) + (kk * 4 + tt) * 4
    a("v_lshrrev_b32 v13, 5, v2"); a("v_lshlrev_b32 v13, 4, v13"); a("v_bfe_u32 v14, v2, 4, 1"); a("v_lshl_add_u32 v13, v14, 2, v13")
    a("v_bfe_u32 v14, v2, 3, 1"); a("s_lshl_b32 s71, s69, 5"); a("v_add3_u32 v13, v13, v14, s71"); a("v_mul_u32_u24 v13, 3072, v13")
    a("v_and_b32 v14, 7, v2"); a("v_lshlrev_b32 v14, 4, v14")
    a("s_mul_i32 s71, s37, 384"); a("v_add3_u32 v%d, v13, v14, s71" % VWO[0])
    for i in range(1, 4): a("v_add_u32 v%d, %d, v%d" % (VWO[i], (8 * (i >> 1) + 2 * (i & 1)) * 3072 - 1056 * i, VWO[0]))
    wpos = {}; xpos = {}
    def dma(n, pos):
        p, j = n // 10, n % 10; wpos[n] = pos
        out = [("s_add_u32 m0, s66, %d\ns_add_u32 s68, s%d, s%d" % (pos * SL, 40 + j, 60 + p), None)]
        return out + [("buffer_load_dwordx4 v%d, s[20:23], s68 offen offset:%d lds" % (VWO[i], 1056 * i), ("vm", ("w", n))) for i in range(4)]
    def dmax(j, pos):
        xpos[j] = pos
        out = [("s_add_u32 m0, s67, %d\ns_nop 0" % (pos * SL), None)]
        return out + [("buffer_load_dwordx4 v%d, s[28:31], s%d offen offset:%d XSC lds" % (VXO, 50 + j, 1024 * i), ("vm", ("x", j))) for i in range(4)]
    for n in range(C.early):
        for it in dma(n, n): sc.emit(it)
    a("s_and_b32 s68, s32, 1")
    a("s_lshl_b32 s70, s36, 1"); a("s_add_u32 s70, s70, s68"); a("s_mul_i32 s70, s70, 68")
    a("s_mul_i32 s71, s37, 6"); a("s_add_u32 s70, s70, s71"); a("s_add_u32 s70, s70, s69"); a("s_add_u32 s70, s70, 20"); a("s_lshl_b32 s70, s70, 12")
    if ACT_OFF: a("s_add_u32 s70, s70, %d" % ACT_OFF)
    for p in range(3):
        a("s_lshl_b32 s%d, s39, 7" % (60 + p)); a("s_lshl_b32 s71, s39, 13"); a("s_add_u32 s%d, s70, s71" % (63 + p))
        if p < 2: a("s_add_u32 s39, s39, 1"); a("s_cmp_eq_u32 s39, 3"); a("s_cselect_b32 s39, 0, s39")
    a("v_bfe_u32 v13, v2, 3, 2"); a("v_mul_u32_u24 v13, 1056, v13")
    a("v_lshrrev_b32 v14, 5, v2"); a("v_lshlrev_b32 v14, 2, v14"); a("v_bfe_u32 v15, v2, 2, 1"); a("v_add_u32 v14, v14, v15"); a("v_lshl_add_u32 v13, v14, 7, v13")
    a("v_and_b32 v14, 3, v2"); a("v_lshlrev_b32 v14, 3, v14"); a("s_lshl_b32 s71, s69, 6")
    a("v_add3_u32 v%d, v13, v14, s71" % VWR); a("v_add_u32 v%d, %d, v%d" % (VWR2, 4 * SL, VWR))
    a("v_lshlrev_b32 v%d, 4, v2" % VST); a("v_add_u32 v%d, s67, v%d" % (VXO, VST))
    a("s_lshl_b32 s71, s68, 12"); a("s_add_u32 s71, s71, %d" % (5 * SL)); a("v_add_u32 v%d, s71, v%d" % (VXR, VST))
    a("v_mov_b32 v%d, %s" % (VA_, f2h(GA))); a("v_mov_b32 v%d, %s" % (VB_, f2h(GB)))
    late = []
    for n in range(C.early, C.nlate): late += dma(n, n)
    p0(a, sc, late, "ffn")
    stamp(a, C.st, 1)
    for j in range(5):
        if j < 4:
            for it in dmax(j, 5 + j): sc.emit(it)
        if j >= C.nlate:
            for it in dma(j, j): sc.emit(it)
    wiss = 5; xiss = 4
    def wreads(g):
        s_, u = g // 8, g % 8; pos = wpos[s_]; kk, wt = u >> 2, u & 3
        vb = VWR if pos < 4 else VWR2; off = (pos % 4) * SL + (kk * 2 + (wt >> 1)) * 4224 + 32 * (wt & 1)
        b = WF + (g % 6) * 4
        return [("ds_read_b64_tr_b16 %s, v%d offset:%d" % (R(b + 2 * t, 2), vb, off + 256 * t), ("lg", ("w", g // 2))) for t in range(2)]
    def xreads(j):
        return [("ds_read_b128 %s, v%d offset:%d" % (R(X(j, kk, tt)), VXR, (xpos[j] - 5) * SL + 8192 * kk + 1024 * tt), ("lg", ("x", j, kk))) for kk in range(2) for tt in range(4)]
    def epilogue(p):
        out = []; base = ACC[p % 2]
        for tt in range(4):
            D = base + (8 + tt) * 4
            for a_ in range(2):
                G = [base + (a_ * 4 + tt) * 4 + k for k in range(4)]; U = [base + ((2 + a_) * 4 + tt) * 4 + k for k in range(4)]; t = TE
                f_sq = lambda k: "v_mul_f32 v%d, v%d, v%d" % (t[k], G[k], G[k])
                f_fm = lambda k: "v_fma_f32 v%d, v%d, v%d, v%d" % (t[k], t[k], VB_, VA_)
                f_m2 = lambda k: "v_mul_f32 v%d, v%d, v%d" % (t[k], t[k], G[k])
                f_ex = lambda k: "v_exp_f32 v%d, v%d" % (t[k], t[k])
                f_gu = lambda k: "v_mul_f32 v%d, v%d, v%d" % (G[k], G[k], U[k])
                f_ad = lambda k: "v_add_f32 v%d, 1.0, v%d" % (t[k], t[k])
                f_rc = lambda k: "v_rcp_f32 v%d, v%d" % (t[k], t[k])
                f_fi = lambda k: "v_mul_f32 v%d, v%d, v%d" % (G[k], G[k], t[k])
                for f in (f_sq, f_fm, f_m2, f_ex, f_gu, f_ad, f_rc, f_fi):
                    for k in range(4): out.append((f(k), None))
                out.append(("v_cvt_pk_bf16_f32 v%d, v%d, v%d" % (D + 2 * a_, G[0], G[1]), None))
                out.append(("v_cvt_pk_bf16_f32 v%d, v%d, v%d" % (D + 2 * a_ + 1, G[2], G[3]), None))
            out.append(("buffer_store_dwordx4 %s, v%d, s[28:31], s%d offen offset:%d %s" % (R(D), VST, 63 + p, 1024 * tt, C.sc1), ("vm", "st")))
        return out
    wait(a, vm=vm.need(("w", 0), ("x", 0))); a("s_barrier")
    xq = xreads(0)
    for it in wreads(0) + xq[:4] + wreads(1) + wreads(2) + wreads(3) + xq[4:]: sc.emit(it)
    xq = []
    wait(a, lg=lg.need(("w", 0), ("x", 0, 0)))
    for P in range(120):
        s_ = P // 4; p, j = s_ // 10, s_ % 10; kk = (P >> 1) & 1
        if P % 40 == 1 and p >= 1: sc.fq += epilogue(p - 1)
        Pn = P + 2
        bar = Pn < 120 and Pn % 4 == 0
        wr = None
        for i in range(8):
            g = 2 * P + (i >> 2); wt = g & 3; tt = i & 3
            c = ACC[p % 2] + (wt * 4 + tt) * 4; b = WF + (g % 6) * 4
            if i == 0 and bar: sc.flush_d()
            a("v_mfma_f32_16x16x32_bf16 %s, %s, %s, %s" % (R(c), R(b), R(X(j, kk, tt)), "0" if (j == 0 and kk == 0) else R(c)))
            if i == 0 and bar:
                s2 = Pn // 4
                wait(a, vm=vm.need(("w", s2), ("x", s2))); a("s_barrier")
                free = []
                if s2 - 1 < 10:
                    if xiss < 10: sc.dq += dmax(xiss, xpos[s2 - 1]); xiss += 1
                    elif xpos[s2 - 1] < 8: free.append(xpos[s2 - 1])
                if s2 >= 2: free.append(wpos[s2 - 2])
                for pos in free:
                    if wiss < 30: sc.dq += dma(wiss, pos); wiss += 1
                if s2 < 10: xq = xreads(s2)
                continue
            if wr is None: wr = (wreads(2 * Pn) + wreads(2 * Pn + 1)) if Pn < 120 else []
            must = []
            if wr and (i % 2 == 1): must.append(wr.pop(0))
            if xq and (i % 2 == 1 and i != 7 or not sc.dq): must.append(xq.pop(0))
            slots = 2
            left = (39 - P % 40) * 8 + 8 - i - 8
            need_rate = sc.fcost() / max(left, 1) + 0.75
            if need_rate > 2 and p > 0: slots = int(need_rate + 0.99)
            if i == 7: slots -= 1
            sc.gap(must, slots)
        if P + 1 < 120:
            s3 = (P + 1) // 4
            wait(a, lg=lg.need(("w", P + 1), ("x", s3 % 10, ((P + 1) >> 1) & 1)))
        if P % 40 == 39: assert not sc.fq, (P, len(sc.fq))
        if P == 39: stamp(a, st, 2)
    stamp(a, st, 3)
    a("s_nop 7")
    for it in epilogue(2): sc.emit(it)
    if st: a("s_waitcnt vmcnt(0)")
    stamp(a, st, 4)
    a("s_branch K1_fin")

def k1_att(a, vm):
    st = 0 if C.p0st else C.st
    a("K1_att:")
    WSL = 24576; NW = 5; PB = NW * WSL
    RS = 496
    lg = Q(15); sc = Sched(a, vm, lg)
    VWO = [3, 4, 5, 6]; VWR = [7, 8, 9]; VXR = [10, 11, 12]; VXO, VL = 13, 14
    TT = 16; PV = 160; PR = 164
    FR = [256, 308]
    def acc(t, u): return 16 + 4 * (t * 9 + u)
    a.srd(20, 6, 2457600)
    a("s_lshl_b32 s66, s32, 12"); a("s_lshl_b32 s67, s32, 11"); a("s_add_u32 s65, s67, 16384")
    for i in range(4):
        a("s_lshl_b32 s68, s32, 8"); a("s_add_u32 s68, s68, %d" % (64 * i)); a("v_add_u32 v%d, s68, v2" % TT)
        a("v_mul_u32_u24 v%d, 2185, v%d" % (TT + 1, TT)); a("v_lshrrev_b32 v%d, 16, v%d" % (TT + 1, TT + 1))
        a("v_mul_u32_u24 v%d, 30, v%d" % (TT + 2, TT + 1)); a("v_sub_u32 v%d, v%d, v%d" % (TT + 2, TT, TT + 2))
        a("v_mul_u32_u24 v%d, 205, v%d" % (TT + 3, TT + 2)); a("v_lshrrev_b32 v%d, 11, v%d" % (TT + 3, TT + 3))
        a("v_mul_u32_u24 v%d, 1120, v%d" % (TT + 3, TT + 3)); a("v_lshl_add_u32 v%d, v%d, 4, v%d" % (TT + 3, TT + 2, TT + 3))
        a("v_bfe_u32 v%d, v%d, 2, 2" % (TT + 4, TT + 1)); a("v_lshlrev_b32 v%d, 3, v%d" % (TT + 4, TT + 4))
        a("v_bfe_u32 v%d, v%d, 4, 1" % (TT + 2, TT + 1)); a("v_lshl_add_u32 v%d, v%d, 2, v%d" % (TT + 4, TT + 2, TT + 4))
        a("v_and_b32 v%d, 3, v%d" % (TT + 2, TT + 1)); a("v_add_u32 v%d, v%d, v%d" % (TT + 4, TT + 4, TT + 2))
        a("v_mul_u32_u24 v%d, 3840, v%d" % (TT + 4, TT + 4)); a("s_mul_i32 s68, s37, 160"); a("s_sub_u32 s68, s68, %d" % (1024 * i))
        a("v_add3_u32 v%d, v%d, v%d, s68" % (VWO[i], TT + 4, TT + 3))
        if i == 2:
            def dmaA(gm):
                c, hf = gm >> 1, gm & 1
                out = [("s_add_u32 m0, s66, %d\ns_add_u32 s68, s%d, %d" % ((gm % NW) * WSL, 40 + c, hf * 122880), None)]
                return out + [("buffer_load_dwordx4 v%d, s[20:23], s68 offen offset:%d lds" % (VWO[k], 1024 * k), ("vm", ("g", gm))) for k in range(3)]
            for gm in range(C.early):
                for it in dmaA(gm): sc.emit(it)
    a("v_lshlrev_b32 v%d, 4, v2" % VL); a("v_add_u32 v%d, s67, v%d" % (VXO, VL))
    a("s_cmp_eq_u32 s36, 0"); a("s_cselect_b32 s68, 0x%x, 0" % OOB); a("v_add_u32 v%d, s68, v%d" % (TT, VL))
    a("s_cmp_eq_u32 s32, 3")
    for i in range(3): a("s_cselect_b32 s%d, s%d, s%d" % (72 + i, 28 + i, 20 + i))
    a("s_mov_b32 s75, 0x00020000")
    a("s_cselect_b64 vcc, -1, 0"); a("v_cndmask_b32 v%d, v%d, v%d, vcc" % (VWO[3], VWO[3], TT))
    def dmaB(gm, withA):
        c, hf = gm >> 1, gm & 1
        pre = "" if withA else "s_add_u32 m0, s66, %d\ns_add_u32 s68, s%d, %d\n" % ((gm % NW) * WSL, 40 + c, hf * 122880)
        out = [(pre + "s_sub_u32 s69, s%d, %d\ns_cmp_eq_u32 s32, 3\ns_cselect_b32 s68, s69, s68" % (50 + c, 163840 - 7168 + 3072 - hf * 8192), None),
               ("buffer_load_dwordx4 v%d, s[72:75], s68 offen offset:3072 XSC lds" % VWO[3], ("vm", ("g", gm))),
               ("s_add_u32 m0, s65, %d\ns_add_u32 s69, s%d, %d" % ((gm % NW) * WSL, 50 + c, hf * 8192), None)]
        return out + [("buffer_load_dwordx4 v%d, s[28:31], s69 offen offset:%d XSC lds" % (VXO, 1024 * k), ("vm", ("g", gm))) for k in range(2)]
    a("v_lshrrev_b32 v%d, 2, v2" % TT); a("v_mul_u32_u24 v%d, 480, v%d" % (TT, TT)); a("v_and_b32 v%d, 3, v2" % (TT + 1)); a("v_lshl_add_u32 v%d, v%d, 3, v%d" % (TT, TT + 1, TT))
    a("s_lshl_b32 s60, s32, 7")
    a("v_add_u32 v%d, s60, v%d" % (VWR[0], TT)); a("v_add_u32 v%d, %d, v%d" % (VWR[1], 2 * WSL, VWR[0])); a("v_add_u32 v%d, %d, v%d" % (VWR[2], 4 * WSL, VWR[0]))
    for k in range(3): a("v_add_u32 v%d, %d, v%d" % (VXR[k], 2 * k * WSL + 15360, VL))
    late = []
    for gm in range(C.early, C.nlate): late += dmaA(gm)
    p0(a, sc, late, "att")
    stamp(a, C.st, 1)
    for gm in range(NW):
        for it in (dmaA(gm) if gm >= C.nlate else []) + dmaB(gm, False): sc.emit(it)
    def reads(s_):
        out = []; fb = FR[s_ % 2]; pos = s_ % NW
        def xr(u): return ("ds_read_b128 %s, v%d offset:%d" % (R(fb + 16 + 4 * u), VXR[pos >> 1], (pos & 1) * WSL + 1024 * u), None)
        def wr(t, tt): return ("ds_read_b64_tr_b16 %s, v%d offset:%d" % (R(fb + 4 * t + 2 * tt, 2), VWR[pos >> 1], (pos & 1) * WSL + 7680 * tt + 32 * t), None)
        out += [wr(0, 0), wr(0, 1)] + [xr(u) for u in range(9)]
        for t in range(1, 4): out += [wr(t, 0), wr(t, 1)]
        return out
    def pack1():
        pre = ["s_sub_u32 s4, s2, 128", "s_mul_i32 s4, s4, 3", "s_add_u32 s4, s4, s32", "s_cmp_lt_u32 s32, 3\ns_cselect_b32 s4, s4, 500", "s_lshr_b32 s5, s4, 2", "s_sub_u32 s6, s5, 20",
               "s_cmp_lt_u32 s5, 20\ns_cselect_b32 s6, s5, s6\ns_cselect_b32 s8, s14, s96\ns_cselect_b32 s9, s15, s97\ns_cselect_b32 s10, 0, 0x118000",
               "s_add_u32 s10, s10, 819200", "s_and_b32 s9, s9, 0xffff", "s_mov_b32 s11, 0x00020000",
               "s_mul_i32 s6, s6, 40960", "s_and_b32 s7, s4, 3", "s_mul_i32 s7, s7, 5120", "s_add_u32 s6, s6, s7",
               "s_mul_i32 s7, s32, 10240", "s_add_u32 s7, s7, %d" % PB, "s_cmp_lt_u32 s32, 3\ns_cselect_b32 s7, s7, 0x30000"]
        out = [(s, None) for s in pre]
        for tt in range(2):
            for o, n in ((0, 4), (4096, 1)):
                g = ["s_add_u32 m0, s7, %d" % (5120 * tt + o), "s_add_u32 s12, s6, %d" % (20480 * tt + o)]
                g += ["buffer_load_dwordx4 v%d, s[8:11], s12 offen offset:%d lds" % (VL, 1024 * i) for i in range(n)]
                out.append(("\n".join(g), ("vm", "pk"), n))
        return out
    def pack2a():
        V = PV
        return [(s, None) for s in ["v_lshrrev_b32 v%d, 4, v2" % (V + 1), "v_mul_u32_u24 v%d, 160, v%d" % (V, V + 1), "s_mov_b32 s6, %d" % (68 * 5120), "v_mul_lo_u32 v%d, v%d, s6" % (V + 1, V + 1),
                "v_bfe_u32 v%d, v2, 2, 2" % (V + 2), "v_mul_u32_u24 v%d, 1280, v%d" % (V + 2, V + 2), "v_add_u32 v%d, v%d, v%d" % (V, V, V + 2),
                "v_and_b32 v%d, 3, v2" % (V + 2), "v_mul_u32_u24 v%d, 40, v%d" % (V + 2, V + 2), "v_add3_u32 v%d, v%d, v%d, s7" % (V, V, V + 2),
                "v_and_b32 v%d, 15, v2" % (V + 2), "v_lshl_add_u32 v%d, v%d, 4, v%d" % (V + 1, V + 2, V + 1), "v_add_u32 v%d, 4096, v%d" % (V + 2, V + 1),
                "s_mul_i32 s6, s5, 5120", "s_and_b32 s7, s4, 3", "s_lshl_b32 s7, s7, 8", "s_add_u32 s6, s6, s7", "s_add_u32 s6, s6, %d" % W2P_OFF,
                "s_cmp_lt_u32 s4, 272\ns_cselect_b32 s6, s6, 0x%x" % OOB, "s_add_u32 s7, s6, %d" % (272 * 5120)]]
    def pack2r(hf):
        return [("WAITVM", "pk")] + [("ds_read_b64_tr_b16 %s, v%d offset:%d" % (R(PR + 20 * hf + 4 * i + 2 * tt, 2), PV, 8 * i + 5120 * tt + 640 * hf), None) for i in range(5) for tt in range(2)]
    def pack2s(hf):
        return [("buffer_store_dwordx4 %s, v%d, s[28:31], s%d offen offset:%d %s" % (R(PR + 20 * hf + 4 * i), PV + 1 if i < 4 else PV + 2, 6 + hf, 1024 * (i % 4), C.sc1), ("vm", "pst")) for i in range(5)]
    extra = {3: pack1, 4: pack2a, 8: lambda: pack2r(0), 9: lambda: pack2s(0), 10: lambda: pack2r(1), 11: lambda: pack2s(1)}
    wait(a, vm=vm.need(("g", 0))); a("s_barrier")
    for it in reads(0): sc.emit(it)
    for s_ in range(20):
        fb = FR[s_ % 2]
        a("s_waitcnt lgkmcnt(0)")
        rq = []
        for i in range(36):
            t, u = i // 9, i % 9; c = acc(t, u)
            a("v_mfma_f32_16x16x32_bf16 %s, %s, %s, %s" % (R(c), R(fb + 4 * t), R(fb + 16 + 4 * u), "0" if s_ == 0 else R(c)))
            if i == 0 and s_ < 19:
                wait(a, vm=vm.need(("g", s_ + 1))); a("s_barrier")
                rq = reads(s_ + 1)
                if s_ + NW < 20: sc.dq += dmaA(s_ + NW) + dmaB(s_ + NW, True)
                if s_ in extra: sc.fq += extra[s_]()
                continue
            must = []
            if rq and i % 2 == 1: must = [rq.pop(0)] + ([rq.pop(0)] if rq else [])
            sc.gap(must, 2 - (1 if i == 35 else 0))
        sc.flush_d(); sc.flush_f()
    stamp(a, st, 2)
    TT = 204
    a("v_and_b32 v%d, 15, v2" % TT); a("v_mul_u32_u24 v%d, %d, v%d" % (TT, RS, TT)); a("v_lshrrev_b32 v%d, 4, v2" % (TT + 1)); a("v_lshl_add_u32 v%d, v%d, 3, v%d" % (TT, TT + 1, TT))
    a("v_add_u32 v%d, s60, v%d" % (TT + 3, TT))
    a("s_barrier")
    def wr_tile(t, u):
        c = acc(t, u)
        a("v_cvt_pk_bf16_f32 v%d, v%d, v%d" % (c, c, c + 1)); a("v_cvt_pk_bf16_f32 v%d, v%d, v%d" % (c + 1, c + 2, c + 3))
        a("ds_write_b64 v%d, %s offset:%d" % (TT + 3, R(c, 2), 16 * RS * u + 32 * t))
    for t in range(3):
        for u in range(9): wr_tile(t, u)
    a("s_cmp_eq_u32 s32, 3"); a("s_cbranch_scc1 K1_att_s3")
    for u in range(9): wr_tile(3, u)
    a("K1_att_s3:")
    AQ, AV, VI = TT, TT + 1, TT + 2
    def rowaddr(dst, hh, bq, par, i):
        a("v_bfe_u32 v%d, v2, %d, 1" % (TT + 8, bq)); a("v_lshlrev_b32 v%d, 3, v%d" % (TT + 8, TT + 8))
        a("v_bfe_u32 v%d, v2, %d, 1" % (TT + 9, par)); a("v_add_u32 v%d, v%d, v%d" % (TT + 8, TT + 8, TT + 9))
        a("v_bfe_u32 v%d, v2, %d, 2" % (TT + 9, i)); a("v_lshl_add_u32 v%d, v%d, 1, v%d" % (TT + 8, TT + 9, TT + 8))
        a("v_mul_u32_u24 v%d, %d, v%d" % (TT + 10, RS, TT + 8))
        a("v_bfe_u32 v%d, v2, %d, 2" % (TT + 9, hh)); a("v_mul_u32_u24 v%d, 40, v%d" % (TT + 9, TT + 9))
        a("v_add3_u32 v%d, v%d, v%d, s70" % (dst, TT + 10, TT + 9))
    a("s_mul_i32 s70, s32, %d" % (32 * RS))
    rowaddr(AV, 0, 4, 5, 2)
    rowaddr(AQ, 2, 4, 5, 0)
    a("v_and_b32 v%d, 3, v2" % VI)
    SO = TT + 12
    a("s_mul_i32 s71, s37, 20"); a("v_lshrrev_b32 v%d, 3, v%d" % (TT + 9, TT + 9)); a("v_add_u32 v%d, s71, v%d" % (TT + 9, TT + 9))
    for dp in range(5):
        a("v_add_u32 v%d, %d, v%d" % (TT + 10, dp, TT + 9))
        a("v_lshrrev_b32 v%d, 3, v%d" % (TT + 11, TT + 10)); a("v_lshlrev_b32 v%d, 12, v%d" % (TT + 11, TT + 11))
        a("v_lshl_add_u32 v%d, v%d, 4, v%d" % (TT + 11, TT + 8, TT + 11))
        a("v_and_b32 v%d, 3, v%d" % (SO + dp, TT + 10)); a("v_lshl_add_u32 v%d, v%d, 8, v%d" % (TT + 11, SO + dp, TT + 11))
        a("v_bfe_u32 v%d, v%d, 2, 1" % (TT + 10, TT + 10)); a("v_lshl_add_u32 v%d, v%d, 3, v%d" % (SO + dp, TT + 10, TT + 11))
    a("s_lshl_b32 s71, s36, 1"); a("s_lshr_b32 s69, s32, 1"); a("s_add_u32 s71, s71, s69"); a("s_mul_i32 s71, s71, %d" % (68 * 4096))
    a("s_and_b32 s69, s32, 1"); a("s_lshl_b32 s69, s69, 11"); a("s_add_u32 s71, s71, s69")
    if ACT_OFF: a("s_add_u32 s71, s71, %d" % ACT_OFF)
    for k in range(1, 4): a("v_cmp_gt_u32 s[%d:%d], %d, v%d" % (60 + 2 * k, 61 + 2 * k, k, VI))
    a("s_mov_b32 s69, %s" % f2h(20 ** -0.5 * 1.4426950408889634))
    a("s_waitcnt lgkmcnt(0)"); a("s_barrier")
    lg.clear()
    QR = [256, 336]; Sx = [16, 48]; O = [120, 140]
    def KR(e, kb): return QR[e] + 10 + 10 * kb
    def VR(e, kb): return QR[e] + 40 + 10 * kb
    for e in range(2):
        for dp in range(5): a("ds_read_b64 %s, v%d offset:%d" % (R(QR[e] + 2 * dp, 2), AQ, (16 + 16 * e) * RS + 8 * dp)); lg.issue(("k", e))
        for kb in range(3):
            for dp in range(5): a("ds_read_b64 %s, v%d offset:%d" % (R(KR(e, kb) + 2 * dp, 2), AQ, (8 * kb + 16 * e) * RS + 160 + 8 * dp)); lg.issue(("k", e))
    for e in range(2):
        wait(a, lg=lg.need(("k", e)))
        for dp in range(5):
            for kb in range(3):
                a("v_mfma_f32_4x4x4_16b_bf16 %s, %s, %s, %s" % (R(Sx[e] + 4 * kb), R(KR(e, kb) + 2 * dp, 2), R(QR[e] + 2 * dp, 2), "0" if dp == 0 else R(Sx[e] + 4 * kb)))
                a("ds_read_b64_tr_b16 %s, v%d offset:%d" % (R(VR(e, kb) + 2 * dp, 2), AV, (8 * kb + 16 * e) * RS + 320 + 8 * dp)); lg.issue(("v", e))
    a("s_nop 3")
    a("s_or_b32 s68, s36, s32"); a("s_cmp_lg_u32 s68, 0"); a("s_cbranch_scc1 K1_att_nomask")
    S_ = Sx[0]; Z = S_ + 20
    a("v_lshlrev_b32 v%d, 1, v%d" % (Z, VI)); a("v_sub_u32 v%d, v%d, v%d" % (Z, TT + 8, Z))
    a("v_mov_b32 v%d, 0xff800000" % (Z + 1))
    for k in range(1, 8):
        a("v_cmp_gt_u32 vcc, %d, v%d" % (16 - 2 * k, Z)); a("s_nop 1"); a("v_cndmask_b32 v%d, v%d, v%d, vcc" % (S_ + k, S_ + k, Z + 1))
    a("K1_att_nomask:")
    def soft(S):
        Z = S + 20; P = S + 12; o = []
        o += ["v_cndmask_b32 v%d, v%d, v%d, s[%d:%d]" % (S + k, S + k + 8, S + k, 60 + 2 * k, 61 + 2 * k) for k in range(1, 4)]
        o += ["v_max3_f32 v%d, v%d, v%d, v%d" % (Z + 1, S + 4, S + 5, S + 6), "v_max3_f32 v%d, v%d, v%d, v%d" % (Z, S + 1, S + 2, S + 3),
              "v_max3_f32 v%d, v%d, v%d, v%d" % (Z + 1, Z + 1, S + 7, S + 8), "v_max_f32 v%d, v%d, v%d" % (Z, Z, Z + 1), "v_mul_f32 v%d, s69, v%d" % (Z, Z)]
        o += ["v_fma_f32 v%d, v%d, s69, -v%d" % (S + k, S + k, Z) for k in range(1, 9)]
        o += ["v_exp_f32 v%d, v%d" % (S + k, S + k) for k in range(1, 9)]
        o += ["v_add_f32 v%d, v%d, v%d" % (Z, S + 1, S + 2), "v_add_f32 v%d, v%d, v%d" % (Z + 1, S + 3, S + 4), "v_add_f32 v%d, v%d, v%d" % (Z + 2, S + 5, S + 6), "v_add_f32 v%d, v%d, v%d" % (Z + 3, S + 7, S + 8),
              "v_add_f32 v%d, v%d, v%d" % (Z, Z, Z + 1), "v_add_f32 v%d, v%d, v%d" % (Z + 2, Z + 2, Z + 3), "v_add_f32 v%d, v%d, v%d" % (Z, Z, Z + 2),
              "v_rcp_f32 v%d, v%d" % (Z, Z), "v_mov_b32 v%d, 0" % S]
        o += ["v_mul_f32 v%d, v%d, v%d" % (S + k, S + k, Z) for k in range(1, 9)]
        for k in range(1, 4):
            o += ["v_cndmask_b32 v%d, v%d, 0, s[%d:%d]" % (S + k + 8, S + k, 60 + 2 * k, 61 + 2 * k), "v_cndmask_b32 v%d, 0, v%d, s[%d:%d]" % (S + k, S + k, 60 + 2 * k, 61 + 2 * k)]
        o += ["v_cvt_pk_bf16_f32 v%d, v%d, v%d" % (P + j, S + 2 * j, S + 2 * j + 1) for j in range(6)]
        return o
    for x, y in zip(soft(Sx[0]), soft(Sx[1])): a(x); a(y)
    a("s_waitcnt lgkmcnt(0)"); a("s_nop 0")
    for e in range(2):
        for kb in range(3):
            for dp in range(5):
                a("v_mfma_f32_4x4x4_16b_bf16 %s, %s, %s, %s" % (R(O[e] + 4 * dp), R(VR(e, kb) + 2 * dp, 2), R(Sx[e] + 12 + 2 * kb, 2), "0" if kb == 0 else R(O[e] + 4 * dp)))
    for e in range(2):
        for dp in range(5):
            c = O[e] + 4 * dp
            a("v_cvt_pk_bf16_f32 v%d, v%d, v%d" % (c, c, c + 1)); a("v_cvt_pk_bf16_f32 v%d, v%d, v%d" % (c + 1, c + 2, c + 3))
            a("buffer_store_dwordx2 %s, v%d, s[28:31], s71 offen offset:%d %s" % (R(c, 2), SO + dp, 1024 * e, C.sc1))
    stamp(a, st, 3)
    if st: a("s_waitcnt vmcnt(0)")
    stamp(a, st, 4)


def gen_k1(st_slot0=0, st_total=9):
    a = Asm(); vm = Q(63)
    prologue(a, vm)
    vm2 = copy.deepcopy(vm)
    k1_ffn(a, vm)
    k1_att(a, vm2)
    a("K1_fin:")
    stamp_flush(a, C.st, 5, 28, 2, st_slot0, st_total)
    a("K1_end:"); a("s_endpgm")
    return ("k1_kernel", a.text().replace("XSC", C.xsc if C.xsc != "none" else ""), 256, 256, 153600, 512, 102, 256)

if __name__ == "__main__":
    out = sys.argv[1]
    for kv in sys.argv[2:]:
        k, v = kv.split("="); setattr(C, k, int(v) if v.lstrip("-").isdigit() else v)
    ks = [gen_k1(), gen_k2(C.st, 4, 5, 9, rot_on=0)]
    open(out, "w").write(module(ks, HEADER))
```

```python
import sys, struct, copy
from asmlib import *
from gen import *
from gen1 import Q, wait, f2h, GA, GB, HEADER
from gen2 import bfr, stats_finish, dpp_reduce, norm_ops, xr_base
XBYTES = 2621440
XNP_OFF = 24 << 20
CNT_OFF = 28 << 20
OOB = 0x7ff00000
class Cfg:
    st = 0; rotp = 1; rotk = 4; xbar = 1; pref = 0; sc1 = "sc1"; fused = 0; dbg = 0; early = 1; slp = 2; nlate = 5; xsc = 'sc1'; p0st = 0; lateafter = 1; D = 4; fd = 2
C = Cfg()
def R(n, k=4):
    return ("a[%d:%d]" % (n - 256, n - 256 + k - 1)) if n >= 256 else ("v[%d:%d]" % (n, n + k - 1))
def cost(ins):
    n = 0
    for l in ins.split("\n"):
        n += 1
        if l.startswith("v_exp") or l.startswith("v_rcp"): n += 1
        if l.startswith("ds_write_b128"): n += 4
    return n
def ismem(ins): return ins.startswith("ds_") or ins.startswith("buffer_")

import re
def deps(ins):
    if "\n" in ins or not ins.startswith("v_") or "vcc" in ins or " s" in ins: return None
    regs = re.findall(r"[va]\d+", ins.split(" ", 1)[1])
    return {regs[0]}, set(regs[1:])

class Sched:
    def __init__(s, a, vm, lg): s.a = a; s.vm = vm; s.lg = lg; s.fq = []; s.dq = []; s.debt = 0.0
    def emit(s, item):
        ins, tag = item[0], item[1]
        if ins == "WAITVM": wait(s.a, vm=s.vm.need(tag)); return
        if ins == "WAITLG": wait(s.a, lg=s.lg.need(tag)); return
        if (C.dbg & 1) and ins.startswith("ds_write_b128"): return
        if (C.dbg & 2) and ins.startswith("v_") and deps(ins): return
        if (C.dbg & 4) and ins.startswith("ds_read_b128"): return
        if (C.dbg & 8) and ins.startswith("buffer_"): return
        if (C.dbg & 16) and ins.startswith("ds_read_b64_tr"): return
        s.a(ins)
        if tag:
            for _ in range(item[2] if len(item) > 2 else 1): (s.vm if tag[0] == "vm" else s.lg).issue(tag[1])
    def gap(s, must=(), slots=2):
        first = True
        for it in must:
            s.emit(it); slots -= cost(it[0]); first = False
        if s.dq and first and slots > 0:
            it = s.dq.pop(0); s.emit(it); slots -= cost(it[0]); first = False
        lastw = None
        while s.fq and slots > 0:
            pick = None; W = set(); Rr = set()
            for idx, it in enumerate(s.fq[:14]):
                n = cost(it[0]); d = deps(it[0])
                if d is None:
                    if idx == 0 and not ("m0" in it[0] and s.dq) and not (ismem(it[0]) and not first) and (n <= slots or (first and n > 2)): pick = 0
                    break
                w, r = d
                if n <= slots and not (r & W) and not (w & W) and not (w & Rr) and not (lastw is not None and lastw in r):
                    pick = idx; break
                W |= w; Rr |= r
            if pick is None: break
            it = s.fq.pop(pick); s.emit(it); slots -= cost(it[0]); first = False
            lastw = next(iter(deps(it[0])[0])) if (cost(it[0]) == 2 and deps(it[0])) else None
    def fcost(s): return sum(cost(it[0]) for it in s.fq) + sum(cost(it[0]) for it in s.dq)
    def flush_d(s):
        while s.dq: s.emit(s.dq.pop(0))
    def flush_f(s):
        while s.fq: s.emit(s.fq.pop(0))


RP = 200
def prologue(a, vm):
    st = C.st
    a("s_cmp_ge_u32 s2, 256"); a("s_cbranch_scc1 K1_end")
    stamp(a, st, 0)
    a("s_load_dwordx4 s[4:7], s[0:1], 0"); a("s_load_dwordx4 s[8:11], s[0:1], 32"); a("s_load_dwordx2 s[12:13], s[0:1], 72")
    a("s_load_dwordx2 s[14:15], s[0:1], 16"); a("s_load_dwordx4 s[96:99], s[0:1], 48"); a("s_load_dwordx2 s[24:25], s[0:1], 64")
    a("v_lshrrev_b32 v1, 6, v0"); a("v_and_b32 v2, 63, v0"); a("v_readfirstlane_b32 s32, v1")
    a("s_and_b32 s33, s2, 7"); a("s_lshr_b32 s34, s2, 3")
    a("s_and_b32 s35, s34, 7"); a("s_lshr_b32 s34, s34, 3")
    a("s_and_b32 s36, s33, 1"); a("s_lshl_b32 s36, s36, 3"); a("s_add_u32 s36, s36, s35")
    a("s_lshr_b32 s76, s33, 1"); a("s_lshl_b32 s76, s76, 2"); a("s_add_u32 s76, s76, s34")
    a("s_lshl_b32 s68, s36, 4"); a("s_add_u32 s68, s68, s76"); a("s_mul_i32 s68, s68, 10240")
    a("v_lshrrev_b32 v3, 3, v2"); a("v_mul_u32_u24 v4, 1280, v3"); a("v_and_b32 v5, 7, v2"); a("v_lshl_add_u32 v4, v5, 4, v4"); a("v_add_u32 v4, s68, v4")
    a("s_mul_i32 s67, s32, 3"); a("s_min_u32 s67, s67, 7"); a("s_lshl_b32 s69, s67, 7")
    a("s_waitcnt lgkmcnt(0)")
    a.srd(16, 4, XBYTES)
    a("s_lshl_b32 s68, s76, 2"); a("s_add_u32 s68, s68, s32"); a("s_cmp_lg_u32 s68, 3"); a("s_cbranch_scc1 K1_noinit")
    a.srd(28, 12, WS_BYTES)
    a("s_and_b32 s25, s25, 0xffff"); a("s_movk_i32 s26, 256"); a("s_mov_b32 s27, 0x00020000")
    a("s_lshl_b32 s68, s36, 10"); a("s_add_u32 s68, s68, %d" % CNT_OFF); a("v_lshlrev_b32 v6, 8, v2"); a("v_mov_b32 v7, 0"); a("s_mov_b64 exec, 15")
    a("buffer_store_dword v7, v6, s[28:31], s68 offen sc1")
    a("s_mov_b64 exec, -1")
    a("K1_noinit:")
    for i in range(10):
        a("buffer_load_dwordx4 %s, v4, s[16:19], s69 offen" % R(RP + 4 * i)); vm.issue("x")
        if i < 9: a("s_add_u32 s69, s69, 128"); a("s_cmp_eq_u32 s69, 1280"); a("s_cselect_b32 s69, 0, s69")
    a.srd(28, 12, WS_BYTES)
    a("s_and_b32 s25, s25, 0xffff"); a("s_movk_i32 s26, 256"); a("s_mov_b32 s27, 0x00020000")
    a("s_lshl_b32 s68, s76, 2"); a("s_add_u32 s68, s68, s32"); a("s_cmp_lg_u32 s68, 3"); a("s_cbranch_scc1 K1_noinit2")
    a("s_lshl_b32 s68, s36, 4"); a("v_mov_b32 v7, 1"); a("s_mov_b64 exec, 1")
    a("s_waitcnt vmcnt(10)")
    a("buffer_store_dword v7, off, s[24:27], s68 sc1")
    a("s_mov_b64 exec, -1")
    a("K1_noinit2:")
    a("s_and_b32 s37, s33, 6"); a("s_and_b32 s68, s34, 1"); a("s_add_u32 s37, s37, s68")
    a("s_mul_i32 s38, s34, 5"); a("s_lshr_b32 s38, s38, 1")
    if C.rotk == 1:
        a("s_and_b32 s68, s35, 1"); a("s_mul_i32 s68, s68, 5"); a("s_add_u32 s38, s38, s68")
    if C.rotk == 2:
        a("s_lshr_b32 s69, s34, 1"); a("s_and_b32 s68, s35, s69"); a("s_mul_i32 s68, s68, 5"); a("s_add_u32 s38, s38, s68")
    if C.rotk == 9: a("s_mov_b32 s38, 0")
    if C.rotk == 4:
        a("s_cmp_ge_u32 s34, 2"); a("s_cselect_b32 s69, 10, 30"); a("s_mul_i32 s68, s35, s69"); a("s_lshr_b32 s68, s68, 3")
        a("s_mul_i32 s39, s68, 205"); a("s_lshr_b32 s39, s39, 11"); a("s_mul_i32 s69, s39, 10"); a("s_sub_u32 s68, s68, s69"); a("s_add_u32 s38, s38, s68")
    if C.rotk: a("s_sub_u32 s68, s38, 10"); a("s_cmp_ge_u32 s38, 10"); a("s_cselect_b32 s38, s68, s38")
    if C.rotk == 4: pass
    elif C.rotp:
        a("s_mul_i32 s68, s35, 11"); a("s_lshr_b32 s68, s68, 5"); a("s_mul_i32 s68, s68, 3"); a("s_sub_u32 s39, s35, s68")
    else: a("s_mov_b32 s39, 0")
    a("s_mul_i32 s3, s35, 30"); a("s_lshr_b32 s3, s3, 3"); a("s_mul_i32 s3, s3, 205"); a("s_lshr_b32 s3, s3, 11")
    assert C.rotk == 4
    a("s_mul_i32 s70, s36, 163840"); a("s_add_u32 s70, s70, %d" % XNP_OFF)
    a("s_cmp_ge_u32 s34, 2"); a("s_movk_i32 s68, 0x3c00"); a("s_cselect_b32 s71, s68, 0x3000"); a("s_lshl_b32 s71, s71, 4")
    for j in range(10):
        a("s_mul_i32 s%d, s38, s71" % (40 + j)); a("s_lshl_b32 s68, s38, 14"); a("s_add_u32 s%d, s70, s68" % (50 + j))
        if j < 9: a("s_add_u32 s38, s38, 1"); a("s_cmp_eq_u32 s38, 10"); a("s_cselect_b32 s38, 0, s38")
    a("v_lshrrev_b32 v6, 2, v5"); a("v_lshlrev_b32 v6, 13, v6"); a("v_and_b32 v5, 3, v5"); a("v_lshl_add_u32 v6, v5, 8, v6"); a("v_lshl_add_u32 v240, v3, 4, v6")
    a("s_lshl_b32 s38, s67, 14"); a("s_add_u32 s38, s38, s70"); a("s_lshr_b32 s68, s76, 1"); a("s_lshl_b32 s68, s68, 10"); a("s_add_u32 s38, s38, s68")
    a("s_and_b32 s68, s76, 1"); a("s_lshl_b32 s68, s68, 7"); a("s_add_u32 s38, s38, s68")
    a("s_mov_b32 s33, 0x3f803f80")
    a("s_cmp_ge_u32 s34, 2"); a("s_cbranch_scc1 K1_att")

def poll(a, name, voff, target, srd=28, first_loaded=False):
    a("s_mov_b32 s68, 0")
    if first_loaded: a("s_branch %s_chk" % name)
    a("%s:" % name)
    a("buffer_load_dword v241, v%d, s[%d:%d], 0 offen sc1" % (voff, srd, srd + 3))
    a("s_add_u32 s68, s68, 1")
    a("s_waitcnt vmcnt(0)")
    a("%s_chk:" % name)
    a("v_cmp_gt_u32 vcc, %d, v241" % target)
    a("s_nop 4")
    a("s_cbranch_vccz %s_ok" % name)
    if C.slp: a("s_sleep %d" % C.slp)
    a("s_cmp_lt_u32 s68, 0x8000"); a("s_cbranch_scc1 %s" % name)
    a("%s_ok:" % name)

def p0(a, sc, late, role):
    vm = sc.vm
    S = [242, 243]; T = [244, 245, 246, 247]
    a("v_mov_b32 v%d, 0" % S[0]); a("v_mov_b32 v%d, 0" % S[1])
    wait(a, vm=vm.need("x"))
    if C.p0st: stamp(a, C.st, 2)
    for d in range(40): a("v_dot2c_f32_bf16 v%d, s33, v%d" % (S[0], RP + d)); a("v_dot2c_f32_bf16 v%d, v%d, v%d" % (S[1], RP + d, RP + d))
    a("s_nop 0")
    dpp_reduce(a, S, ["quad_perm:[1,0,3,2]", "quad_perm:[2,3,0,1]", "row_half_mirror"])
    s_, q = S
    a("v_mul_f32 v%d, 0x3acccccd, v%d" % (s_, s_)); a("v_mul_f32 v%d, 0x3acccccd, v%d" % (q, q))
    a("v_fma_f32 v%d, -v%d, v%d, v%d" % (q, s_, s_, q)); a("v_max_f32 v%d, 0, v%d" % (q, q))
    bfr(a, q); bfr(a, s_)
    a("v_add_f32 v%d, 0x3727c5ac, v%d" % (q, q)); bfr(a, q)
    a("v_sqrt_f32 v%d, v%d" % (q, q)); a("s_nop 0"); bfr(a, q)
    a("v_rcp_f32 v%d, v%d" % (q, q))
    for i in range(3):
        for d in range(0, 4, 2):
            r = RP + 4 * i + d
            for op, o in (("v_sub_f32 v%d, v%d, v%d", s_), ("v_mul_f32 v%d, v%d, v%d", q)):
                a("v_lshlrev_b32 v%d, 16, v%d" % (T[0], r)); a("v_and_b32 v%d, 0xffff0000, v%d" % (T[1], r))
                a("v_lshlrev_b32 v%d, 16, v%d" % (T[2], r + 1)); a("v_and_b32 v%d, 0xffff0000, v%d" % (T[3], r + 1))
                for k in range(4): a(op % (T[k], T[k], o))
                a("v_cvt_pk_bf16_f32 v%d, v%d, v%d" % (r, T[0], T[1])); a("v_cvt_pk_bf16_f32 v%d, v%d, v%d" % (r + 1, T[2], T[3]))
        a("buffer_store_dwordx4 %s, v240, s[28:31], s38 offen sc1" % R(RP + 4 * i)); vm.issue("xst")
        if i < 2: a("s_add_u32 s38, s38, 16384")
    if C.p0st: stamp(a, C.st, 3)
    a("s_lshl_b32 s69, s36, 4")
    if role == "att": a("s_min_u32 s68, s69, 16"); a("v_min_u32 v243, 1, v2"); a("v_mul_u32_u24 v243, s68, v243"); a("v_sub_u32 v243, s69, v243")
    else: a("v_mov_b32 v243, s69")
    a("s_cmp_lg_u32 s32, 0"); a("s_cbranch_scc1 P0_%s_nord" % role)
    a("buffer_load_dword v241, v243, s[24:27], 0 offen sc1")
    a("P0_%s_nord:" % role)
    if C.lateafter: a("s_waitcnt vmcnt(0)"); vm.clear()
    else:
        for it in late: sc.emit(it)
        wait(a, vm=vm.need("xst"))
    a("s_barrier")
    if C.p0st: stamp(a, C.st, 4)
    a("s_cmp_lg_u32 s32, 0"); a("s_cbranch_scc1 P0_%s_skip" % role)
    a("s_mov_b64 exec, 3")
    poll(a, "P0_%s_rdy" % role, 243, 1, 24, True)
    a("v_lshlrev_b32 v243, 6, v243"); a("v_add_u32 v243, %d, v243" % CNT_OFF); a("v_mov_b32 v242, 1"); a("s_mov_b64 exec, 1")
    a("buffer_atomic_add v242, v243, s[28:31], 0 offen sc1")
    a("s_mov_b64 exec, -1")
    a("P0_%s_skip:" % role)
    if C.lateafter:
        for it in late: sc.emit(it)
    a("s_cmp_lg_u32 s32, 0"); a("s_cbranch_scc1 P0_%s_skip2" % role)
    a("s_mov_b64 exec, 3")
    poll(a, "P0_%s_poll" % role, 243, 16)
    a("s_mov_b64 exec, -1")
    a("P0_%s_skip2:" % role)
    a("s_lshl_b32 s34, s36, 10"); a("s_add_u32 s34, s34, %d" % (CNT_OFF + 256)); a("s_add_u32 s35, s34, 256")
    a("s_barrier")

def W2R(i): return 256 + 20 * i if i < 12 else (104 + 20 * (i - 12) if i < 15 else 168 + 20 * (i - 15))
def p2_bases(dst, unit, base_expr):
    out = list(base_expr)
    out += ["s_mul_i32 s68, s32, %d" % (5 * unit), "s_add_u32 s%d, s69, s68" % (dst + 3),
            "s_mul_i32 s68, s32, %d" % (12 * unit), "s_add_u32 s69, s69, s68", "s_add_u32 s69, s69, %d" % (20 * unit),
            "s_mul_i32 s68, s3, %d" % (2 * unit), "s_add_u32 s%d, s69, s68" % dst]
    for pp in (1, 2):
        out += ["s_add_u32 s68, s68, %d\ns_cmp_eq_u32 s68, %d\ns_cselect_b32 s68, 0, s68" % (2 * unit, 6 * unit), "s_add_u32 s%d, s69, s68" % (dst + pp)]
    return out
def step_off(i, dst, unit):
    if i < 8: return dst + ((i >> 1) & 1), (6 * (i >> 2) + (i & 1)) * unit
    if i < 13: return dst + 3, (i - 8) * unit
    return dst + 2, (6 * ((i - 13) >> 1) + ((i - 13) & 1)) * unit
WB = 100 - 8
AB = 56
def w2_setup():
    be = ["s_lshr_b32 s69, s76, 3", "s_lshl_b32 s69, s69, 2", "s_and_b32 s68, s76, 3", "s_add_u32 s69, s69, s68", "s_mul_i32 s69, s69, %d" % (68 * 5120), "s_add_u32 s69, s69, %d" % W2P_OFF]
    return "\n".join(p2_bases(WB, 5120, be))
def w2_loads(i, VL, VL4):
    b, c = step_off(i, WB, 5120)
    out = [("s_add_u32 s13, s%d, %d" % (b, c), None)]
    return out + [("buffer_load_dwordx4 %s, v%d, s[28:31], s13 offen offset:%d sc1" % (R(W2R(i) + 4 * t), VL if t < 4 else VL4, 1024 * (t % 4)), ("vm", ("w2", i))) for t in range(5)]
SPINS = []
def flag_load(vd, soff, srd): return "buffer_load_dword v%d, off, s[%d:%d], %s sc1" % (vd, srd, srd + 3, soff)
def flag_check(name, vd, soff, srd, target):
    SPINS.append((name, vd, soff, srd, target))
    return "v_readfirstlane_b32 s100, v%d\ns_cmp_lt_u32 s100, %d\ns_cbranch_scc1 %s_spin\n%s_ok:" % (vd, target, name, name)
def emit_spins(a):
    for name, vd, soff, srd, target in SPINS:
        a("%s_spin:" % name); a("s_mov_b32 s101, 0")
        a("%s_lp:" % name)
        if C.slp: a("s_sleep %d" % C.slp)
        a(flag_load(vd, soff, srd)); a("s_add_u32 s101, s101, 1"); a("s_waitcnt vmcnt(0)")
        a("v_readfirstlane_b32 s100, v%d" % vd); a("s_cmp_ge_u32 s100, %d" % target); a("s_cbranch_scc1 %s_ok" % name)
        a("s_cmp_lt_u32 s101, 0x8000"); a("s_cbranch_scc1 %s_lp" % name); a("s_branch %s_ok" % name)
def signal(name, soff, srd, vt):
    return ("s_cmp_lg_u32 s32, 0\ns_cbranch_scc1 %s\nv_mov_b32 v%d, 1\ns_mov_b64 exec, 1\nbuffer_atomic_add v%d, off, s[%d:%d], %s sc1\ns_mov_b64 exec, -1\n%s:" % (name, vt, vt, srd, srd + 3, soff, name))

def p2(a):
    st = C.st; D = C.D
    vm = Q(63)
    a("P2:")
    stamp(a, st, 3)
    VA = [3, 4, 5, 6]; VL, VX, VR_, FL = 7, 8, 9, 10; XR = 12; ACC = 24; AB_ = [496, 208, 224, 240]; STG = 104
    a(flag_load(FL, "s34", 28)); vm.issue("fe")
    be = ["s_lshl_b32 s69, s36, 1", "s_bfe_u32 s68, s76, 0x10002", "s_add_u32 s70, s69, s68", "s_mul_i32 s69, s70, %d" % (68 * 4096)]
    if ACT_OFF: be.append("s_add_u32 s69, s69, %d" % ACT_OFF)
    for l in p2_bases(AB, 4096, be): a(l)
    a("v_lshrrev_b32 v1, 6, v0"); a("v_lshlrev_b32 v%d, 4, v2" % VL)
    for i in range(4):
        a("v_add_u32 v11, %d, v1" % i); a("v_and_b32 v11, 3, v11"); a("v_lshl_add_u32 v%d, v11, 10, v%d" % (VA[i], VL))
    a("v_and_b32 v11, 15, v2"); a("v_lshl_add_u32 v11, v1, 4, v11"); a("v_mul_u32_u24 v11, 1280, v11")
    a("v_lshrrev_b32 v22, 4, v2"); a("v_mul_u32_u24 v22, 40, v22"); a("v_add_u32 v%d, v11, v22" % VX)
    a("s_mul_i32 s39, s70, %d" % (64 * 1280)); a("s_lshr_b32 s69, s76, 3"); a("s_lshl_b32 s69, s69, 2"); a("s_and_b32 s68, s76, 3"); a("s_add_u32 s69, s69, s68")
    a("s_mul_i32 s69, s69, 160"); a("s_add_u32 s39, s39, s69")
    a.srd(20, 98, XBYTES)
    wait(a, vm=vm.need("fe"))
    a(flag_check("P2_fe", FL, "s34", 28, 8))
    def issue(i):
        b, c = step_off(i, AB, 4096)
        a("s_add_u32 s13, s%d, %d" % (b, c))
        for q in range(4): a("buffer_load_dwordx4 %s, v%d, s[28:31], s13 offen sc1" % (R(AB_[i % D] + 4 * q), VA[q])); vm.issue(("a", i))
    for i in range(D): issue(i)
    for i in range(17):
        wait(a, vm=vm.need(("a", i)))
        if i == 0: stamp(a, st, 4)
        for t in range(5):
            for q in range(4):
                c = ACC + (q * 5 + t) * 4
                a("v_mfma_f32_16x16x32_bf16 %s, %s, %s, %s" % (R(c), R(W2R(i) + 4 * t), R(AB_[i % D] + 4 * q), "0" if i == 0 else R(c)))
        if i + D == 8 - C.fd: a(flag_load(FL, "s35", 28)); vm.issue("ff")
        if i + D == 8:
            wait(a, vm=vm.need("ff")); a(flag_check("P2_ff", FL, "s35", 28, 16))
        if i + D < 17: issue(i + D)
        if i + D == 16:
            a("buffer_load_dwordx4 %s, v%d, s[16:19], s39 offen" % (R(XR), VX)); a("buffer_load_dwordx4 %s, v%d, s[16:19], s39 offen offset:16" % (R(XR + 4), VX))
            a("buffer_load_dwordx2 %s, v%d, s[16:19], s39 offen offset:32" % (R(XR + 8, 2), VX))
            for _ in range(3): vm.issue("xr")
    for q in range(1, 4):
        a("v_add_u32 v11, %d, v1" % q); a("v_and_b32 v11, 3, v11"); a("v_mul_u32_u24 v11, 15360, v11"); a("v_add_u32 v%d, v11, v%d" % (2 + q, VL))
    a("v_mul_u32_u24 v11, 15360, v1"); a("v_add_u32 v%d, v11, v%d" % (VR_, VL))
    for q in range(1, 4):
        for t in range(5):
            a("ds_write_b128 v%d, %s offset:%d" % (2 + q, R(ACC + (q * 5 + t) * 4), (q - 1) * 5120 + t * 1024))
    a("s_waitcnt vmcnt(0)")
    for t in range(5):
        for p in range(2):
            xr = XR + 2 * t + p; c = ACC + t * 4 + 2 * p
            a("v_lshlrev_b32 v11, 16, v%d" % xr); a("v_and_b32 v22, 0xffff0000, v%d" % xr)
            a("v_add_f32 v%d, v%d, v11" % (c, c)); a("v_add_f32 v%d, v%d, v22" % (c + 1, c + 1))
    a("s_waitcnt lgkmcnt(0)"); a("s_barrier")
    for t in range(5):
        for s in range(3): a("ds_read_b128 %s, v%d offset:%d" % (R(STG + (t * 3 + s) * 4), VR_, s * 5120 + t * 1024))
    for t in range(5):
        a("s_waitcnt lgkmcnt(%d)" % (12 - 3 * t))
        for s in range(3):
            for r in range(4): a("v_add_f32 v%d, v%d, v%d" % (ACC + t * 4 + r, ACC + t * 4 + r, STG + (t * 3 + s) * 4 + r))
        a("v_cvt_pk_bf16_f32 v%d, v%d, v%d" % (XR + 2 * t, ACC + t * 4, ACC + t * 4 + 1))
        a("v_cvt_pk_bf16_f32 v%d, v%d, v%d" % (XR + 2 * t + 1, ACC + t * 4 + 2, ACC + t * 4 + 3))
        if t == 1: a("buffer_store_dwordx4 %s, v%d, s[20:23], s39 offen" % (R(XR), VX))
        if t == 3: a("buffer_store_dwordx4 %s, v%d, s[20:23], s39 offen offset:16" % (R(XR + 4), VX))
    a("buffer_store_dwordx2 %s, v%d, s[20:23], s39 offen offset:32" % (R(XR + 8, 2), VX))
    if st: a("s_waitcnt vmcnt(0)")
    stamp(a, st, 5)

def k1_ffn(a, vm):
    st = 0 if C.p0st else C.st
    SL = 16896
    lg = Q(15); sc = Sched(a, vm, lg)
    a("s_and_b32 s68, s32, 1"); a("s_lshr_b32 s69, s32, 1")
    a("s_cmp_eq_u32 s68, 0"); a("s_cselect_b32 s8, s8, s10"); a("s_cselect_b32 s9, s9, s11")
    a.srd(20, 8, 1966080)
    a("s_lshl_b32 s60, s39, 7")
    a("s_mul_i32 s66, s32, 4224"); a("s_lshl_b32 s67, s32, 12")
    VWO = [3, 4, 5, 6]; VWR, VWR2, VXR, VXO, VST, VA_, VB_ = 7, 8, 9, 10, 11, 12, 13
    WF = 16; ACC = [40, 104]; TE = [14, 15, 1, 10]; VL4 = 9; FL = 232
    def X(j, kk, tt): return (256 + 32 * j if j < 8 else 168 + 32 * (j - 8)) + (kk * 4 + tt) * 4
    a("v_lshrrev_b32 v13, 5, v2"); a("v_lshlrev_b32 v13, 4, v13"); a("v_bfe_u32 v14, v2, 4, 1"); a("v_lshl_add_u32 v13, v14, 2, v13")
    a("v_bfe_u32 v14, v2, 3, 1"); a("s_lshl_b32 s71, s69, 5"); a("v_add3_u32 v13, v13, v14, s71"); a("v_mul_u32_u24 v13, 3072, v13")
    a("v_and_b32 v14, 7, v2"); a("v_lshlrev_b32 v14, 4, v14")
    a("s_mul_i32 s71, s37, 384"); a("v_add3_u32 v%d, v13, v14, s71" % VWO[0])
    for i in range(1, 4): a("v_add_u32 v%d, %d, v%d" % (VWO[i], (8 * (i >> 1) + 2 * (i & 1)) * 3072 - 1056 * i, VWO[0]))
    wpos = {}; xpos = {}
    def dma(n, pos):
        p, j = n // 10, n % 10; wpos[n] = pos
        out = [("s_add_u32 m0, s66, %d\ns_add_u32 s68, s%d, s%d" % (pos * SL, 40 + j, 60 + p), None)]
        return out + [("buffer_load_dwordx4 v%d, s[20:23], s68 offen offset:%d lds" % (VWO[i], 1056 * i), ("vm", ("w", n))) for i in range(4)]
    def dmax(j, pos):
        xpos[j] = pos
        out = [("s_add_u32 m0, s67, %d\ns_nop 0" % (pos * SL), None)]
        return out + [("buffer_load_dwordx4 v%d, s[28:31], s%d offen offset:%d XSC lds" % (VXO, 50 + j, 1024 * i), ("vm", ("x", j))) for i in range(4)]
    for n in range(C.early):
        for it in dma(n, n): sc.emit(it)
    a("s_and_b32 s68, s32, 1")
    a("s_lshl_b32 s70, s36, 1"); a("s_add_u32 s70, s70, s68"); a("s_mul_i32 s70, s70, 68")
    a("s_mul_i32 s71, s37, 6"); a("s_add_u32 s70, s70, s71"); a("s_add_u32 s70, s70, s69"); a("s_add_u32 s70, s70, 20"); a("s_lshl_b32 s70, s70, 12")
    if ACT_OFF: a("s_add_u32 s70, s70, %d" % ACT_OFF)
    for p in range(3):
        a("s_lshl_b32 s%d, s39, 7" % (60 + p)); a("s_lshl_b32 s71, s39, 13"); a("s_add_u32 s%d, s70, s71" % (63 + p))
        if p < 2: a("s_add_u32 s39, s39, 1"); a("s_cmp_eq_u32 s39, 3"); a("s_cselect_b32 s39, 0, s39")
    a("v_bfe_u32 v13, v2, 3, 2"); a("v_mul_u32_u24 v13, 1056, v13")
    a("v_lshrrev_b32 v14, 5, v2"); a("v_lshlrev_b32 v14, 2, v14"); a("v_bfe_u32 v15, v2, 2, 1"); a("v_add_u32 v14, v14, v15"); a("v_lshl_add_u32 v13, v14, 7, v13")
    a("v_and_b32 v14, 3, v2"); a("v_lshlrev_b32 v14, 3, v14"); a("s_lshl_b32 s71, s69, 6")
    a("v_add3_u32 v%d, v13, v14, s71" % VWR); a("v_add_u32 v%d, %d, v%d" % (VWR2, 4 * SL, VWR))
    a("v_lshlrev_b32 v%d, 4, v2" % VST); a("v_add_u32 v%d, s67, v%d" % (VXO, VST))
    a("s_lshl_b32 s71, s68, 12"); a("s_add_u32 s71, s71, %d" % (5 * SL)); a("v_add_u32 v%d, s71, v%d" % (VXR, VST))
    a("v_mov_b32 v%d, %s" % (VA_, f2h(GA))); a("v_mov_b32 v%d, %s" % (VB_, f2h(GB)))
    late = []
    for n in range(C.early, C.nlate): late += dma(n, n)
    p0(a, sc, late, "ffn")
    stamp(a, C.st, 1)
    for j in range(5):
        if j < 4:
            for it in dmax(j, 5 + j): sc.emit(it)
        if j >= C.nlate:
            for it in dma(j, j): sc.emit(it)
    wiss = 5; xiss = 4; w2q = list(range(17)); sig = 0
    def wreads(g):
        s_, u = g // 8, g % 8; pos = wpos[s_]; kk, wt = u >> 2, u & 3
        vb = VWR if pos < 4 else VWR2; off = (pos % 4) * SL + (kk * 2 + (wt >> 1)) * 4224 + 32 * (wt & 1)
        b = WF + (g % 6) * 4
        return [("ds_read_b64_tr_b16 %s, v%d offset:%d" % (R(b + 2 * t, 2), vb, off + 256 * t), ("lg", ("w", g // 2))) for t in range(2)]
    def xreads(j):
        return [("ds_read_b128 %s, v%d offset:%d" % (R(X(j, kk, tt)), VXR, (xpos[j] - 5) * SL + 8192 * kk + 1024 * tt), ("lg", ("x", j, kk))) for kk in range(2) for tt in range(4)]
    def epilogue(p):
        out = []; base = ACC[p % 2]
        for tt in range(4):
            D = base + (8 + tt) * 4
            for a_ in range(2):
                G = [base + (a_ * 4 + tt) * 4 + k for k in range(4)]; U = [base + ((2 + a_) * 4 + tt) * 4 + k for k in range(4)]; t = TE
                f_sq = lambda k: "v_mul_f32 v%d, v%d, v%d" % (t[k], G[k], G[k])
                f_fm = lambda k: "v_fma_f32 v%d, v%d, v%d, v%d" % (t[k], t[k], VB_, VA_)
                f_m2 = lambda k: "v_mul_f32 v%d, v%d, v%d" % (t[k], t[k], G[k])
                f_ex = lambda k: "v_exp_f32 v%d, v%d" % (t[k], t[k])
                f_gu = lambda k: "v_mul_f32 v%d, v%d, v%d" % (G[k], G[k], U[k])
                f_ad = lambda k: "v_add_f32 v%d, 1.0, v%d" % (t[k], t[k])
                f_rc = lambda k: "v_rcp_f32 v%d, v%d" % (t[k], t[k])
                f_fi = lambda k: "v_mul_f32 v%d, v%d, v%d" % (G[k], G[k], t[k])
                for f in (f_sq, f_fm, f_m2, f_ex, f_gu, f_ad, f_rc, f_fi):
                    for k in range(4): out.append((f(k), None))
                out.append(("v_cvt_pk_bf16_f32 v%d, v%d, v%d" % (D + 2 * a_, G[0], G[1]), None))
                out.append(("v_cvt_pk_bf16_f32 v%d, v%d, v%d" % (D + 2 * a_ + 1, G[2], G[3]), None))
            out.append(("buffer_store_dwordx4 %s, v%d, s[28:31], s%d offen offset:%d %s" % (R(D), VST, 63 + p, 1024 * tt, C.sc1), ("vm", "st")))
        return out
    wait(a, vm=vm.need(("w", 0), ("x", 0))); a("s_barrier")
    xq = xreads(0)
    for it in wreads(0) + xq[:4] + wreads(1) + wreads(2) + wreads(3) + xq[4:]: sc.emit(it)
    xq = []
    wait(a, lg=lg.need(("w", 0), ("x", 0, 0)))
    for P in range(120):
        s_ = P // 4; p, j = s_ // 10, s_ % 10; kk = (P >> 1) & 1
        if P % 40 == 1 and p >= 1: sc.fq += epilogue(p - 1)
        Pn = P + 2
        bar = Pn < 120 and Pn % 4 == 0
        wr = None
        for i in range(8):
            g = 2 * P + (i >> 2); wt = g & 3; tt = i & 3
            c = ACC[p % 2] + (wt * 4 + tt) * 4; b = WF + (g % 6) * 4
            if i == 0 and bar: sc.flush_d()
            a("v_mfma_f32_16x16x32_bf16 %s, %s, %s, %s" % (R(c), R(b), R(X(j, kk, tt)), "0" if (j == 0 and kk == 0) else R(c)))
            if i == 0 and bar:
                s2 = Pn // 4
                epi_done = s2 >= 21 and not sc.fq
                if epi_done and sig == 0: wait(a, vm=vm.need(("w", s2), "st")); sig = 1
                else: wait(a, vm=vm.need(("w", s2), ("x", s2)))
                a("s_barrier")
                free = []
                if s2 - 1 < 10:
                    if xiss < 10: sc.dq += dmax(xiss, xpos[s2 - 1]); xiss += 1
                    elif xpos[s2 - 1] < 8: free.append(xpos[s2 - 1])
                if s2 >= 2: free.append(wpos[s2 - 2])
                for pos in free:
                    if wiss < 30: sc.dq += dma(wiss, pos); wiss += 1
                if s2 == 19: sc.dq += [(w2_setup(), None), ("v_add_u32 v%d, 4096, v%d" % (VL4, VST), None), (flag_load(FL, "4", 24), ("vm", "pf"))]
                if s2 == 21: sc.dq += [("WAITVM", "pf"), (flag_check("FFN_pf", FL, "4", 24, 128), None)]
                if s2 >= 22:
                    n = 0
                    while w2q and n < 3:
                        c_ = [i for i in w2q if (i < 12 and (20 * i + 19) // 32 <= s2 - 22) or (12 <= i < 15 and epi_done)]
                        if not c_: break
                        w2q.remove(c_[0]); sc.dq += w2_loads(c_[0], VST, VL4); n += 1
                if s2 >= 21 and sig == 1: sc.dq.insert(0, (signal("FFN_sig", "s34", 28, FL + 1), None)); sig = 2
                if s2 < 10: xq = xreads(s2)
                continue
            if wr is None: wr = (wreads(2 * Pn) + wreads(2 * Pn + 1)) if Pn < 120 else []
            must = []
            if wr and (i % 2 == 1): must.append(wr.pop(0))
            if xq and (i % 2 == 1 and i != 7 or not sc.dq): must.append(xq.pop(0))
            slots = 2
            left = (39 - P % 40) * 8 + 8 - i - (8 if p < 2 else 88)
            need_rate = sum(cost(it[0]) for it in sc.fq) / max(left, 1) + 0.95
            if need_rate > 2 and p > 0: slots = int(need_rate + 0.99)
            if i == 7: slots -= 1
            sc.gap(must, slots)
        if P + 1 < 120:
            s3 = (P + 1) // 4
            wait(a, lg=lg.need(("w", P + 1), ("x", s3 % 10, ((P + 1) >> 1) & 1)))
        if P % 40 == 39: assert not sc.fq, (P, len(sc.fq))
    stamp(a, st, 2)
    assert sig == 2
    sc.flush_d()
    print("W2 steps left after FFN loop:", w2q)
    ep = epilogue(2); rest = []
    for i in w2q: rest += w2_loads(i, VST, VL4)
    a("s_nop 7")
    for k, it in enumerate(ep):
        sc.emit(it)
        if rest and k % 6 == 0: sc.emit(rest.pop(0))
    assert not rest
    wait(a, vm=vm.need("st")); a("s_barrier")
    a(signal("FFN_sig2", "s35", 28, FL + 1))
    a("s_branch P2")

def k1_att(a, vm):
    st = 0 if C.p0st else C.st
    a("K1_att:")
    WSL = 24576; NW = 5; PB = NW * WSL
    RS = 496
    lg = Q(15); sc = Sched(a, vm, lg)
    VWO = [3, 4, 5, 6]; VWR = [7, 8, 9]; VXR = [10, 11, 12]; VXO, VL = 13, 14
    TT = 16; PV = 212; PR = 216; VL4 = 15; FL = 1
    FR = [160, 460]
    def acc(t, u): return 16 + 4 * (t * 9 + u)
    a.srd(20, 6, 2457600)
    a("s_lshl_b32 s66, s32, 12"); a("s_lshl_b32 s67, s32, 11"); a("s_add_u32 s65, s67, 16384")
    for i in range(4):
        a("s_lshl_b32 s68, s32, 8"); a("s_add_u32 s68, s68, %d" % (64 * i)); a("v_add_u32 v%d, s68, v2" % TT)
        a("v_mul_u32_u24 v%d, 2185, v%d" % (TT + 1, TT)); a("v_lshrrev_b32 v%d, 16, v%d" % (TT + 1, TT + 1))
        a("v_mul_u32_u24 v%d, 30, v%d" % (TT + 2, TT + 1)); a("v_sub_u32 v%d, v%d, v%d" % (TT + 2, TT, TT + 2))
        a("v_mul_u32_u24 v%d, 205, v%d" % (TT + 3, TT + 2)); a("v_lshrrev_b32 v%d, 11, v%d" % (TT + 3, TT + 3))
        a("v_mul_u32_u24 v%d, 1120, v%d" % (TT + 3, TT + 3)); a("v_lshl_add_u32 v%d, v%d, 4, v%d" % (TT + 3, TT + 2, TT + 3))
        a("v_bfe_u32 v%d, v%d, 2, 2" % (TT + 4, TT + 1)); a("v_lshlrev_b32 v%d, 3, v%d" % (TT + 4, TT + 4))
        a("v_bfe_u32 v%d, v%d, 4, 1" % (TT + 2, TT + 1)); a("v_lshl_add_u32 v%d, v%d, 2, v%d" % (TT + 4, TT + 2, TT + 4))
        a("v_and_b32 v%d, 3, v%d" % (TT + 2, TT + 1)); a("v_add_u32 v%d, v%d, v%d" % (TT + 4, TT + 4, TT + 2))
        a("v_mul_u32_u24 v%d, 3840, v%d" % (TT + 4, TT + 4)); a("s_mul_i32 s68, s37, 160"); a("s_sub_u32 s68, s68, %d" % (1024 * i))
        a("v_add3_u32 v%d, v%d, v%d, s68" % (VWO[i], TT + 4, TT + 3))
        if i == 2:
            def dmaA(gm):
                c, hf = gm >> 1, gm & 1
                out = [("s_add_u32 m0, s66, %d\ns_add_u32 s68, s%d, %d" % ((gm % NW) * WSL, 40 + c, hf * 122880), None)]
                return out + [("buffer_load_dwordx4 v%d, s[20:23], s68 offen offset:%d lds" % (VWO[k], 1024 * k), ("vm", ("g", gm))) for k in range(3)]
            for gm in range(C.early):
                for it in dmaA(gm): sc.emit(it)
    a("v_lshlrev_b32 v%d, 4, v2" % VL); a("v_add_u32 v%d, s67, v%d" % (VXO, VL))
    a("s_cmp_eq_u32 s36, 0"); a("s_cselect_b32 s68, 0x%x, 0" % OOB); a("v_add_u32 v%d, s68, v%d" % (TT, VL))
    a("s_cmp_eq_u32 s32, 3")
    for i in range(3): a("s_cselect_b32 s%d, s%d, s%d" % (72 + i, 28 + i, 20 + i))
    a("s_mov_b32 s75, 0x00020000")
    a("s_cselect_b64 vcc, -1, 0"); a("v_cndmask_b32 v%d, v%d, v%d, vcc" % (VWO[3], VWO[3], TT))
    def dmaB(gm, withA):
        c, hf = gm >> 1, gm & 1
        pre = "" if withA else "s_add_u32 m0, s66, %d\ns_add_u32 s68, s%d, %d\n" % ((gm % NW) * WSL, 40 + c, hf * 122880)
        out = [(pre + "s_sub_u32 s69, s%d, %d\ns_cmp_eq_u32 s32, 3\ns_cselect_b32 s68, s69, s68" % (50 + c, 163840 - 7168 + 3072 - hf * 8192), None),
               ("buffer_load_dwordx4 v%d, s[72:75], s68 offen offset:3072 XSC lds" % VWO[3], ("vm", ("g", gm))),
               ("s_add_u32 m0, s65, %d\ns_add_u32 s69, s%d, %d" % ((gm % NW) * WSL, 50 + c, hf * 8192), None)]
        return out + [("buffer_load_dwordx4 v%d, s[28:31], s69 offen offset:%d XSC lds" % (VXO, 1024 * k), ("vm", ("g", gm))) for k in range(2)]
    a("v_lshrrev_b32 v%d, 2, v2" % TT); a("v_mul_u32_u24 v%d, 480, v%d" % (TT, TT)); a("v_and_b32 v%d, 3, v2" % (TT + 1)); a("v_lshl_add_u32 v%d, v%d, 3, v%d" % (TT, TT + 1, TT))
    a("s_lshl_b32 s60, s32, 7")
    a("v_add_u32 v%d, s60, v%d" % (VWR[0], TT)); a("v_add_u32 v%d, %d, v%d" % (VWR[1], 2 * WSL, VWR[0])); a("v_add_u32 v%d, %d, v%d" % (VWR[2], 4 * WSL, VWR[0]))
    for k in range(3): a("v_add_u32 v%d, %d, v%d" % (VXR[k], 2 * k * WSL + 15360, VL))
    late = []
    for gm in range(C.early, C.nlate): late += dmaA(gm)
    p0(a, sc, late, "att")
    stamp(a, C.st, 1)
    for gm in range(NW):
        for it in (dmaA(gm) if gm >= C.nlate else []) + dmaB(gm, False): sc.emit(it)
    def reads(s_):
        out = []; fb = FR[s_ % 2]; pos = s_ % NW
        def xr(u): return ("ds_read_b128 %s, v%d offset:%d" % (R(fb + 16 + 4 * u), VXR[pos >> 1], (pos & 1) * WSL + 1024 * u), None)
        def wr(t, tt): return ("ds_read_b64_tr_b16 %s, v%d offset:%d" % (R(fb + 4 * t + 2 * tt, 2), VWR[pos >> 1], (pos & 1) * WSL + 7680 * tt + 32 * t), None)
        out += [wr(0, 0), wr(0, 1)] + [xr(u) for u in range(9)]
        for t in range(1, 4): out += [wr(t, 0), wr(t, 1)]
        return out
    def pack1():
        pre = ["s_sub_u32 s4, s2, 128", "s_mul_i32 s4, s4, 3", "s_add_u32 s4, s4, s32", "s_cmp_lt_u32 s32, 3\ns_cselect_b32 s4, s4, 500", "s_lshr_b32 s5, s4, 2", "s_sub_u32 s6, s5, 20",
               "s_cmp_lt_u32 s5, 20\ns_cselect_b32 s6, s5, s6\ns_cselect_b32 s8, s14, s96\ns_cselect_b32 s9, s15, s97\ns_cselect_b32 s10, 0, 0x118000",
               "s_add_u32 s10, s10, 819200", "s_and_b32 s9, s9, 0xffff", "s_mov_b32 s11, 0x00020000",
               "s_mul_i32 s6, s6, 40960", "s_and_b32 s7, s4, 3", "s_mul_i32 s7, s7, 5120", "s_add_u32 s6, s6, s7",
               "s_mul_i32 s7, s32, 10240", "s_add_u32 s7, s7, %d" % PB, "s_cmp_lt_u32 s32, 3\ns_cselect_b32 s7, s7, 0x30000"]
        out = [(s, None) for s in pre]
        for tt in range(2):
            for o, n in ((0, 4), (4096, 1)):
                g = ["s_add_u32 m0, s7, %d" % (5120 * tt + o), "s_add_u32 s12, s6, %d" % (20480 * tt + o)]
                g += ["buffer_load_dwordx4 v%d, s[8:11], s12 offen offset:%d lds" % (VL, 1024 * i) for i in range(n)]
                out.append(("\n".join(g), ("vm", "pk"), n))
        return out
    def pack2a():
        V = PV
        return [(s, None) for s in ["v_lshrrev_b32 v%d, 4, v2" % (V + 1), "v_mul_u32_u24 v%d, 160, v%d" % (V, V + 1), "s_mov_b32 s6, %d" % (68 * 5120), "v_mul_lo_u32 v%d, v%d, s6" % (V + 1, V + 1),
                "v_bfe_u32 v%d, v2, 2, 2" % (V + 2), "v_mul_u32_u24 v%d, 1280, v%d" % (V + 2, V + 2), "v_add_u32 v%d, v%d, v%d" % (V, V, V + 2),
                "v_and_b32 v%d, 3, v2" % (V + 2), "v_mul_u32_u24 v%d, 40, v%d" % (V + 2, V + 2), "v_add3_u32 v%d, v%d, v%d, s7" % (V, V, V + 2),
                "v_and_b32 v%d, 15, v2" % (V + 2), "v_lshl_add_u32 v%d, v%d, 4, v%d" % (V + 1, V + 2, V + 1), "v_add_u32 v%d, 4096, v%d" % (V + 2, V + 1),
                "s_mul_i32 s6, s5, 5120", "s_and_b32 s7, s4, 3", "s_lshl_b32 s7, s7, 8", "s_add_u32 s6, s6, s7", "s_add_u32 s6, s6, %d" % W2P_OFF,
                "s_cmp_lt_u32 s4, 272\ns_cselect_b32 s6, s6, 0x%x" % OOB, "s_add_u32 s7, s6, %d" % (272 * 5120)]]
    def pack2r(hf):
        return [("WAITVM", "pk")] + [("ds_read_b64_tr_b16 %s, v%d offset:%d" % (R(PR + 20 * hf + 4 * i + 2 * tt, 2), PV, 8 * i + 5120 * tt + 640 * hf), None) for i in range(5) for tt in range(2)]
    def pack2s(hf):
        return [("buffer_store_dwordx4 %s, v%d, s[28:31], s%d offen offset:%d %s" % (R(PR + 20 * hf + 4 * i), PV + 1 if i < 4 else PV + 2, 6 + hf, 1024 * (i % 4), C.sc1), ("vm", "pst")) for i in range(5)]
    extra = {1: pack1, 2: pack2a, 5: lambda: pack2r(0), 6: lambda: pack2s(0), 7: lambda: pack2r(1), 8: lambda: pack2s(1)}
    w2q = list(range(17))
    wait(a, vm=vm.need(("g", 0))); a("s_barrier")
    for it in reads(0): sc.emit(it)
    for s_ in range(20):
        fb = FR[s_ % 2]
        a("s_waitcnt lgkmcnt(0)")
        rq = []
        for i in range(36):
            t, u = i // 9, i % 9; c = acc(t, u)
            a("v_mfma_f32_16x16x32_bf16 %s, %s, %s, %s" % (R(c), R(fb + 4 * t), R(fb + 16 + 4 * u), "0" if s_ == 0 else R(c)))
            if i == 0 and s_ < 19:
                wait(a, vm=vm.need(*([("g", s_ + 1)] + (["pst"] if s_ == 11 else [])))); a("s_barrier")
                rq = reads(s_ + 1)
                if s_ == 11: sc.dq.append((signal("ATT_sig", "4", 24, PV), None))
                if s_ + NW < 20: sc.dq += dmaA(s_ + NW) + dmaB(s_ + NW, True)
                if s_ == 14: sc.dq += [(w2_setup(), None), ("v_add_u32 v%d, 4096, v%d" % (VL4, VL), None), (flag_load(FL, "4", 24), ("vm", "pf"))]
                if s_ == 16: sc.dq += [("WAITVM", "pf"), (flag_check("ATT_pf", FL, "4", 24, 128), None)]
                if s_ >= 16:
                    for _ in range(3 if s_ < 18 else 4): sc.dq += w2_loads(w2q.pop(0), VL, VL4)
                if s_ in extra: sc.fq += extra[s_]()
                continue
            must = []
            if rq and i % 2 == 1: must = [rq.pop(0)] + ([rq.pop(0)] if rq else [])
            sc.gap(must, 2 - (1 if i == 35 else 0))
        sc.flush_d(); sc.flush_f()
    stamp(a, st, 2)
    TT = 232
    a("v_and_b32 v%d, 15, v2" % TT); a("v_mul_u32_u24 v%d, %d, v%d" % (TT, RS, TT)); a("v_lshrrev_b32 v%d, 4, v2" % (TT + 1)); a("v_lshl_add_u32 v%d, v%d, 3, v%d" % (TT, TT + 1, TT))
    a("v_add_u32 v%d, s60, v%d" % (TT + 3, TT))
    a("s_barrier")
    def wr_tile(t, u):
        c = acc(t, u)
        a("v_cvt_pk_bf16_f32 v%d, v%d, v%d" % (c, c, c + 1)); a("v_cvt_pk_bf16_f32 v%d, v%d, v%d" % (c + 1, c + 2, c + 3))
        a("ds_write_b64 v%d, %s offset:%d" % (TT + 3, R(c, 2), 16 * RS * u + 32 * t))
    for t in range(3):
        for u in range(9): wr_tile(t, u)
    a("s_cmp_eq_u32 s32, 3"); a("s_cbranch_scc1 K1_att_s3")
    for u in range(9): wr_tile(3, u)
    a("K1_att_s3:")
    AQ, AV, VI = TT, TT + 1, TT + 2
    def rowaddr(dst, hh, bq, par, i):
        a("v_bfe_u32 v%d, v2, %d, 1" % (TT + 8, bq)); a("v_lshlrev_b32 v%d, 3, v%d" % (TT + 8, TT + 8))
        a("v_bfe_u32 v%d, v2, %d, 1" % (TT + 9, par)); a("v_add_u32 v%d, v%d, v%d" % (TT + 8, TT + 8, TT + 9))
        a("v_bfe_u32 v%d, v2, %d, 2" % (TT + 9, i)); a("v_lshl_add_u32 v%d, v%d, 1, v%d" % (TT + 8, TT + 9, TT + 8))
        a("v_mul_u32_u24 v%d, %d, v%d" % (TT + 10, RS, TT + 8))
        a("v_bfe_u32 v%d, v2, %d, 2" % (TT + 9, hh)); a("v_mul_u32_u24 v%d, 40, v%d" % (TT + 9, TT + 9))
        a("v_add3_u32 v%d, v%d, v%d, s70" % (dst, TT + 10, TT + 9))
    a("s_mul_i32 s70, s32, %d" % (32 * RS))
    rowaddr(AV, 0, 4, 5, 2)
    rowaddr(AQ, 2, 4, 5, 0)
    a("v_and_b32 v%d, 3, v2" % VI)
    SO = TT + 12
    a("s_mul_i32 s71, s37, 20"); a("v_lshrrev_b32 v%d, 3, v%d" % (TT + 9, TT + 9)); a("v_add_u32 v%d, s71, v%d" % (TT + 9, TT + 9))
    for dp in range(5):
        a("v_add_u32 v%d, %d, v%d" % (TT + 10, dp, TT + 9))
        a("v_lshrrev_b32 v%d, 3, v%d" % (TT + 11, TT + 10)); a("v_lshlrev_b32 v%d, 12, v%d" % (TT + 11, TT + 11))
        a("v_lshl_add_u32 v%d, v%d, 4, v%d" % (TT + 11, TT + 8, TT + 11))
        a("v_and_b32 v%d, 3, v%d" % (SO + dp, TT + 10)); a("v_lshl_add_u32 v%d, v%d, 8, v%d" % (TT + 11, SO + dp, TT + 11))
        a("v_bfe_u32 v%d, v%d, 2, 1" % (TT + 10, TT + 10)); a("v_lshl_add_u32 v%d, v%d, 3, v%d" % (SO + dp, TT + 10, TT + 11))
    a("s_lshl_b32 s71, s36, 1"); a("s_lshr_b32 s69, s32, 1"); a("s_add_u32 s71, s71, s69"); a("s_mul_i32 s71, s71, %d" % (68 * 4096))
    a("s_and_b32 s69, s32, 1"); a("s_lshl_b32 s69, s69, 11"); a("s_add_u32 s71, s71, s69")
    if ACT_OFF: a("s_add_u32 s71, s71, %d" % ACT_OFF)
    for k in range(1, 4): a("v_cmp_gt_u32 s[%d:%d], %d, v%d" % (60 + 2 * k, 61 + 2 * k, k, VI))
    a("s_mov_b32 s69, %s" % f2h(20 ** -0.5 * 1.4426950408889634))
    a("s_waitcnt lgkmcnt(0)"); a("s_barrier")
    lg.clear()
    QR = [80, 150]; Sx = [16, 48]; O = [80, 150]
    def KR(e, kb): return QR[e] + 10 + 10 * kb
    def VR(e, kb): return QR[e] + 40 + 10 * kb
    for e in range(2):
        for dp in range(5): a("ds_read_b64 %s, v%d offset:%d" % (R(QR[e] + 2 * dp, 2), AQ, (16 + 16 * e) * RS + 8 * dp)); lg.issue(("k", e))
        for kb in range(3):
            for dp in range(5): a("ds_read_b64 %s, v%d offset:%d" % (R(KR(e, kb) + 2 * dp, 2), AQ, (8 * kb + 16 * e) * RS + 160 + 8 * dp)); lg.issue(("k", e))
    for e in range(2):
        wait(a, lg=lg.need(("k", e)))
        for dp in range(5):
            for kb in range(3):
                a("v_mfma_f32_4x4x4_16b_bf16 %s, %s, %s, %s" % (R(Sx[e] + 4 * kb), R(KR(e, kb) + 2 * dp, 2), R(QR[e] + 2 * dp, 2), "0" if dp == 0 else R(Sx[e] + 4 * kb)))
                a("ds_read_b64_tr_b16 %s, v%d offset:%d" % (R(VR(e, kb) + 2 * dp, 2), AV, (8 * kb + 16 * e) * RS + 320 + 8 * dp)); lg.issue(("v", e))
    a("s_nop 3")
    a("s_or_b32 s68, s36, s32"); a("s_cmp_lg_u32 s68, 0"); a("s_cbranch_scc1 K1_att_nomask")
    S_ = Sx[0]; Z = S_ + 20
    a("v_lshlrev_b32 v%d, 1, v%d" % (Z, VI)); a("v_sub_u32 v%d, v%d, v%d" % (Z, TT + 8, Z))
    a("v_mov_b32 v%d, 0xff800000" % (Z + 1))
    for k in range(1, 8):
        a("v_cmp_gt_u32 vcc, %d, v%d" % (16 - 2 * k, Z)); a("s_nop 1"); a("v_cndmask_b32 v%d, v%d, v%d, vcc" % (S_ + k, S_ + k, Z + 1))
    a("K1_att_nomask:")
    def soft(S):
        Z = S + 20; P = S + 12; o = []
        o += ["v_cndmask_b32 v%d, v%d, v%d, s[%d:%d]" % (S + k, S + k + 8, S + k, 60 + 2 * k, 61 + 2 * k) for k in range(1, 4)]
        o += ["v_max3_f32 v%d, v%d, v%d, v%d" % (Z + 1, S + 4, S + 5, S + 6), "v_max3_f32 v%d, v%d, v%d, v%d" % (Z, S + 1, S + 2, S + 3),
              "v_max3_f32 v%d, v%d, v%d, v%d" % (Z + 1, Z + 1, S + 7, S + 8), "v_max_f32 v%d, v%d, v%d" % (Z, Z, Z + 1), "v_mul_f32 v%d, s69, v%d" % (Z, Z)]
        o += ["v_fma_f32 v%d, v%d, s69, -v%d" % (S + k, S + k, Z) for k in range(1, 9)]
        o += ["v_exp_f32 v%d, v%d" % (S + k, S + k) for k in range(1, 9)]
        o += ["v_add_f32 v%d, v%d, v%d" % (Z, S + 1, S + 2), "v_add_f32 v%d, v%d, v%d" % (Z + 1, S + 3, S + 4), "v_add_f32 v%d, v%d, v%d" % (Z + 2, S + 5, S + 6), "v_add_f32 v%d, v%d, v%d" % (Z + 3, S + 7, S + 8),
              "v_add_f32 v%d, v%d, v%d" % (Z, Z, Z + 1), "v_add_f32 v%d, v%d, v%d" % (Z + 2, Z + 2, Z + 3), "v_add_f32 v%d, v%d, v%d" % (Z, Z, Z + 2),
              "v_rcp_f32 v%d, v%d" % (Z, Z), "v_mov_b32 v%d, 0" % S]
        o += ["v_mul_f32 v%d, v%d, v%d" % (S + k, S + k, Z) for k in range(1, 9)]
        for k in range(1, 4):
            o += ["v_cndmask_b32 v%d, v%d, 0, s[%d:%d]" % (S + k + 8, S + k, 60 + 2 * k, 61 + 2 * k), "v_cndmask_b32 v%d, 0, v%d, s[%d:%d]" % (S + k, S + k, 60 + 2 * k, 61 + 2 * k)]
        o += ["v_cvt_pk_bf16_f32 v%d, v%d, v%d" % (P + j, S + 2 * j, S + 2 * j + 1) for j in range(6)]
        return o
    for x, y in zip(soft(Sx[0]), soft(Sx[1])): a(x); a(y)
    a("s_waitcnt lgkmcnt(0)"); a("s_nop 0")
    for e in range(2):
        for kb in range(3):
            for dp in range(5):
                a("v_mfma_f32_4x4x4_16b_bf16 %s, %s, %s, %s" % (R(O[e] + 4 * dp), R(VR(e, kb) + 2 * dp, 2), R(Sx[e] + 12 + 2 * kb, 2), "0" if kb == 0 else R(O[e] + 4 * dp)))
    for e in range(2):
        for dp in range(5):
            c = O[e] + 4 * dp
            a("v_cvt_pk_bf16_f32 v%d, v%d, v%d" % (c, c, c + 1)); a("v_cvt_pk_bf16_f32 v%d, v%d, v%d" % (c + 1, c + 2, c + 3))
            a("buffer_store_dwordx2 %s, v%d, s[28:31], s71 offen offset:%d %s" % (R(c, 2), SO + dp, 1024 * e, C.sc1))
    a("s_waitcnt vmcnt(0)"); a("s_barrier")
    a(signal("ATT_sig2", "s35", 28, 16))
    for i in w2q:
        for it in w2_loads(i, VL, VL4): sc.emit(it)


def gen_all():
    a = Asm(); vm = Q(63)
    prologue(a, vm)
    vm2 = copy.deepcopy(vm)
    k1_ffn(a, vm)
    k1_att(a, vm2)
    p2(a)
    stamp_flush(a, C.st, 6, 28, 2, 0, 6)
    a("K1_end:"); a("s_endpgm")
    emit_spins(a)
    return a.text().replace("XSC", C.xsc if C.xsc != "none" else "")

if __name__ == "__main__":
    out = sys.argv[1]
    for kv in sys.argv[2:]:
        k, v = kv.split("="); setattr(C, k, int(v) if v.lstrip("-").isdigit() else v)
    kn = NAME + "_kernel"
    txt = HEADER + "; @launch grid=(256,1,1) block=(256,1,1) lds=153600\n" + '.amdgcn_target "amdgcn-amd-amdhsa--gfx950"\n.text\n' + kernel_head(kn) + gen_all()
    txt += '.section .rodata,"a"\n' + kernel_desc(kn, 512, 102, 256)
    open(out, "w").write(txt)
```

```python
import sys, struct, copy
from asmlib import *
from gen import *
from gen1 import Q, wait, f2h, GA, GB, HEADER
from gen2 import bfr, stats_finish, dpp_reduce, norm_ops, xr_base
XBYTES = 2621440
XNP_OFF = 24 << 20
CNT_OFF = 28 << 20
OOB = 0x7ff00000
class Cfg:
    st = 0; rotp = 1; rotk = 4; xbar = 1; pref = 0; sc1 = "sc1"; fused = 0; dbg = 0; early = 1; slp = 2; nlate = 5; xsc = 'sc1'; p0st = 0; lateafter = 1; D = 4; fd = 2
C = Cfg()
def R(n, k=4):
    return ("a[%d:%d]" % (n - 256, n - 256 + k - 1)) if n >= 256 else ("v[%d:%d]" % (n, n + k - 1))
def cost(ins):
    n = 0
    for l in ins.split("\n"):
        n += 1
        if l.startswith("v_exp") or l.startswith("v_rcp"): n += 1
        if l.startswith("ds_write_b128"): n += 4
    return n
def ismem(ins): return ins.startswith("ds_") or ins.startswith("buffer_")

import re
def deps(ins):
    if "\n" in ins or not ins.startswith("v_") or "vcc" in ins or " s" in ins: return None
    regs = re.findall(r"[va]\d+", ins.split(" ", 1)[1])
    return {regs[0]}, set(regs[1:])

class Sched:
    def __init__(s, a, vm, lg): s.a = a; s.vm = vm; s.lg = lg; s.fq = []; s.dq = []; s.debt = 0.0
    def emit(s, item):
        ins, tag = item[0], item[1]
        if ins == "WAITVM": wait(s.a, vm=s.vm.need(tag)); return
        if ins == "WAITLG": wait(s.a, lg=s.lg.need(tag)); return
        if (C.dbg & 1) and ins.startswith("ds_write_b128"): return
        if (C.dbg & 2) and ins.startswith("v_") and deps(ins): return
        if (C.dbg & 4) and ins.startswith("ds_read_b128"): return
        if (C.dbg & 8) and ins.startswith("buffer_"): return
        if (C.dbg & 16) and ins.startswith("ds_read_b64_tr"): return
        s.a(ins)
        if tag:
            for _ in range(item[2] if len(item) > 2 else 1): (s.vm if tag[0] == "vm" else s.lg).issue(tag[1])
    def gap(s, must=(), slots=2):
        first = True
        for it in must:
            s.emit(it); slots -= cost(it[0]); first = False
        if s.dq and first and slots > 0:
            it = s.dq.pop(0); s.emit(it); slots -= cost(it[0]); first = False
        lastw = None
        while s.fq and slots > 0:
            pick = None; W = set(); Rr = set()
            for idx, it in enumerate(s.fq[:14]):
                n = cost(it[0]); d = deps(it[0])
                if d is None:
                    if idx == 0 and not ("m0" in it[0] and s.dq) and not (ismem(it[0]) and not first) and (n <= slots or (first and n > 2)): pick = 0
                    break
                w, r = d
                if n <= slots and not (r & W) and not (w & W) and not (w & Rr) and not (lastw is not None and lastw in r):
                    pick = idx; break
                W |= w; Rr |= r
            if pick is None: break
            it = s.fq.pop(pick); s.emit(it); slots -= cost(it[0]); first = False
            lastw = next(iter(deps(it[0])[0])) if (cost(it[0]) == 2 and deps(it[0])) else None
    def fcost(s): return sum(cost(it[0]) for it in s.fq) + sum(cost(it[0]) for it in s.dq)
    def flush_d(s):
        while s.dq: s.emit(s.dq.pop(0))
    def flush_f(s):
        while s.fq: s.emit(s.fq.pop(0))


RP = 200
def prologue(a, vm):
    st = C.st
    a("s_cmp_ge_u32 s2, 256"); a("s_cbranch_scc1 K1_end")
    stamp(a, st, 0)
    a("s_load_dwordx4 s[4:7], s[0:1], 0"); a("s_load_dwordx4 s[8:11], s[0:1], 32"); a("s_load_dwordx2 s[12:13], s[0:1], 72")
    a("s_load_dwordx2 s[14:15], s[0:1], 16"); a("s_load_dwordx4 s[96:99], s[0:1], 48"); a("s_load_dwordx2 s[24:25], s[0:1], 64")
    a("v_lshrrev_b32 v1, 6, v0"); a("v_and_b32 v2, 63, v0"); a("v_readfirstlane_b32 s32, v1")
    a("s_and_b32 s33, s2, 7"); a("s_lshr_b32 s34, s2, 3")
    a("s_and_b32 s35, s34, 7"); a("s_lshr_b32 s34, s34, 3")
    a("s_and_b32 s36, s33, 1"); a("s_lshl_b32 s36, s36, 3"); a("s_add_u32 s36, s36, s35")
    a("s_lshr_b32 s76, s33, 1"); a("s_lshl_b32 s76, s76, 2"); a("s_add_u32 s76, s76, s34")
    a("s_lshl_b32 s68, s36, 4"); a("s_add_u32 s68, s68, s76"); a("s_mul_i32 s68, s68, 10240")
    a("v_lshrrev_b32 v3, 3, v2"); a("v_mul_u32_u24 v4, 1280, v3"); a("v_and_b32 v5, 7, v2"); a("v_lshl_add_u32 v4, v5, 4, v4"); a("v_add_u32 v4, s68, v4")
    a("s_mul_i32 s67, s32, 3"); a("s_min_u32 s67, s67, 7"); a("s_lshl_b32 s69, s67, 7")
    a("s_waitcnt lgkmcnt(0)")
    a.srd(16, 4, XBYTES)
    a("s_lshl_b32 s68, s76, 2"); a("s_add_u32 s68, s68, s32"); a("s_cmp_lg_u32 s68, 3"); a("s_cbranch_scc1 K1_noinit")
    a.srd(28, 12, WS_BYTES)
    a("s_and_b32 s25, s25, 0xffff"); a("s_movk_i32 s26, 256"); a("s_mov_b32 s27, 0x00020000")
    a("s_lshl_b32 s68, s36, 10"); a("s_add_u32 s68, s68, %d" % CNT_OFF); a("v_lshlrev_b32 v6, 8, v2"); a("v_mov_b32 v7, 0"); a("s_mov_b64 exec, 15")
    a("buffer_store_dword v7, v6, s[28:31], s68 offen sc1")
    a("s_mov_b64 exec, -1")
    a("K1_noinit:")
    for i in range(10):
        a("buffer_load_dwordx4 %s, v4, s[16:19], s69 offen" % R(RP + 4 * i)); vm.issue("x")
        if i < 9: a("s_add_u32 s69, s69, 128"); a("s_cmp_eq_u32 s69, 1280"); a("s_cselect_b32 s69, 0, s69")
    a.srd(28, 12, WS_BYTES)
    a("s_and_b32 s25, s25, 0xffff"); a("s_movk_i32 s26, 256"); a("s_mov_b32 s27, 0x00020000")
    if C.pref:
        a("s_getpc_b64 s[68:69]"); a("K1_pf:")
        a("v_lshlrev_b32 v8, 7, v0"); a("v_add_u32 v10, 32768, v8"); a("v_min_u32 v10, K1_last-K1_pf, v10"); a("v_mov_b32 v9, s69"); a("v_mov_b32 v11, s69")
        a("v_add_co_u32 v8, vcc, s68, v8"); a("s_nop 1"); a("v_addc_co_u32 v9, vcc, 0, v9, vcc")
        a("v_add_co_u32 v10, vcc, s68, v10"); a("s_nop 1"); a("v_addc_co_u32 v11, vcc, 0, v11, vcc")
        a("global_load_dword a0, v[8:9], off"); a("global_load_dword a1, v[10:11], off"); vm.issue("pf"); vm.issue("pf")
    a("s_lshl_b32 s68, s76, 2"); a("s_add_u32 s68, s68, s32"); a("s_cmp_lg_u32 s68, 3"); a("s_cbranch_scc1 K1_noinit2")
    a("s_lshl_b32 s68, s36, 4"); a("v_mov_b32 v7, 1"); a("s_mov_b64 exec, 1")
    a("s_waitcnt vmcnt(%d)" % (12 if C.pref else 10))
    a("buffer_store_dword v7, off, s[24:27], s68 sc1")
    a("s_mov_b64 exec, -1")
    a("K1_noinit2:")
    a("s_and_b32 s37, s33, 6"); a("s_and_b32 s68, s34, 1"); a("s_add_u32 s37, s37, s68")
    a("s_mul_i32 s38, s34, 5"); a("s_lshr_b32 s38, s38, 1")
    if C.rotk == 1:
        a("s_and_b32 s68, s35, 1"); a("s_mul_i32 s68, s68, 5"); a("s_add_u32 s38, s38, s68")
    if C.rotk == 2:
        a("s_lshr_b32 s69, s34, 1"); a("s_and_b32 s68, s35, s69"); a("s_mul_i32 s68, s68, 5"); a("s_add_u32 s38, s38, s68")
    if C.rotk == 9: a("s_mov_b32 s38, 0")
    if C.rotk == 4:
        a("s_cmp_ge_u32 s34, 2"); a("s_cselect_b32 s69, 10, 30"); a("s_mul_i32 s68, s35, s69"); a("s_lshr_b32 s68, s68, 3")
        a("s_mul_i32 s39, s68, 205"); a("s_lshr_b32 s39, s39, 11"); a("s_mul_i32 s69, s39, 10"); a("s_sub_u32 s68, s68, s69"); a("s_add_u32 s38, s38, s68")
    if C.rotk: a("s_sub_u32 s68, s38, 10"); a("s_cmp_ge_u32 s38, 10"); a("s_cselect_b32 s38, s68, s38")
    if C.rotk == 4: pass
    elif C.rotp:
        a("s_mul_i32 s68, s35, 11"); a("s_lshr_b32 s68, s68, 5"); a("s_mul_i32 s68, s68, 3"); a("s_sub_u32 s39, s35, s68")
    else: a("s_mov_b32 s39, 0")
    a("s_mul_i32 s3, s35, 30"); a("s_lshr_b32 s3, s3, 3"); a("s_mul_i32 s3, s3, 205"); a("s_lshr_b32 s3, s3, 11")
    assert C.rotk == 4
    a("s_mul_i32 s70, s36, 163840"); a("s_add_u32 s70, s70, %d" % XNP_OFF)
    a("s_cmp_ge_u32 s34, 2"); a("s_movk_i32 s68, 0x3c00"); a("s_cselect_b32 s71, s68, 0x3000"); a("s_lshl_b32 s71, s71, 4")
    for j in range(10):
        a("s_mul_i32 s%d, s38, s71" % (40 + j)); a("s_lshl_b32 s68, s38, 14"); a("s_add_u32 s%d, s70, s68" % (50 + j))
        if j < 9: a("s_add_u32 s38, s38, 1"); a("s_cmp_eq_u32 s38, 10"); a("s_cselect_b32 s38, 0, s38")
    a("v_lshrrev_b32 v6, 2, v5"); a("v_lshlrev_b32 v6, 13, v6"); a("v_and_b32 v5, 3, v5"); a("v_lshl_add_u32 v6, v5, 8, v6"); a("v_lshl_add_u32 v240, v3, 4, v6")
    a("s_lshl_b32 s38, s67, 14"); a("s_add_u32 s38, s38, s70"); a("s_lshr_b32 s68, s76, 1"); a("s_lshl_b32 s68, s68, 10"); a("s_add_u32 s38, s38, s68")
    a("s_and_b32 s68, s76, 1"); a("s_lshl_b32 s68, s68, 7"); a("s_add_u32 s38, s38, s68")
    a("s_mov_b32 s33, 0x3f803f80")
    a("s_cmp_ge_u32 s34, 2"); a("s_cbranch_scc1 K1_att")

def poll(a, name, voff, target, srd=28, first_loaded=False):
    a("s_mov_b32 s68, 0")
    if first_loaded: a("s_branch %s_chk" % name)
    a("%s:" % name)
    a("buffer_load_dword v241, v%d, s[%d:%d], 0 offen sc1" % (voff, srd, srd + 3))
    a("s_add_u32 s68, s68, 1")
    a("s_waitcnt vmcnt(0)")
    a("%s_chk:" % name)
    a("v_cmp_gt_u32 vcc, %d, v241" % target)
    a("s_nop 4")
    a("s_cbranch_vccz %s_ok" % name)
    if C.slp: a("s_sleep %d" % C.slp)
    a("s_cmp_lt_u32 s68, 0x8000"); a("s_cbranch_scc1 %s" % name)
    a("%s_ok:" % name)

def p0(a, sc, late, role):
    vm = sc.vm
    S = [242, 243]; T = [244, 245, 246, 247]
    a("v_mov_b32 v%d, 0" % S[0]); a("v_mov_b32 v%d, 0" % S[1])
    wait(a, vm=vm.need("x"))
    if C.p0st: stamp(a, C.st, 2)
    for d in range(40): a("v_dot2c_f32_bf16 v%d, s33, v%d" % (S[0], RP + d)); a("v_dot2c_f32_bf16 v%d, v%d, v%d" % (S[1], RP + d, RP + d))
    a("s_nop 0")
    dpp_reduce(a, S, ["quad_perm:[1,0,3,2]", "quad_perm:[2,3,0,1]", "row_half_mirror"])
    s_, q = S
    a("v_mul_f32 v%d, 0x3acccccd, v%d" % (s_, s_)); a("v_mul_f32 v%d, 0x3acccccd, v%d" % (q, q))
    a("v_fma_f32 v%d, -v%d, v%d, v%d" % (q, s_, s_, q)); a("v_max_f32 v%d, 0, v%d" % (q, q))
    bfr(a, q); bfr(a, s_)
    a("v_add_f32 v%d, 0x3727c5ac, v%d" % (q, q)); bfr(a, q)
    a("v_sqrt_f32 v%d, v%d" % (q, q)); a("s_nop 0"); bfr(a, q)
    a("v_rcp_f32 v%d, v%d" % (q, q))
    for i in range(3):
        for d in range(0, 4, 2):
            r = RP + 4 * i + d
            for op, o in (("v_sub_f32 v%d, v%d, v%d", s_), ("v_mul_f32 v%d, v%d, v%d", q)):
                a("v_lshlrev_b32 v%d, 16, v%d" % (T[0], r)); a("v_and_b32 v%d, 0xffff0000, v%d" % (T[1], r))
                a("v_lshlrev_b32 v%d, 16, v%d" % (T[2], r + 1)); a("v_and_b32 v%d, 0xffff0000, v%d" % (T[3], r + 1))
                for k in range(4): a(op % (T[k], T[k], o))
                a("v_cvt_pk_bf16_f32 v%d, v%d, v%d" % (r, T[0], T[1])); a("v_cvt_pk_bf16_f32 v%d, v%d, v%d" % (r + 1, T[2], T[3]))
        a("buffer_store_dwordx4 %s, v240, s[28:31], s38 offen sc1" % R(RP + 4 * i)); vm.issue("xst")
        if i < 2: a("s_add_u32 s38, s38, 16384")
    if C.p0st: stamp(a, C.st, 3)
    a("s_lshl_b32 s69, s36, 4")
    if role == "att": a("s_min_u32 s68, s69, 16"); a("v_min_u32 v243, 1, v2"); a("v_mul_u32_u24 v243, s68, v243"); a("v_sub_u32 v243, s69, v243")
    else: a("v_mov_b32 v243, s69")
    a("s_cmp_lg_u32 s32, 0"); a("s_cbranch_scc1 P0_%s_nord" % role)
    a("buffer_load_dword v241, v243, s[24:27], 0 offen sc1")
    a("P0_%s_nord:" % role)
    if C.lateafter: a("s_waitcnt vmcnt(0)"); vm.clear()
    else:
        for it in late: sc.emit(it)
        wait(a, vm=vm.need("xst"))
    a("s_barrier")
    if C.p0st: stamp(a, C.st, 4)
    a("s_cmp_lg_u32 s32, 0"); a("s_cbranch_scc1 P0_%s_skip" % role)
    a("s_mov_b64 exec, 3")
    poll(a, "P0_%s_rdy" % role, 243, 1, 24, True)
    a("v_lshlrev_b32 v243, 6, v243"); a("v_add_u32 v243, %d, v243" % CNT_OFF); a("v_mov_b32 v242, 1"); a("s_mov_b64 exec, 1")
    a("buffer_atomic_add v242, v243, s[28:31], 0 offen sc1")
    a("s_mov_b64 exec, -1")
    a("P0_%s_skip:" % role)
    if C.lateafter:
        for it in late: sc.emit(it)
    a("s_cmp_lg_u32 s32, 0"); a("s_cbranch_scc1 P0_%s_skip2" % role)
    a("s_mov_b64 exec, 3")
    poll(a, "P0_%s_poll" % role, 243, 16)
    a("s_mov_b64 exec, -1")
    a("P0_%s_skip2:" % role)
    a("s_lshl_b32 s34, s36, 10"); a("s_add_u32 s34, s34, %d" % (CNT_OFF + 256)); a("s_add_u32 s35, s34, 256")
    a("s_barrier")

def W2R(i): return 256 + 20 * i if i < 12 else (104 + 20 * (i - 12) if i < 15 else 168 + 20 * (i - 15))
def p2_bases(dst, unit, base_expr):
    out = list(base_expr)
    out += ["s_mul_i32 s68, s32, %d" % (5 * unit), "s_add_u32 s%d, s69, s68" % (dst + 3),
            "s_mul_i32 s68, s32, %d" % (12 * unit), "s_add_u32 s69, s69, s68", "s_add_u32 s69, s69, %d" % (20 * unit),
            "s_mul_i32 s68, s3, %d" % (2 * unit), "s_add_u32 s%d, s69, s68" % dst]
    for pp in (1, 2):
        out += ["s_add_u32 s68, s68, %d\ns_cmp_eq_u32 s68, %d\ns_cselect_b32 s68, 0, s68" % (2 * unit, 6 * unit), "s_add_u32 s%d, s69, s68" % (dst + pp)]
    return out
def step_off(i, dst, unit):
    if i < 8: return dst + ((i >> 1) & 1), (6 * (i >> 2) + (i & 1)) * unit
    if i < 13: return dst + 3, (i - 8) * unit
    return dst + 2, (6 * ((i - 13) >> 1) + ((i - 13) & 1)) * unit
WB = 100 - 8
AB = 56
def w2_setup():
    be = ["s_lshr_b32 s69, s76, 3", "s_lshl_b32 s69, s69, 2", "s_and_b32 s68, s76, 3", "s_add_u32 s69, s69, s68", "s_mul_i32 s69, s69, %d" % (68 * 5120), "s_add_u32 s69, s69, %d" % W2P_OFF]
    return "\n".join(p2_bases(WB, 5120, be))
def w2_loads(i, VL, VL4):
    b, c = step_off(i, WB, 5120)
    out = [("s_add_u32 s13, s%d, %d" % (b, c), None)]
    return out + [("buffer_load_dwordx4 %s, v%d, s[28:31], s13 offen offset:%d sc1" % (R(W2R(i) + 4 * t), VL if t < 4 else VL4, 1024 * (t % 4)), ("vm", ("w2", i))) for t in range(5)]
SPINS = []
def flag_load(vd, soff, srd): return "buffer_load_dword v%d, off, s[%d:%d], %s sc1" % (vd, srd, srd + 3, soff)
def flag_check(name, vd, soff, srd, target):
    SPINS.append((name, vd, soff, srd, target))
    return "v_readfirstlane_b32 s100, v%d\ns_cmp_lt_u32 s100, %d\ns_cbranch_scc1 %s_spin\n%s_ok:" % (vd, target, name, name)
def emit_spins(a):
    for name, vd, soff, srd, target in SPINS:
        a("%s_spin:" % name); a("s_mov_b32 s101, 0")
        a("%s_lp:" % name)
        if C.slp: a("s_sleep %d" % C.slp)
        a(flag_load(vd, soff, srd)); a("s_add_u32 s101, s101, 1"); a("s_waitcnt vmcnt(0)")
        a("v_readfirstlane_b32 s100, v%d" % vd); a("s_cmp_ge_u32 s100, %d" % target); a("s_cbranch_scc1 %s_ok" % name)
        a("s_cmp_lt_u32 s101, 0x8000"); a("s_cbranch_scc1 %s_lp" % name); a("s_branch %s_ok" % name)
def signal(name, soff, srd, vt):
    return ("s_cmp_lg_u32 s32, 0\ns_cbranch_scc1 %s\nv_mov_b32 v%d, 1\ns_mov_b64 exec, 1\nbuffer_atomic_add v%d, off, s[%d:%d], %s sc1\ns_mov_b64 exec, -1\n%s:" % (name, vt, vt, srd, srd + 3, soff, name))

def p2(a):
    st = C.st; D = C.D
    vm = Q(63)
    a("P2:")
    stamp(a, st, 3)
    VA = [3, 4, 5, 6]; VL, VX, VR_, FL = 7, 8, 9, 10; XR = 12; ACC = 24; AB_ = [496, 208, 224, 240]; STG = 104
    a(flag_load(FL, "s34", 28)); vm.issue("fe")
    be = ["s_lshl_b32 s69, s36, 1", "s_bfe_u32 s68, s76, 0x10002", "s_add_u32 s70, s69, s68", "s_mul_i32 s69, s70, %d" % (68 * 4096)]
    if ACT_OFF: be.append("s_add_u32 s69, s69, %d" % ACT_OFF)
    for l in p2_bases(AB, 4096, be): a(l)
    a("v_lshrrev_b32 v1, 6, v0"); a("v_lshlrev_b32 v%d, 4, v2" % VL)
    for i in range(4):
        a("v_add_u32 v11, %d, v1" % i); a("v_and_b32 v11, 3, v11"); a("v_lshl_add_u32 v%d, v11, 10, v%d" % (VA[i], VL))
    a("v_and_b32 v11, 15, v2"); a("v_lshl_add_u32 v11, v1, 4, v11"); a("v_mul_u32_u24 v11, 1280, v11")
    a("v_lshrrev_b32 v22, 4, v2"); a("v_mul_u32_u24 v22, 40, v22"); a("v_add_u32 v%d, v11, v22" % VX)
    a("s_mul_i32 s39, s70, %d" % (64 * 1280)); a("s_lshr_b32 s69, s76, 3"); a("s_lshl_b32 s69, s69, 2"); a("s_and_b32 s68, s76, 3"); a("s_add_u32 s69, s69, s68")
    a("s_mul_i32 s69, s69, 160"); a("s_add_u32 s39, s39, s69")
    a.srd(20, 98, XBYTES)
    wait(a, vm=vm.need("fe"))
    a(flag_check("P2_fe", FL, "s34", 28, 8))
    def issue(i):
        b, c = step_off(i, AB, 4096)
        a("s_add_u32 s13, s%d, %d" % (b, c))
        for q in range(4): a("buffer_load_dwordx4 %s, v%d, s[28:31], s13 offen sc1" % (R(AB_[i % D] + 4 * q), VA[q])); vm.issue(("a", i))
    for i in range(D): issue(i)
    for i in range(17):
        wait(a, vm=vm.need(("a", i)))
        if i == 0: stamp(a, st, 4)
        for t in range(5):
            for q in range(4):
                c = ACC + (q * 5 + t) * 4
                a("v_mfma_f32_16x16x32_bf16 %s, %s, %s, %s" % (R(c), R(W2R(i) + 4 * t), R(AB_[i % D] + 4 * q), "0" if i == 0 else R(c)))
        if i + D == 8 - C.fd: a(flag_load(FL, "s35", 28)); vm.issue("ff")
        if i + D == 8:
            wait(a, vm=vm.need("ff")); a(flag_check("P2_ff", FL, "s35", 28, 16))
        if i + D < 17: issue(i + D)
        if i + D == 16:
            a("buffer_load_dwordx4 %s, v%d, s[16:19], s39 offen" % (R(XR), VX)); a("buffer_load_dwordx4 %s, v%d, s[16:19], s39 offen offset:16" % (R(XR + 4), VX))
            a("buffer_load_dwordx2 %s, v%d, s[16:19], s39 offen offset:32" % (R(XR + 8, 2), VX))
            for _ in range(3): vm.issue("xr")
    for q in range(1, 4):
        a("v_add_u32 v11, %d, v1" % q); a("v_and_b32 v11, 3, v11"); a("v_mul_u32_u24 v11, 15360, v11"); a("v_add_u32 v%d, v11, v%d" % (2 + q, VL))
    a("v_mul_u32_u24 v11, 15360, v1"); a("v_add_u32 v%d, v11, v%d" % (VR_, VL))
    for q in range(1, 4):
        for t in range(5):
            a("ds_write_b128 v%d, %s offset:%d" % (2 + q, R(ACC + (q * 5 + t) * 4), (q - 1) * 5120 + t * 1024))
    a("s_waitcnt vmcnt(0)")
    for t in range(5):
        for p in range(2):
            xr = XR + 2 * t + p; c = ACC + t * 4 + 2 * p
            a("v_lshlrev_b32 v11, 16, v%d" % xr); a("v_and_b32 v22, 0xffff0000, v%d" % xr)
            a("v_add_f32 v%d, v%d, v11" % (c, c)); a("v_add_f32 v%d, v%d, v22" % (c + 1, c + 1))
    a("s_waitcnt lgkmcnt(0)"); a("s_barrier")
    for t in range(5):
        for s in range(3): a("ds_read_b128 %s, v%d offset:%d" % (R(STG + (t * 3 + s) * 4), VR_, s * 5120 + t * 1024))
    for t in range(5):
        a("s_waitcnt lgkmcnt(%d)" % (12 - 3 * t))
        for s in range(3):
            for r in range(4): a("v_add_f32 v%d, v%d, v%d" % (ACC + t * 4 + r, ACC + t * 4 + r, STG + (t * 3 + s) * 4 + r))
        a("v_cvt_pk_bf16_f32 v%d, v%d, v%d" % (XR + 2 * t, ACC + t * 4, ACC + t * 4 + 1))
        a("v_cvt_pk_bf16_f32 v%d, v%d, v%d" % (XR + 2 * t + 1, ACC + t * 4 + 2, ACC + t * 4 + 3))
        if t == 1: a("buffer_store_dwordx4 %s, v%d, s[20:23], s39 offen" % (R(XR), VX))
        if t == 3: a("buffer_store_dwordx4 %s, v%d, s[20:23], s39 offen offset:16" % (R(XR + 4), VX))
    a("buffer_store_dwordx2 %s, v%d, s[20:23], s39 offen offset:32" % (R(XR + 8, 2), VX))
    if st: a("s_waitcnt vmcnt(0)")
    stamp(a, st, 5)

def k1_ffn(a, vm):
    st = 0 if C.p0st else C.st
    SL = 16896
    lg = Q(15); sc = Sched(a, vm, lg)
    a("s_and_b32 s68, s32, 1"); a("s_lshr_b32 s69, s32, 1")
    a("s_cmp_eq_u32 s68, 0"); a("s_cselect_b32 s8, s8, s10"); a("s_cselect_b32 s9, s9, s11")
    a.srd(20, 8, 1966080)
    a("s_lshl_b32 s60, s39, 7")
    a("s_mul_i32 s66, s32, 4224"); a("s_lshl_b32 s67, s32, 12")
    VWO = [3, 4, 5, 6]; VWR, VWR2, VXR, VXO, VST, VA_, VB_ = 7, 8, 9, 10, 11, 12, 13
    WF = 16; ACC = [40, 104]; TE = [14, 15, 1, 10]; VL4 = 9; FL = 232
    def X(j, kk, tt): return (256 + 32 * j if j < 8 else 168 + 32 * (j - 8)) + (kk * 4 + tt) * 4
    a("v_lshrrev_b32 v13, 5, v2"); a("v_lshlrev_b32 v13, 4, v13"); a("v_bfe_u32 v14, v2, 4, 1"); a("v_lshl_add_u32 v13, v14, 2, v13")
    a("v_bfe_u32 v14, v2, 3, 1"); a("s_lshl_b32 s71, s69, 5"); a("v_add3_u32 v13, v13, v14, s71"); a("v_mul_u32_u24 v13, 3072, v13")
    a("v_and_b32 v14, 7, v2"); a("v_lshlrev_b32 v14, 4, v14")
    a("s_mul_i32 s71, s37, 384"); a("v_add3_u32 v%d, v13, v14, s71" % VWO[0])
    for i in range(1, 4): a("v_add_u32 v%d, %d, v%d" % (VWO[i], (8 * (i >> 1) + 2 * (i & 1)) * 3072 - 1056 * i, VWO[0]))
    wpos = {}; xpos = {}
    def dma(n, pos):
        p, j = n // 10, n % 10; wpos[n] = pos
        out = [("s_add_u32 m0, s66, %d\ns_add_u32 s68, s%d, s%d" % (pos * SL, 40 + j, 60 + p), None)]
        return out + [("buffer_load_dwordx4 v%d, s[20:23], s68 offen offset:%d lds" % (VWO[i], 1056 * i), ("vm", ("w", n))) for i in range(4)]
    def dmax(j, pos):
        xpos[j] = pos
        out = [("s_add_u32 m0, s67, %d\ns_nop 0" % (pos * SL), None)]
        return out + [("buffer_load_dwordx4 v%d, s[28:31], s%d offen offset:%d XSC lds" % (VXO, 50 + j, 1024 * i), ("vm", ("x", j))) for i in range(4)]
    for n in range(C.early):
        for it in dma(n, n): sc.emit(it)
    a("s_and_b32 s68, s32, 1")
    a("s_lshl_b32 s70, s36, 1"); a("s_add_u32 s70, s70, s68"); a("s_mul_i32 s70, s70, 68")
    a("s_mul_i32 s71, s37, 6"); a("s_add_u32 s70, s70, s71"); a("s_add_u32 s70, s70, s69"); a("s_add_u32 s70, s70, 20"); a("s_lshl_b32 s70, s70, 12")
    if ACT_OFF: a("s_add_u32 s70, s70, %d" % ACT_OFF)
    for p in range(3):
        a("s_lshl_b32 s%d, s39, 7" % (60 + p)); a("s_lshl_b32 s71, s39, 13"); a("s_add_u32 s%d, s70, s71" % (63 + p))
        if p < 2: a("s_add_u32 s39, s39, 1"); a("s_cmp_eq_u32 s39, 3"); a("s_cselect_b32 s39, 0, s39")
    a("v_bfe_u32 v13, v2, 3, 2"); a("v_mul_u32_u24 v13, 1056, v13")
    a("v_lshrrev_b32 v14, 5, v2"); a("v_lshlrev_b32 v14, 2, v14"); a("v_bfe_u32 v15, v2, 2, 1"); a("v_add_u32 v14, v14, v15"); a("v_lshl_add_u32 v13, v14, 7, v13")
    a("v_and_b32 v14, 3, v2"); a("v_lshlrev_b32 v14, 3, v14"); a("s_lshl_b32 s71, s69, 6")
    a("v_add3_u32 v%d, v13, v14, s71" % VWR); a("v_add_u32 v%d, %d, v%d" % (VWR2, 4 * SL, VWR))
    a("v_lshlrev_b32 v%d, 4, v2" % VST); a("v_add_u32 v%d, s67, v%d" % (VXO, VST))
    a("s_lshl_b32 s71, s68, 12"); a("s_add_u32 s71, s71, %d" % (5 * SL)); a("v_add_u32 v%d, s71, v%d" % (VXR, VST))
    a("v_mov_b32 v%d, %s" % (VA_, f2h(GA))); a("v_mov_b32 v%d, %s" % (VB_, f2h(GB)))
    late = []
    for n in range(C.early, C.nlate): late += dma(n, n)
    p0(a, sc, late, "ffn")
    stamp(a, C.st, 1)
    for j in range(5):
        if j < 4:
            for it in dmax(j, 5 + j): sc.emit(it)
        if j >= C.nlate:
            for it in dma(j, j): sc.emit(it)
    wiss = 5; xiss = 4; w2q = list(range(17)); sig = 0
    def wreads(g):
        s_, u = g // 8, g % 8; pos = wpos[s_]; kk, wt = u >> 2, u & 3
        vb = VWR if pos < 4 else VWR2; off = (pos % 4) * SL + (kk * 2 + (wt >> 1)) * 4224 + 32 * (wt & 1)
        b = WF + (g % 6) * 4
        return [("ds_read_b64_tr_b16 %s, v%d offset:%d" % (R(b + 2 * t, 2), vb, off + 256 * t), ("lg", ("w", g // 2))) for t in range(2)]
    def xreads(j):
        return [("ds_read_b128 %s, v%d offset:%d" % (R(X(j, kk, tt)), VXR, (xpos[j] - 5) * SL + 8192 * kk + 1024 * tt), ("lg", ("x", j, kk))) for kk in range(2) for tt in range(4)]
    def epilogue(p):
        out = []; base = ACC[p % 2]
        for tt in range(4):
            D = base + (8 + tt) * 4
            for a_ in range(2):
                G = [base + (a_ * 4 + tt) * 4 + k for k in range(4)]; U = [base + ((2 + a_) * 4 + tt) * 4 + k for k in range(4)]; t = TE
                f_sq = lambda k: "v_mul_f32 v%d, v%d, v%d" % (t[k], G[k], G[k])
                f_fm = lambda k: "v_fma_f32 v%d, v%d, v%d, v%d" % (t[k], t[k], VB_, VA_)
                f_m2 = lambda k: "v_mul_f32 v%d, v%d, v%d" % (t[k], t[k], G[k])
                f_ex = lambda k: "v_exp_f32 v%d, v%d" % (t[k], t[k])
                f_gu = lambda k: "v_mul_f32 v%d, v%d, v%d" % (G[k], G[k], U[k])
                f_ad = lambda k: "v_add_f32 v%d, 1.0, v%d" % (t[k], t[k])
                f_rc = lambda k: "v_rcp_f32 v%d, v%d" % (t[k], t[k])
                f_fi = lambda k: "v_mul_f32 v%d, v%d, v%d" % (G[k], G[k], t[k])
                for f in (f_sq, f_fm, f_m2, f_ex, f_gu, f_ad, f_rc, f_fi):
                    for k in range(4): out.append((f(k), None))
                out.append(("v_cvt_pk_bf16_f32 v%d, v%d, v%d" % (D + 2 * a_, G[0], G[1]), None))
                out.append(("v_cvt_pk_bf16_f32 v%d, v%d, v%d" % (D + 2 * a_ + 1, G[2], G[3]), None))
            out.append(("buffer_store_dwordx4 %s, v%d, s[28:31], s%d offen offset:%d %s" % (R(D), VST, 63 + p, 1024 * tt, C.sc1), ("vm", "st")))
        return out
    wait(a, vm=vm.need(("w", 0), ("x", 0))); a("s_barrier")
    xq = xreads(0)
    for it in wreads(0) + xq[:4] + wreads(1) + wreads(2) + wreads(3) + xq[4:]: sc.emit(it)
    xq = []
    wait(a, lg=lg.need(("w", 0), ("x", 0, 0)))
    for P in range(120):
        s_ = P // 4; p, j = s_ // 10, s_ % 10; kk = (P >> 1) & 1
        if P % 40 == 1 and p >= 1: sc.fq += epilogue(p - 1)
        Pn = P + 2
        bar = Pn < 120 and Pn % 4 == 0
        wr = None
        for i in range(8):
            g = 2 * P + (i >> 2); wt = g & 3; tt = i & 3
            c = ACC[p % 2] + (wt * 4 + tt) * 4; b = WF + (g % 6) * 4
            if i == 0 and bar: sc.flush_d()
            a("v_mfma_f32_16x16x32_bf16 %s, %s, %s, %s" % (R(c), R(b), R(X(j, kk, tt)), "0" if (j == 0 and kk == 0) else R(c)))
            if i == 0 and bar:
                s2 = Pn // 4
                epi_done = s2 >= 21 and not sc.fq
                if epi_done and sig == 0: wait(a, vm=vm.need(("w", s2), "st")); sig = 1
                else: wait(a, vm=vm.need(("w", s2), ("x", s2)))
                a("s_barrier")
                free = []
                if s2 - 1 < 10:
                    if xiss < 10: sc.dq += dmax(xiss, xpos[s2 - 1]); xiss += 1
                    elif xpos[s2 - 1] < 8: free.append(xpos[s2 - 1])
                if s2 >= 2: free.append(wpos[s2 - 2])
                for pos in free:
                    if wiss < 30: sc.dq += dma(wiss, pos); wiss += 1
                if s2 == 19: sc.dq += [(w2_setup(), None), ("v_add_u32 v%d, 4096, v%d" % (VL4, VST), None), (flag_load(FL, "4", 24), ("vm", "pf"))]
                if s2 == 21: sc.dq += [("WAITVM", "pf"), (flag_check("FFN_pf", FL, "4", 24, 128), None)]
                if s2 >= 22:
                    n = 0
                    while w2q and n < 3:
                        c_ = [i for i in w2q if (i < 12 and (20 * i + 19) // 32 <= s2 - 22) or (12 <= i < 15 and epi_done)]
                        if not c_: break
                        w2q.remove(c_[0]); sc.dq += w2_loads(c_[0], VST, VL4); n += 1
                if s2 >= 21 and sig == 1: sc.dq.insert(0, (signal("FFN_sig", "s34", 28, FL + 1), None)); sig = 2
                if s2 < 10: xq = xreads(s2)
                continue
            if wr is None: wr = (wreads(2 * Pn) + wreads(2 * Pn + 1)) if Pn < 120 else []
            must = []
            if wr and (i % 2 == 1): must.append(wr.pop(0))
            if xq and (i % 2 == 1 and i != 7 or not sc.dq): must.append(xq.pop(0))
            slots = 2
            left = (39 - P % 40) * 8 + 8 - i - (8 if p < 2 else 88)
            need_rate = sum(cost(it[0]) for it in sc.fq) / max(left, 1) + 0.95
            if need_rate > 2 and p > 0: slots = int(need_rate + 0.99)
            if i == 7: slots -= 1
            sc.gap(must, slots)
        if P + 1 < 120:
            s3 = (P + 1) // 4
            wait(a, lg=lg.need(("w", P + 1), ("x", s3 % 10, ((P + 1) >> 1) & 1)))
        if P % 40 == 39: assert not sc.fq, (P, len(sc.fq))
    stamp(a, st, 2)
    assert sig == 2
    sc.flush_d()
    print("W2 steps left after FFN loop:", w2q)
    ep = epilogue(2); rest = []
    for i in w2q: rest += w2_loads(i, VST, VL4)
    a("s_nop 7")
    for k, it in enumerate(ep):
        sc.emit(it)
        if rest and k % 6 == 0: sc.emit(rest.pop(0))
    assert not rest
    wait(a, vm=vm.need("st")); a("s_barrier")
    a(signal("FFN_sig2", "s35", 28, FL + 1))
    a("s_branch P2")

def k1_att(a, vm):
    st = 0 if C.p0st else C.st
    a("K1_att:")
    WSL = 24576; NW = 5; PB = NW * WSL
    RS = 496
    lg = Q(15); sc = Sched(a, vm, lg)
    VWO = [3, 4, 5, 6]; VWR = [7, 8, 9]; VXR = [10, 11, 12]; VXO, VL = 13, 14
    TT = 16; PV = 212; PR = 216; VL4 = 15; FL = 1
    FR = [160, 460]
    def acc(t, u): return 16 + 4 * (t * 9 + u)
    a.srd(20, 6, 2457600)
    a("s_lshl_b32 s66, s32, 12"); a("s_lshl_b32 s67, s32, 11"); a("s_add_u32 s65, s67, 16384")
    for i in range(4):
        a("s_lshl_b32 s68, s32, 8"); a("s_add_u32 s68, s68, %d" % (64 * i)); a("v_add_u32 v%d, s68, v2" % TT)
        a("v_mul_u32_u24 v%d, 2185, v%d" % (TT + 1, TT)); a("v_lshrrev_b32 v%d, 16, v%d" % (TT + 1, TT + 1))
        a("v_mul_u32_u24 v%d, 30, v%d" % (TT + 2, TT + 1)); a("v_sub_u32 v%d, v%d, v%d" % (TT + 2, TT, TT + 2))
        a("v_mul_u32_u24 v%d, 205, v%d" % (TT + 3, TT + 2)); a("v_lshrrev_b32 v%d, 11, v%d" % (TT + 3, TT + 3))
        a("v_mul_u32_u24 v%d, 1120, v%d" % (TT + 3, TT + 3)); a("v_lshl_add_u32 v%d, v%d, 4, v%d" % (TT + 3, TT + 2, TT + 3))
        a("v_bfe_u32 v%d, v%d, 2, 2" % (TT + 4, TT + 1)); a("v_lshlrev_b32 v%d, 3, v%d" % (TT + 4, TT + 4))
        a("v_bfe_u32 v%d, v%d, 4, 1" % (TT + 2, TT + 1)); a("v_lshl_add_u32 v%d, v%d, 2, v%d" % (TT + 4, TT + 2, TT + 4))
        a("v_and_b32 v%d, 3, v%d" % (TT + 2, TT + 1)); a("v_add_u32 v%d, v%d, v%d" % (TT + 4, TT + 4, TT + 2))
        a("v_mul_u32_u24 v%d, 3840, v%d" % (TT + 4, TT + 4)); a("s_mul_i32 s68, s37, 160"); a("s_sub_u32 s68, s68, %d" % (1024 * i))
        a("v_add3_u32 v%d, v%d, v%d, s68" % (VWO[i], TT + 4, TT + 3))
        if i == 2:
            def dmaA(gm):
                c, hf = gm >> 1, gm & 1
                out = [("s_add_u32 m0, s66, %d\ns_add_u32 s68, s%d, %d" % ((gm % NW) * WSL, 40 + c, hf * 122880), None)]
                return out + [("buffer_load_dwordx4 v%d, s[20:23], s68 offen offset:%d lds" % (VWO[k], 1024 * k), ("vm", ("g", gm))) for k in range(3)]
            for gm in range(C.early):
                for it in dmaA(gm): sc.emit(it)
    a("v_lshlrev_b32 v%d, 4, v2" % VL); a("v_add_u32 v%d, s67, v%d" % (VXO, VL))
    a("s_cmp_eq_u32 s36, 0"); a("s_cselect_b32 s68, 0x%x, 0" % OOB); a("v_add_u32 v%d, s68, v%d" % (TT, VL))
    a("s_cmp_eq_u32 s32, 3")
    for i in range(3): a("s_cselect_b32 s%d, s%d, s%d" % (72 + i, 28 + i, 20 + i))
    a("s_mov_b32 s75, 0x00020000")
    a("s_cselect_b64 vcc, -1, 0"); a("v_cndmask_b32 v%d, v%d, v%d, vcc" % (VWO[3], VWO[3], TT))
    def dmaB(gm, withA):
        c, hf = gm >> 1, gm & 1
        pre = "" if withA else "s_add_u32 m0, s66, %d\ns_add_u32 s68, s%d, %d\n" % ((gm % NW) * WSL, 40 + c, hf * 122880)
        out = [(pre + "s_sub_u32 s69, s%d, %d\ns_cmp_eq_u32 s32, 3\ns_cselect_b32 s68, s69, s68" % (50 + c, 163840 - 7168 + 3072 - hf * 8192), None),
               ("buffer_load_dwordx4 v%d, s[72:75], s68 offen offset:3072 XSC lds" % VWO[3], ("vm", ("g", gm))),
               ("s_add_u32 m0, s65, %d\ns_add_u32 s69, s%d, %d" % ((gm % NW) * WSL, 50 + c, hf * 8192), None)]
        return out + [("buffer_load_dwordx4 v%d, s[28:31], s69 offen offset:%d XSC lds" % (VXO, 1024 * k), ("vm", ("g", gm))) for k in range(2)]
    a("v_lshrrev_b32 v%d, 2, v2" % TT); a("v_mul_u32_u24 v%d, 480, v%d" % (TT, TT)); a("v_and_b32 v%d, 3, v2" % (TT + 1)); a("v_lshl_add_u32 v%d, v%d, 3, v%d" % (TT, TT + 1, TT))
    a("s_lshl_b32 s60, s32, 7")
    a("v_add_u32 v%d, s60, v%d" % (VWR[0], TT)); a("v_add_u32 v%d, %d, v%d" % (VWR[1], 2 * WSL, VWR[0])); a("v_add_u32 v%d, %d, v%d" % (VWR[2], 4 * WSL, VWR[0]))
    for k in range(3): a("v_add_u32 v%d, %d, v%d" % (VXR[k], 2 * k * WSL + 15360, VL))
    late = []
    for gm in range(C.early, C.nlate): late += dmaA(gm)
    p0(a, sc, late, "att")
    stamp(a, C.st, 1)
    for gm in range(NW):
        for it in (dmaA(gm) if gm >= C.nlate else []) + dmaB(gm, False): sc.emit(it)
    def reads(s_):
        out = []; fb = FR[s_ % 2]; pos = s_ % NW
        def xr(u): return ("ds_read_b128 %s, v%d offset:%d" % (R(fb + 16 + 4 * u), VXR[pos >> 1], (pos & 1) * WSL + 1024 * u), None)
        def wr(t, tt): return ("ds_read_b64_tr_b16 %s, v%d offset:%d" % (R(fb + 4 * t + 2 * tt, 2), VWR[pos >> 1], (pos & 1) * WSL + 7680 * tt + 32 * t), None)
        out += [wr(0, 0), wr(0, 1)] + [xr(u) for u in range(9)]
        for t in range(1, 4): out += [wr(t, 0), wr(t, 1)]
        return out
    def pack1():
        pre = ["s_sub_u32 s4, s2, 128", "s_mul_i32 s4, s4, 3", "s_add_u32 s4, s4, s32", "s_cmp_lt_u32 s32, 3\ns_cselect_b32 s4, s4, 500", "s_lshr_b32 s5, s4, 2", "s_sub_u32 s6, s5, 20",
               "s_cmp_lt_u32 s5, 20\ns_cselect_b32 s6, s5, s6\ns_cselect_b32 s8, s14, s96\ns_cselect_b32 s9, s15, s97\ns_cselect_b32 s10, 0, 0x118000",
               "s_add_u32 s10, s10, 819200", "s_and_b32 s9, s9, 0xffff", "s_mov_b32 s11, 0x00020000",
               "s_mul_i32 s6, s6, 40960", "s_and_b32 s7, s4, 3", "s_mul_i32 s7, s7, 5120", "s_add_u32 s6, s6, s7",
               "s_mul_i32 s7, s32, 10240", "s_add_u32 s7, s7, %d" % PB, "s_cmp_lt_u32 s32, 3\ns_cselect_b32 s7, s7, 0x30000"]
        out = [(s, None) for s in pre]
        for tt in range(2):
            for o, n in ((0, 4), (4096, 1)):
                g = ["s_add_u32 m0, s7, %d" % (5120 * tt + o), "s_add_u32 s12, s6, %d" % (20480 * tt + o)]
                g += ["buffer_load_dwordx4 v%d, s[8:11], s12 offen offset:%d lds" % (VL, 1024 * i) for i in range(n)]
                out.append(("\n".join(g), ("vm", "pk"), n))
        return out
    def pack2a():
        V = PV
        return [(s, None) for s in ["v_lshrrev_b32 v%d, 4, v2" % (V + 1), "v_mul_u32_u24 v%d, 160, v%d" % (V, V + 1), "s_mov_b32 s6, %d" % (68 * 5120), "v_mul_lo_u32 v%d, v%d, s6" % (V + 1, V + 1),
                "v_bfe_u32 v%d, v2, 2, 2" % (V + 2), "v_mul_u32_u24 v%d, 1280, v%d" % (V + 2, V + 2), "v_add_u32 v%d, v%d, v%d" % (V, V, V + 2),
                "v_and_b32 v%d, 3, v2" % (V + 2), "v_mul_u32_u24 v%d, 40, v%d" % (V + 2, V + 2), "v_add3_u32 v%d, v%d, v%d, s7" % (V, V, V + 2),
                "v_and_b32 v%d, 15, v2" % (V + 2), "v_lshl_add_u32 v%d, v%d, 4, v%d" % (V + 1, V + 2, V + 1), "v_add_u32 v%d, 4096, v%d" % (V + 2, V + 1),
                "s_mul_i32 s6, s5, 5120", "s_and_b32 s7, s4, 3", "s_lshl_b32 s7, s7, 8", "s_add_u32 s6, s6, s7", "s_add_u32 s6, s6, %d" % W2P_OFF,
                "s_cmp_lt_u32 s4, 272\ns_cselect_b32 s6, s6, 0x%x" % OOB, "s_add_u32 s7, s6, %d" % (272 * 5120)]]
    def pack2r(hf):
        return [("WAITVM", "pk")] + [("ds_read_b64_tr_b16 %s, v%d offset:%d" % (R(PR + 20 * hf + 4 * i + 2 * tt, 2), PV, 8 * i + 5120 * tt + 640 * hf), None) for i in range(5) for tt in range(2)]
    def pack2s(hf):
        return [("buffer_store_dwordx4 %s, v%d, s[28:31], s%d offen offset:%d %s" % (R(PR + 20 * hf + 4 * i), PV + 1 if i < 4 else PV + 2, 6 + hf, 1024 * (i % 4), C.sc1), ("vm", "pst")) for i in range(5)]
    extra = {1: pack1, 2: pack2a, 5: lambda: pack2r(0), 6: lambda: pack2s(0), 7: lambda: pack2r(1), 8: lambda: pack2s(1)}
    w2q = list(range(17))
    wait(a, vm=vm.need(("g", 0))); a("s_barrier")
    for it in reads(0): sc.emit(it)
    for s_ in range(20):
        fb = FR[s_ % 2]
        a("s_waitcnt lgkmcnt(0)")
        rq = []
        for i in range(36):
            t, u = i // 9, i % 9; c = acc(t, u)
            a("v_mfma_f32_16x16x32_bf16 %s, %s, %s, %s" % (R(c), R(fb + 4 * t), R(fb + 16 + 4 * u), "0" if s_ == 0 else R(c)))
            if i == 0 and s_ < 19:
                wait(a, vm=vm.need(*([("g", s_ + 1)] + (["pst"] if s_ == 11 else [])))); a("s_barrier")
                rq = reads(s_ + 1)
                if s_ == 11: sc.dq.append((signal("ATT_sig", "4", 24, PV), None))
                if s_ + NW < 20: sc.dq += dmaA(s_ + NW) + dmaB(s_ + NW, True)
                if s_ == 14: sc.dq += [(w2_setup(), None), ("v_add_u32 v%d, 4096, v%d" % (VL4, VL), None), (flag_load(FL, "4", 24), ("vm", "pf"))]
                if s_ == 16: sc.dq += [("WAITVM", "pf"), (flag_check("ATT_pf", FL, "4", 24, 128), None)]
                if s_ >= 16:
                    for _ in range(3 if s_ < 18 else 4): sc.dq += w2_loads(w2q.pop(0), VL, VL4)
                if s_ in extra: sc.fq += extra[s_]()
                continue
            must = []
            if rq and i % 2 == 1: must = [rq.pop(0)] + ([rq.pop(0)] if rq else [])
            sc.gap(must, 2 - (1 if i == 35 else 0))
        sc.flush_d(); sc.flush_f()
    stamp(a, st, 2)
    TT = 232
    a("v_and_b32 v%d, 15, v2" % TT); a("v_mul_u32_u24 v%d, %d, v%d" % (TT, RS, TT)); a("v_lshrrev_b32 v%d, 4, v2" % (TT + 1)); a("v_lshl_add_u32 v%d, v%d, 3, v%d" % (TT, TT + 1, TT))
    a("v_add_u32 v%d, s60, v%d" % (TT + 3, TT))
    a("s_barrier")
    def wr_tile(t, u):
        c = acc(t, u)
        a("v_cvt_pk_bf16_f32 v%d, v%d, v%d" % (c, c, c + 1)); a("v_cvt_pk_bf16_f32 v%d, v%d, v%d" % (c + 1, c + 2, c + 3))
        a("ds_write_b64 v%d, %s offset:%d" % (TT + 3, R(c, 2), 16 * RS * u + 32 * t))
    for t in range(3):
        for u in range(9): wr_tile(t, u)
    a("s_cmp_eq_u32 s32, 3"); a("s_cbranch_scc1 K1_att_s3")
    for u in range(9): wr_tile(3, u)
    a("K1_att_s3:")
    AQ, AV, VI = TT, TT + 1, TT + 2
    def rowaddr(dst, hh, bq, par, i):
        a("v_bfe_u32 v%d, v2, %d, 1" % (TT + 8, bq)); a("v_lshlrev_b32 v%d, 3, v%d" % (TT + 8, TT + 8))
        a("v_bfe_u32 v%d, v2, %d, 1" % (TT + 9, par)); a("v_add_u32 v%d, v%d, v%d" % (TT + 8, TT + 8, TT + 9))
        a("v_bfe_u32 v%d, v2, %d, 2" % (TT + 9, i)); a("v_lshl_add_u32 v%d, v%d, 1, v%d" % (TT + 8, TT + 9, TT + 8))
        a("v_mul_u32_u24 v%d, %d, v%d" % (TT + 10, RS, TT + 8))
        a("v_bfe_u32 v%d, v2, %d, 2" % (TT + 9, hh)); a("v_mul_u32_u24 v%d, 40, v%d" % (TT + 9, TT + 9))
        a("v_add3_u32 v%d, v%d, v%d, s70" % (dst, TT + 10, TT + 9))
    a("s_mul_i32 s70, s32, %d" % (32 * RS))
    rowaddr(AV, 0, 4, 5, 2)
    rowaddr(AQ, 2, 4, 5, 0)
    a("v_and_b32 v%d, 3, v2" % VI)
    SO = TT + 12
    a("s_mul_i32 s71, s37, 20"); a("v_lshrrev_b32 v%d, 3, v%d" % (TT + 9, TT + 9)); a("v_add_u32 v%d, s71, v%d" % (TT + 9, TT + 9))
    for dp in range(5):
        a("v_add_u32 v%d, %d, v%d" % (TT + 10, dp, TT + 9))
        a("v_lshrrev_b32 v%d, 3, v%d" % (TT + 11, TT + 10)); a("v_lshlrev_b32 v%d, 12, v%d" % (TT + 11, TT + 11))
        a("v_lshl_add_u32 v%d, v%d, 4, v%d" % (TT + 11, TT + 8, TT + 11))
        a("v_and_b32 v%d, 3, v%d" % (SO + dp, TT + 10)); a("v_lshl_add_u32 v%d, v%d, 8, v%d" % (TT + 11, SO + dp, TT + 11))
        a("v_bfe_u32 v%d, v%d, 2, 1" % (TT + 10, TT + 10)); a("v_lshl_add_u32 v%d, v%d, 3, v%d" % (SO + dp, TT + 10, TT + 11))
    a("s_lshl_b32 s71, s36, 1"); a("s_lshr_b32 s69, s32, 1"); a("s_add_u32 s71, s71, s69"); a("s_mul_i32 s71, s71, %d" % (68 * 4096))
    a("s_and_b32 s69, s32, 1"); a("s_lshl_b32 s69, s69, 11"); a("s_add_u32 s71, s71, s69")
    if ACT_OFF: a("s_add_u32 s71, s71, %d" % ACT_OFF)
    for k in range(1, 4): a("v_cmp_gt_u32 s[%d:%d], %d, v%d" % (60 + 2 * k, 61 + 2 * k, k, VI))
    a("s_mov_b32 s69, %s" % f2h(20 ** -0.5 * 1.4426950408889634))
    a("s_waitcnt lgkmcnt(0)"); a("s_barrier")
    lg.clear()
    QR = [80, 150]; Sx = [16, 48]; O = [80, 150]
    def KR(e, kb): return QR[e] + 10 + 10 * kb
    def VR(e, kb): return QR[e] + 40 + 10 * kb
    for e in range(2):
        for dp in range(5): a("ds_read_b64 %s, v%d offset:%d" % (R(QR[e] + 2 * dp, 2), AQ, (16 + 16 * e) * RS + 8 * dp)); lg.issue(("k", e))
        for kb in range(3):
            for dp in range(5): a("ds_read_b64 %s, v%d offset:%d" % (R(KR(e, kb) + 2 * dp, 2), AQ, (8 * kb + 16 * e) * RS + 160 + 8 * dp)); lg.issue(("k", e))
    for e in range(2):
        wait(a, lg=lg.need(("k", e)))
        for dp in range(5):
            for kb in range(3):
                a("v_mfma_f32_4x4x4_16b_bf16 %s, %s, %s, %s" % (R(Sx[e] + 4 * kb), R(KR(e, kb) + 2 * dp, 2), R(QR[e] + 2 * dp, 2), "0" if dp == 0 else R(Sx[e] + 4 * kb)))
                a("ds_read_b64_tr_b16 %s, v%d offset:%d" % (R(VR(e, kb) + 2 * dp, 2), AV, (8 * kb + 16 * e) * RS + 320 + 8 * dp)); lg.issue(("v", e))
    a("s_nop 3")
    a("s_or_b32 s68, s36, s32"); a("s_cmp_lg_u32 s68, 0"); a("s_cbranch_scc1 K1_att_nomask")
    S_ = Sx[0]; Z = S_ + 20
    a("v_lshlrev_b32 v%d, 1, v%d" % (Z, VI)); a("v_sub_u32 v%d, v%d, v%d" % (Z, TT + 8, Z))
    a("v_mov_b32 v%d, 0xff800000" % (Z + 1))
    for k in range(1, 8):
        a("v_cmp_gt_u32 vcc, %d, v%d" % (16 - 2 * k, Z)); a("s_nop 1"); a("v_cndmask_b32 v%d, v%d, v%d, vcc" % (S_ + k, S_ + k, Z + 1))
    a("K1_att_nomask:")
    def soft(S):
        Z = S + 20; P = S + 12; o = []
        o += ["v_cndmask_b32 v%d, v%d, v%d, s[%d:%d]" % (S + k, S + k + 8, S + k, 60 + 2 * k, 61 + 2 * k) for k in range(1, 4)]
        o += ["v_max3_f32 v%d, v%d, v%d, v%d" % (Z + 1, S + 4, S + 5, S + 6), "v_max3_f32 v%d, v%d, v%d, v%d" % (Z, S + 1, S + 2, S + 3),
              "v_max3_f32 v%d, v%d, v%d, v%d" % (Z + 1, Z + 1, S + 7, S + 8), "v_max_f32 v%d, v%d, v%d" % (Z, Z, Z + 1), "v_mul_f32 v%d, s69, v%d" % (Z, Z)]
        o += ["v_fma_f32 v%d, v%d, s69, -v%d" % (S + k, S + k, Z) for k in range(1, 9)]
        o += ["v_exp_f32 v%d, v%d" % (S + k, S + k) for k in range(1, 9)]
        o += ["v_add_f32 v%d, v%d, v%d" % (Z, S + 1, S + 2), "v_add_f32 v%d, v%d, v%d" % (Z + 1, S + 3, S + 4), "v_add_f32 v%d, v%d, v%d" % (Z + 2, S + 5, S + 6), "v_add_f32 v%d, v%d, v%d" % (Z + 3, S + 7, S + 8),
              "v_add_f32 v%d, v%d, v%d" % (Z, Z, Z + 1), "v_add_f32 v%d, v%d, v%d" % (Z + 2, Z + 2, Z + 3), "v_add_f32 v%d, v%d, v%d" % (Z, Z, Z + 2),
              "v_rcp_f32 v%d, v%d" % (Z, Z), "v_mov_b32 v%d, 0" % S]
        o += ["v_mul_f32 v%d, v%d, v%d" % (S + k, S + k, Z) for k in range(1, 9)]
        for k in range(1, 4):
            o += ["v_cndmask_b32 v%d, v%d, 0, s[%d:%d]" % (S + k + 8, S + k, 60 + 2 * k, 61 + 2 * k), "v_cndmask_b32 v%d, 0, v%d, s[%d:%d]" % (S + k, S + k, 60 + 2 * k, 61 + 2 * k)]
        o += ["v_cvt_pk_bf16_f32 v%d, v%d, v%d" % (P + j, S + 2 * j, S + 2 * j + 1) for j in range(6)]
        return o
    for x, y in zip(soft(Sx[0]), soft(Sx[1])): a(x); a(y)
    a("s_waitcnt lgkmcnt(0)"); a("s_nop 0")
    for e in range(2):
        for kb in range(3):
            for dp in range(5):
                a("v_mfma_f32_4x4x4_16b_bf16 %s, %s, %s, %s" % (R(O[e] + 4 * dp), R(VR(e, kb) + 2 * dp, 2), R(Sx[e] + 12 + 2 * kb, 2), "0" if kb == 0 else R(O[e] + 4 * dp)))
    for e in range(2):
        for dp in range(5):
            c = O[e] + 4 * dp
            a("v_cvt_pk_bf16_f32 v%d, v%d, v%d" % (c, c, c + 1)); a("v_cvt_pk_bf16_f32 v%d, v%d, v%d" % (c + 1, c + 2, c + 3))
            a("buffer_store_dwordx2 %s, v%d, s[28:31], s71 offen offset:%d %s" % (R(c, 2), SO + dp, 1024 * e, C.sc1))
    a("s_waitcnt vmcnt(0)"); a("s_barrier")
    a(signal("ATT_sig2", "s35", 28, 16))
    for i in w2q:
        for it in w2_loads(i, VL, VL4): sc.emit(it)


def gen_all():
    a = Asm(); vm = Q(63)
    prologue(a, vm)
    vm2 = copy.deepcopy(vm)
    k1_ffn(a, vm)
    k1_att(a, vm2)
    p2(a)
    stamp_flush(a, C.st, 6, 28, 2, 0, 6)
    a("K1_end:"); a("s_endpgm")
    emit_spins(a)
    a("K1_last:"); a("s_endpgm")
    return a.text().replace("XSC", C.xsc if C.xsc != "none" else "")

if __name__ == "__main__":
    out = sys.argv[1]
    for kv in sys.argv[2:]:
        k, v = kv.split("="); setattr(C, k, int(v) if v.lstrip("-").isdigit() else v)
    kn = NAME + "_kernel"
    txt = HEADER + "; @launch grid=(256,1,1) block=(256,1,1) lds=153600\n" + '.amdgcn_target "amdgcn-amd-amdhsa--gfx950"\n.text\n' + kernel_head(kn) + gen_all()
    txt += '.section .rodata,"a"\n' + kernel_desc(kn, 512, 102, 256)
    open(out, "w").write(txt)
```

```python
import sys, struct, copy, re, os
from asmlib import *
ACT_OFF = 0; W2P_OFF = 16 << 20; XNP_OFF = 24 << 20; CNT_OFF = 28 << 20; STAMP_OFF = 128 << 20
WS_BYTES = 256 << 20; XBYTES = 2621440; OOB = 0x7ff00000
class Cfg:
    st = 0; tr = 0; pref = 0; early = 1; slp = 2; slp2 = 4; D = 4; fd = 2; sp = 3; spa = 4; w2n = 12; aw2 = 10; mixcb = 0; pk0 = 2
    st4 = 8; sd = 64; e1 = 8; e2 = 88; pfc = 11; l2pf = 0; pfs = 16; rot2 = 0; apc = 13; pke = 2; npa = 4; npf = 5; sp2 = 2; sgi = 2; eps = 4; sg1 = 200; spec = 0; ptrig = 9; map2 = 0; plan = 1; fk = 214; ldw = 1; pag = 3; pac = 1
C = Cfg()
GA = -2.0 * 0.7978845608028654 * 1.4426950408889634; GB = GA * 0.044715
def f2h(x): return "0x%08x" % struct.unpack("<I", struct.pack("<f", x))[0]
_ref = "cdna_kernels/%s.s.ref" % NAME
HEADER = open(_ref).read().split("; Override")[0] if os.path.exists(_ref) else ""

class Q:
    def __init__(s, cap): s.q = []; s.cap = cap; s.seen = set()
    def issue(s, tag): s.q.append(tag); s.seen.add(tag)
    def need(s, *tags, opt=()):
        for t in tags: assert t in s.seen, ("waiting for something never issued", t)
        tags = tuple(tags) + tuple(opt); idx = -1
        for i, t in enumerate(s.q):
            if t in tags: idx = i
        if idx < 0: return None
        n = min(len(s.q) - 1 - idx, s.cap); s.q = s.q[len(s.q) - n:] if n else []
        return n
    def clear(s): s.q = []
def wait(a, vm=None, lg=None):
    p = []
    if vm is not None: p.append("vmcnt(%d)" % vm)
    if lg is not None: p.append("lgkmcnt(%d)" % lg)
    if p: a("s_waitcnt " + " ".join(p))
def R(n, k=4): return ("a[%d:%d]" % (n - 256, n - 256 + k - 1)) if n >= 256 else ("v[%d:%d]" % (n, n + k - 1))
def cost(ins):
    n = 0
    for l in ins.split("\n"):
        if l.endswith(":"): continue
        n += 1
        if l.startswith("v_exp") or l.startswith("v_rcp"): n += 1
        if l.startswith("ds_write_b128") or l.startswith("buffer_store_dwordx4"): n += 3
        if l.startswith("ds_write_b64"): n += 2
        if l.startswith("buffer_load") or l.startswith("buffer_atomic") or l.startswith("buffer_store_dword "): n += 1
    return n
def ismem(ins): return ins.startswith("ds_") or ins.startswith("buffer_")
def deps(ins):
    if "\n" in ins or not ins.startswith("v_") or "vcc" in ins or " s" in ins: return None
    regs = re.findall(r"[va]\d+", ins.split(" ", 1)[1])
    return {regs[0]}, set(regs[1:])

class Sched:
    def __init__(s, a, vm, lg, sp): s.a = a; s.vm = vm; s.lg = lg; s.fq = []; s.dq = []; s.lq = []; s.since = 99; s.sp = sp; s.n = 0; s.timed = []
    def emit(s, item):
        ins, tag = item[0], item[1]
        if ins == "WAITVM": wait(s.a, vm=s.vm.need(tag)); return
        if ins == "WAITLG": wait(s.a, lg=s.lg.need(tag)); return
        if ins == "LATER": s.timed.append((s.n + tag[0], tag[1])); return
        s.a(ins)
        if tag:
            for _ in range(item[2] if len(item) > 2 else 1): (s.vm if tag[0] == "vm" else s.lg).issue(tag[1])
    def gap(s, must=(), slots=2):
        first = True; s.n += 1; s.since += 1
        while s.timed and s.timed[0][0] <= s.n: s.lq = s.timed.pop(0)[1] + s.lq if not s.lq_open() else s.lq + s.timed.pop(0)[1]
        for it in must: s.emit(it); slots -= cost(it[0]); first = False
        while slots > 0:
            q = s.dq if s.dq else s.lq
            if not q: break
            isb = "buffer_" in q[0][0]; m = ismem(q[0][0])
            if not ((first or (not m and cost(q[0][0]) <= slots)) and (not isb or s.since > s.sp)): break
            it = q.pop(0); s.emit(it); slots -= cost(it[0]); first = False
            if isb: s.since = 0
        lastw = None
        while s.fq and slots > 0:
            pick = None; W = set(); Rr = set()
            for idx, it in enumerate(s.fq[:14]):
                n = cost(it[0]); d = deps(it[0])
                if d is None:
                    if idx == 0 and not (ismem(it[0]) and not first) and (n <= slots or (first and n > 2) or it[0] == "LATER"): pick = 0
                    break
                w, r = d
                if n <= slots and not (r & W) and not (w & W) and not (w & Rr) and not (lastw is not None and lastw in r): pick = idx; break
                W |= w; Rr |= r
            if pick is None: break
            it = s.fq.pop(pick); s.emit(it)
            if it[0] == "LATER": continue
            slots -= cost(it[0]); first = False
            lastw = next(iter(deps(it[0])[0])) if (cost(it[0]) == 2 and deps(it[0])) else None
    m0lock = False
    def lq_open(s): return False
    def fc(s): return sum(cost(it[0]) for it in s.fq if it[0] != "LATER")
    def flush(s, q):
        while q: s.emit(q.pop(0))

def stamp(a, idx):
    if C.st: a("%s s[%d:%d]" % ("s_memtime" if C.st == 2 else "s_memrealtime", 80 + 2 * idx, 81 + 2 * idx))
def stamp_flush(a, n):
    if not C.st: return
    a("s_waitcnt lgkmcnt(0)"); a("v_cmp_eq_u32 vcc, 0, v0"); a("s_and_saveexec_b64 s[68:69], vcc"); a("s_cbranch_execz L_stf")
    a("s_mul_i32 s70, s2, %d" % (n * 8)); a("s_add_u32 s70, s70, %d" % STAMP_OFF)
    for j in range(n):
        a("v_mov_b32 v2, s%d" % (80 + 2 * j)); a("v_mov_b32 v3, s%d" % (81 + 2 * j)); a("buffer_store_dwordx2 v[2:3], off, s[28:31], s70 offset:%d" % (8 * j)); a("s_nop 1")
    a("L_stf:")
class Trace:
    def __init__(s, a, v, n=0): s.a = a; s.v = v; s.n = n; s.n0 = n
    def mark(s):
        if not C.tr: return
        if s.n > s.n0: s.a("v_writelane_b32 v%d, s%d, %d" % (s.v, 88 + 2 * ((s.n - 1) & 1), s.n - 1))
        s.a("%s s[%d:%d]" % ("s_memtime" if C.tr == 2 else "s_memrealtime", 88 + 2 * (s.n & 1), 89 + 2 * (s.n & 1))); s.n += 1
    def sync(s):
        if C.tr: s.a("s_waitcnt lgkmcnt(0)"); s.a("v_writelane_b32 v%d, s%d, %d" % (s.v, 88 + 2 * ((s.n - 1) & 1), s.n - 1))
    def flush(s, vt, off=0):
        if not C.tr: return
        s.sync(); s.a("s_lshl_b32 s88, s2, 10"); s.a("s_add_u32 s88, s88, %d" % (STAMP_OFF + off)); s.a("v_lshlrev_b32 v%d, 2, v0" % vt)
        s.a("buffer_store_dword v%d, v%d, s[28:31], s88 offen" % (s.v, vt))

def bfr(a, v): a("v_cvt_pk_bf16_f32 v%d, v%d, v%d" % (v, v, v)); a("v_lshlrev_b32 v%d, 16, v%d" % (v, v))

SPINS = []
def flag_load(vd, soff, srd, off=None):
    if off is None: return "buffer_load_dword v%d, off, s[%d:%d], %s offset:64 sc1" % (vd, srd, srd + 3, soff)
    return "buffer_load_dwordx4 v[%d:%d], off, s[%d:%d], %s offset:%d sc1" % (vd, vd + 3, srd, srd + 3, soff, off)
def flag_read(vd, off):
    return ("v_min3_u32 v%d, v%d, v%d, v%d\nv_min_u32 v%d, v%d, v%d\ns_nop 0\n" % (vd, vd, vd + 1, vd + 2, vd, vd, vd + 3) if off is not None else "") + "v_readfirstlane_b32 s100, v%d" % vd
def flag_check(name, vd, soff, srd, target, off=None):
    if (name, vd, soff, srd, target, off) not in SPINS: SPINS.append((name, vd, soff, srd, target, off))
    return flag_read(vd, off) + "\ns_cmp_lt_u32 s100, %d\ns_cbranch_scc1 %s_spin\n%s_ok:" % (target, name, name)
def emit_spins(a):
    for name, vd, soff, srd, target, off in SPINS:
        a("%s_spin:" % name); a("s_mov_b32 s101, 0"); a("%s_lp:" % name)
        a("s_sleep %d" % (C.slp2 if off is None else C.slp))
        a(flag_load(vd, soff, srd, off)); a("s_add_u32 s101, s101, 1"); a("s_waitcnt vmcnt(0)")
        a(flag_read(vd, off)); a("s_cmp_ge_u32 s100, %d" % target); a("s_cbranch_scc1 %s_ok" % name)
        a("s_cmp_lt_u32 s101, 0x8000"); a("s_cbranch_scc1 %s_lp" % name); a("s_branch %s_ok" % name)
def wave_signal(vt, val):
    return "v_mov_b32 v%d, %d\ns_mov_b64 exec, 1\nbuffer_store_dword v%d, off, s[28:31], s34 sc1\ns_mov_b64 exec, -1" % (vt, val, vt)
def poll(a, name, voff, target, srd=28, first_loaded=False):
    a("s_mov_b32 s68, 0")
    if first_loaded: a("s_branch %s_chk" % name)
    a("%s:" % name)
    a("buffer_load_dword v241, v%d, s[%d:%d], 0 offen sc1" % (voff, srd, srd + 3)); a("s_add_u32 s68, s68, 1"); a("s_waitcnt vmcnt(0)")
    a("%s_chk:" % name)
    a("v_cmp_gt_u32 vcc, %d, v241" % target); a("s_nop 4"); a("s_cbranch_vccz %s_ok" % name)
    a("s_sleep %d" % C.slp); a("s_cmp_lt_u32 s68, 0x8000"); a("s_cbranch_scc1 %s" % name); a("%s_ok:" % name)

WB = [92, 93, 94, 95]; AB = [77, 78, 79, 1]; SOUT = 3
def W2R(i): return 256 + 20 * i if i < 12 else (104 + 20 * (i - 12) if i < 15 else 168 + 20 * (i - 15))
AB_ = [496, 208, 224, 240]
def p2_bases(a, dst, unit):
    a("s_mul_i32 s68, s32, %d" % (5 * unit)); a("s_add_u32 s%d, s69, s68" % dst[3])
    a("s_mul_i32 s68, s32, %d" % (12 * unit)); a("s_add_u32 s69, s69, s68"); a("s_add_u32 s69, s69, %d" % (20 * unit))
    a("s_mul_i32 s68, s3, %d" % (2 * unit)); a("s_add_u32 s%d, s69, s68" % dst[0])
    for pp in (1, 2):
        a("s_add_u32 s68, s68, %d" % (2 * unit)); a("s_cmp_eq_u32 s68, %d" % (6 * unit)); a("s_cselect_b32 s68, 0, s68"); a("s_add_u32 s%d, s69, s68" % dst[pp])
def step_off(i, dst, unit):
    if i < 4: return dst[0], (6 * (i >> 1) + (i & 1)) * unit
    if i < 9: return dst[3], (i - 4) * unit
    if i < 13: return dst[1], (6 * ((i - 9) >> 1) + ((i - 9) & 1)) * unit
    return dst[2], (6 * ((i - 13) >> 1) + ((i - 13) & 1)) * unit
def w2_loads(i, VL, VL4):
    b, c = step_off(i, WB, 5120)
    return [("s_add_u32 s13, s%d, %d" % (b, c), None)] + [("buffer_load_dwordx4 %s, v%d, s[28:31], s13 offen offset:%d sc1" % (R(W2R(i) + 4 * t), VL if t < 4 else VL4, 1024 * (t % 4)), ("vm", ("w2", i))) for t in range(5)]
def w2_lds(i, VL):
    b, c = step_off(i, WB, 5120); o = (i - 12) * 5120
    return [("s_add_u32 m0, s12, %d" % o, None), ("s_add_u32 s68, s%d, %d" % (b, c), None)] + [("buffer_load_dwordx4 v%d, s[28:31], s68 offen offset:%d sc1 lds" % (VL, 1024 * t), ("vm", ("wl", i))) for t in range(4)] + \
           [("s_add_u32 m0, s12, %d" % (o + 4096), None), ("s_add_u32 s68, s68, 4096", None), ("buffer_load_dwordx4 v%d, s[28:31], s68 offen sc1 lds" % VL, ("vm", ("wl", i)))]
def act_voffs(VL): return [("s_add_u32 s14, s32, %d\ns_and_b32 s14, s14, 3" % i, None) if k == 0 else ("s_lshl_b32 s14, s14, 10\nv_add_u32 v%d, s14, v%d" % (3 + i, VL), None) for i in range(4) for k in range(2)]
def AR(i):
    if i < 4: return AB_[i]
    j = (i - 4) // 2
    return AR(j) if (i - 4) % 2 == 0 else W2R(j)
def act_loads(i):
    b, c = step_off(i, AB, 4096)
    return [("s_add_u32 s13, s%d, %d" % (b, c), None)] + [("buffer_load_dwordx4 %s, v%d, s[28:31], s13 offen sc1" % (R(AR(i) + 4 * q), 3 + q), ("vm", ("a", i))) for q in range(4)]

RP = 200
def prologue(a, vm):
    a("s_cmp_ge_u32 s2, 256"); a("s_cbranch_scc1 K_end")
    stamp(a, 0)
    a("s_load_dwordx4 s[4:7], s[0:1], 0"); a("s_load_dwordx2 s[12:13], s[0:1], 72"); a("s_load_dwordx2 s[24:25], s[0:1], 64")
    a("s_load_dwordx4 s[8:11], s[0:1], 32"); a("s_load_dwordx2 s[14:15], s[0:1], 16"); a("s_load_dwordx4 s[96:99], s[0:1], 48")
    a("v_lshrrev_b32 v1, 6, v0"); a("v_and_b32 v2, 63, v0"); a("v_readfirstlane_b32 s32, v1")
    a("s_and_b32 s33, s2, 7"); a("s_lshr_b32 s34, s2, 3"); a("s_and_b32 s35, s34, 7"); a("s_lshr_b32 s34, s34, 3")
    a("s_and_b32 s36, s33, 1"); a("s_lshl_b32 s36, s36, 3"); a("s_add_u32 s36, s36, s35")
    a("s_lshr_b32 s76, s33, 1"); a("s_lshl_b32 s76, s76, 2"); a("s_add_u32 s76, s76, s34")
    a("s_lshl_b32 s68, s36, 4"); a("s_add_u32 s68, s68, s76"); a("s_mul_i32 s68, s68, 10240")
    a("v_lshrrev_b32 v3, 3, v2"); a("v_mul_u32_u24 v4, 1280, v3"); a("v_and_b32 v5, 7, v2"); a("v_lshl_add_u32 v4, v5, 4, v4"); a("v_add_u32 v4, s68, v4")
    a("s_mul_i32 s67, s32, %d" % (5 if C.spec else 3)); a("s_min_u32 s67, s67, %d" % (5 if C.spec else 7)); a("s_lshl_b32 s69, s67, 7")
    a("s_lshl_b32 s70, s76, 2"); a("s_add_u32 s70, s70, s32")
    a("s_mov_b32 s18, 0x%x" % XBYTES); a("s_mov_b32 s19, 0x00020000"); a("s_mov_b32 s30, 0x%x" % WS_BYTES); a("s_mov_b32 s31, 0x00020000"); a("s_movk_i32 s26, 256"); a("s_mov_b32 s27, 0x00020000")
    a("s_waitcnt lgkmcnt(0)")
    a("s_mov_b32 s16, s4"); a("s_and_b32 s17, s5, 0xffff"); a("s_mov_b32 s28, s12"); a("s_and_b32 s29, s13, 0xffff")
    a("s_cmp_lg_u32 s70, 3"); a("s_cbranch_scc1 K_noinit")
    a("s_lshl_b32 s68, s36, 10"); a("s_add_u32 s68, s68, %d" % CNT_OFF); a("v_mov_b32 v7, 0"); a("s_mov_b64 exec, 1")
    a("buffer_store_dword v7, off, s[28:31], s68 sc1"); a("s_mov_b64 exec, -1")
    a("K_noinit:")
    for i in range(10):
        a("buffer_load_dwordx4 %s, v4, s[16:19], s69 offen" % R(RP + 4 * i)); vm.issue("x")
        if i < 9: a("s_add_u32 s69, s69, 128"); a("s_cmp_eq_u32 s69, 1280"); a("s_cselect_b32 s69, 0, s69")
    a("s_and_b32 s25, s25, 0xffff")
    a("s_cmp_lg_u32 s70, 3"); a("s_cbranch_scc1 K_noinit2")
    a("s_lshl_b32 s68, s36, 4"); a("v_mov_b32 v7, 1"); a("s_mov_b64 exec, 1"); a("s_waitcnt vmcnt(10)")
    a("buffer_store_dword v7, off, s[24:27], s68 sc1"); a("s_mov_b64 exec, -1")
    a("K_noinit2:")
    if C.pref:
        a("s_getpc_b64 s[68:69]"); a("K_pf:")
        a("v_lshlrev_b32 v8, 7, v0"); a("v_add_u32 v10, 32768, v8"); a("v_min_u32 v10, K_last-K_pf, v10"); a("v_mov_b32 v9, s69"); a("v_mov_b32 v11, s69")
        a("v_add_co_u32 v8, vcc, s68, v8"); a("s_nop 1"); a("v_addc_co_u32 v9, vcc, 0, v9, vcc")
        a("v_add_co_u32 v10, vcc, s68, v10"); a("s_nop 1"); a("v_addc_co_u32 v11, vcc, 0, v11, vcc")
        a("global_load_dword a0, v[8:9], off"); a("global_load_dword a1, v[10:11], off"); vm.issue("pf0"); vm.issue("pf0")
    a("s_and_b32 s37, s33, 6"); a("s_and_b32 s68, s34, 1"); a("s_add_u32 s37, s37, s68")
    a("s_mul_i32 s38, s34, 5"); a("s_lshr_b32 s38, s38, 1")
    a("s_cmp_ge_u32 s34, 2"); a("s_mov_b32 s68, 0x87653210"); a("s_cselect_b32 s69, s68, 0x77533000"); a("s_lshl_b32 s68, s35, 2"); a("s_lshr_b32 s69, s69, s68"); a("s_and_b32 s69, s69, 15"); a("s_add_u32 s38, s38, s69")
    a("s_lshr_b32 s39, 0x10210210, s68"); a("s_and_b32 s39, s39, 3"); a("s_mov_b32 s3, s39")
    a("s_sub_u32 s68, s38, 10"); a("s_cmp_ge_u32 s38, 10"); a("s_cselect_b32 s38, s68, s38")
    a("s_mul_i32 s71, s36, 163840"); a("s_add_u32 s71, s71, %d" % XNP_OFF)
    a("s_cmp_ge_u32 s34, 2"); a("s_movk_i32 s68, 0x3c00"); a("s_cselect_b32 s69, s68, 0x3000"); a("s_lshl_b32 s69, s69, 4")
    for j in range(10):
        a("s_mul_i32 s%d, s38, s69" % (40 + j)); a("s_lshl_b32 s68, s38, 14"); a("s_add_u32 s%d, s71, s68" % (50 + j))
        if j < 9: a("s_add_u32 s38, s38, 1"); a("s_cmp_eq_u32 s38, 10"); a("s_cselect_b32 s38, 0, s38")
    a("v_lshrrev_b32 v6, 2, v5"); a("v_lshlrev_b32 v6, 13, v6"); a("v_and_b32 v5, 3, v5"); a("v_lshl_add_u32 v6, v5, 8, v6"); a("v_lshl_add_u32 v240, v3, 4, v6")
    a("s_lshl_b32 s38, s67, 14"); a("s_add_u32 s38, s38, s71"); a("s_lshr_b32 s68, s76, 1"); a("s_lshl_b32 s68, s68, 10"); a("s_add_u32 s38, s38, s68")
    a("s_and_b32 s68, s76, 1"); a("s_lshl_b32 s68, s68, 7"); a("s_add_u32 s38, s38, s68")
    a("s_cmp_ge_u32 s34, 2"); a("s_cbranch_scc1 K_att")

def common_setup(a, role):
    if C.map2 == 0:
        a("s_lshr_b32 s0, s76, 3"); a("s_lshl_b32 s0, s0, 2"); a("s_and_b32 s68, s76, 3"); a("s_add_u32 s0, s0, s68")
        a("s_lshl_b32 s70, s36, 1"); a("s_bfe_u32 s71, s76, 0x10002"); a("s_add_u32 s70, s70, s71")
    else:
        a("s_and_b32 s70, s36, 8"); a("s_lshl_b32 s70, s70, 1"); a("s_and_b32 s68, s76, 12"); a("s_add_u32 s70, s70, s68")
        if C.map2 == 1: a("s_mov_b32 s0, s35"); a("s_add_u32 s70, s70, s34")
        else: a("s_and_b32 s0, s35, 1"); a("s_lshl_b32 s0, s0, 2"); a("s_add_u32 s0, s0, s34"); a("s_lshr_b32 s68, s35, 1"); a("s_add_u32 s70, s70, s68")
        a("s_bfe_u32 s68, s70, 0x30001"); a("s_lshl_b32 s68, s68, 2"); a("s_lshr_b32 s3, 0x10210210, s68"); a("s_and_b32 s3, s3, 3")
    a("s_mul_i32 s69, s0, %d" % (68 * 5120)); a("s_add_u32 s69, s69, %d" % W2P_OFF); p2_bases(a, WB, 5120)
    a("s_mul_i32 s69, s70, %d" % (68 * 4096)); p2_bases(a, AB, 4096)
    a("s_mul_i32 s3, s70, %d" % (64 * 1280)); a("s_mul_i32 s69, s0, 160"); a("s_add_u32 s3, s3, s69")
    a("s_lshr_b32 s35, s70, 1"); a("s_lshl_b32 s35, s35, 10"); a("s_and_b32 s71, s70, 1"); a("s_lshl_b32 s71, s71, 5"); a("s_add_u32 s35, s35, s71")
    a("s_lshl_b32 s71, s32, 7"); a("s_add_u32 s71, s71, %d" % (CNT_OFF + 256)); a("s_add_u32 s35, s35, s71")
    a("s_lshl_b32 s68, s36, 10"); a("s_add_u32 s0, s68, s71"); a("s_add_u32 s68, s68, %d" % (CNT_OFF + 256))
    a("s_lshr_b32 s69, s76, 2"); a("s_lshl_b32 s69, s69, 7"); a("s_add_u32 s68, s68, s69"); a("s_lshl_b32 s34, s34, 3"); a("s_add_u32 s34, s34, s68")
    hi, lo = ("s_and_b32 s68, s32, 1", "s_lshr_b32 s69, s32, 1") if role == "ffn" else ("s_lshr_b32 s68, s32, 1", "s_and_b32 s69, s32, 1")
    a(hi); a(lo); a("s_lshl_b32 s68, s68, 5"); a("s_lshl_b32 s69, s69, 2"); a("s_add_u32 s34, s34, s68"); a("s_add_u32 s34, s34, s69")
    a("s_mov_b32 s33, 0x3f803f80")

def p0(a, sc, late, role, late2=()):
    vm = sc.vm; S = [242, 243]; T = [244, 245, 246, 247]
    if C.spec:
        a("s_cmp_lt_u32 s32, 2"); a("s_cbranch_scc1 P0_%s_ln" % role)
        a("s_waitcnt vmcnt(%d)" % (len(vm.q) - 10 + C.ptrig))
        for it in late: a(it[0])
        a("s_branch P0_%s_skip" % role)
        a("P0_%s_ln:" % role)
    a("v_mov_b32 v248, 0"); a("s_mov_b64 exec, 1")
    po = 4 if role == "ffn" else 32
    for o in ([0, 64, po, po + 64] if C.spec else [0, 64]): a("buffer_store_dword v248, off, s[28:31], s34 offset:%d sc1" % o); vm.issue("z")
    a("s_mov_b64 exec, -1")
    a("v_mov_b32 v%d, 0" % S[0]); a("v_mov_b32 v%d, 0" % S[1])
    wait(a, vm=vm.need("x"))
    for d in range(40): a("v_dot2c_f32_bf16 v%d, s33, v%d" % (S[0], RP + d)); a("v_dot2c_f32_bf16 v%d, v%d, v%d" % (S[1], RP + d, RP + d))
    a("s_nop 0")
    for m in ["quad_perm:[1,0,3,2]", "quad_perm:[2,3,0,1]", "row_half_mirror"]:
        a("s_nop 1")
        for r in S: a("v_add_f32_dpp v%d, v%d, v%d %s row_mask:0xf bank_mask:0xf" % (r, r, r, m))
    s_, q = S
    a("v_mul_f32 v%d, 0x3acccccd, v%d" % (s_, s_)); a("v_mul_f32 v%d, 0x3acccccd, v%d" % (q, q))
    a("v_fma_f32 v%d, -v%d, v%d, v%d" % (q, s_, s_, q)); a("v_max_f32 v%d, 0, v%d" % (q, q))
    bfr(a, q); bfr(a, s_); a("v_add_f32 v%d, 0x3727c5ac, v%d" % (q, q)); bfr(a, q)
    a("v_sqrt_f32 v%d, v%d" % (q, q)); a("s_nop 0"); bfr(a, q); a("v_rcp_f32 v%d, v%d" % (q, q))
    NC = 5 if C.spec else 3
    for i in range(NC):
        for d in range(0, 4, 2):
            r = RP + 4 * i + d
            for op, o in (("v_sub_f32 v%d, v%d, v%d", s_), ("v_mul_f32 v%d, v%d, v%d", q)):
                a("v_lshlrev_b32 v%d, 16, v%d" % (T[0], r)); a("v_and_b32 v%d, 0xffff0000, v%d" % (T[1], r))
                a("v_lshlrev_b32 v%d, 16, v%d" % (T[2], r + 1)); a("v_and_b32 v%d, 0xffff0000, v%d" % (T[3], r + 1))
                for k in range(4): a(op % (T[k], T[k], o))
                a("v_cvt_pk_bf16_f32 v%d, v%d, v%d" % (r, T[0], T[1])); a("v_cvt_pk_bf16_f32 v%d, v%d, v%d" % (r + 1, T[2], T[3]))
        a("buffer_store_dwordx4 %s, v240, s[28:31], s38 offen sc1" % R(RP + 4 * i))
        if i < NC - 1: a("s_add_u32 s38, s38, 16384")
    a("s_lshl_b32 s69, s36, 4")
    if role == "att": a("s_min_u32 s68, s69, 16"); a("v_min_u32 v243, 1, v2"); a("v_mul_u32_u24 v243, s68, v243"); a("v_sub_u32 v243, s69, v243")
    else: a("v_mov_b32 v243, s69")
    if not C.spec: a("s_cmp_lg_u32 s32, 0"); a("s_cbranch_scc1 P0_%s_nord" % role)
    a("buffer_load_dword v241, v243, s[24:27], 0 offen sc1")
    a("P0_%s_nord:" % role)
    a("s_waitcnt vmcnt(0)"); vm.clear()
    if not C.spec: a("s_barrier"); a("s_cmp_lg_u32 s32, 0"); a("s_cbranch_scc1 P0_%s_skip" % role)
    a("s_mov_b64 exec, 3")
    poll(a, "P0_%s_rdy" % role, 243, 1, 24, True)
    a("v_lshlrev_b32 v243, 6, v243"); a("v_add_u32 v243, %d, v243" % CNT_OFF); a("v_mov_b32 v242, 1"); a("s_mov_b64 exec, 1")
    a("buffer_atomic_add v242, v243, s[28:31], 0 offen sc1"); a("s_mov_b64 exec, -1")
    a("P0_%s_skip:" % role)
    for it in (late2 if C.spec else late): sc.emit(it)
    if C.spec:
        for it in late:
            if it[1]: vm.seen.add(it[1][1])
    a("s_cmp_lg_u32 s32, 0"); a("s_cbranch_scc1 P0_%s_skip2" % role)
    a("s_mov_b64 exec, 3"); poll(a, "P0_%s_poll" % role, 243, 32 if C.spec else 16); a("s_mov_b64 exec, -1")
    a("P0_%s_skip2:" % role)
    a("s_barrier")
    stamp(a, 1)

def ffn(a, vm):
    SL = 16896
    lg = Q(15); sc = Sched(a, vm, lg, C.sp)
    a("s_and_b32 s68, s32, 1"); a("s_lshr_b32 s69, s32, 1")
    a("s_cmp_eq_u32 s68, 0"); a("s_cselect_b32 s8, s8, s10"); a("s_cselect_b32 s9, s9, s11")
    a.srd(20, 8, 1966080)
    a("s_lshl_b32 s60, s39, 7"); a("s_mul_i32 s66, s32, 4224"); a("s_lshl_b32 s67, s32, 12")
    VWO = [3, 4, 5, 6]; VWR, VWR2, VXR, VXO, VST, VA_, VB_ = 7, 8, 9, 10, 11, 12, 13
    WF = 16; ACC = [40, 104]; TE = [14, 15, 1, 10]; VL4 = 252; FL = 232; VS = 236
    def X(j, kk, tt): return (256 + 32 * j if j < 8 else 168 + 32 * (j - 8)) + (kk * 4 + tt) * 4
    a("v_lshrrev_b32 v13, 5, v2"); a("v_lshlrev_b32 v13, 4, v13"); a("v_bfe_u32 v14, v2, 4, 1"); a("v_lshl_add_u32 v13, v14, 2, v13")
    a("v_bfe_u32 v14, v2, 3, 1"); a("s_lshl_b32 s71, s69, 5"); a("v_add3_u32 v13, v13, v14, s71"); a("v_mul_u32_u24 v13, 3072, v13")
    a("v_and_b32 v14, 7, v2"); a("v_lshlrev_b32 v14, 4, v14"); a("s_mul_i32 s71, s37, 384"); a("v_add3_u32 v%d, v13, v14, s71" % VWO[0])
    for i in range(1, 4): a("v_add_u32 v%d, %d, v%d" % (VWO[i], (8 * (i >> 1) + 2 * (i & 1)) * 3072 - 1056 * i, VWO[0]))
    wpos = {}; xpos = {}
    def dma(n, pos):
        p, j = n // 10, n % 10; wpos[n] = pos
        return [("s_add_u32 m0, s66, %d" % (pos * SL), None), ("s_add_u32 s68, s%d, s%d" % (40 + j, 60 + p), None)] + \
               [("buffer_load_dwordx4 v%d, s[20:23], s68 offen offset:%d lds" % (VWO[i], 1056 * i), ("vm", ("w", n))) for i in range(4)]
    def dmax(j, pos, inl=False):
        xpos[j] = pos
        return [("s_add_u32 m0, s67, %d" % (pos * SL), None), ("s_nop 0", None)] + \
               [("buffer_load_dwordx4 v%d, s[28:31], s%d offen offset:%d sc1 lds" % (VXO, 50 + j, 1024 * i), ("vm", ("x", j))) for i in range(4)]
    for n in range(C.early):
        for it in dma(n, n): sc.emit(it)
    a("s_and_b32 s68, s32, 1")
    a("s_lshl_b32 s70, s36, 1"); a("s_add_u32 s70, s70, s68"); a("s_mul_i32 s70, s70, 68")
    a("s_mul_i32 s71, s37, 6"); a("s_add_u32 s70, s70, s71"); a("s_add_u32 s70, s70, s69"); a("s_add_u32 s70, s70, 20"); a("s_lshl_b32 s70, s70, 12")
    for p in range(3):
        a("s_lshl_b32 s%d, s39, 7" % (60 + p)); a("s_lshl_b32 s71, s39, 13"); a("s_add_u32 s%d, s70, s71" % (63 + p))
        if p < 2: a("s_add_u32 s39, s39, 1"); a("s_cmp_eq_u32 s39, 3"); a("s_cselect_b32 s39, 0, s39")
    a("v_bfe_u32 v13, v2, 3, 2"); a("v_mul_u32_u24 v13, 1056, v13")
    a("v_lshrrev_b32 v14, 5, v2"); a("v_lshlrev_b32 v14, 2, v14"); a("v_bfe_u32 v15, v2, 2, 1"); a("v_add_u32 v14, v14, v15"); a("v_lshl_add_u32 v13, v14, 7, v13")
    a("v_and_b32 v14, 3, v2"); a("v_lshlrev_b32 v14, 3, v14"); a("s_lshl_b32 s71, s69, 6")
    a("v_add3_u32 v%d, v13, v14, s71" % VWR); a("v_add_u32 v%d, %d, v%d" % (VWR2, 4 * SL, VWR))
    a("v_lshlrev_b32 v%d, 4, v2" % VST); a("v_add_u32 v%d, s67, v%d" % (VXO, VST)); a("v_add_u32 v%d, 4096, v%d" % (VL4, VST))
    a("s_lshl_b32 s71, s68, 12"); a("s_add_u32 s71, s71, %d" % (5 * SL)); a("v_add_u32 v%d, s71, v%d" % (VXR, VST))
    a("v_mov_b32 v%d, %s" % (VA_, f2h(GA))); a("v_mov_b32 v%d, %s" % (VB_, f2h(GB)))
    if C.l2pf:
        a("s_lshl_b32 s12, s35, 1"); a("s_add_u32 s12, s12, s34"); a("s_lshl_b32 s12, s12, 2"); a("s_add_u32 s12, s12, s32"); a("s_mul_i32 s12, s12, 24576")
        a("s_lshr_b32 s13, s76, 3"); a("s_mul_i32 s13, s13, %d" % (272 * 5120)); a("s_add_u32 s12, s12, s13"); a("s_add_u32 s12, s12, %d" % W2P_OFF); a("v_lshlrev_b32 v251, 7, v2")
    if C.ldw: a("s_mul_i32 s12, s32, 15360"); a("s_add_u32 s12, s12, %d" % (5 * SL))
    common_setup(a, "ffn")
    late = []
    for n in range(C.early, C.npf):
        late += dma(n, n)
        if C.spec: late += [("s_sub_u32 m0, m0, 8448", None), ("s_nop 0", None)] + [("buffer_load_dwordx4 v%d, s[20:23], s68 offen offset:%d lds" % (16 + i, 1056 * i), ("vm", ("w", n))) for i in range(4)]
    if C.spec:
        for i in range(4): a("v_subrev_u32 v%d, 98304, v%d" % (16 + i, VWO[i]))
    p0(a, sc, late, "ffn")
    tr = Trace(a, 253); tr.mark()
    for j in range(5):
        for it in (dmax(j, 5 + j, True) if j < 4 else []) + (dma(j, j) if j >= C.npf else []): sc.emit(it)
    wiss = 5; xiss = 4; w2q = list(range(12))
    def wreads(g):
        s_, u = g // 8, g % 8; pos = wpos[s_]; kk, wt = u >> 2, u & 3
        vb = VWR if pos < 4 else VWR2; off = (pos % 4) * SL + (kk * 2 + (wt >> 1)) * 4224 + 32 * (wt & 1); b = WF + (g % 6) * 4
        return [("ds_read_b64_tr_b16 %s, v%d offset:%d" % (R(b + 2 * t, 2), vb, off + 256 * t), ("lg", ("w", g // 2))) for t in range(2)]
    def xreads(j):
        return [("ds_read_b128 %s, v%d offset:%d" % (R(X(j, kk, tt)), VXR, (xpos[j] - 5) * SL + 8192 * kk + 1024 * tt), ("lg", ("x", j, kk, tt))) for kk in range(2) for tt in range(4)]
    def epilogue(p):
        out = []; base = ACC[p % 2]
        for tt in range(4):
            D = base + (8 + tt) * 4
            for a_ in range(2):
                G = [base + (a_ * 4 + tt) * 4 + k for k in range(4)]; U = [base + ((2 + a_) * 4 + tt) * 4 + k for k in range(4)]; t = TE
                for f in (lambda k: "v_mul_f32 v%d, v%d, v%d" % (t[k], G[k], G[k]), lambda k: "v_fma_f32 v%d, v%d, v%d, v%d" % (t[k], t[k], VB_, VA_),
                          lambda k: "v_mul_f32 v%d, v%d, v%d" % (t[k], t[k], G[k]), lambda k: "v_exp_f32 v%d, v%d" % (t[k], t[k]),
                          lambda k: "v_mul_f32 v%d, v%d, v%d" % (G[k], G[k], U[k]), lambda k: "v_add_f32 v%d, 1.0, v%d" % (t[k], t[k]),
                          lambda k: "v_rcp_f32 v%d, v%d" % (t[k], t[k]), lambda k: "v_mul_f32 v%d, v%d, v%d" % (G[k], G[k], t[k])):
                    for k in range(4): out.append((f(k), None))
                out.append(("v_cvt_pk_bf16_f32 v%d, v%d, v%d" % (D + 2 * a_, G[0], G[1]), None)); out.append(("v_cvt_pk_bf16_f32 v%d, v%d, v%d" % (D + 2 * a_ + 1, G[2], G[3]), None))
            out.append(("buffer_store_dwordx4 %s, v%d, s[28:31], s%d offen offset:%d sc1" % (R(D), VST, 63 + p, 1024 * tt), ("vm", ("st", p))))
        return out
    def sig(p): return [("WAITVM", ("st", p)), (wave_signal(VS, p + 1), ("vm", "sg"))]
    wait(a, vm=vm.need(("x", 0))); a("s_barrier"); tr.mark()
    xq = xreads(0)
    for it in wreads(0) + xq[:4] + wreads(1) + wreads(2) + wreads(3) + xq[4:]: sc.emit(it)
    xq = []
    wait(a, lg=lg.need(("w", 0), ("x", 0, 0, 3)))
    for P in range(120):
        s_ = P // 4; p, j = s_ // 10, s_ % 10; kk = (P >> 1) & 1
        if P % 40 == 1 and p >= 1: sc.fq += epilogue(p - 1) + [("LATER", (C.sd, sig(p - 1)))]
        Pn = P + 2; bar = Pn < 120 and Pn % 4 == 0; wr = None
        for i in range(8):
            g = 2 * P + (i >> 2); wt = g & 3; tt = i & 3
            c = ACC[p % 2] + (wt * 4 + tt) * 4; b = WF + (g % 6) * 4
            if i == 0 and bar: sc.flush(sc.dq)
            a("v_mfma_f32_16x16x32_bf16 %s, %s, %s, %s" % (R(c), R(b), R(X(j, kk, tt)), "0" if (j == 0 and kk == 0) else R(c)))
            if i == 0 and bar:
                s2 = Pn // 4
                wait(a, vm=vm.need(("w", s2), opt=[("x", s2)])); a("s_barrier"); tr.mark()
                free = []
                if s2 - 1 < 10:
                    if xiss < 10: sc.dq += dmax(xiss, xpos[s2 - 1]); xiss += 1
                    elif xpos[s2 - 1] < 8 and not C.ldw: free.append(xpos[s2 - 1])
                if s2 >= 2: free.append(wpos[s2 - 2])
                for pos in free:
                    if wiss < 30: sc.dq += dma(wiss, pos); wiss += 1
                if s2 == C.pfc: sc.dq += [(flag_load(FL, "s0", 28), ("vm", "pf"))]
                if s2 == C.pfc + 2: sc.dq += [("WAITVM", "pf"), (flag_check("FFN_pf", FL, "s0", 28, 1), None)]
                if C.ldw and C.pfc + 3 <= s2 < C.pfc + 9:
                    x_ = w2_lds(12 + (s2 - C.pfc - 3) // 2, VST); sc.dq += (x_[:4] if (s2 - C.pfc - 3) % 2 == 0 else x_[:2] + x_[4:])
                if C.l2pf and s2 in (C.pfs, C.pfs + 2, C.pfs + 4): sc.lq += [("buffer_load_dword v250, v251, s[28:31], s12 offen sc1", ("vm", "l2")), ("s_add_u32 s12, s12, 8192", None)]
                if s2 >= 22:
                    while w2q and len(sc.lq) < C.w2n and (20 * w2q[0] + 19) // 32 <= s2 - 22: sc.lq += w2_loads(w2q.pop(0), VST, VL4)
                if s2 == 27: sc.dq += [(flag_load(FL, "s35", 28, 0), ("vm", "fe"))] + act_voffs(VST)
                if s2 < 10: xq = xreads(s2)
                sc.n += 1; sc.since += 1
                continue
            if wr is None: wr = (wreads(2 * Pn) + wreads(2 * Pn + 1)) if Pn < 120 else []
            must = []
            if wr and (i % 2 == 1): must.append(wr.pop(0))
            elif xq and (i % 4 == 2 or not sc.dq): must.append(xq.pop(0))
            if xq and i == 3 and (Pn % 2) == 0: must.append(xq.pop(0))
            slots = 2
            left = (39 - P % 40) * 8 + 8 - i - (C.e1 if p < 2 else C.e2)
            need_rate = sc.fc() / max(left, 1) + 0.9
            if need_rate > 2 and p > 0: slots = int(need_rate + 0.99)
            if i == 7: slots -= 1
            sc.gap(must, slots)
        if P + 1 < 120:
            s3 = (P + 1) // 4
            wait(a, lg=lg.need(("w", P + 1), ("x", s3 % 10, ((P + 1) >> 1) & 1, 3)))
        if P % 40 == 39: assert not sc.fq, (P, len(sc.fq))
    stamp(a, 2); tr.mark(); tr.flush(254)
    sc.flush(sc.dq)
    print("FFN after loop: W2 left", w2q, "lq", len(sc.lq), "timed", len(sc.timed))
    rest = list(sc.lq); sc.lq = []
    for i in [i for i in w2q if i < 8]: rest += w2_loads(i, VST, VL4)
    rest += [("WAITVM", "fe"), (flag_check("FFN_fe", FL, "s35", 28, 1, 0), None)]
    for i in range(3): rest += act_loads(i)
    for i in [i for i in w2q if i >= 8]: rest += w2_loads(i, VST, VL4)
    rest += act_loads(3)
    a("s_nop 7")
    ep = epilogue(2)
    for k, it in enumerate(ep):
        sc.emit(it)
        if k % C.eps == 0 and rest:
            sc.emit(rest.pop(0))
            if rest and not ismem(rest[0][0]): sc.emit(rest.pop(0))
        if k == C.fk: a(flag_load(164, "s35", 28, 16)); a(flag_load(20, "s35", 28, 0)); vm.issue("f2"); vm.issue("f2"); assert not rest
        if k == C.sg1:
            for t in sc.timed:
                for x in t[1]: sc.emit((x[0].replace("v%d" % VS, "v16"), x[1]))
    sc.flush(rest)
    a("s_mov_b32 s71, 3")
    a("s_branch P2")

def att(a, vm):
    a("K_att:")
    WSL = 24576; NW = 5; PB = NW * WSL; RS = 496; OB = 73728
    lg = Q(15); sc = Sched(a, vm, lg, C.spa)
    VWO = [3, 4, 5, 6]; VWR = [7, 8, 9]; VXR = [10, 11, 12]; VXO, VL, VL4 = 13, 14, 15
    TT = 16; PV = 212; PR = 216; FL = 1; FR = [160, 460]
    def acc(t, u): return 16 + 4 * (t * 9 + u)
    a.srd(20, 6, 2457600)
    a("v_lshlrev_b32 v%d, 4, v2" % VL)
    for l in ["s_xor_b32 s71, s32, %d" % (3 if C.pke == 2 else 0), "s_sub_u32 s4, s2, 128", "s_mul_i32 s4, s4, 3", "s_add_u32 s4, s4, s71", "s_cmp_lt_u32 s71, 3", "s_cselect_b32 s4, s4, 500", "s_lshr_b32 s5, s4, 2", "s_sub_u32 s6, s5, 20",
              "s_cmp_lt_u32 s5, 20", "s_cselect_b32 s6, s5, s6", "s_cselect_b32 s8, s14, s96", "s_cselect_b32 s9, s15, s97", "s_cselect_b32 s10, 0, 0x118000", "s_cselect_b32 s13, 2, 1", "s_cselect_b32 s14, 1, 4",
              "s_add_u32 s10, s10, 819200", "s_and_b32 s9, s9, 0xffff", "s_mov_b32 s11, 0x00020000",
              "s_mul_i32 s6, s6, 40960", "s_and_b32 s7, s4, 3", "s_mul_i32 s12, s7, s13", "s_mul_i32 s12, s12, 5120", "s_add_u32 s6, s6, s12", "s_mul_i32 s14, s14, 5120", "s_add_u32 s14, s14, s6",
              "s_mul_i32 s5, s5, 5120", "s_lshl_b32 s7, s7, 8", "s_add_u32 s5, s5, s7", "s_add_u32 s5, s5, %d" % W2P_OFF, "s_cmp_lt_u32 s4, 272", "s_cselect_b32 s4, s5, 0x%x" % OOB, "s_add_u32 s5, s4, %d" % (272 * 5120),
              "s_mul_i32 s7, s71, 10240", "s_add_u32 s7, s7, %d" % PB, "s_cmp_lt_u32 s71, 3", "s_cselect_b32 s7, s7, 0x30000", "s_mov_b32 s15, %d" % (68 * 5120)]: a(l)
    def pack_ld(tt, o, n):
        return [("s_add_u32 m0, s7, %d\ns_add_u32 s12, s%d, %d" % (5120 * tt + o, 14 if tt else 6, o), None)] + [("buffer_load_dwordx4 v%d, s[8:11], s12 offen offset:%d lds" % (VL, 1024 * i), ("vm", "pk")) for i in range(n)]
    V = PV
    pack_addr = [(x, None) for x in ["v_lshrrev_b32 v%d, 4, v2" % (V + 1), "v_mul_u32_u24 v%d, 160, v%d" % (V, V + 1), "v_mul_lo_u32 v%d, v%d, s15" % (V + 1, V + 1),
                "v_bfe_u32 v%d, v2, 2, 2" % (V + 2), "v_mul_u32_u24 v%d, 1280, v%d" % (V + 2, V + 2), "v_add_u32 v%d, v%d, v%d" % (V, V, V + 2),
                "v_and_b32 v%d, 3, v2" % (V + 2), "v_mul_u32_u24 v%d, 40, v%d" % (V + 2, V + 2), "v_add3_u32 v%d, v%d, v%d, s7" % (V, V, V + 2),
                "v_and_b32 v%d, 15, v2" % (V + 2), "v_lshl_add_u32 v%d, v%d, 4, v%d" % (V + 1, V + 2, V + 1), "v_add_u32 v%d, 4096, v%d" % (V + 2, V + 1)]]
    def pack_rd(hf): return [("WAITVM", "pk")] + [("ds_read_b64_tr_b16 %s, v%d offset:%d" % (R(PR + 20 * hf + 4 * i + 2 * tt, 2), PV, 8 * i + 5120 * tt + 640 * hf), None) for i in range(5) for tt in range(2)]
    def pack_st(hf, i): return ("buffer_store_dwordx4 %s, v%d, s[28:31], s%d offen offset:%d sc1" % (R(PR + 20 * hf + 4 * i), PV + 1 if i < 4 else PV + 2, 4 + hf, 1024 * (i % 4)), ("vm", "pst"))
    pack_all = pack_ld(0, 0, 4) + pack_ld(0, 4096, 1) + pack_ld(1, 0, 4) + pack_ld(1, 4096, 1)
    EA = 0 if C.pke == 2 else C.early
    if C.pke == 2:
        for it in pack_all: sc.emit(it)
    a("s_lshl_b32 s66, s32, 12"); a("s_lshl_b32 s67, s32, 11"); a("s_add_u32 s65, s67, 16384")
    for i in range(8 if C.spec else 4):
        if i < 4: a("s_lshl_b32 s68, s32, 8")
        else: a("s_and_b32 s68, s32, 1"); a("s_lshl_b32 s68, s68, 8")
        dstv = VWO[i] if i < 4 else 20 + i; i &= 3
        a("s_add_u32 s68, s68, %d" % (64 * i)); a("v_add_u32 v%d, s68, v2" % TT)
        a("v_mul_u32_u24 v%d, 2185, v%d" % (TT + 1, TT)); a("v_lshrrev_b32 v%d, 16, v%d" % (TT + 1, TT + 1))
        a("v_mul_u32_u24 v%d, 30, v%d" % (TT + 2, TT + 1)); a("v_sub_u32 v%d, v%d, v%d" % (TT + 2, TT, TT + 2))
        a("v_mul_u32_u24 v%d, 205, v%d" % (TT + 3, TT + 2)); a("v_lshrrev_b32 v%d, 11, v%d" % (TT + 3, TT + 3))
        a("v_mul_u32_u24 v%d, 1120, v%d" % (TT + 3, TT + 3)); a("v_lshl_add_u32 v%d, v%d, 4, v%d" % (TT + 3, TT + 2, TT + 3))
        a("v_bfe_u32 v%d, v%d, 2, 2" % (TT + 4, TT + 1)); a("v_lshlrev_b32 v%d, 3, v%d" % (TT + 4, TT + 4))
        a("v_bfe_u32 v%d, v%d, 4, 1" % (TT + 2, TT + 1)); a("v_lshl_add_u32 v%d, v%d, 2, v%d" % (TT + 4, TT + 2, TT + 4))
        a("v_and_b32 v%d, 3, v%d" % (TT + 2, TT + 1)); a("v_add_u32 v%d, v%d, v%d" % (TT + 4, TT + 4, TT + 2))
        a("v_mul_u32_u24 v%d, 3840, v%d" % (TT + 4, TT + 4)); a("s_mul_i32 s68, s37, 160"); a("s_sub_u32 s68, s68, %d" % (1024 * i))
        a("v_add3_u32 v%d, v%d, v%d, s68" % (dstv, TT + 4, TT + 3))
    a("s_cmp_eq_u32 s32, 3"); a("s_cselect_b32 s68, 0x%x, 0" % OOB); a("v_or_b32 v249, s68, v%d" % VWO[3])
    def hdr(gm): return "s_add_u32 m0, s66, %d\ns_add_u32 s68, s%d, %d" % ((gm % NW) * WSL, 40 + (gm >> 1), (gm & 1) * 122880)
    def dmaW(gm, pre):
        out = [(x, None) for x in hdr(gm).split("\n")] + [("buffer_load_dwordx4 v%d, s[20:23], s68 offen offset:%d lds" % (VWO[k], 1024 * k), ("vm", ("g", gm))) for k in range(3)]
        if pre: out.append(("buffer_load_dwordx4 v249, s[20:23], s68 offen offset:3072 lds", ("vm", ("g", gm))))
        return out
    def hoff(gm): return "s_sub_u32 s69, s%d, %d" % (50 + (gm >> 1), 163840 - 7168 + 3072 - (gm & 1) * 8192)
    def flex(gm): return [(hoff(gm), None), ("s_cmp_eq_u32 s32, 3\ns_cselect_b32 s68, s69, s68", None), ("buffer_load_dwordx4 v%d, s[72:75], s68 offen offset:3072 sc1 lds" % VWO[3], ("vm", ("g", gm)))]
    def dmaX(gm):
        return [("s_add_u32 m0, s65, %d" % ((gm % NW) * WSL), None), ("s_add_u32 s69, s%d, %d" % (50 + (gm >> 1), (gm & 1) * 8192), None)] + \
               [("buffer_load_dwordx4 v%d, s[28:31], s69 offen offset:%d sc1 lds" % (VXO, 1024 * k), ("vm", ("g", gm))) for k in range(2)]
    for gm in range(EA):
        for it in dmaW(gm, True): sc.emit(it)
    a("v_add_u32 v%d, s67, v%d" % (VXO, VL)); a("v_add_u32 v%d, 4096, v%d" % (VL4, VL))
    a("s_cmp_eq_u32 s36, 0"); a("s_cselect_b32 s68, 0x%x, 0" % OOB); a("v_add_u32 v%d, s68, v%d" % (TT, VL))
    a("s_cmp_eq_u32 s32, 3")
    for i in range(3): a("s_cselect_b32 s%d, s%d, s%d" % (72 + i, 28 + i, 20 + i))
    a("s_mov_b32 s75, 0x00020000"); a("s_cselect_b64 vcc, -1, 0"); a("v_cndmask_b32 v%d, v%d, v%d, vcc" % (VWO[3], VWO[3], TT))
    a("v_lshrrev_b32 v%d, 2, v2" % TT); a("v_mul_u32_u24 v%d, 480, v%d" % (TT, TT)); a("v_and_b32 v%d, 3, v2" % (TT + 1)); a("v_lshl_add_u32 v%d, v%d, 3, v%d" % (TT, TT + 1, TT))
    a("s_lshl_b32 s60, s32, 7")
    a("v_add_u32 v%d, s60, v%d" % (VWR[0], TT)); a("v_add_u32 v%d, %d, v%d" % (VWR[1], 2 * WSL, VWR[0])); a("v_add_u32 v%d, %d, v%d" % (VWR[2], 4 * WSL, VWR[0]))
    for k in range(3): a("v_add_u32 v%d, %d, v%d" % (VXR[k], 2 * k * WSL + 15360, VL))
    a("s_lshl_b32 s61, s36, 1"); a("s_lshr_b32 s69, s32, 1"); a("s_add_u32 s61, s61, s69"); a("s_mul_i32 s61, s61, %d" % (68 * 4096))
    a("s_and_b32 s69, s32, 1"); a("s_lshl_b32 s69, s69, 11"); a("s_add_u32 s61, s61, s69"); a("s_mov_b32 s39, %s" % f2h(20 ** -0.5 * 1.4426950408889634))
    a("s_mul_i32 s62, s32, %d" % (32 * RS)); a("s_mul_i32 s63, s32, 5120"); a("s_add_u32 s63, s63, %d" % OB); a("s_mul_i32 s64, s37, 10")
    common_setup(a, "att")
    late = []
    for gm in range(EA, C.npa):
        late += dmaW(gm, True)
        if C.spec: late += [("s_sub_u32 m0, m0, 8192", None), ("s_nop 0", None)] + [("buffer_load_dwordx4 v%d, s[20:23], s68 offen offset:%d lds" % (24 + k, 1024 * k), ("vm", ("g", gm))) for k in range(4)]
    late2 = pack_all + pack_addr if C.pke == 1 else []
    if not C.spec: late += late2
    if C.pke == 2:
        assert not C.spec
        nl = sum(1 for it in late if it[1])
        PR = 160
        blk = ["s_cmp_eq_u32 s32, 0", "s_cbranch_scc1 K_att_nopk"] + [x[0] for x in pack_addr + pack_rd(0)[1:] + pack_rd(1)[1:]] + ["s_waitcnt lgkmcnt(10)"] + \
              [pack_st(0, i)[0] for i in range(5)] + ["s_waitcnt lgkmcnt(0)"] + [pack_st(1, i)[0] for i in range(5)] + ["K_att_nopk:"]
        late = [("\n".join(blk), None)] + late + [("s_waitcnt vmcnt(%d)" % nl, None)]
    p0(a, sc, late, "att", late2)
    tr = Trace(a, 215); tr.mark()
    patom = [("v_mov_b32 v%d, 1\ns_lshl_b32 s13, s32, 12" % PV, None), ("s_mov_b64 exec, 1\nbuffer_atomic_add v%d, off, s[24:27], s13 offset:4 sc0 sc1\ns_mov_b64 exec, -1" % PV, ("vm", "pa"))]
    for gm in range(NW):
        if gm == C.pag and C.pke == 2:
            for it in patom: sc.emit(it)
        if gm >= C.npa:
            for it in dmaW(gm, False) + flex(gm) + dmaX(gm): sc.emit(it)
            continue
        a("s_cmp_lg_u32 s32, 3"); a("s_cbranch_scc1 K_att_h%d" % gm)
        a("s_add_u32 m0, s66, %d" % (gm * WSL)); a(hoff(gm)); a("buffer_load_dwordx4 v%d, s[72:75], s69 offen offset:3072 sc1 lds" % VWO[3])
        a("K_att_h%d:" % gm)
        for it in dmaX(gm): sc.emit(it)
    def reads(s_):
        fb = FR[s_ % 2]; pos = s_ % NW
        def xr(u): return ("ds_read_b128 %s, v%d offset:%d" % (R(fb + 16 + 4 * u), VXR[pos >> 1], (pos & 1) * WSL + 1024 * u), None)
        def wr(t, tt): return ("ds_read_b64_tr_b16 %s, v%d offset:%d" % (R(fb + 4 * t + 2 * tt, 2), VWR[pos >> 1], (pos & 1) * WSL + 7680 * tt + 32 * t), None)
        out = [wr(0, 0), wr(0, 1)] + [xr(u) for u in range(9)]
        for t in range(1, 4): out += [wr(t, 0), wr(t, 1)]
        return out
    T2 = 232; AQ, AV, VI, VQW, TOK, VOR = T2, T2 + 1, T2 + 2, T2 + 3, T2 + 4, T2 + 5; SO = T2 + 6; GO = T2 + 11; t0, t1, t2, t3 = T2 + 16, T2 + 17, T2 + 18, T2 + 19
    ad = []
    def rowaddr(dst, hh, i):
        ad.extend(["v_bfe_u32 v%d, v2, 4, 1" % TOK, "v_lshlrev_b32 v%d, 3, v%d" % (TOK, TOK), "v_bfe_u32 v%d, v2, 5, 1" % t0, "v_add_u32 v%d, v%d, v%d" % (TOK, TOK, t0),
                   "v_bfe_u32 v%d, v2, %d, 2" % (t0, i), "v_lshl_add_u32 v%d, v%d, 1, v%d" % (TOK, t0, TOK), "v_mul_u32_u24 v%d, %d, v%d" % (t1, RS, TOK),
                   "v_bfe_u32 v%d, v2, %d, 2" % (t0, hh), "v_mul_u32_u24 v%d, 40, v%d" % (t0, t0), "v_add3_u32 v%d, v%d, v%d, s62" % (dst, t1, t0)])
    rowaddr(AV, 0, 2); rowaddr(AQ, 2, 0)
    ad += ["v_and_b32 v%d, 3, v2" % VI, "v_lshrrev_b32 v%d, 3, v%d" % (t0, t0), "v_lshl_add_u32 v%d, v%d, 4, s63" % (t2, TOK), "v_add_u32 v%d, s63, v%d" % (VOR, VL)]
    for dp in range(5):
        ad += ["v_add_u32 v%d, %d, v%d" % (t1, dp, t0), "v_lshrrev_b32 v%d, 1, v%d" % (SO + dp, t1), "v_lshl_add_u32 v%d, v%d, 8, v%d" % (SO + dp, SO + dp, t2),
               "v_and_b32 v%d, 1, v%d" % (t1, t1), "v_lshl_add_u32 v%d, v%d, 3, v%d" % (SO + dp, t1, SO + dp)]
    ad += ["v_lshrrev_b32 v%d, 4, v2" % t0, "v_and_b32 v%d, 15, v2" % t2, "v_mul_u32_u24 v%d, %d, v%d" % (VQW, RS, t2), "v_lshl_add_u32 v%d, v%d, 3, v%d" % (VQW, t0, VQW), "v_add_u32 v%d, s60, v%d" % (VQW, VQW),
           "v_lshlrev_b32 v%d, 4, v%d" % (t2, t2)]
    for j in range(5):
        ad += ["v_add_u32 v%d, %d, v%d" % (t1, 4 * j, t0), "v_mul_u32_u24 v%d, 13, v%d" % (t3, t1), "v_lshrrev_b32 v%d, 7, v%d" % (t3, t3), "v_lshl_add_u32 v%d, v%d, 10, v%d" % (GO + j, t3, t2),
               "v_mul_u32_u24 v%d, 10, v%d" % (t3, t3), "v_sub_u32 v%d, v%d, v%d" % (t1, t1, t3), "v_add_u32 v%d, s64, v%d" % (t1, t1),
               "v_lshrrev_b32 v%d, 2, v%d" % (t3, t1), "v_lshl_add_u32 v%d, v%d, 12, v%d" % (GO + j, t3, GO + j), "v_and_b32 v%d, 3, v%d" % (t3, t1), "v_lshl_add_u32 v%d, v%d, 8, v%d" % (GO + j, t3, GO + j)]
    ad += ["v_cmp_gt_u32 s[%d:%d], %d, v%d" % (4 + 2 * k, 5 + 2 * k, k, VI) for k in range(1, 4)]
    k0 = C.pk0
    dex = {}
    if not C.pke:
        for it in pack_all + pack_addr: sc.emit(it)
    fex = {k0: pack_rd(0), k0 + 1: pack_rd(1) + [pack_st(0, i) for i in range(2)], k0 + 2: [pack_st(0, i) for i in range(2, 5)] + [pack_st(1, 0)],
           k0 + 3: [pack_st(1, i) for i in range(1, 5)], k0 + 6: [(x, None) for x in ad]}
    PSIG = k0 + 5
    if C.pke == 2: PSIG = C.pac - 2; assert PSIG < 0; fex = {2: [(x, None) for x in ad]}
    if C.pke == 1:
        for it in pack_rd(0) + pack_rd(1): sc.emit(it)
        a("s_waitcnt lgkmcnt(10)")
        for i in range(5): sc.emit(pack_st(0, i))
        a("s_waitcnt lgkmcnt(0)")
        for i in range(5): sc.emit(pack_st(1, i))
        PSIG = 2; fex = {4: [(x, None) for x in ad]}
    w2q = list(range(12))
    def wr_tile(t, u):
        c = acc(t, u)
        return [("v_cvt_pk_bf16_f32 v%d, v%d, v%d" % (c, c, c + 1), None), ("v_cvt_pk_bf16_f32 v%d, v%d, v%d" % (c + 1, c + 2, c + 3), None), ("ds_write_b64 v%d, %s offset:%d" % (VQW, R(c, 2), 16 * RS * u + 32 * t), None)]
    wait(a, vm=vm.need(("g", 0))); a("s_barrier"); tr.mark()
    for it in reads(0): sc.emit(it)
    for s_ in range(20):
        fb = FR[s_ % 2]
        a("s_waitcnt lgkmcnt(0)")
        rq = []
        for i in range(36):
            t, u = i // 9, i % 9; c = acc(t, u)
            a("v_mfma_f32_16x16x32_bf16 %s, %s, %s, %s" % (R(c), R(fb + 4 * t), R(fb + 16 + 4 * u), "0" if s_ == 0 else R(c)))
            if i == 0:
                if s_ < 19: wait(a, vm=vm.need(*([("g", s_ + 1)] + (["pst"] if s_ == PSIG else []))))
                a("s_barrier"); tr.mark()
                if s_ < 19: rq = reads(s_ + 1)
                if s_ == PSIG: sc.fq += patom
                if s_ == PSIG + 2: sc.fq = [("WAITVM", "pa"), ("v_readfirstlane_b32 s100, v%d\ns_and_b32 s100, s100, 127\ns_cmp_eq_u32 s100, 127\ns_cbranch_scc1 ATT_bcast\nATT_bcast_ok:" % PV, None)] + sc.fq
                if s_ + NW < 20: sc.dq += dmaW(s_ + NW, False) + flex(s_ + NW) + dmaX(s_ + NW)
                sc.sp = C.spa
                if s_ in dex: sc.dq += dex[s_]; sc.sp = 2
                if s_ in fex: sc.fq += fex[s_]
                if s_ == C.apc: sc.dq += [(flag_load(FL, "s0", 28), ("vm", "pf"))]
                if s_ == C.apc + 2:
                    sc.lq += [("WAITVM", "pf"), (flag_check("ATT_pf", FL, "s0", 28, 1), None)]
                    for _ in range(C.aw2): sc.lq += w2_loads(w2q.pop(0), VL, VL4)
                if s_ >= 15: sc.sp = 3
                sc.n += 1; sc.since += 1
                continue
            if s_ == 19:
                if i >= 8 and i - 8 < 27:
                    it = wr_tile((i - 8) // 9, (i - 8) % 9)
                    if prev: sc.emit(prev)
                    sc.emit(it[0]); sc.emit(it[1]); prev = it[2]
                else: sc.gap([], 2)
                continue
            prev = None
            sc.gap([rq.pop(0)] if (rq and i % 3 != 0) else [], 2 - (1 if i == 35 else 0))
        sc.flush(sc.dq)
        if s_ <= PSIG or s_ == 18: sc.flush(sc.fq)
    stamp(a, 2); tr.mark()
    sc.emit(prev)
    a("s_cmp_eq_u32 s32, 3"); a("s_cbranch_scc1 K_att_s3"); a("s_nop 3")
    for u in range(9):
        for it in wr_tile(3, u): sc.emit(it)
    a("K_att_s3:")
    if C.tr: a("v_mov_b32 v255, v215"); tr.v = 255
    a("s_waitcnt lgkmcnt(0)"); tr.mark(); a("s_barrier")
    if C.ldw:
        a("s_mul_i32 s12, s32, 15360"); a("s_add_u32 s12, s12, 94208")
        for i in range(12, 15): sc.lq += [(x[0].replace("s68", "s69"), x[1]) for x in w2_lds(i, VL)]
    QR = [80, 150]; Sx = [16, 48]; O = [80, 150]
    def KR(e, kb): return QR[e] + 10 + 10 * kb
    def VR(e, kb): return QR[e] + 40 + 10 * kb
    def lqpop(n=1):
        for _ in range(n):
            if sc.lq: sc.emit(sc.lq.pop(0))
    for e in range(2):
        for dp in range(5): a("ds_read_b64 %s, v%d offset:%d" % (R(QR[e] + 2 * dp, 2), AQ, (16 + 16 * e) * RS + 8 * dp)); lg.issue(("k", e))
        for kb in range(3):
            if e == 1 and kb == 0: continue
            for dp in range(5): a("ds_read_b64 %s, v%d offset:%d" % (R(KR(e, kb) + 2 * dp, 2), AQ, (8 * kb + 16 * e) * RS + 160 + 8 * dp)); lg.issue(("k", e))
    def KK(e, kb): return KR(0, 2) if (e == 1 and kb == 0) else KR(e, kb)
    def VV(e, kb): return VR(0, 2) if (e == 1 and kb == 0) else VR(e, kb)
    for e in range(2):
        wait(a, lg=lg.need(("k", e)))
        for dp in range(5):
            for kb in range(3):
                a("v_mfma_f32_4x4x4_16b_bf16 %s, %s, %s, %s" % (R(Sx[e] + 4 * kb), R(KK(e, kb) + 2 * dp, 2), R(QR[e] + 2 * dp, 2), "0" if dp == 0 else R(Sx[e] + 4 * kb)))
                if not (e == 1 and kb == 0): a("ds_read_b64_tr_b16 %s, v%d offset:%d" % (R(VR(e, kb) + 2 * dp, 2), AV, (8 * kb + 16 * e) * RS + 320 + 8 * dp)); lg.issue(("v", e))
    a("s_nop 3")
    a("s_or_b32 s68, s36, s32"); a("s_cmp_lg_u32 s68, 0"); a("s_cbranch_scc1 K_att_nomask")
    Z = Sx[0] + 20
    a("v_lshlrev_b32 v%d, 1, v%d" % (Z, VI)); a("v_sub_u32 v%d, v%d, v%d" % (Z, TOK, Z)); a("v_mov_b32 v%d, 0xff800000" % (Z + 1))
    for k in range(1, 8): a("v_cmp_gt_u32 vcc, %d, v%d" % (16 - 2 * k, Z)); a("s_nop 1"); a("v_cndmask_b32 v%d, v%d, v%d, vcc" % (Sx[0] + k, Sx[0] + k, Z + 1))
    a("K_att_nomask:")
    tr.mark()
    a(flag_load(72, "s35", 28, 0)); vm.issue("fe")
    def soft(S):
        Z = S + 20; P = S + 12; o = []; M = lambda k: "s[%d:%d]" % (4 + 2 * k, 5 + 2 * k)
        o += ["v_cndmask_b32 v%d, v%d, v%d, %s" % (S + k, S + k + 8, S + k, M(k)) for k in range(1, 4)]
        o += ["v_max3_f32 v%d, v%d, v%d, v%d" % (Z + 1, S + 4, S + 5, S + 6), "v_max3_f32 v%d, v%d, v%d, v%d" % (Z, S + 1, S + 2, S + 3),
              "v_max3_f32 v%d, v%d, v%d, v%d" % (Z + 1, Z + 1, S + 7, S + 8), "v_max_f32 v%d, v%d, v%d" % (Z, Z, Z + 1), "v_mul_f32 v%d, s39, v%d" % (Z, Z)]
        o += ["v_fma_f32 v%d, v%d, s39, -v%d" % (S + k, S + k, Z) for k in range(1, 9)]
        o += ["v_exp_f32 v%d, v%d" % (S + k, S + k) for k in range(1, 9)]
        o += ["v_add_f32 v%d, v%d, v%d" % (Z, S + 1, S + 2), "v_add_f32 v%d, v%d, v%d" % (Z + 1, S + 3, S + 4), "v_add_f32 v%d, v%d, v%d" % (Z + 2, S + 5, S + 6), "v_add_f32 v%d, v%d, v%d" % (Z + 3, S + 7, S + 8),
              "v_add_f32 v%d, v%d, v%d" % (Z, Z, Z + 1), "v_add_f32 v%d, v%d, v%d" % (Z + 2, Z + 2, Z + 3), "v_add_f32 v%d, v%d, v%d" % (Z, Z, Z + 2), "v_rcp_f32 v%d, v%d" % (Z, Z), "v_mov_b32 v%d, 0" % S]
        o += ["v_mul_f32 v%d, v%d, v%d" % (S + k, S + k, Z) for k in range(1, 9)]
        for k in range(1, 4): o += ["v_cndmask_b32 v%d, v%d, 0, %s" % (S + k + 8, S + k, M(k)), "v_cndmask_b32 v%d, 0, v%d, %s" % (S + k, S + k, M(k))]
        o += ["v_cvt_pk_bf16_f32 v%d, v%d, v%d" % (P + j, S + 2 * j, S + 2 * j + 1) for j in range(6)]
        return o
    for k, (x, y) in enumerate(zip(soft(Sx[0]), soft(Sx[1]))):
        a(x); a(y)
        if k % 3 == 0: lqpop()
    a("s_waitcnt lgkmcnt(0)"); a("s_nop 0")
    def ocvt(e, dp):
        c = O[e] + 4 * dp
        return ["v_cvt_pk_bf16_f32 v%d, v%d, v%d" % (c, c, c + 1), "v_cvt_pk_bf16_f32 v%d, v%d, v%d" % (c + 1, c + 2, c + 3), "ds_write_b64 v%d, %s offset:%d" % (SO + dp, R(c, 2), 2560 * e)]
    q0 = [x for dp in range(5) for x in ocvt(0, dp)]
    for e in range(2):
        for kb in range(3):
            for dp in range(5):
                a("v_mfma_f32_4x4x4_16b_bf16 %s, %s, %s, %s" % (R(O[e] + 4 * dp), R(VV(e, kb) + 2 * dp, 2), R(Sx[e] + 12 + 2 * kb, 2), "0" if kb == 0 else R(O[e] + 4 * dp)))
                if e == 1 and (kb > 0 or dp > 0): a(q0.pop(0))
    for x in q0: a(x)
    for dp in range(5):
        for x in ocvt(1, dp): a(x)
    a("s_waitcnt lgkmcnt(0)")
    for j in range(5): a("ds_read_b128 %s, v%d offset:%d" % (R(16 + 4 * j), VOR, 1024 * j))
    for j in range(5):
        a("s_waitcnt lgkmcnt(%d)" % (4 - j)); a("buffer_store_dwordx4 %s, v%d, s[28:31], s61 offen sc1" % (R(16 + 4 * j), GO + j)); vm.issue("ost")
    tr.mark()
    for it in act_voffs(VL): sc.emit(it)
    wait(a, vm=vm.need("fe")); a(flag_check("ATT_fe", 72, "s35", 28, 1, 0))
    rest = list(sc.lq); sc.lq = []
    for i in [i for i in w2q if i < 8]: rest += w2_loads(i, VL, VL4)
    LATE_LDS = []
    for i in range(C.D): rest += act_loads(i)
    for i in [i for i in w2q if i >= 8]: rest += w2_loads(i, VL, VL4)
    for it in rest[:10]: sc.emit(it)
    wait(a, vm=vm.need("ost")); a(wave_signal(40, 1))
    tr.sync(); tr.mark(); tr.flush(41)
    for it in rest[10:]: sc.emit(it)
    a(flag_load(164, "s35", 28, 16)); a(flag_load(20, "s35", 28, 0))
    a("s_mov_b32 s71, 0")

def p2(a):
    vm = Q(63); sc = Sched(a, vm, Q(15), C.sp2)
    VL, VX, VR_, VL4 = 7, 8, 9, 10; XR = 12; ACC = 24; STG = 104; FL = 164
    a("P2:")
    for i in range(4):
        for _ in range(4): vm.issue(("a", i))
    vm.issue("ff"); vm.issue("ff")
    stamp(a, 3)
    tr = Trace(a, 11); tr.mark()
    a("v_lshlrev_b32 v%d, 4, v2" % VL); a("v_add_u32 v%d, 4096, v%d" % (VL4, VL))
    def chk(n, tgt, off): return [("WAITVM", "ff"), (flag_check("P2_f%d" % n, FL, "s35", 28, tgt, off), None)]
    def fl(off): return [(flag_load(FL, "s35", 28, off), ("vm", "ff"))]
    xl = [("buffer_load_dwordx4 %s, v%d, s[16:19], s3 offen" % (R(XR), VX), ("vm", "xr")), ("buffer_load_dwordx4 %s, v%d, s[16:19], s3 offen offset:16" % (R(XR + 4), VX), ("vm", "xr")),
          ("buffer_load_dwordx2 %s, v%d, s[16:19], s3 offen offset:32" % (R(XR + 8, 2), VX), ("vm", "xr"))]
    W = lambda i: w2_loads(i, VL, VL4); A = act_loads
    fsig = [("WAITVM", "m"), ("s_cmp_eq_u32 s71, 0\ns_cbranch_scc1 P2_nosig\n" + wave_signal(13, 3) + "\nP2_nosig:", None)]
    chkB = [(flag_check("P2_f1", 20, "s35", 28, 2, 0), None)]
    W12 = W(12) if not C.ldw else W(15)
    W12 = W12[:1] + [(W12[1][0], ("vm", "m"))] + W12[2:]
    if not C.ldw:
        plan = {0: W12, 1: chk(0, 1, 16) + A(4) + A(5), 2: A(6) + W(13)[:3], 3: fsig + A(7) + W(13)[:1] + W(13)[3:], 4: A(8) + W(14)[:3], 5: chkB + fl(0) + A(9) + W(14)[:1] + W(14)[3:],
                6: A(10) + W(15)[:3], 7: A(11) + W(15)[:1] + W(15)[3:], 8: A(12) + W(16)[:3], 9: chk(2, 3, 0) + A(13) + W(16)[:1] + W(16)[3:], 10: A(14) + xl, 11: A(15), 12: A(16)}
    else:
        plan = {0: W12, 1: chk(0, 1, 16) + A(4) + A(5), 2: A(6) + W(16)[:2], 3: fsig + A(7) + W(16)[:1] + W(16)[2:3], 4: A(8) + W(16)[:1] + W(16)[3:4], 5: chkB + fl(0) + A(9),
                6: A(10) + W(16)[:1] + W(16)[4:5], 7: A(11) + W(16)[:1] + W(16)[5:], 8: A(12), 9: chk(2, 3, 0) + A(13), 10: A(14) + xl, 11: A(15), 12: A(16)}
        lrd = [("ds_read_b128 %s, v%d offset:%d" % (R(104 + 4 * k), VR_, 1024 * k), None) for k in range(15)]
    for i in range(17):
        sc.flush(sc.lq)
        wait(a, vm=vm.need(("a", i), opt=[("w2", i)])); tr.mark()
        if i == C.st4: stamp(a, 4)
        sc.lq = list(plan.get(i, []))
        order = [(t, q) for t in range(5) for q in range(4)] if i < 16 else [(t, q) for q in (1, 2, 3, 0) for t in range(5)]
        if i == 2 and C.ldw: sc.fq += [("v_add_u32 v%d, s12, v%d" % (VR_, VL), None)] + lrd[:8]
        if i == 4 and C.ldw: sc.fq += lrd[8:]
        if i == 12 and C.ldw: a("s_waitcnt lgkmcnt(0)")
        if i == 0:
            sc.fq += [(x, None) for x in ["v_lshrrev_b32 v1, 6, v0", "v_and_b32 v9, 15, v2", "v_lshl_add_u32 v9, v1, 4, v9", "v_mul_u32_u24 v9, 1280, v9", "v_lshrrev_b32 v12, 4, v2", "v_mul_u32_u24 v12, 40, v12", "v_add_u32 v%d, v9, v12" % VX,
                    "s_mov_b32 s20, s98", "s_and_b32 s21, s99, 0xffff", "s_mov_b32 s22, 0x%x" % XBYTES, "s_mov_b32 s23, 0x00020000"]]
        if i == 14:
            for q in range(1, 4): sc.fq += [(x, None) for x in ["v_add_u32 v22, %d, v1" % q, "v_and_b32 v22, 3, v22", "v_mul_u32_u24 v22, 15360, v22", "v_add_u32 v%d, v22, v%d" % (2 + q, VL)]]
            sc.fq += [("v_mul_u32_u24 v22, 15360, v1", None), ("v_add_u32 v%d, v22, v%d" % (VR_, VL), None), ("s_barrier", None)]
        wq = [(q, t) for q in range(1, 4) for t in range(5)]
        for k, (t, q) in enumerate(order):
            c = ACC + (q * 5 + t) * 4
            a("v_mfma_f32_16x16x32_bf16 %s, %s, %s, %s" % (R(c), R(W2R(i) + 4 * t), R(AR(i) + 4 * q), "0" if i == 0 else R(c)))
            if i == 16:
                if k >= 8:
                    q_, t_ = wq.pop(0); a("ds_write_b128 v%d, %s offset:%d" % (2 + q_, R(ACC + (q_ * 5 + t_) * 4), (q_ - 1) * 5120 + t_ * 1024))
            else: sc.gap([], 2 if k < 19 else 1)
        sc.flush(sc.fq)
    tr.mark()
    for q_, t_ in wq: a("ds_write_b128 v%d, %s offset:%d" % (2 + q_, R(ACC + (q_ * 5 + t_) * 4), (q_ - 1) * 5120 + t_ * 1024))
    a("s_waitcnt vmcnt(0)"); a("s_nop 3")
    for t in range(5):
        for p in range(2):
            xr = XR + 2 * t + p; c = ACC + t * 4 + 2 * p
            a("v_lshlrev_b32 v23, 16, v%d" % xr); a("v_and_b32 v22, 0xffff0000, v%d" % xr); a("v_add_f32 v%d, v%d, v23" % (c, c)); a("v_add_f32 v%d, v%d, v22" % (c + 1, c + 1))
    a("s_waitcnt lgkmcnt(0)"); tr.mark(); a("s_barrier"); tr.sync(); tr.mark()
    for t in range(5):
        for s in range(3): a("ds_read_b128 %s, v%d offset:%d" % (R(STG + (t * 3 + s) * 4), VR_, s * 5120 + t * 1024))
    for t in range(5):
        a("s_waitcnt lgkmcnt(%d)" % (12 - 3 * t))
        for s in range(3):
            for r in range(4): a("v_add_f32 v%d, v%d, v%d" % (ACC + t * 4 + r, ACC + t * 4 + r, STG + (t * 3 + s) * 4 + r))
        a("v_cvt_pk_bf16_f32 v%d, v%d, v%d" % (XR + 2 * t, ACC + t * 4, ACC + t * 4 + 1)); a("v_cvt_pk_bf16_f32 v%d, v%d, v%d" % (XR + 2 * t + 1, ACC + t * 4 + 2, ACC + t * 4 + 3))
        if t == 1: a("buffer_store_dwordx4 %s, v%d, s[20:23], s3 offen" % (R(XR), VX))
        if t == 3: a("buffer_store_dwordx4 %s, v%d, s[20:23], s3 offen offset:16" % (R(XR + 4), VX))
    a("buffer_store_dwordx2 %s, v%d, s[20:23], s3 offen offset:32" % (R(XR + 8, 2), VX))
    tr.mark()
    if C.st or C.tr: a("s_waitcnt vmcnt(0)")
    stamp(a, 5); tr.sync(); tr.mark(); tr.flush(23, 1 << 20)

def gen_all():
    a = Asm(); vm = Q(63)
    prologue(a, vm); vm2 = copy.deepcopy(vm)
    ffn(a, vm); att(a, vm2); p2(a)
    stamp_flush(a, 6)
    a("K_end:"); a("s_endpgm"); emit_spins(a)
    a("ATT_bcast:"); a("v_lshrrev_b32 v212, 2, v2"); a("v_lshlrev_b32 v212, 10, v212"); a("v_and_b32 v213, 3, v2"); a("v_lshl_add_u32 v212, v213, 7, v212"); a("v_mov_b32 v213, 1")
    a("s_mov_b32 s100, %d" % (CNT_OFF + 256 + 64)); a("buffer_store_dword v213, v212, s[28:31], s100 offen sc1"); a("buffer_store_dword v213, v212, s[28:31], s100 offen offset:32 sc1"); a("s_branch ATT_bcast_ok"); a("K_last:"); a("s_endpgm")
    return a.text()
if __name__ == "__main__":
    for kv in sys.argv[2:]:
        k, v = kv.split("="); assert hasattr(C, k), k; setattr(C, k, int(v))
    kn = NAME + "_kernel"
    txt = HEADER + "; @launch grid=(256,1,1) block=(256,1,1) lds=155648\n" + '.amdgcn_target "amdgcn-amd-amdhsa--gfx950"\n.text\n' + kernel_head(kn) + gen_all()
    open(sys.argv[1], "w").write(txt + '.section .rodata,"a"\n' + kernel_desc(kn, 512, 102, 256))
```

```python
import sys, struct, copy, re, os
from asmlib import *
ACT_OFF = 0; W2P_OFF = 16 << 20; SYNC_OFF = 28 << 20; STAMP_OFF = 128 << 20
WS_BYTES = 256 << 20; XBYTES = 2621440; OOB = 0x7ff00000
class Cfg:
    st = 0; tr = 0; pref = 0; slp = 2; sp = 3; spa = 4; w2n = 16; aw2 = 10; st4 = 8; sd = 64; e1 = 8; e2 = 88; pfc = 20; apc = 14
    sp2 = 2; eps = 8; sg1 = 200; map2 = 0; fk = 230; ldw = 0; nx0 = 2; na0 = 3; pk0 = 4; sl0 = 6; sla = 13; rdf = 1; rda = 0; wpf = 99; pkl = 1; ae0 = 24; off = 0; wpn = 1; hack = 0; mixcb = 1; sp3 = 1; sgs = 2; fc = 10; fd = 2
C = Cfg()
GA = -2.0 * 0.7978845608028654 * 1.4426950408889634; GB = GA * 0.044715
def f2h(x): return "0x%08x" % struct.unpack("<I", struct.pack("<f", x))[0]
_ref = "cdna_kernels/%s.s.ref" % NAME
HEADER = open(_ref).read().split("; Override")[0] if os.path.exists(_ref) else ""

class Q:
    def __init__(s, cap): s.q = []; s.cap = cap; s.seen = set()
    def issue(s, tag): s.q.append(tag); s.seen.add(tag)
    def need(s, *tags, opt=()):
        for t in tags: assert t in s.seen, ("waiting for something never issued", t)
        tags = tuple(tags) + tuple(opt); idx = -1
        for i, t in enumerate(s.q):
            if t in tags: idx = i
        if idx < 0: return None
        n = min(len(s.q) - 1 - idx, s.cap); s.q = s.q[len(s.q) - n:] if n else []
        return n
    def clear(s): s.q = []
def wait(a, vm=None, lg=None):
    p = []
    if vm is not None: p.append("vmcnt(%d)" % vm)
    if lg is not None: p.append("lgkmcnt(%d)" % lg)
    if p: a("s_waitcnt " + " ".join(p))
def R(n, k=4): return ("a[%d:%d]" % (n - 256, n - 256 + k - 1)) if n >= 256 else ("v[%d:%d]" % (n, n + k - 1))
def cost(ins):
    n = 0
    for l in ins.split("\n"):
        if l.endswith(":") or not l: continue
        n += 1
        if l.startswith("v_exp") or l.startswith("v_rcp"): n += 1
        if l.startswith("ds_write_b128") or l.startswith("buffer_store_dwordx4"): n += 3
        if l.startswith("ds_write_b64"): n += 2
        if l.startswith("buffer_load") or l.startswith("buffer_atomic") or l.startswith("buffer_store_dword "): n += 1
    return n
def ismem(ins): return ins.startswith("ds_") or ins.startswith("buffer_")
def deps(ins):
    if "\n" in ins or not ins.startswith("v_") or "vcc" in ins or " s" in ins: return None
    regs = re.findall(r"[va]\d+", ins.split(" ", 1)[1])
    return {regs[0]}, set(regs[1:])

class Sched:
    def __init__(s, a, vm, lg, sp): s.a = a; s.vm = vm; s.lg = lg; s.fq = []; s.dq = []; s.lq = []; s.since = 99; s.sp = sp; s.n = 0; s.timed = []
    def emit(s, item):
        ins, tag = item[0], item[1]
        if ins == "WAITVM": wait(s.a, vm=s.vm.need(tag)); return
        if ins == "WAITLG": wait(s.a, lg=s.lg.need(tag)); return
        if ins == "LATER": s.timed.append((s.n + tag[0], tag[1])); return
        s.a(ins)
        if tag:
            for _ in range(item[2] if len(item) > 2 else 1): (s.vm if tag[0] == "vm" else s.lg).issue(tag[1])
    def gap(s, must=(), slots=2):
        first = True; s.n += 1; s.since += 1
        while s.timed and s.timed[0][0] <= s.n: s.lq = s.timed.pop(0)[1] + s.lq if not s.lq_open() else s.lq + s.timed.pop(0)[1]
        for it in must: s.emit(it); slots -= cost(it[0]); first = False
        while slots > 0:
            q = s.dq if s.dq else s.lq
            if not q: break
            isb = "buffer_" in q[0][0]; m = ismem(q[0][0])
            if not ((first or (not m and cost(q[0][0]) <= slots)) and (not isb or s.since > s.sp)): break
            it = q.pop(0); s.emit(it); slots -= cost(it[0]); first = False
            if isb: s.since = 0
        lastw = None
        while s.fq and slots > 0:
            pick = None; W = set(); Rr = set()
            for idx, it in enumerate(s.fq[:14]):
                n = cost(it[0]); d = deps(it[0])
                if d is None:
                    if idx == 0 and not (ismem(it[0]) and not first) and (n <= slots or (first and n > 2) or it[0] == "LATER"): pick = 0
                    break
                w, r = d
                if n <= slots and not (r & W) and not (w & W) and not (w & Rr) and not (lastw is not None and lastw in r): pick = idx; break
                W |= w; Rr |= r
            if pick is None: break
            it = s.fq.pop(pick); s.emit(it)
            if it[0] == "LATER": continue
            slots -= cost(it[0]); first = False
            lastw = next(iter(deps(it[0])[0])) if (cost(it[0]) == 2 and deps(it[0])) else None
    m0lock = False
    def lq_open(s): return False
    def fc(s): return sum(cost(it[0]) for it in s.fq if it[0] != "LATER")
    def flush(s, q):
        while q: s.emit(q.pop(0))

def stamp(a, idx):
    if C.st: a("%s s[%d:%d]" % ("s_memtime" if C.st == 2 else "s_memrealtime", 80 + 2 * idx, 81 + 2 * idx))
def stamp_flush(a, n):
    if not C.st: return
    a("s_waitcnt lgkmcnt(0)"); a("s_cmp_lg_u32 s32, 0"); a("s_cbranch_scc1 L_stf"); a("s_mov_b64 exec, 1")
    a("s_mul_i32 s70, s2, %d" % (n * 8)); a("s_add_u32 s70, s70, %d" % STAMP_OFF)
    for j in range(n):
        a("v_mov_b32 v2, s%d" % (80 + 2 * j)); a("v_mov_b32 v3, s%d" % (81 + 2 * j)); a("buffer_store_dwordx2 v[2:3], off, s[28:31], s70 offset:%d" % (8 * j)); a("s_nop 1")
    a("L_stf:")
class Trace:
    def __init__(s, a, v, n=0): s.a = a; s.v = v; s.n = n; s.n0 = n
    def mark(s):
        if not C.tr: return
        if s.n > s.n0: s.a("v_writelane_b32 v%d, s%d, %d" % (s.v, 88 + 2 * ((s.n - 1) & 1), s.n - 1))
        s.a("%s s[%d:%d]" % ("s_memtime" if C.tr == 2 else "s_memrealtime", 88 + 2 * (s.n & 1), 89 + 2 * (s.n & 1))); s.n += 1
    def sync(s):
        if C.tr: s.a("s_waitcnt lgkmcnt(0)"); s.a("v_writelane_b32 v%d, s%d, %d" % (s.v, 88 + 2 * ((s.n - 1) & 1), s.n - 1))
    def flush(s, vt, off=0):
        if not C.tr: return
        s.sync(); s.a("s_lshl_b32 s88, s2, 10"); s.a("s_add_u32 s88, s88, %d" % (STAMP_OFF + off)); s.a("s_lshl_b32 s89, s32, 8"); s.a("s_add_u32 s88, s88, s89"); s.a("v_lshrrev_b32 v%d, 2, v%d" % (vt, s.lv))
        s.a("buffer_store_dword v%d, v%d, s[28:31], s88 offen" % (s.v, vt))

def bfr(a, v): a("v_cvt_pk_bf16_f32 v%d, v%d, v%d" % (v, v, v)); a("v_lshlrev_b32 v%d, 16, v%d" % (v, v))

SPINS = []
def flag_load(vd, soff, srd, off=None):
    if off is None: return "buffer_load_dword v%d, off, s[%d:%d], %s offset:64 sc1" % (vd, srd, srd + 3, soff)
    return "buffer_load_dwordx4 v[%d:%d], off, s[%d:%d], %s offset:%d sc1" % (vd, vd + 3, srd, srd + 3, soff, off)
def flag_read(vd, off, ph):
    o = ["s_add_u32 s100, s1, %d" % ph]
    if off is None: o += ["v_subrev_u32 v%d, s100, v%d" % (vd, vd)]
    else: o += ["v_subrev_u32 v%d, s100, v%d" % (vd + k, vd + k) for k in range(4)] + ["v_max3_u32 v%d, v%d, v%d, v%d" % (vd, vd, vd + 1, vd + 2), "v_max_u32 v%d, v%d, v%d" % (vd, vd, vd + 3)]
    return o + ["v_cmp_lt_u32 vcc, %d, v%d" % (3 - ph, vd)]
def flag_check(name, vd, soff, srd, ph, off=None):
    if (name, vd, soff, srd, ph, off) not in SPINS: SPINS.append((name, vd, soff, srd, ph, off))
    r = flag_read(vd, off, ph)
    return [(x, None) for x in r[:-1]] + [(r[-1] + "\ns_cmp_lg_u64 vcc, 0\ns_cbranch_scc1 %s_spin\n%s_ok:" % (name, name), None)]
def spin(a, name, loads, red):
    a("%s_spin:" % name); a("s_mov_b32 s101, 0"); a("%s_lp:" % name); a("s_sleep %d" % C.slp)
    for l in loads: a(l)
    a("s_add_u32 s101, s101, 1"); a("s_waitcnt vmcnt(0)")
    for l in red: a(l)
    a("s_nop 1"); a("s_cmp_eq_u64 vcc, 0"); a("s_cbranch_scc1 %s_ok" % name)
    a("s_cmp_lt_u32 s101, 0x8000"); a("s_cbranch_scc1 %s_lp" % name); a("s_branch %s_ok" % name)
def emit_spins(a):
    for name, vd, soff, srd, ph, off in SPINS: spin(a, name, [flag_load(vd, soff, srd, off)], flag_read(vd, off, ph))
    for name, loads, red in TSPINS: spin(a, name, loads, red)
def wave_signal(VN, val):
    return "s_mov_b64 exec, %d\nbuffer_store_dword v%d, off, s[28:31], s34 sc1\ns_mov_b64 exec, -1" % (1 << val, VN)
TSPINS = []
def tag_check(name, loads, regs, tmp):
    red = ["v_xor_b32 v%d, s1, v%d" % (tmp, regs[0])] + ["v_bitop3_b32 v%d, v%d, s1, v%d bitop3:0xbe" % (tmp, r, tmp) for r in regs[1:]] + ["v_cmp_ne_u32 vcc, 0, v%d" % tmp]
    TSPINS.append((name, loads, red))
    return [(x, None) for x in red[:-1]] + [(red[-1] + "\ns_cmp_lg_u64 vcc, 0\ns_cbranch_scc1 %s_spin\n%s_ok:" % (name, name), None)]

WB = [92, 93]; AB = [77, 78]
def W2R(i): return 256 + 20 * i if i < 12 else (104 + 20 * (i - 12) if i < 15 else 168 + 20 * (i - 15))
AB_ = [496, 208, 224, 240]
def p2_bases(a, dst, unit):
    a("s_mul_i32 s68, s32, %d" % (5 * unit)); a("s_add_u32 s%d, s69, s68" % dst[1])
    a("s_mul_i32 s68, s32, %d" % (12 * unit)); a("s_add_u32 s%d, s69, s68" % dst[0])
def step_off(i, dst, unit):
    if 4 <= i < 9: return dst[1], (i - 4) * unit
    p, k = (0, i) if i < 4 else ((1, i - 9) if i < 13 else (2, i - 13))
    return dst[0], (20 + 2 * p + 6 * (k >> 1) + (k & 1)) * unit
def w2_loads(i, VL):
    b, c = step_off(i, WB, 5120)
    ld = lambda t: ("buffer_load_dwordx4 %s, v%d, s[28:31], s13 offen offset:%d sc1" % (R(W2R(i) + 4 * t), VL, 1024 * (t if t < 2 else t - 2)), ("vm", ("w2", i)))
    return [("s_add_u32 s13, s%d, %d" % (b, c), None), ld(0), ld(1), ("s_add_u32 s13, s%d, %d" % (b, c + 2048), None), ld(2), ld(3), ld(4)]
def w2_lds(i, VL):
    b, c = step_off(i, WB, 5120); o = (i - 12) * 5120
    return [("s_add_u32 m0, s12, %d" % o, None), ("s_add_u32 s68, s%d, %d" % (b, c), None)] + [("buffer_load_dwordx4 v%d, s[28:31], s68 offen offset:%d sc1 lds" % (VL, 1024 * t), ("vm", ("wl", i))) for t in range(4)] + \
           [("s_add_u32 m0, s12, %d" % (o + 4096), None), ("s_add_u32 s68, s68, 4096", None), ("buffer_load_dwordx4 v%d, s[28:31], s68 offen sc1 lds" % VL, ("vm", ("wl", i)))]
def act_voffs(VL): return [("s_add_u32 s14, s32, %d\ns_and_b32 s14, s14, 3" % i, None) if k == 0 else ("s_lshl_b32 s14, s14, 10\nv_add_u32 v%d, s14, v%d" % (3 + i, VL), None) for i in range(4) for k in range(2)]
def act_loads(i):
    b, c = step_off(i, AB, 4096)
    return [("s_add_u32 s13, s%d, %d" % (b, c), None)] + [("buffer_load_dwordx4 %s, v%d, s[28:31], s13 offen sc1" % (R(AR(i) + 4 * q), 3 + q), ("vm", ("a", i))) for q in range(4)]

ARL = [496, 208, 24, 240, 496, 256, 208, 276, 24, 296, 240, 316, 496, 336, 256, 356, 208]
def PA(q, t): n = q * 5 + t; return 40 + 4 * n if n < 16 else 224 + 4 * (n - 16)
def AR(i): return ARL[i]
SR = 112

def prologue(a, vm):
    a("s_cmp_ge_u32 s2, 256"); a("s_cbranch_scc1 K_end")
    stamp(a, 0)
    a("s_memrealtime s[94:95]")
    a("s_load_dwordx4 s[4:7], s[0:1], 0"); a("s_load_dwordx4 s[8:11], s[0:1], 32"); a("s_load_dwordx2 s[12:13], s[0:1], 72"); a("s_load_dwordx2 s[24:25], s[0:1], 64")
    a("s_load_dwordx2 s[14:15], s[0:1], 16"); a("s_load_dwordx4 s[96:99], s[0:1], 48")
    a("v_lshrrev_b32 v1, 6, v0"); a("v_and_b32 v2, 63, v0"); a("v_readfirstlane_b32 s32, v1")
    a("s_and_b32 s33, s2, 7"); a("s_lshr_b32 s34, s2, 3"); a("s_and_b32 s35, s34, 7"); a("s_lshr_b32 s34, s34, 3")
    a("s_and_b32 s36, s33, 1"); a("s_lshl_b32 s36, s36, 3"); a("s_add_u32 s36, s36, s35")
    a("s_lshr_b32 s76, s33, 1"); a("s_lshl_b32 s76, s76, 2"); a("s_add_u32 s76, s76, s34")
    a("s_and_b32 s37, s33, 6"); a("s_and_b32 s68, s34, 1"); a("s_add_u32 s37, s37, s68")
    a("s_mul_i32 s38, s34, 5"); a("s_lshr_b32 s38, s38, 1"); a("s_lshl_b32 s68, s35, 2"); a("s_lshr_b32 s69, 0x87653210, s68"); a("s_and_b32 s69, s69, 15"); a("s_add_u32 s38, s38, s69")
    a("s_sub_u32 s68, s38, 10"); a("s_cmp_ge_u32 s38, 10"); a("s_cselect_b32 s38, s68, s38")
    a("s_cmp_ge_u32 s34, 2"); a("s_movk_i32 s68, 0x780"); a("s_cselect_b32 s69, s68, 0x600")
    for j in range(10):
        a("s_lshl_b32 s%d, s38, 7" % (50 + j)); a("s_mul_i32 s%d, s%d, s69" % (40 + j, 50 + j))
        if j < 9: a("s_add_u32 s38, s38, 1"); a("s_cmp_eq_u32 s38, 10"); a("s_cselect_b32 s38, 0, s38")
    a("s_lshl_b32 s68, s36, 4"); a("s_add_u32 s68, s68, s76"); a("s_mul_i32 s39, s68, 10240")
    a("v_lshrrev_b32 v3, 5, v0"); a("v_mul_u32_u24 v4, 1280, v3"); a("v_and_b32 v5, 31, v2"); a("v_lshl_add_u32 v4, v5, 4, v4")
    a("v_lshlrev_b32 v5, 26, v5"); a("v_and_b32 v5, 0x40000000, v5"); a("v_or_b32 v5, v5, v4")
    a("s_mov_b32 s18, 0x%x" % XBYTES); a("s_mov_b32 s19, 0x00020000"); a("s_mov_b32 s30, 0x%x" % WS_BYTES); a("s_mov_b32 s31, 0x00020000"); a("s_movk_i32 s26, 256"); a("s_mov_b32 s27, 0x00020000")
    a("s_or_b32 s70, s2, s32")
    a("v_lshlrev_b32 v14, 4, v2")
    a("s_waitcnt lgkmcnt(0)")
    a("s_mov_b32 s16, s4"); a("s_and_b32 s17, s5, 0xffff"); a("s_mov_b32 s28, s12"); a("s_and_b32 s29, s13, 0xffff"); a("s_and_b32 s25, s25, 0xffff")
    a("s_cmp_lg_u32 s70, 0"); a("s_cbranch_scc1 K_noinit")
    a("s_lshl_b32 s68, s94, 3"); a("s_or_b32 s68, s68, 4"); a("v_mov_b32 v8, s68"); a("s_mov_b64 exec, 1")
    a("buffer_store_dword v8, off, s[24:27], 0 sc1"); a("s_mov_b64 exec, -1")
    a("K_noinit:")
    for i in range(3): a("buffer_load_dwordx4 %s, v%d, s[16:19], s39 offen offset:%d" % (R(SR + 4 * i), 4 if i < 2 else 5, 512 * i)); vm.issue("x")
    a("s_cmp_ge_u32 s34, 2"); a("s_cbranch_scc1 K_att")

def raise_ready(a, vm, role):
    if C.pref:
        a("s_getpc_b64 s[68:69]"); a("K_pf_%s:" % role)
        a("v_lshlrev_b32 v16, 7, v0"); a("v_min_u32 v16, K_last-K_pf_%s, v16" % role); a("v_mov_b32 v17, s69")
        a("v_add_co_u32 v16, vcc, s68, v16"); a("s_nop 1"); a("v_addc_co_u32 v17, vcc, 0, v17, vcc"); a("global_load_dword a199, v[16:17], off"); vm.issue("pf0")

def common_setup(a, role):
    if C.map2 == 0:
        a("s_lshr_b32 s0, s76, 3"); a("s_lshl_b32 s0, s0, 2"); a("s_add_u32 s68, s76, s35" if C.mixcb else "s_mov_b32 s68, s76"); a("s_and_b32 s68, s68, 3"); a("s_add_u32 s0, s0, s68")
        a("s_lshl_b32 s70, s36, 1"); a("s_bfe_u32 s71, s76, 0x10002"); a("s_add_u32 s70, s70, s71")
    else:
        a("s_and_b32 s70, s36, 8"); a("s_lshl_b32 s70, s70, 1"); a("s_and_b32 s68, s76, 12"); a("s_add_u32 s70, s70, s68"); a("s_mov_b32 s0, s35"); a("s_add_u32 s70, s70, s34")
    a("s_mul_i32 s69, s0, %d" % (0 if C.hack & 1 else 68 * 5120)); a("s_add_u32 s69, s69, %d" % W2P_OFF); p2_bases(a, WB, 5120)
    a("s_mul_i32 s69, s70, %d" % (0 if C.hack & 2 else 68 * 4096))
    if C.hack & 2: a("s_add_u32 s69, s69, %d" % W2P_OFF)
    p2_bases(a, AB, 4096)
    a("s_mul_i32 s3, s70, %d" % (64 * 1280)); a("s_mul_i32 s69, s0, 160"); a("s_add_u32 s3, s3, s69"); a("s_mul_i32 s69, s32, %d" % (16 * 1280)); a("s_add_u32 s3, s3, s69")
    a("s_lshr_b32 s35, s70, 1"); a("s_lshl_b32 s35, s35, 14"); a("s_and_b32 s71, s70, 1"); a("s_lshl_b32 s71, s71, 5"); a("s_add_u32 s35, s35, s71")
    a("s_lshl_b32 s71, s32, 7"); a("s_add_u32 s71, s71, %d" % (SYNC_OFF + 1024)); a("s_add_u32 s35, s35, s71")
    a("s_lshl_b32 s79, s36, 14"); a("s_add_u32 s79, s79, %d" % SYNC_OFF)
    a("s_lshr_b32 s69, s76, 2"); a("s_lshl_b32 s69, s69, 7"); a("s_add_u32 s68, s79, s69"); a("s_lshl_b32 s34, s34, 3"); a("s_add_u32 s34, s34, s68"); a("s_add_u32 s34, s34, 1024")
    hi, lo = ("s_and_b32 s68, s32, 1", "s_lshr_b32 s69, s32, 1") if role == "ffn" else ("s_lshr_b32 s68, s32, 1", "s_and_b32 s69, s32, 1")
    a(hi); a(lo); a("s_lshl_b32 s68, s68, 5"); a("s_lshl_b32 s69, s69, 2"); a("s_add_u32 s34, s34, s68"); a("s_add_u32 s34, s34, s69")

def stats(a, vm, S, VO, VN, role):
    s_, q = S, S + 1
    a("s_mov_b32 s33, 0x3f803f80"); a("v_mov_b32 v%d, 0" % s_)
    a("v_lshrrev_b32 v%d, 5, v0" % VO); a("s_lshl_b32 s68, s76, 3"); a("v_add_lshl_u32 v%d, v%d, s68, 3" % (VO, VO))
    a("v_and_b32 v%d, 31, v2" % q); a("v_cmp_eq_u32 vcc, 31, v%d" % q); a("v_mov_b32 v%d, 0x%x" % (q, OOB)); a("s_nop 0"); a("v_cndmask_b32 v%d, v%d, v%d, vcc" % (VO, q, VO))
    a("v_mov_b32 v%d, 0" % q)
    wait(a, vm=vm.need("x"))
    a("s_buffer_load_dword s1, s[24:27], 0")
    for d in range(12): a("v_dot2c_f32_bf16 v%d, s33, v%d" % (s_, SR + d)); a("v_dot2c_f32_bf16 v%d, v%d, v%d" % (q, SR + d, SR + d))
    a("s_nop 0")
    for m in ["quad_perm:[1,0,3,2] row_mask:0xf", "quad_perm:[2,3,0,1] row_mask:0xf", "row_half_mirror row_mask:0xf", "row_mirror row_mask:0xf", "row_bcast:15 row_mask:0xa"]:
        a("s_nop 1")
        for r in (s_, q): a("v_add_f32_dpp v%d, v%d, v%d %s bank_mask:0xf" % (r, r, r, m))
    a("v_mul_f32 v%d, 0xbacccccd, v%d" % (s_, s_)); a("v_mul_f32 v%d, 0x3acccccd, v%d" % (q, q))
    a("v_fma_f32 v%d, -v%d, v%d, v%d" % (q, s_, s_, q)); a("v_max_f32 v%d, 0, v%d" % (q, q))
    bfr(a, q); a("v_add_f32 v%d, 0x3727c5ac, v%d" % (q, q)); bfr(a, q)
    a("v_sqrt_f32 v%d, v%d" % (q, q)); a("s_waitcnt lgkmcnt(0)"); a("v_cvt_pk_bf16_f32 v%d, v%d, v%d" % (s_, s_, q))
    a("s_cmp_eq_u32 s1, 0"); a("s_cbranch_scc1 NON_%s_spin" % role); a("NON_%s_ok:" % role)
    TSPINS.append(("NON_" + role, ["s_sleep 6", "buffer_load_dword v%d, off, s[24:27], 0 sc1" % q], ["v_readfirstlane_b32 s1, v%d" % q, "v_cmp_eq_u32 vcc, 0, v%d" % q]))
    a("v_mov_b32 v%d, s1" % q); a("v_add_u32 v%d, s1, v2" % VN)
    a("buffer_store_dwordx2 v[%d:%d], v%d, s[28:31], s79 offen sc1" % (S, S + 1, VO)); vm.issue("ss")

def ffn(a, vm):
    SL = 16896
    lg = Q(15); sc = Sched(a, vm, lg, C.sp)
    VWO = [3, 4, 5, 6]; VWR, VWR2, VST = 7, 8, 11; VXO = [104, 105, 106, 107]; VXR = [108, 109]
    WF = 16; ACC = [40, 104]; TE = [14, 15]; NM = [0, 9]; KA, KB = 232, 236; KS = [1, 10, 12, 13]; PL = 240; VN = 2; PFR = 255
    def X(j, kk, tt): return (256 + 32 * j if j < 8 else 168 + 32 * (j - 8)) + (kk * 4 + tt) * 4
    a("s_and_b32 s60, s32, 1"); a("s_lshr_b32 s61, s32, 1")
    a("v_mov_b32 v%d, v14" % VST)
    a("v_lshrrev_b32 v13, 3, v2"); a("v_lshl_add_u32 v13, v1, 5, v13"); a("s_lshl_b32 s71, s36, 7"); a("v_add_u32 v13, s71, v13"); a("v_mul_u32_u24 v13, 1280, v13")
    a("v_and_b32 v14, 7, v2"); a("v_lshrrev_b32 v15, 4, v2"); a("v_xor_b32 v15, v14, v15"); a("v_lshl_add_u32 v%d, v15, 4, v13" % VXO[0])
    a("v_xor_b32 v15, 64, v%d" % VXO[0]); a("v_add_u32 v%d, 9216, v15" % VXO[1]); a("v_add_u32 v%d, 18432, v%d" % (VXO[2], VXO[0])); a("v_add_u32 v%d, 18432, v%d" % (VXO[3], VXO[1]))
    a("s_mul_i32 s66, s32, 4224"); a("s_lshl_b32 s67, s32, 12")
    wpos = {}; xpos = {}; freew = []
    def dma(n, pos):
        p, j = n // 10, n % 10; wpos[n] = pos
        return [("s_add_u32 m0, s66, %d" % (pos * SL), None), ("s_add_u32 s68, s%d, %d" % (40 + j, 128 * p), None)] + \
               [("buffer_load_dwordx4 v%d, s[20:23], s68 offen offset:%d lds" % (VWO[i], 1056 * i), ("vm", ("w", n))) for i in range(4)]
    def dmax(j, pos):
        xpos[j] = pos
        return [("s_add_u32 m0, s67, %d" % (pos * SL), None), ("s_nop 0", None)] + \
               [("buffer_load_dwordx4 v%d, s[16:19], s%d offen offset:%d lds" % (VXO[i], 50 + j, 1024 * i), ("vm", ("x", j))) for i in range(4)]
    for it in dmax(0, 5): sc.emit(it)
    a("s_cmp_eq_u32 s60, 0"); a("s_cselect_b32 s8, s8, s10"); a("s_cselect_b32 s9, s9, s11")
    a.srd(20, 8, 1966080)
    a("v_lshrrev_b32 v13, 5, v2"); a("v_lshlrev_b32 v13, 4, v13"); a("v_bfe_u32 v15, v2, 4, 1"); a("v_lshl_add_u32 v13, v15, 2, v13")
    a("v_bfe_u32 v15, v2, 3, 1"); a("s_lshl_b32 s71, s61, 5"); a("v_add3_u32 v13, v13, v15, s71"); a("v_mul_u32_u24 v13, 3072, v13")
    a("v_lshlrev_b32 v14, 4, v14"); a("s_mul_i32 s71, s37, 384"); a("v_add3_u32 v%d, v13, v14, s71" % VWO[0])
    for i in range(1, 4): a("v_add_u32 v%d, %d, v%d" % (VWO[i], (8 * (i >> 1) + 2 * (i & 1)) * 3072 - 1056 * i, VWO[0]))
    for it in dma(0, 0): sc.emit(it)
    raise_ready(a, vm, "ffn")
    for n in range(1, C.nx0):
        for it in dmax(n, 5 + n) + dma(n, n): sc.emit(it)
    a("s_lshl_b32 s63, s36, 1"); a("s_add_u32 s63, s63, s60"); a("s_mul_i32 s63, s63, 68")
    a("s_mul_i32 s71, s37, 6"); a("s_add_u32 s63, s63, s71"); a("s_add_u32 s63, s63, s61"); a("s_add_u32 s63, s63, 20"); a("s_lshl_b32 s63, s63, 12")
    a("s_add_u32 s64, s63, 8192"); a("s_add_u32 s65, s63, 16384")
    a("v_bfe_u32 v13, v2, 3, 2"); a("v_mul_u32_u24 v13, 1056, v13")
    a("v_lshrrev_b32 v14, 5, v2"); a("v_lshlrev_b32 v14, 2, v14"); a("v_bfe_u32 v15, v2, 2, 1"); a("v_add_u32 v14, v14, v15"); a("v_lshl_add_u32 v13, v14, 7, v13")
    a("v_and_b32 v14, 3, v2"); a("v_lshlrev_b32 v14, 3, v14"); a("s_lshl_b32 s71, s61, 6")
    a("v_add3_u32 v%d, v13, v14, s71" % VWR); a("v_add_u32 v%d, %d, v%d" % (VWR2, 4 * SL, VWR))
    a("v_bfe_u32 v13, v2, 1, 3"); a("v_lshrrev_b32 v14, 4, v2"); a("v_xor_b32 v13, v13, v14"); a("v_lshlrev_b32 v13, 4, v13"); a("v_and_b32 v14, 15, v2"); a("v_lshl_add_u32 v13, v14, 7, v13")
    a("s_lshl_b32 s71, s60, 13"); a("s_add_u32 s71, s71, %d" % (5 * SL)); a("v_add_u32 v%d, s71, v13" % VXR[0]); a("v_xor_b32 v%d, 64, v%d" % (VXR[1], VXR[0]))
    a("v_lshlrev_b32 v110, 3, v14")
    a("s_mul_i32 s12, s32, 15360"); a("s_add_u32 s12, s12, %d" % (5 * SL))
    a("s_lshl_b32 s72, s33, 1"); a("s_add_u32 s72, s72, s34"); a("s_lshl_b32 s72, s72, 15"); a("s_lshl_b32 s71, s61, 12"); a("s_add_u32 s72, s72, s71"); a("s_add_u32 s72, s72, %d" % (SYNC_OFF + (1 << 20)))
    a("s_lshl_b32 s73, s60, 11"); a("s_add_u32 s73, s73, s72"); a("s_lshl_b32 s71, s35, 8"); a("s_add_u32 s73, s73, s71")
    a("s_and_b32 s71, s35, 3"); a("s_cmp_eq_u32 s71, 3"); a("s_cselect_b32 s74, 0x3f803f80, 0")
    common_setup(a, "ffn")
    a("s_lshl_b32 s75, s60, 9"); a("s_add_u32 s75, s75, s79")
    a("s_mov_b32 s4, 0x01000100"); a("s_mov_b32 s5, 0x03020302")
    stats(a, vm, 124, 126, VN, "ffn")
    stamp(a, 1)
    tr = Trace(a, PFR); tr.lv = VST; tr.mark()
    wiss = C.nx0; xiss = C.nx0; w2q = list(range(17)); freew[:] = list(range(C.nx0, 5)); freex = list(range(5 + C.nx0, 9))
    def wreads(g):
        s_, u = g // 8, g % 8; pos = wpos[s_]; kk, wt = u >> 2, u & 3
        vb = VWR if pos < 4 else VWR2; off = (pos % 4) * SL + (kk * 2 + (wt >> 1)) * 4224 + 32 * (wt & 1); b = WF + (g % 6) * 4
        return [("ds_read_b64_tr_b16 %s, v%d offset:%d" % (R(b + 2 * t, 2), vb, off + 256 * t), ("lg", ("w", g // 2))) for t in range(2)]
    def xreads(j):
        return [("ds_read_b128 %s, v%d offset:%d" % (R(X(j, kk, tt)), VXR[kk], (xpos[j] - 5) * SL + 2048 * tt), ("lg", ("x", j, kk, tt))) for kk in range(2) for tt in range(4)]
    def epilogue(p, t=TE):
        out = []; base = ACC[p % 2]; n = len(t)
        for tt in range(4):
            D = base + (8 + tt) * 4
            for a_ in range(2):
                for h in range(0, 4, n):
                    G = [base + (a_ * 4 + tt) * 4 + h + k for k in range(n)]; U = [base + ((2 + a_) * 4 + tt) * 4 + h + k for k in range(n)]
                    for f in (lambda k: "v_mul_f32 v%d, v%d, v%d" % (t[k], G[k], G[k]), lambda k: "v_fma_f32 v%d, v%d, v%d, v%d" % (t[k], t[k], KB + tt, KA + tt),
                              lambda k: "v_mul_f32 v%d, v%d, v%d" % (t[k], t[k], G[k]), lambda k: "v_exp_f32 v%d, v%d" % (t[k], t[k]),
                              lambda k: "v_mul_f32 v%d, v%d, v%d" % (G[k], G[k], U[k]), lambda k: "v_fma_f32 v%d, v%d, v%d, v%d" % (U[k], t[k], KS[tt], KS[tt]),
                              lambda k: "v_rcp_f32 v%d, v%d" % (U[k], U[k]), lambda k: "v_mul_f32 v%d, v%d, v%d" % (G[k], G[k], U[k])):
                        for k in range(n): out.append((f(k), None))
                    for k in range(0, n, 2): out.append(("v_cvt_pk_bf16_f32 v%d, v%d, v%d" % (D + 2 * a_ + (h + k) // 2, G[k], G[k + 1]), None))
            out.append(("buffer_store_dwordx4 %s, v%d, s[28:31], s%d offen offset:%d sc1" % (R(D), VST, 63 + p, 1024 * tt), ("vm", ("st", p))))
        return out
    def sig(p): return [("WAITVM", ("st", p)), (wave_signal(VN, p + 1), ("vm", "sg"))]
    ON = PL; CS = PL + 4
    def cs_out(p):
        o = []
        for k in range(2):
            c = CS + 4 * k
            o += ["v_cvt_pk_bf16_f32 v%d, v%d, v%d" % (c + 1, c, c), "v_lshlrev_b32 v%d, 16, v%d" % (c + 1, c + 1), "v_sub_f32 v%d, v%d, v%d" % (c, c, c + 1), "v_cvt_pk_bf16_f32 v%d, v%d, v%d" % (ON + k, c + 1, c)]
        o += ["v_mov_b32 v%d, s1" % (ON + 2), "s_add_u32 s14, s73, %d" % (8192 * p)]
        return [(x, None) for x in o] + [("s_mov_b64 exec, 0xffff\nbuffer_store_dwordx4 %s, v%d, s[28:31], s14 offen sc1\ns_mov_b64 exec, -1" % (R(ON), VST), ("vm", "cs"))]
    AE = PL; VAE = PL + 3; BP = [PL + 2, PL + 6]
    ae_loads = ["buffer_load_dwordx3 %s, v%d, s[28:31], s15 offen offset:%d sc1" % (R(AE + 4 * w, 3), VAE, 2048 * (w >> 1) + 256 * (w & 1)) for w in range(4)]
    def ae_in(p):
        return [(x, None) for x in ["v_and_b32 v%d, 0x300, v%d" % (VAE, VST), "v_add_u32 v%d, v%d, v%d" % (VAE, VAE, VST), "s_add_u32 s15, s72, %d" % (8192 * p)]] + [(l, ("vm", ("ae", p))) for l in ae_loads]
    def ae_chk(p): return [("WAITVM", ("ae", p))] + tag_check("AE%d" % p, ae_loads, [AE + 2, AE + 6, AE + 10, AE + 14], AE + 7) + [("v_swap_b32 v%d, v%d\n" % (AE + 1, AE + 4), None), ("v_swap_b32 v%d, v%d\n" % (AE + 9, AE + 12), None)]
    st_loads = ["buffer_load_dwordx2 v[%d:%d], v110, s[28:31], s75 offen offset:%d sc1" % (128 + 2 * tt, 129 + 2 * tt, 128 * tt) for tt in range(4)]
    def st_consts():
        o = ["s_mov_b32 s14, 0x05040100", "v_perm_b32 v%d, v130, v128, s14" % NM[0], "v_perm_b32 v%d, v134, v132, s14" % NM[1]]
        for tt in range(4):
            s_ = 128 + 2 * tt
            o += ["v_and_b32 v%d, 0xffff0000, v%d" % (s_, s_), "v_rcp_f32 v%d, v%d" % (KA + tt, s_), "v_mul_f32 v%d, v%d, v%d" % (KS[tt], s_, s_), "v_mul_f32 v%d, v%d, v%d" % (KB + tt, KA + tt, KA + tt),
                  "v_mul_f32 v%d, %s, v%d" % (KA + tt, f2h(GA), KA + tt), "v_mul_f32 v%d, %s, v%d" % (KB + tt, f2h(0.044715), KB + tt), "v_mul_f32 v%d, v%d, v%d" % (KB + tt, KB + tt, KA + tt)]
        return [(x, None) for x in o]
    wpf_items = [(x, None) for x in ["v_and_b32 v137, 0x1f0, v%d" % VST, "v_mul_u32_u24 v137, 192, v137", "v_mov_b32 v138, s40", "v_mov_b32 v139, s41", "v_cmp_gt_u32 vcc, 512, v%d" % VST,
                 "s_mul_i32 s14, s61, 98304", "s_mul_i32 s69, s37, 384", "v_cndmask_b32 v138, v139, v138, vcc", "s_add_u32 s14, s14, s69", "v_add_u32 v137, v137, v138"]] + \
                [("buffer_load_dword v139, v137, s[20:23], s14 offen offset:%d" % (128 * q), ("vm", "wp")) for q in range(1, 1 + C.wpn)]
    def refill():
        nonlocal wiss, xiss
        n = 0
        while n < 2 or (n < 3 and len(freew) + len(freex) > 0 and False):
            if xiss < 10 and freex and xiss <= wiss: sc.dq += dmax(xiss, freex.pop(0)); xiss += 1
            elif wiss < 30 and freew: sc.dq += dma(wiss, freew.pop(0)); wiss += 1
            elif xiss < 10 and freex: sc.dq += dmax(xiss, freex.pop(0)); xiss += 1
            else: break
            n += 1
    assert C.sl0 <= 6
    for k in range(4): a("v_mov_b32 v%d, 0x3f803f80" % (ON + k))
    refill(); sc.flush(sc.dq)
    if C.wpf == 0: sc.flush(wpf_items)
    wait(a, vm=vm.need(("w", 0))); a("s_barrier"); tr.mark()
    xq = xreads(0)
    for it in wreads(0) + xq[:4] + wreads(1) + wreads(2) + wreads(3) + xq[4:]: sc.emit(it)
    xq = []
    refill(); sc.sp = 1
    wait(a, lg=lg.need(("w", 0), ("x", 0, 0, 3)))
    for P in range(120):
        s_ = P // 4; p, j = s_ // 10, s_ % 10; kk = (P >> 1) & 1
        if P % 40 == 1 and p >= 1: sc.fq += epilogue(p - 1) + [("LATER", (C.sd, sig(p - 1)))]
        Pn = P + 2; bar = Pn < 120 and Pn % 4 == 0; wr = None
        for i in range(8):
            g = 2 * P + (i >> 2); wt = g & 3; tt = i & 3
            c = ACC[p % 2] + (wt * 4 + tt) * 4; b = WF + (g % 6) * 4
            if i == 0 and bar: sc.flush(sc.dq)
            a("v_mfma_f32_16x16x32_bf16 %s, %s, %s, %s" % (R(c), R(b), R(X(j, kk, tt)), "0" if (j == 0 and kk == 0) else R(c)))
            if i == 0 and bar:
                s2 = Pn // 4; j2 = s2 % 10; p2_ = s2 // 10
                wait(a, vm=vm.need(("w", s2), opt=[("x", s2)] + (["wp"] if s2 == 10 else []))); a("s_barrier"); tr.mark()
                sc.sp = C.sp
                if s2 - 1 < 10: freex.append(xpos[s2 - 1])
                if xiss == 10 and not C.ldw: freew += [x for x in freex if x < 8]; freex.clear()
                if s2 >= 2: freew.append(wpos[s2 - 2])
                refill()
                if s2 == C.wpf: sc.dq += wpf_items
                if s2 == C.sl0 and not C.off & 16: sc.dq += [(l, ("vm", "stl")) for l in st_loads]
                if s2 == C.sl0 + 2 and not C.off & 16: sc.dq += [("WAITVM", "stl")] + tag_check("STF", st_loads, [129, 131, 133, 135], 136) + st_consts()
                if s2 == C.pfc and not C.tr: sc.dq += [(flag_load(PFR, "s35", 28), ("vm", "pf"))]
                if s2 == C.pfc + 2 and not C.tr: sc.dq += [("WAITVM", "pf")] + flag_check("FFN_pf", PFR, "s35", 28, 0)
                if C.ldw and C.pfc + 3 <= s2 < C.pfc + 9:
                    x_ = w2_lds(12 + (s2 - C.pfc - 3) // 2, VST); sc.dq += (x_[:4] if (s2 - C.pfc - 3) % 2 == 0 else x_[:2] + x_[4:])
                if s2 >= max(22, C.pfc + 2):
                    if not sc.dq: sc.sp = C.sp3
                    while len(sc.lq) < C.w2n:
                        ok = [i for i in w2q if (i < 12 and 20 * i + 20 <= 32 * (s2 - 21) + 16) or (12 <= i < 15 and not sc.fq)]
                        if not ok: break
                        w2q.remove(ok[0]); sc.lq += w2_loads(ok[0], VST)
                if s2 == 28: assert not sc.fq; sc.dq += [(flag_load(164, "s35", 28, 0), ("vm", "fe"))] + act_voffs(VST)
                if s2 < 10: xq = xreads(s2)
                sc.n += 1; sc.since += 1
                continue
            if wr is None: wr = (wreads(2 * Pn) + wreads(2 * Pn + 1)) if Pn < 120 else []
            must = []
            if wr and (i % 2 == 1): must.append(wr.pop(0))
            elif xq and (i % 4 == 2 or not sc.dq): must.append(xq.pop(0))
            if xq and i == 3 and (Pn % 2) == 0: must.append(xq.pop(0))
            if P % 40 == 8 and i == 4 and not C.off & 2: sc.dq = cs_out(p) + sc.dq
            if C.off & 4: pass
            elif P % 40 == C.ae0 and i == 1: sc.dq += ae_in(p)
            elif P % 40 == 34 and i == 1: sc.dq = ae_chk(p) + sc.dq
            if P % 40 == 36 and i == 0:
                while any("v_swap" in x[0] for x in sc.dq): sc.emit(sc.dq.pop(0))
            if P == 116 and i == 0:
                for k in [k for k in w2q if k <= 15]: w2q.remove(k); sc.lq += w2_loads(k, VST)
            if j == 9 and i == 4: must += [("v_perm_b32 v%d, v%d, v%d, s%d" % (BP[P & 1] + k, NM[(P & 3) >> 1], NM[(P & 3) >> 1], 4 + (P & 1)), None) for k in range(2)]
            if P % 40 == 4 and i == 0: must += [("v_mov_b32 v%d, s74" % (ON + k), None) for k in range(4)]
            if P % 40 == 0 and i == 0 and p > 0: must += [("v_mov_b32 v%d, 0x3f803f80" % (ON + k), None) for k in range(4)]
            slots = 2
            left = (39 - P % 40) * 8 + 8 - i - (C.e1 if p < 2 else C.e2)
            need_rate = sc.fc() / max(left, 1) + 0.9
            if need_rate > 2 and p > 0: slots = int(need_rate + 0.99)
            extra = j < 2 or j == 9
            if i == 7: slots -= 1
            if i == 7 and j < 2 and not C.off & 1: slots = 0
            sc.gap(must, slots)
        if j < 2 and not C.off & 1:
            a("s_cmp_lg_u32 s60, %d" % (P & 1)); a("s_cbranch_scc1 CSK%d" % P)
            for k in range(2): a("v_mfma_f32_16x16x32_bf16 %s, %s, %s, %s" % (R(CS + 4 * k), R(ON), R(WF + ((2 * P + k) % 6) * 4), "0" if P % 40 < 2 else R(CS + 4 * k)))
            a("CSK%d:" % P)
        corr = [(w, P & 3, BP[P & 1]) for w in range(4)] if j == 9 else []
        if C.off & 8: corr = []
        for k, (w, t_, bp) in enumerate(corr):
            c = ACC[p % 2] + (w * 4 + t_) * 4
            a("v_mfma_f32_16x16x16_bf16 %s, %s, %s, %s" % (R(c), R(AE + 4 * w, 2), R(bp, 2), R(c)))
            sc.gap([], 2 if k < len(corr) - 1 else 1)
        if P + 1 < 120:
            s3 = (P + 1) // 4
            wait(a, lg=lg.need(("w", P + 1), ("x", s3 % 10, ((P + 1) >> 1) & 1, 3)))
        if P % 40 == 39: assert not sc.fq, (P, len(sc.fq))
    stamp(a, 2); tr.mark(); tr.flush(16)
    sc.flush(sc.dq)
    print("FFN after loop: W2 left", w2q, "lq", len(sc.lq), "timed", len(sc.timed))
    rest = list(sc.lq); sc.lq = []
    for i in [i for i in w2q if i < 8]: rest += w2_loads(i, VST)
    rest += [("WAITVM", "fe"), ("\n".join(x[0] for x in flag_check("FFN_fe", 164, "s35", 28, 1, 0)), None)]
    for i in range(4): rest += act_loads(i)
    for i in [i for i in w2q if i >= 8]: rest += w2_loads(i, VST)
    nrest = sum(1 for x in rest if ismem(x[0])) + 2
    a("s_nop 7")
    for k, it in enumerate(epilogue(2, [16, 17, 18, 19])):
        sc.emit(it)
        if k % max(2, min(C.eps, (C.fk - 4) // max(1, nrest))) == 0 and rest:
            sc.emit(rest.pop(0))
            if rest and not ismem(rest[0][0]): sc.emit(rest.pop(0))
        if k == C.fk: a(flag_load(164, "s35", 28, 16)); a(flag_load(20, "s35", 28, 0)); vm.issue("f2"); vm.issue("f2"); assert not rest and 207 <= k < 275 and C.sg1 < k
        if k == C.sg1:
            for t in sc.timed:
                for x in t[1]: sc.emit(x)
    a("v_mov_b32 v7, v%d" % VST); a("s_mov_b32 s71, 3"); a("s_branch P2")

def att(a, vm):
    a("K_att:")
    WSL = 15360; NW = 5; XB = NW * WSL; XSL = 18432; PB = XB + 3 * XSL; RS = 496; OB = 73728
    lg = Q(15); sc = Sched(a, vm, lg, C.spa)
    VWO = [3, 4, 5, 6]; VWR = [7, 8]; VXR = [9, 10]; VXO = [11, 12]; VF1, VL = 13, 14
    TT = 16; PV = 212; PR = 216; FL = 1; FR = [160, 460]; KR_ = 212
    def acc(t, u): return 16 + 4 * (t * 9 + u)
    a("v_lshrrev_b32 v%d, 3, v2" % TT); a("v_mul_u32_u24 v%d, 1280, v%d" % (TT, TT)); a("v_and_b32 v%d, 7, v2" % (TT + 1)); a("v_lshrrev_b32 v%d, 4, v2" % (TT + 2)); a("v_xor_b32 v%d, v%d, v%d" % (TT + 1, TT + 1, TT + 2))
    a("v_lshl_add_u32 v%d, v%d, 4, v%d" % (TT + 8, TT + 1, TT)); a("v_xor_b32 v%d, 64, v%d" % (TT + 9, TT + 8))
    a("s_lshl_b32 s68, s36, 3"); a("s_add_u32 s68, s68, s32"); a("s_mul_i32 s68, s68, 20480"); a("v_add_u32 v%d, s68, v%d" % (VXO[0], TT + 8)); a("s_add_u32 s68, s68, 9216"); a("v_add_u32 v%d, s68, v%d" % (VXO[1], TT + 9))
    a("s_lshl_b32 s66, s32, 12"); a("s_lshl_b32 s65, s32, 11"); a("s_add_u32 s65, s65, %d" % XB)
    def dmaX(gm):
        c, hf = gm >> 1, gm & 1
        return [("s_add_u32 m0, s65, %d" % ((c % 3) * XSL + hf * 8192), None), ("s_add_u32 s69, s%d, %d" % (50 + c, hf * 81920), None)] + \
               [("buffer_load_dwordx4 v%d, s[16:19], s69 offen offset:%d lds" % (VXO[k], 1024 * k), ("vm", ("g", gm))) for k in range(2)]
    for it in dmaX(0) + dmaX(1): sc.emit(it)
    a.srd(20, 6, 2457600)
    for i in range(4):
        a("s_lshl_b32 s68, s32, 8"); a("s_add_u32 s68, s68, %d" % (64 * i)); a("v_add_u32 v%d, s68, v2" % TT)
        a("v_mul_u32_u24 v%d, 2185, v%d" % (TT + 1, TT)); a("v_lshrrev_b32 v%d, 16, v%d" % (TT + 1, TT + 1))
        a("v_mul_u32_u24 v%d, 30, v%d" % (TT + 2, TT + 1)); a("v_sub_u32 v%d, v%d, v%d" % (TT + 2, TT, TT + 2))
        a("v_mul_u32_u24 v%d, 205, v%d" % (TT + 3, TT + 2)); a("v_lshrrev_b32 v%d, 11, v%d" % (TT + 3, TT + 3))
        a("v_mul_u32_u24 v%d, 1120, v%d" % (TT + 3, TT + 3)); a("v_lshl_add_u32 v%d, v%d, 4, v%d" % (TT + 3, TT + 2, TT + 3))
        a("v_bfe_u32 v%d, v%d, 2, 2" % (TT + 4, TT + 1)); a("v_lshlrev_b32 v%d, 3, v%d" % (TT + 4, TT + 4))
        a("v_bfe_u32 v%d, v%d, 4, 1" % (TT + 2, TT + 1)); a("v_lshl_add_u32 v%d, v%d, 2, v%d" % (TT + 4, TT + 2, TT + 4))
        a("v_and_b32 v%d, 3, v%d" % (TT + 2, TT + 1)); a("v_add_u32 v%d, v%d, v%d" % (TT + 4, TT + 4, TT + 2))
        a("v_mul_u32_u24 v%d, 3840, v%d" % (TT + 4, TT + 4)); a("s_mul_i32 s68, s37, 160"); a("s_sub_u32 s68, s68, %d" % (1024 * i if i < 3 else 0))
        a("v_add3_u32 v%d, v%d, v%d, s68" % (VWO[i], TT + 4, TT + 3))
    a("s_mul_i32 s68, s36, 163840"); a("s_sub_u32 s68, s68, 20480"); a("s_cmp_eq_u32 s36, 0"); a("s_cselect_b32 s68, 0x%x, s68" % OOB)
    a("v_add_u32 v%d, s68, v%d" % (TT + 8, TT + 8)); a("s_add_u32 s68, s68, 10240"); a("v_add_u32 v%d, s68, v%d" % (TT + 9, TT + 9))
    a("s_cmp_eq_u32 s32, 3")
    for i in range(3): a("s_cselect_b32 s%d, s%d, s%d" % (72 + i, 16 + i, 20 + i))
    a("s_mov_b32 s75, 0x00020000"); a("s_cselect_b64 vcc, -1, 0"); a("v_cndmask_b32 v%d, v%d, v%d, vcc" % (VF1, VWO[3], TT + 9)); a("v_cndmask_b32 v%d, v%d, v%d, vcc" % (VWO[3], VWO[3], TT + 8))
    def dmaW(gm):
        c, hf = gm >> 1, gm & 1
        return [("s_add_u32 m0, s66, %d" % ((gm % NW) * WSL), None), ("s_add_u32 s68, s%d, %d" % (40 + c, hf * 122880), None)] + \
               [("buffer_load_dwordx4 v%d, s[20:23], s68 offen offset:%d lds" % (VWO[k], 1024 * k), ("vm", ("g", gm))) for k in range(3)] + \
               [("s_add_u32 s69, m0, 3072", None), ("s_cmp_eq_u32 s32, 3\ns_cselect_b32 m0, %d, s69" % (XB + (c % 3) * XSL + 16384 + 1024 * hf), None), ("s_cmp_eq_u32 s32, 3\ns_cselect_b32 s68, s%d, s68" % (50 + c), None),
                ("buffer_load_dwordx4 v%d, s[72:75], s68 offen lds" % (VF1 if hf else VWO[3]), ("vm", ("g", gm)))]
    for it in dmaW(0) + dmaW(1): sc.emit(it)
    raise_ready(a, vm, "att")
    for gm in range(2, C.na0):
        for it in dmaX(gm) + dmaW(gm): sc.emit(it)
    a("v_lshrrev_b32 v%d, 2, v2" % TT); a("v_mul_u32_u24 v%d, 480, v%d" % (TT, TT)); a("v_and_b32 v%d, 3, v2" % (TT + 1)); a("v_lshl_add_u32 v%d, v%d, 3, v%d" % (TT, TT + 1, TT))
    a("s_lshl_b32 s60, s32, 7"); a("v_add_u32 v%d, s60, v%d" % (VWR[0], TT)); a("v_add_u32 v%d, %d, v%d" % (VWR[1], 3 * WSL, VWR[0]))
    a("v_bfe_u32 v%d, v2, 1, 3" % TT); a("v_lshrrev_b32 v%d, 4, v2" % (TT + 1)); a("v_xor_b32 v%d, v%d, v%d" % (TT, TT, TT + 1)); a("v_lshlrev_b32 v%d, 4, v%d" % (TT, TT))
    a("v_and_b32 v%d, 15, v2" % (TT + 1)); a("v_lshl_add_u32 v%d, v%d, 7, v%d" % (TT, TT + 1, TT)); a("v_add_u32 v%d, %d, v%d" % (VXR[0], XB, TT)); a("v_xor_b32 v%d, 64, v%d" % (VXR[1], VXR[0]))
    a("v_lshlrev_b32 v15, 3, v%d" % (TT + 1))
    for l in ["s_xor_b32 s71, s32, %d" % 0, "s_sub_u32 s4, s2, 128", "s_mul_i32 s4, s4, 3", "s_add_u32 s4, s4, s71", "s_cmp_lt_u32 s71, 3", "s_cselect_b32 s4, s4, 500", "s_lshr_b32 s5, s4, 2", "s_sub_u32 s6, s5, 20",
              "s_cmp_lt_u32 s5, 20", "s_cselect_b32 s6, s5, s6", "s_cselect_b32 s8, s14, s96", "s_cselect_b32 s9, s15, s97", "s_cselect_b32 s10, 0, 0x118000", "s_cselect_b32 s13, 2, 1", "s_cselect_b32 s14, 1, 4",
              "s_add_u32 s10, s10, 819200", "s_and_b32 s9, s9, 0xffff", "s_mov_b32 s11, 0x00020000",
              "s_mul_i32 s6, s6, 40960", "s_and_b32 s7, s4, 3", "s_mul_i32 s12, s7, s13", "s_mul_i32 s12, s12, 5120", "s_add_u32 s6, s6, s12", "s_mul_i32 s14, s14, 5120", "s_add_u32 s14, s14, s6",
              "s_mul_i32 s5, s5, 5120", "s_lshl_b32 s7, s7, 8", "s_add_u32 s5, s5, s7", "s_add_u32 s5, s5, %d" % W2P_OFF, "s_cmp_lt_u32 s4, 272", "s_cselect_b32 s4, s5, 0x%x" % OOB, "s_add_u32 s5, s4, %d" % (272 * 5120),
              "s_mul_i32 s7, s71, 10240", "s_add_u32 s7, s7, %d" % PB, "s_cmp_lt_u32 s71, 3", "s_cselect_b32 s7, s7, 0x30000", "s_mov_b32 s15, %d" % (68 * 5120)]: a(l)
    a("s_lshl_b32 s61, s36, 1"); a("s_lshr_b32 s69, s32, 1"); a("s_add_u32 s61, s61, s69"); a("s_mul_i32 s61, s61, %d" % (68 * 4096))
    a("s_and_b32 s69, s32, 1"); a("s_lshl_b32 s69, s69, 11"); a("s_add_u32 s61, s61, s69"); a("s_mov_b32 s39, %s" % f2h(20 ** -0.5 * 1.4426950408889634))
    a("s_mul_i32 s62, s32, %d" % (32 * RS)); a("s_mul_i32 s63, s32, 5120"); a("s_add_u32 s63, s63, %d" % OB); a("s_mul_i32 s64, s37, 10")
    a("s_mov_b32 s94, 0xfffefffe"); a("s_mov_b32 s95, 0xfffefffe")
    common_setup(a, "att")
    a("s_sub_u32 s38, s79, %d" % (16384 - 896)); a("s_cmp_eq_u32 s36, 0"); a("s_cselect_b32 s38, s79, s38")
    a("v_mov_b32 v%d, 0x3f803f80" % (FR[0] + 16))
    for k in range(4): a("v_mov_b32 v%d, 0x3f803f80" % (FR[0] + 16 + k)); a("v_accvgpr_write_b32 a%d, v%d" % (FR[1] - 256 + 16 + k, FR[0] + 16))
    stats(a, vm, 252, 254, 255, "att")
    stamp(a, 1)
    tr = Trace(a, 0); tr.lv = VL; tr.mark()
    def reads(s_):
        fb = FR[s_ % 2]; pos = s_ % NW; c = s_ >> 1; kh = s_ & 1
        def xr(u):
            l = "ds_read_b128 %s, v%d offset:%d" % (R(fb + 16 + 4 * u), VXR[kh], (c % 3) * XSL + (2048 * (u - 1) if u else 16384))
            return (l if u else "s_mov_b64 exec, s[94:95]\n" + l + "\ns_mov_b64 exec, -1", None)
        def wr(t, tt): return ("ds_read_b64_tr_b16 %s, v%d offset:%d" % (R(fb + 4 * t + 2 * tt, 2), VWR[pos // 3], (pos % 3) * WSL + 7680 * tt + 32 * t), None)
        out = [wr(0, 0), wr(0, 1)] + [xr(u) for u in range(9)]
        for t in range(1, 4): out += [wr(t, 0), wr(t, 1)]
        return out
    def pack_ld(tt, o, n):
        return [("s_add_u32 m0, s7, %d" % (5120 * tt + o), None), ("s_add_u32 s12, s%d, %d" % (14 if tt else 6, o), None)] + [("buffer_load_dwordx4 v%d, s[8:11], s12 offen offset:%d lds" % (VL, 1024 * i), ("vm", "pk")) for i in range(n)]
    V = PV
    pack_addr = [(x, None) for x in ["v_lshrrev_b32 v%d, 4, v2" % (V + 1), "v_mul_u32_u24 v%d, 160, v%d" % (V, V + 1), "v_mul_lo_u32 v%d, v%d, s15" % (V + 1, V + 1),
                "v_bfe_u32 v%d, v2, 2, 2" % (V + 2), "v_mul_u32_u24 v%d, 1280, v%d" % (V + 2, V + 2), "v_add_u32 v%d, v%d, v%d" % (V, V, V + 2),
                "v_and_b32 v%d, 3, v2" % (V + 2), "v_lshlrev_b32 v%d, 3, v%d" % (V + 2, V + 2), "v_add3_u32 v%d, v%d, v%d, s7" % (V + 3, V, V + 2), "v_add_u32 v%d, v%d, v%d" % (V, V + 3, V + 2),
                "v_and_b32 v%d, 15, v2" % (V + 2), "v_lshl_add_u32 v%d, v%d, 4, v%d" % (V + 1, V + 2, V + 1), "v_add_u32 v%d, 4096, v%d" % (V + 2, V + 1)]]
    def pack_rd(hf): return [("WAITVM", "pk")] + [("ds_read_b64_tr_b16 %s, v%d offset:%d" % (R(PR + 4 * i + 2 * tt, 2), PV if i < 4 else PV + 3, 64 * (i >> 1) + 8 * (i & 1) + 5120 * tt + 640 * hf), None) for i in range(5) for tt in range(2)]
    def pack_st(hf): return [("buffer_store_dwordx4 %s, v%d, s[28:31], s%d offen offset:%d sc1" % (R(PR + 4 * i), PV + 1 if i < 4 else PV + 2, 4 + hf, 1024 * (i % 4)), ("vm", "pst")) for i in range(5)]
    pack_all = pack_ld(0, 0, 4) + pack_ld(0, 4096, 1) + pack_ld(1, 0, 4) + pack_ld(1, 4096, 1)
    patom = [("v_mov_b32 v%d, 1\ns_lshl_b32 s13, s32, 12" % PV, None), ("s_mov_b64 exec, 1\nbuffer_atomic_add v%d, off, s[24:27], s13 offset:128 sc0 sc1\ns_mov_b64 exec, -1" % PV, ("vm", "pa"))]
    T2 = 232; AQ, AV, VI, VQW, TOK, VOR = T2, T2 + 1, T2 + 2, T2 + 3, T2 + 4, T2 + 5; SO = T2 + 6; GO = T2 + 11; t0, t1, t2, t3 = T2 + 16, T2 + 17, T2 + 18, T2 + 19
    ad = []
    def rowaddr(dst, hh, i):
        ad.extend(["v_bfe_u32 v%d, v2, 4, 1" % TOK, "v_lshlrev_b32 v%d, 3, v%d" % (TOK, TOK), "v_bfe_u32 v%d, v2, 5, 1" % t0, "v_add_u32 v%d, v%d, v%d" % (TOK, TOK, t0),
                   "v_bfe_u32 v%d, v2, %d, 2" % (t0, i), "v_lshl_add_u32 v%d, v%d, 1, v%d" % (TOK, t0, TOK), "v_mul_u32_u24 v%d, %d, v%d" % (t1, RS, TOK),
                   "v_bfe_u32 v%d, v2, %d, 2" % (t0, hh), "v_mul_u32_u24 v%d, 40, v%d" % (t0, t0), "v_add3_u32 v%d, v%d, v%d, s62" % (dst, t1, t0)])
    rowaddr(AV, 0, 2); rowaddr(AQ, 2, 0)
    ad += ["v_and_b32 v%d, 3, v2" % VI, "v_lshrrev_b32 v%d, 3, v%d" % (t0, t0), "v_lshl_add_u32 v%d, v%d, 4, s63" % (t2, TOK), "v_add_u32 v%d, s63, v%d" % (VOR, VL)]
    for dp in range(5):
        ad += ["v_add_u32 v%d, %d, v%d" % (t1, dp, t0), "v_lshrrev_b32 v%d, 1, v%d" % (SO + dp, t1), "v_lshl_add_u32 v%d, v%d, 8, v%d" % (SO + dp, SO + dp, t2),
               "v_and_b32 v%d, 1, v%d" % (t1, t1), "v_lshl_add_u32 v%d, v%d, 3, v%d" % (SO + dp, t1, SO + dp)]
    ad += ["v_lshrrev_b32 v%d, 4, v2" % t0, "v_and_b32 v%d, 15, v2" % t2, "v_mul_u32_u24 v%d, %d, v%d" % (VQW, RS, t2), "v_lshl_add_u32 v%d, v%d, 3, v%d" % (VQW, t0, VQW), "v_add_u32 v%d, s60, v%d" % (VQW, VQW),
           "v_lshlrev_b32 v%d, 4, v%d" % (t2, t2)]
    for j in range(5):
        ad += ["v_add_u32 v%d, %d, v%d" % (t1, 4 * j, t0), "v_mul_u32_u24 v%d, 13, v%d" % (t3, t1), "v_lshrrev_b32 v%d, 7, v%d" % (t3, t3), "v_lshl_add_u32 v%d, v%d, 10, v%d" % (GO + j, t3, t2),
               "v_mul_u32_u24 v%d, 10, v%d" % (t3, t3), "v_sub_u32 v%d, v%d, v%d" % (t1, t1, t3), "v_add_u32 v%d, s64, v%d" % (t1, t1),
               "v_lshrrev_b32 v%d, 2, v%d" % (t3, t1), "v_lshl_add_u32 v%d, v%d, 12, v%d" % (GO + j, t3, GO + j), "v_and_b32 v%d, 3, v%d" % (t3, t1), "v_lshl_add_u32 v%d, v%d, 8, v%d" % (GO + j, t3, GO + j)]
    ad += ["v_cmp_gt_u32 s[%d:%d], %d, v%d" % (4 + 2 * k, 5 + 2 * k, k, VI) for k in range(1, 4)]
    k0 = C.pk0
    st_loads = ["buffer_load_dwordx2 v[%d:%d], v15, s[28:31], s%d offen offset:%d sc1" % (KR_ + 2 * u, KR_ + 2 * u + 1, 79 if u else 38, 128 * (u - 1) if u else 0) for u in range(9)]
    st_c = ["v_and_b32 v%d, 0xffff0000, v%d" % (KR_ + 2 * u + 1, KR_ + 2 * u) for u in range(9)] + ["v_lshlrev_b32 v%d, 16, v%d" % (KR_ + 2 * u, KR_ + 2 * u) for u in range(9)] + ["v_rcp_f32 v%d, v%d" % (KR_ + 2 * u + 1, KR_ + 2 * u + 1) for u in range(9)] + ["v_mul_f32 v%d, v%d, v%d" % (KR_ + 2 * u, KR_ + 2 * u, KR_ + 2 * u + 1) for u in range(9)]
    fex = {2: pack_addr, k0: pack_rd(0), k0 + 1: pack_st(0) + pack_rd(1)[1:], k0 + 2: pack_st(1), k0 + 4: patom,
           k0 + 6: [("WAITVM", "pa"), ("v_readfirstlane_b32 s100, v%d\ns_and_b32 s100, s100, 127\ns_cmp_eq_u32 s100, 127\ns_cbranch_scc1 ATT_bcast\nATT_bcast_ok:" % PV, None)] + [(x, None) for x in ad],
           C.sla + 3: [("WAITVM", "stl")] + tag_check("STA", st_loads, [KR_ + 2 * u + 1 for u in range(9)], 230) + [(x, None) for x in st_c]}
    assert C.sla > k0 + 6
    w2q = list(range(12)); giss = C.na0
    CB = t0
    def wr_tile(t, u):
        c = acc(t, u); o = []
        if u == 0: o += ["v_mov_b32_dpp v%d, v%d row_newbcast:0 row_mask:0xf bank_mask:0xf" % (CB + r, c + r) for r in range(4)]
        o += ["v_mul_f32 v%d, v%d, v%d" % (c + r, c + r, KR_ + 2 * u + 1) for r in range(4)] + ["v_fmac_f32 v%d, v%d, v%d" % (c + r, CB + r, KR_ + 2 * u) for r in range(4)]
        o += ["v_cvt_pk_bf16_f32 v%d, v%d, v%d" % (c, c, c + 1), "v_cvt_pk_bf16_f32 v%d, v%d, v%d" % (c + 1, c + 2, c + 3), "ds_write_b64 v%d, %s offset:%d" % (VQW, R(c, 2), 16 * RS * u + 32 * t)]
        return o
    while giss < 4:
        for it in dmaX(giss) + dmaW(giss): sc.emit(it)
        giss += 1
    wait(a, vm=vm.need(("g", 1))); a("s_barrier"); tr.mark()
    for it in reads(0): sc.emit(it)
    sc.dq += dmaX(4) + dmaW(4)
    eq = []
    for s_ in range(20):
        fb = FR[s_ % 2]
        a("s_waitcnt lgkmcnt(0)")
        rq = []
        for i in range(36):
            t, u = i // 9, i % 9; c = acc(t, u)
            a("v_mfma_f32_16x16x32_bf16 %s, %s, %s, %s" % (R(c), R(fb + 4 * t), R(fb + 16 + 4 * u), "0" if s_ == 0 else R(c)))
            if i == 0:
                if s_ < 19: wait(a, vm=vm.need(*([("g", (s_ + 1) | 1)] + (["pst"] if s_ == k0 + 4 else []))))
                a("s_barrier"); tr.mark()
                if s_ < 19: rq = reads(s_ + 1)
                if s_ + NW < 20: sc.dq += dmaX(s_ + NW) + dmaW(s_ + NW)
                sc.sp = C.spa
                if s_ == 0: sc.sp = 1
                if s_ == C.pkl: sc.dq += pack_all[:9]; sc.sp = 2
                if s_ == C.pkl + 1: sc.dq += pack_all[9:]; sc.sp = 2
                if s_ in fex: sc.fq += fex[s_]
                if C.sla <= s_ < C.sla + 3: sc.dq += [(l, ("vm", "stl")) for l in st_loads[3 * (s_ - C.sla):3 * (s_ - C.sla) + 3]]; sc.sp = 2
                if s_ == C.apc: sc.dq += [(flag_load(FL, "s35", 28), ("vm", "pf"))]
                if s_ == C.apc + 2:
                    sc.lq += [("WAITVM", "pf"), ("\n".join(x[0] for x in flag_check("ATT_pf", FL, "s35", 28, 0)), None)]
                    for _ in range(C.aw2): sc.lq += w2_loads(w2q.pop(0), VL)
                if s_ >= 15: sc.sp = 3
                sc.n += 1; sc.since += 1
                continue
            if s_ == 19:
                if i >= 8 and i - 8 < 27: eq += wr_tile((i - 8) // 9, (i - 8) % 9)
                if i < 8: sc.gap([], 2)
                for _ in range(4):
                    if eq: a(eq.pop(0))
                continue
            sc.gap([rq.pop(0)] if (rq and i % 3 != 0) else [], 2 - (1 if i == 35 else 0))
        sc.flush(sc.dq)
        if s_ <= k0 + 4 or s_ == 18 or s_ == C.sla - 1: sc.flush(sc.fq)
    stamp(a, 2); tr.mark()
    for k, x in enumerate(eq):
        a(x)
        if k % 12 == 0 and sc.lq:
            sc.emit(sc.lq.pop(0))
            if sc.lq and not ismem(sc.lq[0][0]): sc.emit(sc.lq.pop(0))
    a("s_cmp_eq_u32 s32, 3"); a("s_cbranch_scc1 K_att_s3")
    for u in range(9):
        for x in wr_tile(3, u): a(x)
    a("K_att_s3:")
    a("s_waitcnt lgkmcnt(0)"); tr.mark(); a("s_barrier")
    a("s_mul_i32 s12, s32, 15360"); a("s_add_u32 s12, s12, 94208")
    for i in w2q: sc.lq += w2_loads(i, VL)
    w2q = [15, 16]
    for i in range(12, 15): sc.lq += [(x[0].replace("s68", "s69"), x[1]) for x in w2_lds(i, VL)]
    QR = [80, 150]; Sx = [16, 48]; O = [80, 150]
    def KR(e, kb): return QR[e] + 10 + 10 * kb
    def VR(e, kb): return QR[e] + 40 + 10 * kb
    def lqpop(n=1):
        for _ in range(n):
            while sc.lq and not ismem(sc.lq[0][0]): sc.emit(sc.lq.pop(0))
            if sc.lq: sc.emit(sc.lq.pop(0))
    for e in range(2):
        for dp in range(5): a("ds_read_b64 %s, v%d offset:%d" % (R(QR[e] + 2 * dp, 2), AQ, (16 + 16 * e) * RS + 8 * dp)); lg.issue(("k", e))
        for kb in range(3):
            if e == 1 and kb == 0: continue
            for dp in range(5): a("ds_read_b64 %s, v%d offset:%d" % (R(KR(e, kb) + 2 * dp, 2), AQ, (8 * kb + 16 * e) * RS + 160 + 8 * dp)); lg.issue(("k", e))
    def KK(e, kb): return KR(0, 2) if (e == 1 and kb == 0) else KR(e, kb)
    def VV(e, kb): return VR(0, 2) if (e == 1 and kb == 0) else VR(e, kb)
    for e in range(2):
        wait(a, lg=lg.need(("k", e)))
        for dp in range(5):
            for kb in range(3):
                a("v_mfma_f32_4x4x4_16b_bf16 %s, %s, %s, %s" % (R(Sx[e] + 4 * kb), R(KK(e, kb) + 2 * dp, 2), R(QR[e] + 2 * dp, 2), "0" if dp == 0 else R(Sx[e] + 4 * kb)))
                if kb == 0: lqpop()
                if not (e == 1 and kb == 0): a("ds_read_b64_tr_b16 %s, v%d offset:%d" % (R(VR(e, kb) + 2 * dp, 2), AV, (8 * kb + 16 * e) * RS + 320 + 8 * dp)); lg.issue(("v", e))
    a("s_nop 3")
    a("s_or_b32 s68, s36, s32"); a("s_cmp_lg_u32 s68, 0"); a("s_cbranch_scc1 K_att_nomask")
    Z = Sx[0] + 20
    a("v_lshlrev_b32 v%d, 1, v%d" % (Z, VI)); a("v_sub_u32 v%d, v%d, v%d" % (Z, TOK, Z)); a("v_mov_b32 v%d, 0xff800000" % (Z + 1))
    for k in range(1, 8): a("v_cmp_gt_u32 vcc, %d, v%d" % (16 - 2 * k, Z)); a("s_nop 1"); a("v_cndmask_b32 v%d, v%d, v%d, vcc" % (Sx[0] + k, Sx[0] + k, Z + 1))
    a("K_att_nomask:")
    tr.mark()
    a(flag_load(72, "s35", 28, 0)); vm.issue("fe")
    def soft(S):
        Z = S + 20; P = S + 12; o = []; M = lambda k: "s[%d:%d]" % (4 + 2 * k, 5 + 2 * k)
        o += ["v_cndmask_b32 v%d, v%d, v%d, %s" % (S + k, S + k + 8, S + k, M(k)) for k in range(1, 4)]
        o += ["v_max3_f32 v%d, v%d, v%d, v%d" % (Z + 1, S + 4, S + 5, S + 6), "v_max3_f32 v%d, v%d, v%d, v%d" % (Z, S + 1, S + 2, S + 3),
              "v_max3_f32 v%d, v%d, v%d, v%d" % (Z + 1, Z + 1, S + 7, S + 8), "v_max_f32 v%d, v%d, v%d" % (Z, Z, Z + 1), "v_mul_f32 v%d, s39, v%d" % (Z, Z)]
        o += ["v_fma_f32 v%d, v%d, s39, -v%d" % (S + k, S + k, Z) for k in range(1, 9)]
        o += ["v_exp_f32 v%d, v%d" % (S + k, S + k) for k in range(1, 9)]
        o += ["v_add_f32 v%d, v%d, v%d" % (Z, S + 1, S + 2), "v_add_f32 v%d, v%d, v%d" % (Z + 1, S + 3, S + 4), "v_add_f32 v%d, v%d, v%d" % (Z + 2, S + 5, S + 6), "v_add_f32 v%d, v%d, v%d" % (Z + 3, S + 7, S + 8),
              "v_add_f32 v%d, v%d, v%d" % (Z, Z, Z + 1), "v_add_f32 v%d, v%d, v%d" % (Z + 2, Z + 2, Z + 3), "v_add_f32 v%d, v%d, v%d" % (Z, Z, Z + 2), "v_rcp_f32 v%d, v%d" % (Z, Z), "v_mov_b32 v%d, 0" % S]
        o += ["v_mul_f32 v%d, v%d, v%d" % (S + k, S + k, Z) for k in range(1, 9)]
        for k in range(1, 4): o += ["v_cndmask_b32 v%d, v%d, 0, %s" % (S + k + 8, S + k, M(k)), "v_cndmask_b32 v%d, 0, v%d, %s" % (S + k, S + k, M(k))]
        o += ["v_cvt_pk_bf16_f32 v%d, v%d, v%d" % (P + j, S + 2 * j, S + 2 * j + 1) for j in range(6)]
        return o
    for k, (x, y) in enumerate(zip(soft(Sx[0]), soft(Sx[1]))):
        a(x); a(y)
        if k % 4 == 0: lqpop()
    a("s_waitcnt lgkmcnt(0)"); a("s_nop 0")
    def ocvt(e, dp):
        c = O[e] + 4 * dp
        return ["v_cvt_pk_bf16_f32 v%d, v%d, v%d" % (c, c, c + 1), "v_cvt_pk_bf16_f32 v%d, v%d, v%d" % (c + 1, c + 2, c + 3), "ds_write_b64 v%d, %s offset:%d" % (SO + dp, R(c, 2), 2560 * e)]
    q0 = [x for dp in range(5) for x in ocvt(0, dp)]
    for e in range(2):
        for kb in range(3):
            for dp in range(5):
                a("v_mfma_f32_4x4x4_16b_bf16 %s, %s, %s, %s" % (R(O[e] + 4 * dp), R(VV(e, kb) + 2 * dp, 2), R(Sx[e] + 12 + 2 * kb, 2), "0" if kb == 0 else R(O[e] + 4 * dp)))
                if e == 1 and (kb > 0 or dp > 0): a(q0.pop(0))
    for x in q0: a(x)
    for dp in range(5):
        for x in ocvt(1, dp): a(x)
    a("s_waitcnt lgkmcnt(0)")
    for j in range(5): a("ds_read_b128 %s, v%d offset:%d" % (R(44 + 4 * j), VOR, 1024 * j))
    for j in range(5):
        a("s_waitcnt lgkmcnt(%d)" % (4 - j)); a("buffer_store_dwordx4 %s, v%d, s[28:31], s61 offen sc1" % (R(44 + 4 * j), GO + j)); vm.issue("ost")
    tr.mark()
    for it in act_voffs(VL): sc.emit(it)
    wait(a, vm=vm.need("fe")); sc.flush(flag_check("ATT_fe", 72, "s35", 28, 1, 0))
    rest = list(sc.lq); sc.lq = []
    for i in [i for i in w2q if i < 8]: rest += w2_loads(i, VL)
    LATE_LDS = []
    for i in range(4): rest += act_loads(i)
    for i in [i for i in w2q if i >= 8]: rest += w2_loads(i, VL)
    for it in rest[:10]: sc.emit(it)
    wait(a, vm=vm.need("ost")); a("v_add_u32 v40, s1, v2"); a(wave_signal(40, 1))
    tr.sync(); tr.mark(); tr.flush(41)
    for it in rest[10:]: sc.emit(it)
    wait(a, vm=vm.need(("wl", 14))); a("v_add_u32 v9, s12, v%d" % VL)
    for k in range(15): a("ds_read_b128 %s, v9 offset:%d" % (R(104 + 4 * k), 1024 * k))
    a(flag_load(164, "s35", 28, 16)); a(flag_load(20, "s35", 28, 0)); a(flag_load(FL, "s35", 28))
    a("v_mov_b32 v7, v%d" % VL); a("s_mov_b32 s71, 0")

def p2(a):
    vm = Q(63); sc = Sched(a, vm, Q(15), C.sp2)
    VL, VX, VR_ = 7, 8, 9; XR = 12; ACC = 40; STG = 104; FL = 164
    a("P2:")
    for i in range(4):
        for _ in range(4): vm.issue(("a", i))
    vm.issue("ff"); vm.issue("ff"); vm.issue("d")
    stamp(a, 3)
    tr = Trace(a, 11); tr.lv = VL; tr.mark()
    def chk(n, tgt, off): return [("WAITVM", "ff")] + flag_check("P2_f%d" % n, FL, "s35", 28, tgt, off)
    def fl(off): return [(flag_load(FL, "s35", 28, off), ("vm", "ff"))]
    xl = [("buffer_load_dwordx4 %s, v%d, s[16:19], s3 offen" % (R(XR), VX), ("vm", "xr")), ("buffer_load_dwordx4 %s, v%d, s[16:19], s3 offen offset:64" % (R(XR + 4), VX), ("vm", "xr")),
          ("buffer_load_dwordx2 %s, v%d, s[16:19], s3 offen offset:128" % (R(XR + 8, 2), 10), ("vm", "xr"))]
    W = lambda i: w2_loads(i, VL); A = act_loads
    fsig = [("WAITVM", "m"), ("s_cmp_eq_u32 s71, 0\ns_cbranch_scc1 P2_nosig\n" + wave_signal(2, 3) + "\nP2_nosig:", None)]
    chkB = flag_check("P2_f1", 20, "s35", 28, 2, 0)
    fsig[0] = ("WAITVM", "d")
    vx = [(x, None) for x in ["v_and_b32 v9, 0xf0, v7", "v_mul_u32_u24 v9, 80, v9", "v_lshrrev_b32 v12, 8, v7", "v_lshl_add_u32 v%d, v12, 4, v9" % VX, "v_lshl_add_u32 v10, v12, 3, v9"]]
    plan = {0: vx + xl[:2] + chk(0, 1, 16), 1: A(4) + A(5), 2: A(6) + A(7)[:3], 3: A(7)[:1] + A(7)[3:] + A(8), 4: chkB + xl[2:] + A(9), 5: A(10),
            6: A(11), 7: A(12), C.fc: chk(2, 3, 0) + A(13) + A(14)[:3], C.fc + 1: A(14)[:1] + A(14)[3:] + A(15), C.fc + 2: A(16)}
    plan[C.sgs] = fsig + plan[C.sgs]; plan[C.fc - C.fd] = plan.get(C.fc - C.fd, []) + fl(0)
    for i in range(17):
        sc.flush(sc.lq)
        wait(a, vm=vm.need(("a", i), opt=[("w2", i)])); tr.mark()
        if i == C.st4: stamp(a, 4)
        sc.lq = list(plan.get(i, []))
        order = [(t, q) for t in range(5) for q in range(4)] if i < 16 else [(t, q) for q in (1, 2, 3, 0) for t in range(5)]
        if i == 12: a("s_waitcnt lgkmcnt(0)")
        if i == 0:
            sc.fq += [(x, None) for x in ["s_mov_b32 s20, s98", "s_and_b32 s21, s99, 0xffff", "s_mov_b32 s22, 0x%x" % XBYTES, "s_mov_b32 s23, 0x00020000"]]
        if i == 14:
            for q in range(1, 4): sc.fq += [(x, None) for x in ["s_add_u32 s14, s32, %d" % q, "s_and_b32 s14, s14, 3", "s_mul_i32 s14, s14, 15360", "v_add_u32 v%d, s14, v%d" % (2 + q, VL)]]
            sc.fq += [("s_mul_i32 s14, s32, 15360", None), ("v_add_u32 v%d, s14, v%d" % (VR_, VL), None), ("s_barrier", None)]
        wq = [(q, t) for q in range(1, 4) for t in range(5)]
        for k, (t, q) in enumerate(order):
            c = PA(q, t)
            a("v_mfma_f32_16x16x32_bf16 %s, %s, %s, %s" % (R(c), R(W2R(i) + 4 * t), R(AR(i) + 4 * q), "0" if i == 0 else R(c)))
            if i == 16:
                if k >= 8:
                    q_, t_ = wq.pop(0); a("ds_write_b128 v%d, %s offset:%d" % (2 + q_, R(PA(q_, t_)), (q_ - 1) * 5120 + t_ * 1024))
            else: sc.gap([], 2 if k < 19 else 1)
        sc.flush(sc.fq)
    tr.mark()
    for q_, t_ in wq: a("ds_write_b128 v%d, %s offset:%d" % (2 + q_, R(PA(q_, t_)), (q_ - 1) * 5120 + t_ * 1024))
    a("s_waitcnt vmcnt(0)"); a("s_nop 3")
    for t in range(5):
        for p in range(2):
            xr = XR + 2 * t + p; c = ACC + t * 4 + 2 * p
            a("v_lshlrev_b32 v23, 16, v%d" % xr); a("v_and_b32 v22, 0xffff0000, v%d" % xr); a("v_add_f32 v%d, v%d, v23" % (c, c)); a("v_add_f32 v%d, v%d, v22" % (c + 1, c + 1))
    a("s_waitcnt lgkmcnt(0)"); tr.mark(); a("s_barrier"); tr.sync(); tr.mark()
    for t in range(5):
        for s in range(3): a("ds_read_b128 %s, v%d offset:%d" % (R(STG + (t * 3 + s) * 4), VR_, s * 5120 + t * 1024))
    for t in range(5):
        a("s_waitcnt lgkmcnt(%d)" % (12 - 3 * t))
        for s in range(3):
            for r in range(4): a("v_add_f32 v%d, v%d, v%d" % (ACC + t * 4 + r, ACC + t * 4 + r, STG + (t * 3 + s) * 4 + r))
        a("v_cvt_pk_bf16_f32 v%d, v%d, v%d" % (XR + 2 * t, ACC + t * 4, ACC + t * 4 + 1)); a("v_cvt_pk_bf16_f32 v%d, v%d, v%d" % (XR + 2 * t + 1, ACC + t * 4 + 2, ACC + t * 4 + 3))
        if t == 1: a("buffer_store_dwordx4 %s, v%d, s[20:23], s3 offen" % (R(XR), VX))
        if t == 3: a("buffer_store_dwordx4 %s, v%d, s[20:23], s3 offen offset:64" % (R(XR + 4), VX))
    a("buffer_store_dwordx2 %s, v%d, s[20:23], s3 offen offset:128" % (R(XR + 8, 2), 10))
    tr.mark()
    if C.st or C.tr: a("s_waitcnt vmcnt(0)")
    stamp(a, 5); tr.sync(); tr.mark(); tr.flush(23, 1 << 20)

def gen_all():
    a = Asm(); vm = Q(63)
    prologue(a, vm); vm2 = copy.deepcopy(vm)
    ffn(a, vm); att(a, vm2); p2(a)
    stamp_flush(a, 6)
    a("K_end:"); a("s_endpgm"); emit_spins(a)
    a("ATT_bcast:"); a("v_lshrrev_b32 v212, 2, v2"); a("v_lshlrev_b32 v212, 14, v212"); a("v_and_b32 v213, 3, v2"); a("v_lshl_add_u32 v212, v213, 7, v212"); a("v_mov_b32 v213, s1")
    a("s_mov_b32 s100, %d" % (SYNC_OFF + 1024 + 64)); a("buffer_store_dword v213, v212, s[28:31], s100 offen sc1"); a("buffer_store_dword v213, v212, s[28:31], s100 offen offset:32 sc1"); a("s_branch ATT_bcast_ok"); a("K_last:"); a("s_endpgm")
    return a.text()
if __name__ == "__main__":
    for kv in sys.argv[2:]:
        k, v = kv.split("="); assert hasattr(C, k), k; setattr(C, k, int(v))
    kn = NAME + "_kernel"
    txt = HEADER + "; @launch grid=(256,1,1) block=(256,1,1) lds=162816\n" + '.amdgcn_target "amdgcn-amd-amdhsa--gfx950"\n.text\n' + kernel_head(kn) + gen_all()
    open(sys.argv[1], "w").write(txt + '.section .rodata,"a"\n' + kernel_desc(kn, 512, 102, 256))
```

```python
import sys, subprocess, re
from asmlib import *
j = int(sys.argv[1]); K = int(sys.argv[2]); out = sys.argv[3]; lo = int(sys.argv[4]) if len(sys.argv) > 4 else 0
subprocess.run("python gen7.py d.s st=1 " + " ".join(sys.argv[5:]), shell=True)
t = open("d.s").read()
kn = NAME + "_kernel"
body = t.split(kn + ":\n")[1].split('.section .rodata')[0]
a = Asm()
a("s_cmp_lg_u32 s2, 0"); a("s_cbranch_scc1 R_end")
a("s_memrealtime s[10:11]"); a("s_load_dwordx2 s[4:5], s[0:1], 72"); a("s_waitcnt lgkmcnt(0)")
a.srd(28, 4, 256 << 20)
a("v_mul_u32_u24 v1, 48, v0"); a("s_mov_b32 s6, %d" % (128 << 20))
for q in range(4):
    a("buffer_load_dword v%d, v1, s[28:31], s6 offen" % (4 + q)); a("buffer_load_dword v%d, v1, s[28:31], s6 offen offset:%d" % (8 + q, 8 * j)); a("s_add_u32 s6, s6, %d" % (64 * 48))
a("s_waitcnt vmcnt(0)")
for q in range(8): a("v_sub_u32 v%d, s10, v%d" % (4 + q, 4 + q))
a("v_max3_u32 v4, v4, v5, v6"); a("v_max_u32 v4, v4, v7")
op = "max" if lo else "min"
a("v_%s3_u32 v8, v8, v9, v10" % op); a("v_%s_u32 v8, v8, v11" % op)
a("s_mov_b32 s12, 0"); a("s_mov_b32 s13, %d" % (0 if lo else -1))
for l in range(64):
    a("v_readlane_b32 s14, v4, %d" % l); a("v_readlane_b32 s15, v8, %d" % l); a("s_max_u32 s12, s12, s14"); a("s_%s_u32 s13, s13, s15" % op)
a("s_sub_u32 s12, s12, s13"); a("s_min_u32 s12, s12, 10000"); a("s_mul_i32 s12, s12, %d" % K); a("s_add_u32 s12, s12, 500")
a("R_lp:"); a("s_memrealtime s[16:17]"); a("s_waitcnt lgkmcnt(0)"); a("s_sub_u32 s16, s16, s10"); a("s_cmp_lt_u32 s16, s12"); a("s_cbranch_scc1 R_lp")
a("R_end:"); a("s_endpgm")
open(out, "w").write(module([("m_kernel", body, 256, 256, 162816, 512, 102, 256), ("r_kernel", a.text(), 1, 64, 0, 16, 40, None)]))
```

```python
import sys, subprocess, re
from asmlib import *
j = int(sys.argv[1]); K = int(sys.argv[2]); out = sys.argv[3]; lo = int(sys.argv[4]) if len(sys.argv) > 4 else 0
subprocess.run("python gen8.py d.s st=1 " + " ".join(sys.argv[5:]), shell=True)
t = open("d.s").read()
kn = NAME + "_kernel"
body = t.split(kn + ":\n")[1].split('.section .rodata')[0]
a = Asm()
a("s_cmp_lg_u32 s2, 0"); a("s_cbranch_scc1 R_end")
a("s_memrealtime s[10:11]"); a("s_load_dwordx2 s[4:5], s[0:1], 72"); a("s_waitcnt lgkmcnt(0)")
a.srd(28, 4, 256 << 20)
a("v_mul_u32_u24 v1, 48, v0"); a("s_mov_b32 s6, %d" % (128 << 20))
for q in range(4):
    a("buffer_load_dword v%d, v1, s[28:31], s6 offen" % (4 + q)); a("buffer_load_dword v%d, v1, s[28:31], s6 offen offset:%d" % (8 + q, 8 * j)); a("s_add_u32 s6, s6, %d" % (64 * 48))
a("s_waitcnt vmcnt(0)")
for q in range(8): a("v_sub_u32 v%d, s10, v%d" % (4 + q, 4 + q))
a("v_max3_u32 v4, v4, v5, v6"); a("v_max_u32 v4, v4, v7")
op = "max" if lo else "min"
import os
role = os.environ.get("ROLE", "all")
if role == "all": a("v_%s3_u32 v8, v8, v9, v10" % op); a("v_%s_u32 v8, v8, v11" % op)
elif role == "ffn": a("v_%s_u32 v8, v8, v9" % op)
else: a("v_%s_u32 v8, v10, v11" % op)
a("s_mov_b32 s12, 0"); a("s_mov_b32 s13, %d" % (0 if lo else -1))
for l in range(64):
    a("v_readlane_b32 s14, v4, %d" % l); a("v_readlane_b32 s15, v8, %d" % l); a("s_max_u32 s12, s12, s14"); a("s_%s_u32 s13, s13, s15" % op)
a("s_sub_u32 s12, s12, s13"); a("s_min_u32 s12, s12, 10000"); a("s_mul_i32 s12, s12, %d" % K); a("s_add_u32 s12, s12, 500")
a("R_lp:"); a("s_memrealtime s[16:17]"); a("s_waitcnt lgkmcnt(0)"); a("s_sub_u32 s16, s16, s10"); a("s_cmp_lt_u32 s16, s12"); a("s_cbranch_scc1 R_lp")
a("R_end:"); a("s_endpgm")
open(out, "w").write(module([("m_kernel", body, 256, 256, 162816, 512, 102, 256), ("r_kernel", a.text(), 1, 64, 0, 16, 40, None)]))
```

```python
import sys, struct, copy, re, os
from asmlib import *
ACT_OFF = 0; W2P_OFF = 16 << 20; SYNC_OFF = 28 << 20; STAMP_OFF = 128 << 20
WS_BYTES = 256 << 20; XBYTES = 2621440; OOB = 0x7ff00000
class Cfg:
    st = 0; tr = 0; pref = 3; slp = 2; sp = 3; spa = 4; w2n = 16; aw2 = 8; st4 = 8; sd = 40; e1 = 0; e2 = 88; pfc = 20; apc = 13
    sp2 = 2; eps = 8; sg1 = 200; map2 = 0; fk = 230; ldw = 0; nx0 = 2; na0 = 3; pk0 = 3; sl0 = 6; sla = 13; rdf = 1; rda = 0; wpf = 99; pkl = 0; ae0 = 24; ae00 = 26; off = 0; wpn = 1; hack = 0; b1 = 60; b2 = 90; csm = 1; es = 0; tlb = 0; mixcb = 1; sp3 = 2; span = 13; bs = 13; ffp = 3; pke = 0; rf = 2; xb = 6; stsp = 1; sfl = 1; glc = 1; lrs = 7; pk = 1; skipm = 1; nep = 16; epn = 276; qp = 8; sqp = 4; arp = 1; sd2 = 20; pv = 0; sda = 2; aord = 0; hs = 0; jb = 0; foa = 2; boost = 0; qm = 1; pnt = 1; p1 = 1; rz = 65536; snk = 1; xt = 6; xta = 1; lst = 0; stub = 0; sto = 0; q19 = 1; t3u = 1; pvq = 1; fdf = 2; xsf = 10; xsa = 12; fca = 10; ea1 = 1; sfe = 30; pke2 = 1; ssp = 1; ao = 2; ab = 6; ac = 10; pkq = 1; ea0 = 1; npl = 5; eqn = 2; pfold = 0; esl = 4; spanA = 13; la = 4; fo = 0; fb = 5; sgs = 2; fc = 10; fd = 2
C = Cfg()
GA = -2.0 * 0.7978845608028654 * 1.4426950408889634; GB = GA * 0.044715
def f2h(x): return "0x%08x" % struct.unpack("<I", struct.pack("<f", x))[0]
_ref = "cdna_kernels/%s.s.ref" % NAME
HEADER = open(_ref).read().split("; Override")[0] if os.path.exists(_ref) else ""

class Q:
    def __init__(s, cap): s.q = []; s.cap = cap; s.seen = set()
    def issue(s, tag): s.q.append(tag); s.seen.add(tag)
    def need(s, *tags, opt=()):
        for t in tags: assert t in s.seen, ("waiting for something never issued", t)
        tags = tuple(tags) + tuple(opt); idx = -1
        for i, t in enumerate(s.q):
            if t in tags: idx = i
        if idx < 0: return None
        n = min(len(s.q) - 1 - idx, s.cap); s.q = s.q[len(s.q) - n:] if n else []
        return n
    def clear(s): s.q = []
def wait(a, vm=None, lg=None):
    p = []
    if vm is not None: p.append("vmcnt(%d)" % vm)
    if lg is not None: p.append("lgkmcnt(%d)" % lg)
    if p: a("s_waitcnt " + " ".join(p))
def R(n, k=4): return ("a[%d:%d]" % (n - 256, n - 256 + k - 1)) if n >= 256 else ("v[%d:%d]" % (n, n + k - 1))
def cost(ins):
    n = 0
    for l in ins.split("\n"):
        if l.endswith(":") or not l: continue
        n += 1
        if l.startswith("v_exp") or l.startswith("v_rcp"): n += 1
        if l.startswith("ds_write_b128") or l.startswith("buffer_store_dwordx4"): n += 3
        if l.startswith("ds_write_b64"): n += 2
        if l.startswith("buffer_load") or l.startswith("buffer_atomic") or l.startswith("buffer_store_dword "): n += 1
    return n
def ismem(ins): return ins.startswith("ds_") or ins.startswith("buffer_")
def deps(ins):
    if "\n" in ins or not ins.startswith("v_") or "vcc" in ins or " s" in ins: return None
    regs = re.findall(r"[va]\d+", ins.split(" ", 1)[1])
    return {regs[0]}, set(regs[1:])

class Sched:
    def __init__(s, a, vm, lg, sp): s.a = a; s.vm = vm; s.lg = lg; s.fq = []; s.dq = []; s.lq = []; s.since = 99; s.sp = sp; s.n = 0; s.timed = []
    def emit(s, item):
        ins, tag = item[0], item[1]
        if ins == "WAITVM": wait(s.a, vm=s.vm.need(tag)); return
        if ins == "WAITLG": wait(s.a, lg=s.lg.need(tag)); return
        if ins == "LATER": s.timed.append((s.n + tag[0], tag[1])); return
        s.a(ins)
        if tag:
            for _ in range(item[2] if len(item) > 2 else 1): (s.vm if tag[0] == "vm" else s.lg).issue(tag[1])
    def gap(s, must=(), slots=2):
        first = True; s.n += 1; s.since += 1
        while s.timed and s.timed[0][0] <= s.n: s.lq = s.timed.pop(0)[1] + s.lq if not s.lq_open() else s.lq + s.timed.pop(0)[1]
        for it in must: s.emit(it); slots -= cost(it[0]); first = False
        while slots > 0:
            q = s.dq if s.dq else s.lq
            if not q: break
            isb = "buffer_" in q[0][0]; m = ismem(q[0][0])
            if not ((first or (not m and cost(q[0][0]) <= slots)) and (not isb or s.since > s.sp)): break
            it = q.pop(0); s.emit(it); slots -= cost(it[0]); first = False
            if isb: s.since = 0
        lastw = None
        while s.fq and slots > 0:
            pick = None; W = set(); Rr = set()
            for idx, it in enumerate(s.fq[:14]):
                n = cost(it[0]); d = deps(it[0])
                if d is None:
                    if idx == 0 and not (ismem(it[0]) and not first) and (n <= slots or (first and n > 2) or it[0] == "LATER"): pick = 0
                    break
                w, r = d
                if n <= slots and not (r & W) and not (w & W) and not (w & Rr) and not (lastw is not None and lastw in r): pick = idx; break
                W |= w; Rr |= r
            if pick is None: break
            it = s.fq.pop(pick); s.emit(it)
            if it[0] == "LATER": continue
            slots -= cost(it[0]); first = False
            lastw = next(iter(deps(it[0])[0])) if (cost(it[0]) == 2 and deps(it[0])) else None
    m0lock = False
    def lq_open(s): return False
    def fc(s): return sum(cost(it[0]) for it in s.fq if it[0] != "LATER")
    def flush(s, q):
        while q: s.emit(q.pop(0))

def stamp(a, idx):
    if C.st: a("%s s[%d:%d]" % ("s_memtime" if C.st == 2 else "s_memrealtime", 80 + 2 * idx, 81 + 2 * idx))
def stamp_flush(a, n):
    if not C.st: return
    a("s_waitcnt lgkmcnt(0)"); a("s_cmp_lg_u32 s32, 0"); a("s_cbranch_scc1 L_stf"); a("s_mov_b64 exec, 1")
    a("s_mul_i32 s70, s2, %d" % (n * 8)); a("s_add_u32 s70, s70, %d" % STAMP_OFF)
    for j in range(n):
        a("v_mov_b32 v2, s%d" % (80 + 2 * j)); a("v_mov_b32 v3, s%d" % (81 + 2 * j)); a("buffer_store_dwordx2 v[2:3], off, s[28:31], s70 offset:%d" % (8 * j)); a("s_nop 1")
    a("L_stf:")
class Trace:
    def __init__(s, a, v, n=0): s.a = a; s.v = v; s.n = n; s.n0 = n
    def mark(s):
        if not C.tr: return
        if s.n > s.n0: s.a("v_writelane_b32 v%d, s%d, %d" % (s.v, 88 + 2 * ((s.n - 1) & 1), s.n - 1))
        s.a("%s s[%d:%d]" % ("s_memtime" if C.tr == 2 else "s_memrealtime", 88 + 2 * (s.n & 1), 89 + 2 * (s.n & 1))); s.n += 1
    def sync(s):
        if C.tr: s.a("s_waitcnt lgkmcnt(0)"); s.a("v_writelane_b32 v%d, s%d, %d" % (s.v, 88 + 2 * ((s.n - 1) & 1), s.n - 1))
    def flush(s, vt, off=0):
        if not C.tr: return
        s.sync(); s.a("s_lshl_b32 s88, s2, 10"); s.a("s_add_u32 s88, s88, %d" % (STAMP_OFF + off)); s.a("s_lshl_b32 s89, s32, 8"); s.a("s_add_u32 s88, s88, s89"); s.a("v_lshrrev_b32 v%d, 2, v%d" % (vt, s.lv))
        s.a("buffer_store_dword v%d, v%d, s[28:31], s88 offen" % (s.v, vt))

def bfr(a, v): a("v_cvt_pk_bf16_f32 v%d, v%d, v%d" % (v, v, v)); a("v_lshlrev_b32 v%d, 16, v%d" % (v, v))

SPINS = []
def flag_load(vd, soff, srd, off=None):
    if off is None: return "buffer_load_dword v%d, off, s[%d:%d], %s offset:64 sc1" % (vd, srd, srd + 3, soff)
    return "buffer_load_dwordx4 v[%d:%d], off, s[%d:%d], %s offset:%d sc1" % (vd, vd + 3, srd, srd + 3, soff, off)
def flag_read(vd, off, ph):
    o = ["s_add_u32 s100, s1, %d" % ph]
    if off is None: o += ["v_subrev_u32 v%d, s100, v%d" % (vd, vd)]
    else: o += ["v_subrev_u32 v%d, s100, v%d" % (vd + k, vd + k) for k in range(4)] + ["v_max3_u32 v%d, v%d, v%d, v%d" % (vd, vd, vd + 1, vd + 2), "v_max_u32 v%d, v%d, v%d" % (vd, vd, vd + 3)]
    return o + ["v_cmp_lt_u32 vcc, %d, v%d" % (3 - ph, vd)]
def flag_check(name, vd, soff, srd, ph, off=None):
    if (name, vd, soff, srd, ph, off) not in SPINS: SPINS.append((name, vd, soff, srd, ph, off))
    r = flag_read(vd, off, ph)
    return [(x, None) for x in r[:-1]] + [(r[-1] + "\ns_cmp_lg_u64 vcc, 0\ns_cbranch_scc1 %s_spin\n%s_ok:" % (name, name), None)]
SSPINS = []
def sflag_load(off=None):
    g = " glc" if C.glc else ""
    return ("s_buffer_load_dword s56, s[28:31], s35 offset:64" + g) if off is None else ("s_buffer_load_dwordx4 s[56:59], s[28:31], s35 offset:%d" % off + g)
def sflag_check(name, vd, ph, off=None, restore=()):
    if not C.ssp: TSPINS.append((name, [flag_load(vd, "s35", 28, off)], flag_read(vd, off, ph) + list(restore)))
    o = ["s_waitcnt lgkmcnt(0)", "s_add_u32 s100, s1, %d" % ph] + ["s_sub_u32 s%d, s%d, s100" % (56 + k, 56 + k) for k in range(1 if off is None else 4)]
    if off is not None: o += ["s_max_u32 s56, s56, s57", "s_max_u32 s58, s58, s59", "s_max_u32 s56, s56, s58"]
    if C.ssp: SSPINS.append((name, sflag_load(off), o, 3 - ph, [flag_load(vd, "s35", 28, off)], flag_read(vd, off, ph) + list(restore)))
    return [(x, None) for x in o] + [("s_cmp_gt_u32 s56, %d\ns_cbranch_scc1 %s_spin\n%s_ok:" % (3 - ph, name, name), None)]
def spin(a, name, loads, red):
    a("%s_spin:" % name); a("s_mov_b32 s101, 0"); a("%s_lp:" % name); a("s_sleep %d" % C.slp)
    for l in loads: a(l)
    a("s_add_u32 s101, s101, 1"); a("s_waitcnt vmcnt(0)")
    for l in red: a(l)
    a("s_nop 1"); a("s_cmp_eq_u64 vcc, 0"); a("s_cbranch_scc1 %s_ok" % name)
    a("s_cmp_lt_u32 s101, 0x8000"); a("s_cbranch_scc1 %s_lp" % name); a("s_branch %s_ok" % name)
def emit_spins(a):
    for name, vd, soff, srd, ph, off in SPINS: spin(a, name, [flag_load(vd, soff, srd, off)], flag_read(vd, off, ph))
    for name, loads, red in TSPINS: spin(a, name, loads, red)
    for name, ld, o, lim, loads, red in SSPINS:
        a("%s_spin:" % name); a("s_mov_b32 s101, 0"); a("%s_sl:" % name); a("s_sleep 1"); a(ld); a("s_add_u32 s101, s101, 1")
        for l in o: a(l)
        a("s_cmp_le_u32 s56, %d" % lim); a("s_cbranch_scc1 %s_ok" % name); a("s_cmp_lt_u32 s101, 24"); a("s_cbranch_scc1 %s_sl" % name)
        spin(a, name + "v", loads, red); a("%sv_ok:" % name); a("s_branch %s_ok" % name)
def wave_signal(VN, val):
    return "s_mov_b64 exec, %d\nbuffer_store_dword v%d, off, s[28:31], s34 sc1\ns_mov_b64 exec, -1" % (1 << val, VN)
TSPINS = []
def tag_check(name, loads, regs, tmp):
    red = ["v_xor_b32 v%d, s1, v%d" % (tmp, regs[0])] + ["v_bitop3_b32 v%d, v%d, s1, v%d bitop3:0xbe" % (tmp, r, tmp) for r in regs[1:]] + ["v_cmp_ne_u32 vcc, 0, v%d" % tmp]
    TSPINS.append((name, loads, red))
    return [(x, None) for x in red[:-1]] + [(red[-1] + "\ns_cmp_lg_u64 vcc, 0\ns_cbranch_scc1 %s_spin\n%s_ok:" % (name, name), None)]

WB = [92, 93]; AB = [77, 78]; KSB = 40960
class Role: pass
RF = Role(); RF.n = "ffn"; RF.NT = 4
RF.W = [256 + 16 * i for i in range(16)] + [168]; RF.WREL = [-1] * 17
RF.A = [184, 200, 216, 24, 240, 184, 256, 200, 272, 216, 288, 24, 304, 40, 56, 72, 88]; RF.AREL = [-1, -1, -1, -1, -1, 0, 0, 1, 1, 2, 2, 3, 3, "e", "e", "e", "e"]
RF.acc = lambda q, t: 104 + 4 * (q * 4 + t); RF.XF = 200; RF.STG = 40
RA = Role(); RA.n = "att"; RA.NT = 6
RA.W = [256 + 24 * i for i in range(10)] + [120, 144, 168] + [256 + 24 * i for i in range(4)]; RA.WREL = [-1] * 13 + [0, 1, 2, 3]
RA.A = [496, 192, 208, 224, 240, 496, 192, 208, 224, 240, 352, 496, 376, 192, 400, 208, 424]; RA.AREL = [-1, -1, -1, -1, -1, 0, 1, 2, 3, 4, 4, 5, 5, 6, 6, 7, 7]
RA.acc = lambda q, t: 24 + 4 * (q * 6 + t); RA.XF = 120; RA.STG = 144
def p2_bases(a, dst, unit):
    a("s_mul_i32 s68, s32, %d" % (5 * unit)); a("s_add_u32 s%d, s69, s68" % dst[1])
    a("s_mul_i32 s68, s32, %d" % (12 * unit)); a("s_add_u32 s%d, s69, s68" % dst[0])
def step_off(i, dst, unit, r):
    if r is RA and C.aord: i = ([0, 1, 2, 3, 8, 9, 10, 11, 12, 4, 5, 6, 7] + [13, 14, 15, 16])[i]
    if 8 <= i < 13: return dst[1], (i - 8) * unit
    p, k = (0, i) if i < 4 else ((1, i - 4) if i < 8 else (2, i - 13))
    return dst[0], (20 + 2 * p + 6 * (k >> 1) + (k & 1)) * unit
def w2_parts(r, i, VL=7):
    b, c = step_off(i, WB, KSB, r); h = r.NT if r.NT <= 4 else r.NT // 2; out = []
    for t0 in range(0, r.NT, h):
        out.append([("s_add_u32 s13, s%d, %d" % (b, c + 1024 * t0), None)] + [("buffer_load_dwordx4 %s, v%d, s[28:31], s13 offen offset:%d sc1" % (R(r.W[i] + 4 * (t0 + t)), VL, 1024 * t), ("vm", ("w2", i))) for t in range(h)])
    return out
def w2_loads(r, i, VL): return [x for p in w2_parts(r, i, VL) for x in p]
def w2_lds(i, k, VL, i0):
    b, c = step_off(i, WB, KSB, RA); o = (i - i0) * 6144 + 3072 * k
    return [("s_add_u32 m0, s12, %d" % o, None), ("s_add_u32 s69, s%d, %d" % (b, c + 3072 * k), None)] + [("buffer_load_dwordx4 v%d, s[28:31], s69 offen offset:%d sc1 lds" % (VL, 1024 * t), ("vm", "wl")) for t in range(3)]
def act_voffs(VL): return [("s_add_u32 s14, s32, %d\ns_and_b32 s14, s14, 3" % i, None) if k == 0 else ("s_lshl_b32 s14, s14, 10\nv_add_u32 v%d, s14, v%d" % (3 + i, VL), None) for i in range(4) for k in range(2)]
def act_loads(r, i):
    b, c = step_off(i, AB, 4096, r)
    return [("s_add_u32 s13, s%d, %d" % (b, c), None)] + [("buffer_load_dwordx4 %s, v%d, s[28:31], s13 offen sc1" % (R(r.A[i] + 4 * q), 3 + q), ("vm", ("a", i))) for q in range(4)]

SR = 112

def prologue(a, vm):
    a("s_cmp_ge_u32 s2, 256"); a("s_cbranch_scc1 K_end")
    stamp(a, 0)
    a("s_memrealtime s[94:95]")
    a("s_load_dwordx4 s[4:7], s[0:1], 0"); a("s_load_dwordx4 s[8:11], s[0:1], 32"); a("s_load_dwordx2 s[12:13], s[0:1], 72"); a("s_load_dwordx2 s[24:25], s[0:1], 64")
    a("s_load_dwordx2 s[14:15], s[0:1], 16"); a("s_load_dwordx4 s[96:99], s[0:1], 48")
    a("v_lshrrev_b32 v1, 6, v0"); a("v_and_b32 v2, 63, v0"); a("v_readfirstlane_b32 s32, v1")
    if C.pref >= 2:
        a("s_getpc_b64 s[68:69]"); a("K_pf:"); a("s_cmp_ge_u32 s2, 128"); a("s_cselect_b32 s70, K_att-K_pf, 0")
        if C.pref == 2: a("v_lshl_add_u32 v16, v0, 7, s70")
        else: a("s_bfe_u32 s71, s2, 0x20003"); a("s_lshl_b32 s71, s71, 4"); a("v_lshrrev_b32 v16, 2, v2"); a("v_add_u32 v16, s71, v16"); a("v_lshl_add_u32 v16, v1, 6, v16"); a("v_lshl_add_u32 v16, v16, 7, s70")
        a("v_min_u32 v16, K_last-K_pf, v16"); a("v_mov_b32 v17, s69")
        a("v_add_co_u32 v16, vcc, s68, v16"); a("s_nop 1"); a("v_addc_co_u32 v17, vcc, 0, v17, vcc"); a("global_load_dword a199, v[16:17], off"); vm.issue("pf0")
    a("s_and_b32 s33, s2, 7"); a("s_lshr_b32 s34, s2, 3"); a("s_and_b32 s35, s34, 7"); a("s_lshr_b32 s34, s34, 3")
    a("s_and_b32 s36, s33, 1"); a("s_lshl_b32 s36, s36, 3"); a("s_add_u32 s36, s36, s35")
    a("s_lshr_b32 s76, s33, 1"); a("s_lshl_b32 s76, s76, 2"); a("s_add_u32 s76, s76, s34")
    a("s_and_b32 s37, s33, 6"); a("s_and_b32 s68, s34, 1"); a("s_add_u32 s37, s37, s68")
    a("s_mul_i32 s38, s34, 5"); a("s_lshr_b32 s38, s38, 1"); a("s_lshl_b32 s68, s35, 2"); a("s_lshr_b32 s69, 0x87653210, s68"); a("s_and_b32 s69, s69, 15"); a("s_add_u32 s38, s38, s69")
    if C.hs: a("s_and_b32 s69, s33, 1"); a("s_mul_i32 s69, s69, %d" % C.hs); a("s_add_u32 s38, s38, s69")
    a("s_sub_u32 s68, s38, 10"); a("s_cmp_ge_u32 s38, 10"); a("s_cselect_b32 s38, s68, s38")
    a("s_cmp_ge_u32 s34, 2"); a("s_movk_i32 s68, 0x780"); a("s_cselect_b32 s69, s68, 0x600")
    for j in range(10):
        a("s_lshl_b32 s%d, s38, 7" % (50 + j)); a("s_mul_i32 s%d, s%d, s69" % (40 + j, 50 + j))
        if j < 9: a("s_add_u32 s38, s38, 1"); a("s_cmp_eq_u32 s38, 10"); a("s_cselect_b32 s38, 0, s38")
    a("s_lshl_b32 s68, s36, 4"); a("s_add_u32 s68, s68, s76"); a("s_mul_i32 s39, s68, 10240")
    a("v_lshrrev_b32 v3, 5, v0"); a("v_mul_u32_u24 v4, 1280, v3"); a("v_and_b32 v5, 31, v2"); a("v_lshl_add_u32 v4, v5, 4, v4")
    a("v_lshlrev_b32 v5, 26, v5"); a("v_and_b32 v5, 0x40000000, v5"); a("v_or_b32 v5, v5, v4")
    a("s_mov_b32 s18, 0x%x" % XBYTES); a("s_mov_b32 s19, 0x00020000"); a("s_mov_b32 s30, 0x%x" % WS_BYTES); a("s_mov_b32 s31, 0x00020000"); a("s_movk_i32 s26, 256"); a("s_mov_b32 s27, 0x00020000")
    a("s_or_b32 s70, s2, s32")
    a("v_lshlrev_b32 v14, 4, v2")
    a("s_waitcnt lgkmcnt(0)")
    a("s_mov_b32 s16, s4"); a("s_and_b32 s17, s5, 0xffff"); a("s_mov_b32 s28, s12"); a("s_and_b32 s29, s13, 0xffff"); a("s_and_b32 s25, s25, 0xffff")
    a("s_cmp_lg_u32 s70, 0"); a("s_cbranch_scc1 K_noinit")
    a("s_lshl_b32 s68, s94, 3"); a("s_or_b32 s68, s68, 4"); a("v_mov_b32 v8, s68"); a("s_mov_b64 exec, 1")
    a("buffer_store_dword v8, off, s[24:27], 0 sc1"); a("s_mov_b64 exec, -1")
    a("K_noinit:")
    if C.lst: a("v_mov_b32 v250, v4"); a("v_mov_b32 v251, v5")
    else: stat_loads(a, vm, SR, 4)
    if C.tlb:
        for o in [0, 2, 4, 6, 8, 16, 18, 28]: a("s_mov_b32 s68, %d" % (o << 20)); a("s_buffer_load_dword s100, s[28:31], s68")
        for p, n in ((98, XBYTES), (14, 819200), (96, 1966080)):
            a("s_load_dword s100, s[%d:%d], 0" % (p, p + 1)); a("s_mov_b32 s68, %d" % (n - 4)); a("s_load_dword s100, s[%d:%d], s68" % (p, p + 1))
        if C.tlb == 2:
            a("v_lshlrev_b32 v8, 20, v2"); a("v_cmp_gt_u32 vcc, 30, v2"); a("s_and_saveexec_b64 s[68:69], vcc"); a("buffer_load_dword a198, v8, s[28:31], 0 offen"); a("s_mov_b64 exec, -1"); vm.issue("t")
    a("s_cmp_ge_u32 s34, 2"); a("s_cbranch_scc1 K_att")

def stat_loads(a, vm, dst, v):
    for i in range(3): a("buffer_load_dwordx4 %s, v%d, s[16:19], s39 offen offset:%d" % (R(dst + 4 * i), v if i < 2 else v + 1, 512 * i)); vm.issue("x")
def raise_ready(a, vm, role):
    if C.lst: stat_loads(a, vm, SR if role == "ffn" else 236, 250)
    if C.pref == 1:
        a("s_getpc_b64 s[68:69]"); a("K_pf_%s:" % role)
        a("v_lshlrev_b32 v16, 7, v0"); a("v_min_u32 v16, K_last-K_pf_%s, v16" % role); a("v_mov_b32 v17, s69")
        a("v_add_co_u32 v16, vcc, s68, v16"); a("s_nop 1"); a("v_addc_co_u32 v17, vcc, 0, v17, vcc"); a("global_load_dword a199, v[16:17], off"); vm.issue("pf0")

def common_setup(a, role):
    a("s_lshr_b32 s0, s76, 3"); a("s_mul_i32 s0, s0, 20"); a("s_lshl_b32 s68, s34, 3"); a("s_lshr_b32 s68, 0x0e080400, s68"); a("s_and_b32 s68, s68, 255"); a("s_add_u32 s0, s0, s68")
    a("s_lshl_b32 s70, s36, 1"); a("s_bfe_u32 s71, s76, 0x10002"); a("s_add_u32 s70, s70, s71")
    a("s_lshl_b32 s69, s0, 10"); a("s_add_u32 s69, s69, %d" % W2P_OFF); p2_bases(a, WB, KSB)
    a("s_mul_i32 s69, s70, %d" % (68 * 4096)); p2_bases(a, AB, 4096)
    a("s_mul_i32 s3, s70, %d" % (64 * 1280)); a("s_lshl_b32 s69, s0, 5"); a("s_add_u32 s3, s3, s69"); a("s_mul_i32 s69, s32, %d" % (16 * 1280)); a("s_add_u32 s3, s3, s69")
    a("s_lshr_b32 s35, s70, 1"); a("s_lshl_b32 s35, s35, 14"); a("s_and_b32 s71, s70, 1"); a("s_lshl_b32 s71, s71, 5"); a("s_add_u32 s35, s35, s71")
    a("s_lshl_b32 s71, s32, 7"); a("s_add_u32 s71, s71, %d" % (SYNC_OFF + 1024)); a("s_add_u32 s35, s35, s71")
    a("s_lshl_b32 s79, s36, 14"); a("s_add_u32 s79, s79, %d" % SYNC_OFF)
    a("s_lshr_b32 s69, s76, 2"); a("s_lshl_b32 s69, s69, 7"); a("s_add_u32 s68, s79, s69"); a("s_lshl_b32 s34, s34, 3"); a("s_add_u32 s34, s34, s68"); a("s_add_u32 s34, s34, 1024")
    hi, lo = ("s_and_b32 s68, s32, 1", "s_lshr_b32 s69, s32, 1") if role == "ffn" else ("s_lshr_b32 s68, s32, 1", "s_and_b32 s69, s32, 1")
    a(hi); a(lo); a("s_lshl_b32 s68, s68, 5"); a("s_lshl_b32 s69, s69, 2"); a("s_add_u32 s34, s34, s68"); a("s_add_u32 s34, s34, s69")

def stats(a, vm, S, VO, VN, role, SR=SR):
    s_, q = S, S + 1
    a("s_mov_b32 s33, 0x3f803f80"); a("v_mov_b32 v%d, 0" % s_)
    a("v_lshrrev_b32 v%d, 5, v0" % VO); a("s_lshl_b32 s68, s76, 3"); a("v_add_lshl_u32 v%d, v%d, s68, 3" % (VO, VO))
    a("v_and_b32 v%d, 31, v2" % q); a("v_cmp_eq_u32 vcc, 31, v%d" % q); a("v_mov_b32 v%d, 0x%x" % (q, OOB)); a("s_nop 0"); a("v_cndmask_b32 v%d, v%d, v%d, vcc" % (VO, q, VO))
    a("v_mov_b32 v%d, 0" % q)
    wait(a, vm=vm.need("x"))
    a("s_buffer_load_dword s1, s[24:27], 0")
    for d in range(12): a("v_dot2c_f32_bf16 v%d, s33, v%d" % (s_, SR + d)); a("v_dot2c_f32_bf16 v%d, v%d, v%d" % (q, SR + d, SR + d))
    a("s_nop 0")
    for m in ["quad_perm:[1,0,3,2] row_mask:0xf", "quad_perm:[2,3,0,1] row_mask:0xf", "row_half_mirror row_mask:0xf", "row_mirror row_mask:0xf", "row_bcast:15 row_mask:0xa"]:
        a("s_nop 1")
        for r in (s_, q): a("v_add_f32_dpp v%d, v%d, v%d %s bank_mask:0xf" % (r, r, r, m))
    a("v_mul_f32 v%d, 0xbacccccd, v%d" % (s_, s_)); a("v_mul_f32 v%d, 0x3acccccd, v%d" % (q, q))
    a("v_fma_f32 v%d, -v%d, v%d, v%d" % (q, s_, s_, q)); a("v_max_f32 v%d, 0, v%d" % (q, q))
    bfr(a, q); a("v_add_f32 v%d, 0x3727c5ac, v%d" % (q, q)); bfr(a, q)
    a("v_sqrt_f32 v%d, v%d" % (q, q)); a("s_waitcnt lgkmcnt(0)"); a("v_cvt_pk_bf16_f32 v%d, v%d, v%d" % (s_, s_, q))
    a("s_cmp_eq_u32 s1, 0"); a("s_cbranch_scc1 NON_%s_spin" % role); a("NON_%s_ok:" % role)
    TSPINS.append(("NON_" + role, ["s_sleep 6", "buffer_load_dword v%d, off, s[24:27], 0 sc1" % q], ["v_readfirstlane_b32 s1, v%d" % q, "v_cmp_eq_u32 vcc, 0, v%d" % q]))
    a("v_mov_b32 v%d, s1" % q); a("v_add_u32 v%d, s1, v2" % VN)
    a("buffer_store_dwordx2 v[%d:%d], v%d, s[28:31], s79 offen sc1" % (S, S + 1, VO)); vm.issue("ss")

def ffn(a, vm):
    SL = 16896
    lg = Q(15); sc = Sched(a, vm, lg, C.sp)
    VWO = [3, 4, 5, 6]; VWR, VWR2, VST = 7, 8, 11; VXO = [104, 105, 106, 107]; VXR = [108, 109]
    WF = 16; ACC = [40, 104]; TE = [14, 15]; NM = [0, 9]; KA, KB = 232, 236; KS = [1, 10, 12, 13]; PL = 240; VN = 2; PFR = 255
    def X(j, kk, tt): return (256 + 32 * j if j < 8 else 168 + 32 * (j - 8)) + (kk * 4 + tt) * 4
    a("s_and_b32 s60, s32, 1"); a("s_lshr_b32 s61, s32, 1")
    a("v_mov_b32 v%d, v14" % VST)
    a("v_lshrrev_b32 v13, 3, v2"); a("v_lshl_add_u32 v13, v1, 5, v13"); a("s_lshl_b32 s71, s36, 7"); a("v_add_u32 v13, s71, v13"); a("v_mul_u32_u24 v13, 1280, v13")
    a("v_and_b32 v14, 7, v2"); a("v_lshrrev_b32 v15, 4, v2"); a("v_xor_b32 v15, v14, v15"); a("v_lshl_add_u32 v%d, v15, 4, v13" % VXO[0])
    a("v_xor_b32 v15, 64, v%d" % VXO[0]); a("v_add_u32 v%d, 9216, v15" % VXO[1]); a("v_add_u32 v%d, 18432, v%d" % (VXO[2], VXO[0])); a("v_add_u32 v%d, 18432, v%d" % (VXO[3], VXO[1]))
    a("s_mul_i32 s66, s32, 4224"); a("s_lshl_b32 s67, s32, 12")
    wpos = {}; xpos = {}; freew = []; WI = []
    def dma(n, pos):
        p, j = n // 10, n % 10; wpos[n] = pos
        return [("s_add_u32 m0, s66, %d" % (pos * SL), None), ("s_add_u32 s68, s%d, %d" % (40 + j, 128 * p), None)] + \
               [("buffer_load_dwordx4 v%d, s[20:23], s68 offen offset:%d lds" % (VWO[i], 1056 * i), ("vm", ("w", n))) for i in range(4)]
    def dmax(j, pos):
        xpos[j] = pos
        return [("s_add_u32 m0, s67, %d" % (pos * SL), None), ("s_nop 0", None)] + \
               [("buffer_load_dwordx4 v%d, s[16:19], s%d offen offset:%d lds" % (VXO[i], 50 + j, 1024 * i), ("vm", ("x", j))) for i in range(4)]
    for it in dmax(0, C.xb): sc.emit(it)
    a("s_cmp_eq_u32 s60, 0"); a("s_cselect_b32 s8, s8, s10"); a("s_cselect_b32 s9, s9, s11")
    a.srd(20, 8, 1966080)
    a("v_lshrrev_b32 v13, 5, v2"); a("v_lshlrev_b32 v13, 4, v13"); a("v_bfe_u32 v15, v2, 4, 1"); a("v_lshl_add_u32 v13, v15, 2, v13")
    a("v_bfe_u32 v15, v2, 3, 1"); a("s_lshl_b32 s71, s61, 5"); a("v_add3_u32 v13, v13, v15, s71"); a("v_mul_u32_u24 v13, 3072, v13")
    a("v_lshlrev_b32 v14, 4, v14"); a("s_mul_i32 s71, s37, 384"); a("v_add3_u32 v%d, v13, v14, s71" % VWO[0])
    for i in range(1, 4): a("v_add_u32 v%d, %d, v%d" % (VWO[i], (8 * (i >> 1) + 2 * (i & 1)) * 3072 - 1056 * i, VWO[0]))
    for it in dma(0, 0): sc.emit(it)
    def xtouch(p, v): return [("v_mul_u32_u24 v%d, 192, v%d" % (v, VST), None), ("s_mov_b64 exec, 0xff\nbuffer_load_dword v%d, v%d, s[20:23], s62 offen offset:%d\ns_mov_b64 exec, -1" % (v, v, 128 * p), ("vm", ("xt", p)))]
    if C.xt:
        a("s_mul_i32 s62, s34, 5"); a("s_lshr_b32 s62, s62, 1"); a("s_lshr_b32 s69, s35, 2"); a("s_mul_i32 s69, s69, 5"); a("s_add_u32 s62, s62, s69"); a("s_add_u32 s62, s62, 4")
        a("s_sub_u32 s69, s62, 10"); a("s_cmp_ge_u32 s62, 10"); a("s_cselect_b32 s62, s69, s62"); a("s_lshl_b32 s62, s62, 3"); a("s_and_b32 s69, s35, 3"); a("s_lshl_b32 s69, s69, 1"); a("s_add_u32 s62, s62, s69")
        a("s_add_u32 s62, s62, s61"); a("s_mul_i32 s62, s62, 24576"); a("s_add_u32 s62, s62, s71"); assert not C.hs
    if C.xt & 1: sc.flush(xtouch(0, 140))
    raise_ready(a, vm, "ffn")
    for n in range(1, C.nx0):
        for it in dmax(n, C.xb + n) + dma(n, n): sc.emit(it)
    a("s_lshl_b32 s63, s36, 1"); a("s_add_u32 s63, s63, s60"); a("s_mul_i32 s63, s63, 68")
    a("s_mul_i32 s71, s37, 6"); a("s_add_u32 s63, s63, s71"); a("s_add_u32 s63, s63, s61"); a("s_add_u32 s63, s63, 20"); a("s_lshl_b32 s63, s63, 12")
    a("s_add_u32 s64, s63, 8192"); a("s_add_u32 s65, s63, 16384")
    a("v_bfe_u32 v13, v2, 3, 2"); a("v_mul_u32_u24 v13, 1056, v13")
    a("v_lshrrev_b32 v14, 5, v2"); a("v_lshlrev_b32 v14, 2, v14"); a("v_bfe_u32 v15, v2, 2, 1"); a("v_add_u32 v14, v14, v15"); a("v_lshl_add_u32 v13, v14, 7, v13")
    a("v_and_b32 v14, 3, v2"); a("v_lshlrev_b32 v14, 3, v14"); a("s_lshl_b32 s71, s61, 6")
    a("v_add3_u32 v%d, v13, v14, s71" % VWR); a("v_add_u32 v%d, %d, v%d" % (VWR2, 4 * SL, VWR))
    a("v_bfe_u32 v13, v2, 1, 3"); a("v_lshrrev_b32 v14, 4, v2"); a("v_xor_b32 v13, v13, v14"); a("v_lshlrev_b32 v13, 4, v13"); a("v_and_b32 v14, 15, v2"); a("v_lshl_add_u32 v13, v14, 7, v13")
    a("s_lshl_b32 s71, s60, 13"); a("s_add_u32 s71, s71, %d" % (5 * SL)); a("v_add_u32 v%d, s71, v13" % VXR[0]); a("v_xor_b32 v%d, 64, v%d" % (VXR[1], VXR[0]))
    a("v_lshlrev_b32 v110, 3, v14")
    a("s_mul_i32 s12, s32, 15360"); a("s_add_u32 s12, s12, %d" % (5 * SL))
    a("s_lshl_b32 s72, s33, 1"); a("s_add_u32 s72, s72, s34"); a("s_lshl_b32 s72, s72, 15"); a("s_lshl_b32 s71, s61, 12"); a("s_add_u32 s72, s72, s71"); a("s_add_u32 s72, s72, %d" % (SYNC_OFF + (1 << 20)))
    a("s_lshl_b32 s73, s60, 11"); a("s_add_u32 s73, s73, s72"); a("s_lshr_b32 s71, s35, 1"); a("s_lshl_b32 s71, s71, 8"); a("s_add_u32 s73, s73, s71"); a("s_and_b32 s71, s35, 1"); a("s_lshl_b32 s71, s71, 10"); a("s_add_u32 s73, s73, s71")
    a("s_and_b32 s71, s35, 3"); a("s_cmp_eq_u32 s71, 3"); a("s_cselect_b32 s74, 0x3f803f80, 0")
    a("s_cmp_eq_u32 s60, 0"); a("s_cselect_b32 s6, 0x3f803f80, 0"); a("s_cselect_b32 s7, 0, 0x3f803f80"); a("s_and_b32 s10, s6, s74"); a("s_and_b32 s11, s7, s74")
    if C.stub: a("STUBCALLS_ffn")
    common_setup(a, "ffn")
    a("s_lshl_b32 s75, s60, 9"); a("s_add_u32 s75, s75, s79")
    a("s_mov_b32 s4, 0x01000100"); a("s_mov_b32 s5, 0x03020302")
    if not C.lst: stats(a, vm, 124, 126, VN, "ffn")
    stamp(a, 1)
    tr = Trace(a, 2, 8); tr.lv = VST; tr.mark()
    wiss = C.nx0; xiss = C.nx0; w2q = list(range(17)); freew[:] = list(range(C.nx0, C.xb)); freex = list(range(C.xb + C.nx0, 9))
    def wreads(g):
        s_, u = g // 8, g % 8; pos = wpos[s_]; kk, wt = u >> 2, u & 3
        vb = VWR if pos < 4 else VWR2; off = (pos % 4) * SL + (kk * 2 + (wt >> 1)) * 4224 + 32 * (wt & 1); b = WF + (g % 6) * 4
        return [("ds_read_b64_tr_b16 %s, v%d offset:%d" % (R(b + 2 * t, 2), vb, off + 256 * t), ("lg", ("w", g // 2))) for t in range(2)]
    def xreads(j):
        return [("ds_read_b128 %s, v%d offset:%d" % (R(X(j, kk, tt)), VXR[kk], (xpos[j] - 5) * SL + 2048 * tt), ("lg", ("x", j, kk, tt))) for kk in range(2) for tt in range(4)]
    def epilogue(p, t=TE):
        out = []; base = ACC[p % 2]; n = len(t)
        for tt in range(4):
            D = base + (8 + tt) * 4
            for a_ in range(2):
                for h in range(0, 4, n):
                    G = [base + (a_ * 4 + tt) * 4 + h + k for k in range(n)]; U = [base + ((2 + a_) * 4 + tt) * 4 + h + k for k in range(n)]
                    for f in (lambda k: "v_mul_f32 v%d, v%d, v%d" % (t[k], G[k], G[k]), lambda k: "v_fma_f32 v%d, v%d, v%d, v%d" % (t[k], t[k], KB + tt, KA + tt),
                              lambda k: "v_mul_f32 v%d, v%d, v%d" % (t[k], t[k], G[k]), lambda k: "v_exp_f32 v%d, v%d" % (t[k], t[k]),
                              lambda k: "v_mul_f32 v%d, v%d, v%d" % (G[k], G[k], U[k]), lambda k: "v_fma_f32 v%d, v%d, v%d, v%d" % (U[k], t[k], KS[tt], KS[tt]),
                              lambda k: "v_rcp_f32 v%d, v%d" % (U[k], U[k]), lambda k: "v_mul_f32 v%d, v%d, v%d" % (G[k], G[k], U[k])):
                        for k in range(n): out.append((f(k), None))
                    for k in range(0, n, 2): out.append(("v_cvt_pk_bf16_f32 v%d, v%d, v%d" % (D + 2 * a_ + (h + k) // 2, G[k], G[k + 1]), None))
            out.append(("buffer_store_dwordx4 %s, v%d, s[28:31], s%d offen offset:%d sc1" % (R(D), VST, 63 + p, 1024 * tt), ("vm", ("st", p))))
        return out
    def epilogue_pk(p, T):
        out = []; base = ACC[p % 2]
        def bc(r): return R(r & ~1, 2), r & 1
        for tt in range(4):
            D = base + (8 + tt) * 4; (A_, sa), (B_, sb), (S_, ss) = bc(KA + tt), bc(KB + tt), bc(KS[tt])
            G = [base + (a_ * 4 + tt) * 4 + h for a_ in range(2) for h in (0, 2)]; U = [g + 32 for g in G]; t = [T + 2 * k for k in range(4)]
            o = ["v_pk_mul_f32 %s, %s, %s" % (R(t[k], 2), R(G[k], 2), R(G[k], 2)) for k in range(4)]
            o += ["v_pk_fma_f32 %s, %s, %s, %s op_sel:[0,%d,%d] op_sel_hi:[1,%d,%d]" % (R(t[k], 2), R(t[k], 2), B_, A_, sb, sa, sb, sa) for k in range(4)]
            o += ["v_pk_mul_f32 %s, %s, %s" % (R(t[k], 2), R(t[k], 2), R(G[k], 2)) for k in range(4)]
            o += ["v_exp_f32 v%d, v%d" % (T + k, T + k) for k in range(8)]
            o += ["v_pk_mul_f32 %s, %s, %s" % (R(G[k], 2), R(G[k], 2), R(U[k], 2)) for k in range(4)]
            o += ["v_pk_fma_f32 %s, %s, %s, %s op_sel:[0,%d,%d] op_sel_hi:[1,%d,%d]" % (R(t[k], 2), R(t[k], 2), S_, S_, ss, ss, ss, ss) for k in range(4)]
            o += ["v_rcp_f32 v%d, v%d" % (T + k, T + k) for k in range(8)]
            o += ["v_pk_mul_f32 %s, %s, %s" % (R(G[k], 2), R(G[k], 2), R(t[k], 2)) for k in range(4)]
            o += ["v_cvt_pk_bf16_f32 v%d, v%d, v%d" % (D + k, G[k], G[k] + 1) for k in range(4)]
            out += [(x, None) for x in o] + [("buffer_store_dwordx4 %s, v%d, s[28:31], s%d offen offset:%d sc1" % (R(D), VST, 63 + p, 1024 * tt), ("vm", ("st", p)))]
        return out
    def sig(p): return [("WAITVM", ("st", p)), (wave_signal(VN, p + 1), ("vm", "sg"))]
    ON = PL; CS = PL + 8 if C.csm else PL + 4
    def cs_out(p):
        o = []
        for k in range(2):
            c = CS + 4 * k
            o += ["v_cvt_pk_bf16_f32 v%d, v%d, v%d" % (c + 1, c, c), "v_lshlrev_b32 v%d, 16, v%d" % (c + 1, c + 1), "v_sub_f32 v%d, v%d, v%d" % (c, c, c + 1), "v_cvt_pk_bf16_f32 v%d, v%d, v%d" % (ON + k, c + 1, c)]
        o += ["v_mov_b32 v%d, s1" % (ON + 2), "s_add_u32 s14, s73, %d" % (8192 * p)]
        return [(x, None) for x in o] + [("s_mov_b64 exec, 0xffff\nbuffer_store_dwordx4 %s, v%d, s[28:31], s14 offen sc1\ns_mov_b64 exec, -1" % (R(ON), VST), ("vm", "cs"))]
    AE = PL; VAE = PL + 15; BP = [PL + 2, PL + 6]
    ae_loads = ["buffer_load_dwordx4 %s, v%d, s[28:31], s15 offen offset:%d sc1" % (R(AE + 4 * w), VST, 1024 * w) for w in range(4)]
    def ae_in(p): return [("s_add_u32 s15, s72, %d" % (8192 * p), None)] + [(l, ("vm", ("ae", p)) if ismem(l) else None) for l in ae_loads]
    def ae_chk(p): return [("WAITVM", ("ae", p))] + tag_check("AE%d" % p, ae_loads, [AE + 2, AE + 6, AE + 10, AE + 14], AE + 7) + [("v_swap_b32 v%d, v%d\n" % (AE + 1, AE + 4), None), ("v_swap_b32 v%d, v%d\n" % (AE + 9, AE + 12), None)]
    st_loads = ["buffer_load_dwordx2 v[%d:%d], v110, s[28:31], s75 offen offset:%d sc1" % (128 + 2 * tt, 129 + 2 * tt, 128 * tt) for tt in range(4)]
    def st_consts():
        o = ["s_mov_b32 s14, 0x05040100", "v_perm_b32 v%d, v130, v128, s14" % NM[0], "v_perm_b32 v%d, v134, v132, s14" % NM[1]]
        for tt in range(4):
            s_ = 128 + 2 * tt
            o += ["v_and_b32 v%d, 0xffff0000, v%d" % (s_, s_), "v_rcp_f32 v%d, v%d" % (KA + tt, s_), "v_mul_f32 v%d, v%d, v%d" % (KS[tt], s_, s_), "v_mul_f32 v%d, v%d, v%d" % (KB + tt, KA + tt, KA + tt),
                  "v_mul_f32 v%d, %s, v%d" % (KA + tt, f2h(GA), KA + tt), "v_mul_f32 v%d, %s, v%d" % (KB + tt, f2h(0.044715), KB + tt), "v_mul_f32 v%d, v%d, v%d" % (KB + tt, KB + tt, KA + tt)]
        return [(x, None) for x in o]
    wpf_items = [(x, None) for x in ["v_and_b32 v137, 0x1f0, v%d" % VST, "v_mul_u32_u24 v137, 192, v137", "v_mov_b32 v138, s40", "v_mov_b32 v139, s41", "v_cmp_gt_u32 vcc, 512, v%d" % VST,
                 "s_mul_i32 s14, s61, 98304", "s_mul_i32 s69, s37, 384", "v_cndmask_b32 v138, v139, v138, vcc", "s_add_u32 s14, s14, s69", "v_add_u32 v137, v137, v138"]] + \
                [("buffer_load_dword v139, v137, s[20:23], s14 offen offset:%d" % (128 * q), ("vm", "wp")) for q in range(1, 1 + C.wpn)]
    def refill(m=2):
        nonlocal wiss, xiss
        n = 0
        while n < m:
            if xiss < 10 and freex and xiss <= wiss: sc.dq += dmax(xiss, freex.pop(0)); xiss += 1
            elif wiss < 30 and freew:
                sc.dq += dma(wiss, freew.pop(0))
                if wiss in (10, 20) and (C.xt >> (wiss // 10)) & 1: sc.dq += xtouch(wiss // 10, 140 if wiss == 10 else PL + 15)
                wiss += 1
            elif xiss < 10 and freex: sc.dq += dmax(xiss, freex.pop(0)); xiss += 1
            else: break
            n += 1
    assert C.sl0 <= 6
    def onset(h, sr): return [("v_mov_b32 v%d, s%d" % (ON + 4 * h + k, sr), None) for k in range(4)]
    for k in range(4): a("v_mov_b32 v%d, 0x3f803f80" % (ON + k))
    if C.csm: sc.flush(onset(0, 6) + onset(1, 7))
    refill(); sc.flush(sc.dq)
    if C.wpf == 0: sc.flush(wpf_items)
    wait(a, vm=vm.need(("w", 0))); a("s_barrier"); tr.mark()
    xq = xreads(0)
    for it in wreads(0) + xq[:4] + wreads(1) + wreads(2) + wreads(3) + xq[4:]: sc.emit(it)
    xq = []
    refill(); sc.sp = 1
    wait(a, lg=lg.need(("w", 0), ("x", 0, 0, 3)))
    for P in range(120):
        s_ = P // 4; p, j = s_ // 10, s_ % 10; kk = (P >> 1) & 1
        Pn = P + 2; bar = Pn < 120 and Pn % 4 == 0; wr = None
        for i in range(8):
            g = 2 * P + (i >> 2); wt = g & 3; tt = (i & 3) if (i < 4 or not C.snk) else 7 - i
            c = ACC[p % 2] + (wt * 4 + tt) * 4; b = WF + (g % 6) * 4
            if i == 0 and bar: sc.flush(sc.dq)
            a("v_mfma_f32_16x16x32_bf16 %s, %s, %s, %s" % (R(c), R(b), R(X(j, kk, tt)), "0" if (j == 0 and kk == 0) else R(c)))
            if i == 0 and bar:
                s2 = Pn // 4; j2 = s2 % 10; p2_ = s2 // 10
                if s2 == C.lst: stats(a, vm, 124, 126, VN, "ffn"); lg.clear()
                wait(a, vm=vm.need(("w", s2), opt=[("x", s2)] + (["wp", ("xt", 1)] if s2 == 10 else []))); a("s_barrier"); tr.mark()
                sc.sp = C.sp
                if s2 - 1 < 10: freex.append(xpos[s2 - 1])
                if xiss == 10 and not C.ldw: freew += [x for x in freex if x < 8]; freex.clear()
                if s2 >= 2: freew.append(wpos[s2 - 2])
                refill({1: {7: 2, 8: 0, 9: 1}, 2: {7: 1, 8: 1, 9: 1, 10: 1}, 3: {7: 2, 8: 0, 9: 0, 10: 2}}.get(C.rf, {}).get(s2, 2) if not ((C.rz >> s2) & 1) else 0); WI.append(wiss)
                if s2 == C.wpf: sc.dq += wpf_items
                if C.stsp and C.sl0 - 3 <= s2 <= C.sl0: sc.dq += [(st_loads[s2 - C.sl0 + 3], ("vm", "stl"))]
                elif s2 == C.sl0: sc.dq += [(l, ("vm", "stl")) for l in st_loads]
                if s2 == C.sl0 + 2 and not C.off & 16: sc.dq += [("WAITVM", "stl")] + tag_check("STF", st_loads, [129, 131, 133, 135], 136) + st_consts()
                if s2 == C.pfc: sc.dq += [(sflag_load(), None)]
                if s2 == C.pfc + 2: sc.dq = sflag_check("FFN_pf", VN, 0, None, ["v_lshrrev_b32 v2, 4, v%d" % VST, "v_add_u32 v2, s1, v2"]) + sc.dq
                if s2 >= max(21, C.pfc + 2):
                    if not sc.dq: sc.sp = C.sp3
                    while len(sc.lq) < C.w2n:
                        ok = [i for i in w2q if 16 * i + 16 <= 32 * (s2 - 21) + 16]
                        if not ok: break
                        w2q.remove(ok[0]); sc.lq += w2_loads(RF, ok[0], VST)
                if s2 == 27: sc.fq += act_voffs(VST)
                if s2 == 28: sc.dq += [(sflag_load(0), None)]
                if s2 < 10: xq = xreads(s2)
                sc.n += 1; sc.since += 1
                continue
            if P % 40 == 0 and i == 4 and p >= 1: sc.fq += epilogue(p - 1) + [("LATER", (C.sd, sig(p - 1)))]
            if wr is None: wr = (wreads(2 * Pn) + wreads(2 * Pn + 1)) if Pn < 120 else []
            must = []
            if wr and (i % 2 == 1): must.append(wr.pop(0))
            elif xq and (i % 4 == 2 or not sc.dq): must.append(xq.pop(0))
            if xq and i == 3 and (Pn % 2) == 0: must.append(xq.pop(0))
            if P % 40 == 8 and i == 4 and not C.off & 2: sc.dq = cs_out(p) + sc.dq
            if C.off & 4: pass
            elif P % 40 == (C.ae0 if p else C.ae00) and i == 1: sc.dq += ae_in(p)
            elif P % 40 == 34 and i == 1: sc.dq = ae_chk(p) + sc.dq
            if P % 40 == 36 and i == 0:
                while any("v_swap" in x[0] for x in sc.dq): sc.emit(sc.dq.pop(0))
            if P == 116 and i == 0:
                assert not sc.fq
                sc.lq = sc.lq[:next((k for k, x in enumerate(sc.lq) if not ismem(x[0])), len(sc.lq))] + sflag_check("FFN_fe", 104, 1, 0) + act_loads(RF, 0) + sc.lq[next((k for k, x in enumerate(sc.lq) if not ismem(x[0])), len(sc.lq)):]
            if j == 9 and i == 4: must += [("v_perm_b32 v%d, v%d, v%d, s%d" % (BP[P & 1] + k, NM[(P & 3) >> 1], NM[(P & 3) >> 1], 4 + (P & 1)), None) for k in range(2)]
            if C.csm:
                q_ = {0: (0, 6), 1: (1, 7), 4: (0, 10), 5: (1, 11)}.get(P % 40)
                if q_ and P >= 2 and i in (0, 2): must += onset(*q_)[i:i + 2]
            elif P % 40 == 4 and i == 0: must += [("v_mov_b32 v%d, s74" % (ON + k), None) for k in range(4)]
            if not C.csm and P % 40 == 0 and i == 0 and p > 0: must += [("v_mov_b32 v%d, 0x3f803f80" % (ON + k), None) for k in range(4)]
            slots = 2
            left = (39 - P % 40) * 8 + 8 - i - (C.e1 if p < 2 else C.e2)
            need_rate = sc.fc() / max(left, 1) + (C.b1 if p < 2 else C.b2) / 100.0
            if need_rate > 2 and p > 0: slots = int(need_rate + 0.99)
            extra = j < 2 or j == 9
            if i == 7 and not (j == 9 or (j < 2 and C.csm)): slots -= 1
            if i == 7 and j < 2 and not C.off & 1 and not C.csm: slots = 0
            sc.gap(must, slots)
        if j < 2 and C.csm:
            for k in range(2):
                a("v_mfma_f32_16x16x32_bf16 %s, %s, %s, %s" % (R(CS + 4 * k), R(ON + 4 * (P & 1)), R(WF + ((2 * P + k) % 6) * 4), "0" if P % 40 == 0 else R(CS + 4 * k)))
                sc.gap([], 2 - k)
        elif j < 2 and not C.off & 1:
            a("s_cmp_lg_u32 s60, %d" % (P & 1)); a("s_cbranch_scc1 CSK%d" % P)
            for k in range(2): a("v_mfma_f32_16x16x32_bf16 %s, %s, %s, %s" % (R(CS + 4 * k), R(ON), R(WF + ((2 * P + k) % 6) * 4), "0" if P % 40 < 2 else R(CS + 4 * k)))
            a("CSK%d:" % P)
        corr = [(w, P & 3, BP[P & 1]) for w in range(4)] if j == 9 else []
        if C.off & 8: corr = []
        for k, (w, t_, bp) in enumerate(corr):
            c = ACC[p % 2] + (w * 4 + t_) * 4
            a("v_mfma_f32_16x16x16_bf16 %s, %s, %s, %s" % (R(c), R(AE + 4 * w, 2), R(bp, 2), R(c)))
            sc.gap([], 2 if k < len(corr) - 1 else 1)
        if P + 1 < 120:
            s3 = (P + 1) // 4
            wait(a, lg=lg.need(("w", P + 1), ("x", s3 % 10, ((P + 1) >> 1) & 1, 3)))
        if P % 40 == 39: assert not sc.fq, (P, len(sc.fq))
    stamp(a, 2); tr.mark(); tr.flush(16)
    sc.flush(sc.dq)
    print("W issued by interval", WI)
    print("FFN after loop: W2 left", w2q, "lq", len(sc.lq), "timed", len(sc.timed))
    a("v_mov_b32 v7, v%d" % VST)
    k0 = next((k for k, x in enumerate(sc.lq) if not ismem(x[0])), len(sc.lq))
    assert ("a", 0) in vm.seen
    rest = sc.lq[:k0]; left = sc.lq[k0:]; sc.lq = []
    pend = [(i, act_loads(RF, i)) for i in range(1, 4)]
    while left: pend.append((left[1][1][1][1] - 0.5, left[:5])); left = left[5:]
    for i in w2q: pend += [(i - 0.5, w2_loads(RF, i, 7))]
    pend.sort(key=lambda w: w[0])
    while pend and sum(1 for x in rest if ismem(x[0])) < C.nep: rest += pend.pop(0)[1]
    nrest = sum(1 for x in rest if ismem(x[0])) + 1
    a("s_nop 7")
    ep = epilogue(2, [16, 17, 18, 19])
    if C.pke2: ep = epilogue_pk(2, 16); C.epn = len(ep)
    for k in range(C.epn):
        sc.emit(ep.pop(0))
        if k % max(2, C.epn // nrest) == 0 and rest:
            while rest and not ismem(rest[0][0]): sc.emit(rest.pop(0))
            sc.emit(rest.pop(0))
        if k == C.epn - C.sfe: a(sflag_load(0))
        if k == C.epn - 10:
            for t in sc.timed:
                for x in t[1]: sc.emit(x)
    sc.flush(rest); sc.timed = []
    p2_main(a, sc, RF, pend, ep + [("LATER", (C.sd2, sig(2)))])

def att(a, vm):
    a("K_att:")
    WSL = 15360; NW = 5; XB = NW * WSL; XSL = 18432; PB = XB + 3 * XSL; RS = 496; OB = 73728
    lg = Q(15); sc = Sched(a, vm, lg, C.spa)
    VWO = [3, 4, 5, 6]; VWR = [7, 8]; VXR = [9, 10]; VXO = [11, 12]; VF1, VL = 13, 14
    TT = 16; PV = 212; PR = 216; FL = 1; FR = [160, 460]; KR_ = 212
    def acc(t, u): return 16 + 4 * (t * 9 + u)
    a("v_lshrrev_b32 v%d, 3, v2" % TT); a("v_mul_u32_u24 v%d, 1280, v%d" % (TT, TT)); a("v_and_b32 v%d, 7, v2" % (TT + 1)); a("v_lshrrev_b32 v%d, 4, v2" % (TT + 2)); a("v_xor_b32 v%d, v%d, v%d" % (TT + 1, TT + 1, TT + 2))
    a("v_lshl_add_u32 v%d, v%d, 4, v%d" % (TT + 8, TT + 1, TT)); a("v_xor_b32 v%d, 64, v%d" % (TT + 9, TT + 8))
    a("s_lshl_b32 s68, s36, 3"); a("s_add_u32 s68, s68, s32"); a("s_mul_i32 s68, s68, 20480"); a("v_add_u32 v%d, s68, v%d" % (VXO[0], TT + 8)); a("s_add_u32 s68, s68, 9216"); a("v_add_u32 v%d, s68, v%d" % (VXO[1], TT + 9))
    a("s_lshl_b32 s66, s32, 12"); a("s_lshl_b32 s65, s32, 11"); a("s_add_u32 s65, s65, %d" % XB)
    def dmaX(gm):
        c, hf = gm >> 1, gm & 1
        return [("s_add_u32 m0, s65, %d" % ((c % 3) * XSL + hf * 8192), None), ("s_add_u32 s69, s%d, %d" % (50 + c, hf * 81920), None)] + \
               [("buffer_load_dwordx4 v%d, s[16:19], s69 offen offset:%d lds" % (VXO[k], 1024 * k), ("vm", ("g", gm))) for k in range(2)]
    def pack_scalars():
        for l in ["s_xor_b32 s71, s32, %d" % 0, "s_sub_u32 s4, s2, 128", "s_mul_i32 s4, s4, %d" % (1 if C.jb else 3), "s_mul_i32 s5, s71, %d" % (128 if C.jb else 1), "s_add_u32 s4, s4, s5", "s_cmp_lt_u32 s71, 3", "s_cselect_b32 s4, s4, 500", "s_lshr_b32 s5, s4, 2", "s_sub_u32 s6, s5, 20",
                  "s_cmp_lt_u32 s5, 20", "s_cselect_b32 s6, s5, s6", "s_cselect_b32 s8, s14, s96", "s_cselect_b32 s9, s15, s97", "s_cselect_b32 s10, 0, 0x118000", "s_cselect_b32 s13, 2, 1", "s_cselect_b32 s14, 1, 4",
                  "s_add_u32 s10, s10, 819200", "s_and_b32 s9, s9, 0xffff", "s_mov_b32 s11, 0x00020000",
                  "s_mul_i32 s6, s6, 40960", "s_and_b32 s7, s4, 3", "s_mul_i32 s12, s7, s13", "s_mul_i32 s12, s12, 5120", "s_add_u32 s6, s6, s12", "s_mul_i32 s14, s14, 5120", "s_add_u32 s14, s14, s6",
                  "s_mul_i32 s5, s5, 40960", "s_lshl_b32 s7, s7, 8", "s_add_u32 s5, s5, s7", "s_add_u32 s5, s5, %d" % W2P_OFF, "s_cmp_lt_u32 s4, 272", "s_cselect_b32 s4, s5, 0x%x" % OOB,
                  "s_mul_i32 s7, s71, 10240", "s_add_u32 s7, s7, %d" % PB, "s_cmp_lt_u32 s71, 3", "s_cselect_b32 s7, s7, 0x30000", "s_mov_b32 s15, %d" % (68 * 5120)]: a(l)
    def pack_ld(tt, o, n):
        return [("s_add_u32 m0, s7, %d" % (5120 * tt + o), None), ("s_add_u32 s12, s%d, %d" % (14 if tt else 6, o), None)] + [("buffer_load_dwordx4 v%d, s[8:11], s12 offen offset:%d%s lds" % (VL, 1024 * i, " nt" if C.pnt else ""), ("vm", "pk")) for i in range(n)]
    V = PV; PH = 20 if C.pv else 0
    pack_addr = [(x, None) for x in ["v_lshrrev_b32 v%d, 5, v2" % V, "v_lshlrev_b32 v%d, 6, v%d" % (V, V), "v_bfe_u32 v%d, v2, 4, 1" % (V + 2), "v_lshl_add_u32 v%d, v%d, 3, v%d" % (V, V + 2, V),
                "v_bfe_u32 v%d, v2, 2, 2" % (V + 2), "v_mul_u32_u24 v%d, 1280, v%d" % (V + 2, V + 2), "v_add_u32 v%d, v%d, v%d" % (V, V, V + 2),
                "v_and_b32 v%d, 3, v2" % (V + 2), "v_lshlrev_b32 v%d, 4, v%d" % (V + 2, V + 2), "v_add3_u32 v%d, v%d, v%d, s7" % (V, V, V + 2),
                "v_lshrrev_b32 v%d, 4, v2" % (V + 1), "v_lshlrev_b32 v%d, 10, v%d" % (V + 1, V + 1), "v_and_b32 v%d, 0xf0, v%d" % (V + 2, VL), "v_add_u32 v%d, v%d, v%d" % (V + 1, V + 1, V + 2)]]
    def pack_rd(hf): return [("WAITVM", "pk")] + [("ds_read_b64_tr_b16 %s, v%d offset:%d" % (R(PR + PH * hf + 4 * i + 2 * tt, 2), PV, 128 * (5 * hf + i) + 5120 * tt), None) for i in range(5) for tt in range(2)]
    def pack_st(hf): return [x for i in range(5) for x in (("s_add_u32 s5, s4, %d" % (4096 * (5 * hf + i)), None), ("buffer_store_dwordx4 %s, v%d, s[28:31], s5 offen sc1" % (R(PR + PH * hf + 4 * i), PV + 1), ("vm", "pst")))]
    pack_all = pack_ld(0, 0, 4) + pack_ld(0, 4096, 1) + pack_ld(1, 0, 4) + pack_ld(1, 4096, 1)
    patom = [("v_mov_b32 v%d, 1\ns_lshl_b32 s13, s32, 12" % PV, None), ("s_mov_b64 exec, 1\nbuffer_atomic_add v%d, off, s[24:27], s13 offset:128 sc0 sc1\ns_mov_b64 exec, -1" % PV, ("vm", "pa"))]
    a.srd(20, 6, 2457600)
    if C.pke == 1: pack_scalars(); sc.flush(list(pack_all))
    for it in dmaX(0) + dmaX(1): sc.emit(it)
    for i in range(4):
        a("s_lshl_b32 s68, s32, 8"); a("s_add_u32 s68, s68, %d" % (64 * i)); a("v_add_u32 v%d, s68, v2" % TT)
        a("v_mul_u32_u24 v%d, 2185, v%d" % (TT + 1, TT)); a("v_lshrrev_b32 v%d, 16, v%d" % (TT + 1, TT + 1))
        a("v_mul_u32_u24 v%d, 30, v%d" % (TT + 2, TT + 1)); a("v_sub_u32 v%d, v%d, v%d" % (TT + 2, TT, TT + 2))
        a("v_mul_u32_u24 v%d, 205, v%d" % (TT + 3, TT + 2)); a("v_lshrrev_b32 v%d, 11, v%d" % (TT + 3, TT + 3))
        a("v_mul_u32_u24 v%d, 1120, v%d" % (TT + 3, TT + 3)); a("v_lshl_add_u32 v%d, v%d, 4, v%d" % (TT + 3, TT + 2, TT + 3))
        a("v_bfe_u32 v%d, v%d, 2, 2" % (TT + 4, TT + 1)); a("v_lshlrev_b32 v%d, 3, v%d" % (TT + 4, TT + 4))
        a("v_bfe_u32 v%d, v%d, 4, 1" % (TT + 2, TT + 1)); a("v_lshl_add_u32 v%d, v%d, 2, v%d" % (TT + 4, TT + 2, TT + 4))
        a("v_and_b32 v%d, 3, v%d" % (TT + 2, TT + 1)); a("v_add_u32 v%d, v%d, v%d" % (TT + 4, TT + 4, TT + 2))
        a("v_mul_u32_u24 v%d, 3840, v%d" % (TT + 4, TT + 4)); a("s_mul_i32 s68, s37, 160"); a("s_sub_u32 s68, s68, %d" % (1024 * i if i < 3 else 0))
        a("v_add3_u32 v%d, v%d, v%d, s68" % (VWO[i], TT + 4, TT + 3))
    a("s_mul_i32 s68, s36, 163840"); a("s_sub_u32 s68, s68, 20480"); a("s_cmp_eq_u32 s36, 0"); a("s_cselect_b32 s68, 0x%x, s68" % OOB)
    a("v_add_u32 v%d, s68, v%d" % (TT + 8, TT + 8)); a("s_add_u32 s68, s68, 10240"); a("v_add_u32 v%d, s68, v%d" % (TT + 9, TT + 9))
    a("s_cmp_eq_u32 s32, 3")
    for i in range(3): a("s_cselect_b32 s%d, s%d, s%d" % (72 + i, 16 + i, 20 + i))
    a("s_mov_b32 s75, 0x00020000"); a("s_cselect_b64 vcc, -1, 0"); a("v_cndmask_b32 v%d, v%d, v%d, vcc" % (VF1, VWO[3], TT + 9)); a("v_cndmask_b32 v%d, v%d, v%d, vcc" % (VWO[3], VWO[3], TT + 8))
    def dmaW(gm):
        c, hf = gm >> 1, gm & 1
        return [("s_add_u32 m0, s66, %d" % ((gm % NW) * WSL), None), ("s_add_u32 s68, s%d, %d" % (40 + c, hf * 122880), None)] + \
               [("buffer_load_dwordx4 v%d, s[20:23], s68 offen offset:%d lds" % (VWO[k], 1024 * k), ("vm", ("g", gm))) for k in range(3)] + \
               [("s_add_u32 s69, m0, 3072", None), ("s_cmp_eq_u32 s32, 3\ns_cselect_b32 m0, %d, s69" % (XB + (c % 3) * XSL + 16384 + 1024 * hf), None), ("s_cmp_eq_u32 s32, 3\ns_cselect_b32 s68, s%d, s68" % (50 + c), None),
                ("buffer_load_dwordx4 v%d, s[72:75], s68 offen lds" % (VF1 if hf else VWO[3]), ("vm", ("g", gm)))]
    for it in dmaW(0) + dmaW(1): sc.emit(it)
    if C.xta:
        a("s_mul_i32 s62, s34, 5"); a("s_lshr_b32 s62, s62, 1"); a("s_lshr_b32 s69, s35, 2"); a("s_mul_i32 s69, s69, 5"); a("s_add_u32 s62, s62, s69"); a("s_add_u32 s62, s62, 4")
        a("s_sub_u32 s69, s62, 10"); a("s_cmp_ge_u32 s62, 10"); a("s_cselect_b32 s62, s69, s62"); a("s_lshl_b32 s62, s62, 4"); a("s_and_b32 s69, s35, 3"); a("s_lshl_b32 s69, s69, 2"); a("s_add_u32 s62, s62, s69")
        a("s_add_u32 s62, s62, s32"); a("s_mul_i32 s62, s62, 15360"); a("s_mul_i32 s69, s37, 160"); a("s_add_u32 s62, s62, s69")
        a("v_lshrrev_b32 v%d, 1, v2" % TT); a("v_mul_u32_u24 v%d, 1280, v%d" % (TT, TT)); a("v_and_b32 v%d, 1, v2" % (TT + 1)); a("v_mul_u32_u24 v%d, 156, v%d" % (TT + 1, TT + 1)); a("v_add_u32 v%d, v%d, v%d" % (TT, TT, TT + 1))
        a("s_mov_b64 exec, 0xffffff"); a("buffer_load_dword a198, v%d, s[20:23], s62 offen" % TT); a("s_mov_b64 exec, -1"); vm.issue("xt")
    if C.pke == 2: pack_scalars(); sc.flush(list(pack_all))
    raise_ready(a, vm, "att")
    for gm in range(2, C.na0):
        for it in dmaX(gm) + dmaW(gm): sc.emit(it)
    a("v_lshrrev_b32 v%d, 2, v2" % TT); a("v_mul_u32_u24 v%d, 480, v%d" % (TT, TT)); a("v_and_b32 v%d, 3, v2" % (TT + 1)); a("v_lshl_add_u32 v%d, v%d, 3, v%d" % (TT, TT + 1, TT))
    a("s_lshl_b32 s60, s32, 7"); a("v_add_u32 v%d, s60, v%d" % (VWR[0], TT)); a("v_add_u32 v%d, %d, v%d" % (VWR[1], 3 * WSL, VWR[0]))
    a("v_bfe_u32 v%d, v2, 1, 3" % TT); a("v_lshrrev_b32 v%d, 4, v2" % (TT + 1)); a("v_xor_b32 v%d, v%d, v%d" % (TT, TT, TT + 1)); a("v_lshlrev_b32 v%d, 4, v%d" % (TT, TT))
    a("v_and_b32 v%d, 15, v2" % (TT + 1)); a("v_lshl_add_u32 v%d, v%d, 7, v%d" % (TT, TT + 1, TT)); a("v_add_u32 v%d, %d, v%d" % (VXR[0], XB, TT)); a("v_xor_b32 v%d, 64, v%d" % (VXR[1], VXR[0]))
    a("v_lshlrev_b32 v15, 3, v%d" % (TT + 1))
    if not C.pke: pack_scalars()
    a("s_lshl_b32 s61, s36, 1"); a("s_lshr_b32 s69, s32, 1"); a("s_add_u32 s61, s61, s69"); a("s_mul_i32 s61, s61, %d" % (68 * 4096))
    a("s_and_b32 s69, s32, 1"); a("s_lshl_b32 s69, s69, 11"); a("s_add_u32 s61, s61, s69"); a("s_mov_b32 s39, %s" % f2h(20 ** -0.5 * 1.4426950408889634))
    a("s_mul_i32 s62, s32, %d" % (32 * RS)); a("s_mul_i32 s63, s32, 5120"); a("s_add_u32 s63, s63, %d" % OB); a("s_mul_i32 s64, s37, 10")
    a("s_mov_b32 s94, 0xfffefffe"); a("s_mov_b32 s95, 0xfffefffe")
    if C.stub: a("STUBCALLS_att")
    common_setup(a, "att")
    a("s_sub_u32 s38, s79, %d" % (16384 - 896)); a("s_cmp_eq_u32 s36, 0"); a("s_cselect_b32 s38, s79, s38")
    a("v_mov_b32 v%d, 0x3f803f80" % (FR[0] + 16))
    for k in range(4): a("v_mov_b32 v%d, 0x3f803f80" % (FR[0] + 16 + k)); a("v_accvgpr_write_b32 a%d, v%d" % (FR[1] - 256 + 16 + k, FR[0] + 16))
    if not C.lst: stats(a, vm, 252, 254, 255, "att")
    if C.skipm:
        a("s_cmp_eq_u32 s32, 3"); a("s_cselect_b32 s68, 0x30000, 0"); a("v_add_u32 v252, s68, v%d" % VWR[0]); a("v_add_u32 v253, s68, v%d" % VWR[1])
    stamp(a, 1)
    tr = Trace(a, 0); tr.lv = VL; tr.mark()
    def reads(s_):
        fb = FR[s_ % 2]; pos = s_ % NW; c = s_ >> 1; kh = s_ & 1
        def xr(u):
            l = "ds_read_b128 %s, v%d offset:%d" % (R(fb + 16 + 4 * u), VXR[kh], (c % 3) * XSL + (2048 * (u - 1) if u else 16384))
            return (l if u else "s_mov_b64 exec, s[94:95]\n" + l + "\ns_mov_b64 exec, -1", None)
        def wr(t, tt): return ("ds_read_b64_tr_b16 %s, v%d offset:%d" % (R(fb + 4 * t + 2 * tt, 2), (252 + pos // 3) if (t == 3 and C.skipm) else VWR[pos // 3], (pos % 3) * WSL + 7680 * tt + 32 * t), None)
        out = [wr(0, 0), wr(0, 1)] + [xr(u) for u in range(9)]
        for t in range(1, 4): out += [wr(t, 0), wr(t, 1)]
        return out
    T2 = 232; AQ, AV, VI, VQW, TOK, VOR = T2, T2 + 1, T2 + 2, T2 + 3, T2 + 4, T2 + 5; SO = T2 + 6; GO = T2 + 11; t0, t1, t2, t3 = T2 + 16, T2 + 17, T2 + 18, T2 + 19
    ad = []
    def rowaddr(dst, hh, i):
        ad.extend(["v_bfe_u32 v%d, v2, 4, 1" % TOK, "v_lshlrev_b32 v%d, 3, v%d" % (TOK, TOK), "v_bfe_u32 v%d, v2, 5, 1" % t0, "v_add_u32 v%d, v%d, v%d" % (TOK, TOK, t0),
                   "v_bfe_u32 v%d, v2, %d, 2" % (t0, i), "v_lshl_add_u32 v%d, v%d, 1, v%d" % (TOK, t0, TOK), "v_mul_u32_u24 v%d, %d, v%d" % (t1, RS, TOK),
                   "v_bfe_u32 v%d, v2, %d, 2" % (t0, hh), "v_mul_u32_u24 v%d, 40, v%d" % (t0, t0), "v_add3_u32 v%d, v%d, v%d, s62" % (dst, t1, t0)])
    rowaddr(AV, 0, 2); rowaddr(AQ, 2, 0)
    ad += ["v_and_b32 v%d, 3, v2" % VI, "v_lshrrev_b32 v%d, 3, v%d" % (t0, t0), "v_lshl_add_u32 v%d, v%d, 4, s63" % (t2, TOK), "v_add_u32 v%d, s63, v%d" % (VOR, VL)]
    for dp in range(5):
        ad += ["v_add_u32 v%d, %d, v%d" % (t1, dp, t0), "v_lshrrev_b32 v%d, 1, v%d" % (SO + dp, t1), "v_lshl_add_u32 v%d, v%d, 8, v%d" % (SO + dp, SO + dp, t2),
               "v_and_b32 v%d, 1, v%d" % (t1, t1), "v_lshl_add_u32 v%d, v%d, 3, v%d" % (SO + dp, t1, SO + dp)]
    ad += ["v_lshrrev_b32 v%d, 4, v2" % t0, "v_and_b32 v%d, 15, v2" % t2, "v_mul_u32_u24 v%d, %d, v%d" % (VQW, RS, t2), "v_lshl_add_u32 v%d, v%d, 3, v%d" % (VQW, t0, VQW), "v_add_u32 v%d, s60, v%d" % (VQW, VQW),
           "v_lshlrev_b32 v%d, 4, v%d" % (t2, t2)]
    for j in range(5):
        ad += ["v_add_u32 v%d, %d, v%d" % (t1, 4 * j, t0), "v_mul_u32_u24 v%d, 13, v%d" % (t3, t1), "v_lshrrev_b32 v%d, 7, v%d" % (t3, t3), "v_lshl_add_u32 v%d, v%d, 10, v%d" % (GO + j, t3, t2),
               "v_mul_u32_u24 v%d, 10, v%d" % (t3, t3), "v_sub_u32 v%d, v%d, v%d" % (t1, t1, t3), "v_add_u32 v%d, s64, v%d" % (t1, t1),
               "v_lshrrev_b32 v%d, 2, v%d" % (t3, t1), "v_lshl_add_u32 v%d, v%d, 12, v%d" % (GO + j, t3, GO + j), "v_and_b32 v%d, 3, v%d" % (t3, t1), "v_lshl_add_u32 v%d, v%d, 8, v%d" % (GO + j, t3, GO + j)]
    ad += ["v_cmp_gt_u32 s[%d:%d], %d, v%d" % (4 + 2 * k, 5 + 2 * k, k, VI) for k in range(1, 4)]
    k0 = C.pk0
    st_loads = ["buffer_load_dwordx2 v[%d:%d], v15, s[28:31], s%d offen offset:%d sc1" % (KR_ + 2 * u, KR_ + 2 * u + 1, 79 if u else 38, 128 * (u - 1) if u else 0) for u in range(9)]
    st_c = ["v_and_b32 v%d, 0xffff0000, v%d" % (KR_ + 2 * u + 1, KR_ + 2 * u) for u in range(9)] + ["v_lshlrev_b32 v%d, 16, v%d" % (KR_ + 2 * u, KR_ + 2 * u) for u in range(9)] + ["v_rcp_f32 v%d, v%d" % (KR_ + 2 * u + 1, KR_ + 2 * u + 1) for u in range(9)] + ["v_mul_f32 v%d, v%d, v%d" % (KR_ + 2 * u, KR_ + 2 * u, KR_ + 2 * u + 1) for u in range(9)]
    fex = {2: pack_addr, k0: pack_rd(0), k0 + 1: pack_st(0) + pack_rd(1)[1:], k0 + 2: pack_st(1), k0 + 4: patom,
           k0 + 6: [("WAITVM", "pa"), ("v_readfirstlane_b32 s100, v%d\ns_and_b32 s100, s100, 127\ns_cmp_eq_u32 s100, 127\ns_cbranch_scc1 ATT_bcast\nATT_bcast_ok:" % PV, None)] + [(x, None) for x in ad],
           C.sla + 3: [("WAITVM", "stl")] + tag_check("STA", st_loads, [KR_ + 2 * u + 1 for u in range(9)], 230) + [(x, None) for x in st_c]}
    assert C.sla > k0 + 6
    PSG = k0 + 4
    if C.pv:
        last = fex[k0 + 6]; stq = pack_st(0) + pack_st(1); PSG = k0 + 5
        fex = {2: pack_addr, k0: pack_rd(0), k0 + 1: pack_rd(1)[1:] + stq[:4], k0 + 2: stq[4:12], k0 + 3: stq[12:], PSG: patom, k0 + 6: last[2:30] + last[:2] + last[30:], C.sla + 3: fex[C.sla + 3]}
        pack_all = pack_ld(0, 0, 3) + pack_ld(0, 3072, 2) + pack_ld(1, 0, 2) + pack_ld(1, 2048, 3)
    if C.pke:
        k0 = -3; C.pkl = -9; PSG = 1; assert not C.pv
        fex = {1: patom, 3: fex[C.pk0 + 6], C.sla + 3: fex[C.sla + 3]}
        sc.flush(pack_addr + pack_rd(0)); PR = 16; sc.flush(pack_rd(1)[1:]); PR = 216
        a("s_waitcnt lgkmcnt(10)"); sc.flush(pack_st(0)); PR = 16; a("s_waitcnt lgkmcnt(0)"); sc.flush(pack_st(1))
    w2q = list(range(10)); giss = C.na0
    CB = t0
    def wr_tile(t, u, pk=False):
        c = acc(t, u); o = []; K = R(KR_ + 2 * u, 2)
        if u == 0: o += ["v_mov_b32_dpp v%d, v%d row_newbcast:0 row_mask:0xf bank_mask:0xf" % (CB + r, c + r) for r in range(4)]
        if pk: o += ["v_pk_mul_f32 %s, %s, %s op_sel:[0,1] op_sel_hi:[1,1]" % (R(c + r, 2), R(c + r, 2), K) for r in (0, 2)] + ["v_pk_fma_f32 %s, %s, %s, %s op_sel_hi:[1,0,1]" % (R(c + r, 2), R(CB + r, 2), K, R(c + r, 2)) for r in (0, 2)]
        else: o += ["v_mul_f32 v%d, v%d, v%d" % (c + r, c + r, KR_ + 2 * u + 1) for r in range(4)] + ["v_fmac_f32 v%d, v%d, v%d" % (c + r, CB + r, KR_ + 2 * u) for r in range(4)]
        o += ["v_cvt_pk_bf16_f32 v%d, v%d, v%d" % (c, c, c + 1), "v_cvt_pk_bf16_f32 v%d, v%d, v%d" % (c + 1, c + 2, c + 3), "ds_write_b64 v%d, %s offset:%d" % (13 if (t == 3 and C.t3u) else VQW, R(c, 2), 16 * RS * u + 32 * t)]
        return o
    while giss < 4:
        for it in dmaX(giss) + dmaW(giss): sc.emit(it)
        giss += 1
    wait(a, vm=vm.need(("g", 1))); a("s_barrier"); tr.mark()
    for it in reads(0): sc.emit(it)
    sc.dq += dmaX(4) + dmaW(4)
    eq = []
    for s_ in range(20):
        fb = FR[s_ % 2]
        a("s_waitcnt lgkmcnt(0)")
        rq = []
        for i in range(36):
            t, u = i // 9, i % 9
            if C.snk and t & 1 and s_ < 19: u = 8 - u
            c = acc(t, u)
            a("v_mfma_f32_16x16x32_bf16 %s, %s, %s, %s" % (R(c), R(fb + 4 * t), R(fb + 16 + 4 * u), "0" if s_ == 0 else R(c)))
            if i == 0:
                if C.lst and s_ == 1: stats(a, vm, 252, 254, 255, "att", 236)
                if s_ < 19: wait(a, vm=vm.need(*([("g", (s_ + 1) | 1)] + (["pst"] if s_ == PSG else []))))
                a("s_barrier"); tr.mark()
                if s_ < 19: rq = reads(s_ + 1)
                if s_ + NW < 20: sc.dq += dmaX(s_ + NW) + dmaW(s_ + NW)
                sc.sp = C.spa
                if s_ == 0: sc.sp = 1
                if C.pv:
                    if C.pkl <= s_ < C.pkl + 3: sc.dq += [pack_all[:5], pack_all[5:13], pack_all[13:]][s_ - C.pkl]; sc.sp = 2
                else:
                    if s_ == C.pkl: sc.dq += pack_all[:18 if C.p1 else 9]; sc.sp = 1 if C.p1 else 2
                    if s_ == C.pkl + 1 and not C.p1: sc.dq += pack_all[9:]; sc.sp = 2
                if s_ in fex: sc.fq += fex[s_]
                if C.sla <= s_ < C.sla + 3: sc.dq += [(l, ("vm", "stl")) for l in st_loads[3 * (s_ - C.sla):3 * (s_ - C.sla) + 3]]; sc.sp = 2
                if s_ == C.apc: sc.dq += [(flag_load(FL, "s35", 28), ("vm", "pf"))]
                if s_ == C.apc + 2:
                    sc.lq += [("WAITVM", "pf"), ("\n".join(x[0] for x in flag_check("ATT_pf", FL, "s35", 28, 0)), None)]
                    for _ in range(C.aw2): sc.lq += w2_loads(RA, w2q.pop(0), VL)
                if s_ >= 15: sc.sp = 3
                sc.n += 1; sc.since += 1
                continue
            if s_ == 19:
                if i >= 8 and i - 8 < 27: eq += wr_tile((i - 8) // 9, (i - 8) % 9, C.pkq and i - 8 >= C.npl)
                if i < 8 or (C.q19 and i % 4 == 0): sc.gap([], 2); continue
                for _ in range(C.eqn):
                    if eq and not eq[0].startswith("v_pk"): a(eq.pop(0))
                continue
            sc.gap([rq.pop(0)] if (rq and i % 3 != 0) else [], 2 - (1 if i == 35 else 0))
        sc.flush(sc.dq)
        if s_ <= PSG or s_ == 18 or s_ == C.sla - 1: sc.flush(sc.fq)
    stamp(a, 2); tr.mark()
    a("s_mul_i32 s12, s32, 15360"); a("s_add_u32 s12, s12, 94208")
    for i in w2q: sc.lq += w2_loads(RA, i, VL)
    SB = 13 if C.arp else 10
    for k in range(5): sc.lq += w2_lds(SB + k // 2, k & 1, VL, SB)
    if C.t3u:
        a("s_cmp_eq_u32 s32, 3"); a("s_cselect_b32 s68, 0x30000, 0"); a("v_add_u32 v13, s68, v%d" % VQW)
        for u in range(9): eq += wr_tile(3, u, C.pkq)
    for k, x in enumerate(eq):
        a(x)
        if k % C.qp == 0 and sc.lq:
            while sc.lq and not ismem(sc.lq[0][0]): sc.emit(sc.lq.pop(0))
            sc.emit(sc.lq.pop(0))
    if not C.t3u: a("s_cmp_eq_u32 s32, 3"); a("s_cbranch_scc1 K_att_s3")
    for u in range(0 if C.t3u else 9):
        for x in wr_tile(3, u, C.pkq): a(x)
    a("K_att_s3:")
    a("s_waitcnt lgkmcnt(0)"); tr.mark(); a("s_barrier")
    if C.arp:
        for i in (10, 11, 12): sc.lq += w2_loads(RA, i, VL)
    QR = [80, 150]; Sx = [16, 48]; O = [80, 150]; ZO = 20
    def KR(e, kb): return QR[e] + 10 + 10 * kb
    def VR(e, kb): return QR[e] + 40 + 10 * kb
    if C.arp:
        QR = [60, 496]; Sx = [16, 38]; O = [60, 80]; ZO = 18
        KR = lambda e, kb: 70 + 10 * (2 * e + kb)
        VR = lambda e, kb: [192, 202, 212, 222, 4][2 * e + kb]
    def lqpop(n=1):
        for _ in range(n):
            while sc.lq and not ismem(sc.lq[0][0]): sc.emit(sc.lq.pop(0))
            if sc.lq: sc.emit(sc.lq.pop(0))
    for e in range(2):
        for dp in range(5): a("ds_read_b64 %s, v%d offset:%d" % (R(QR[e] + 2 * dp, 2), AQ, (16 + 16 * e) * RS + 8 * dp)); lg.issue(("k", e))
        for kb in range(3):
            if e == 1 and kb == 0: continue
            for dp in range(5): a("ds_read_b64 %s, v%d offset:%d" % (R(KR(e, kb) + 2 * dp, 2), AQ, (8 * kb + 16 * e) * RS + 160 + 8 * dp)); lg.issue(("k", e))
    def KK(e, kb): return KR(0, 2) if (e == 1 and kb == 0) else KR(e, kb)
    def VV(e, kb): return VR(0, 2) if (e == 1 and kb == 0) else VR(e, kb)
    for e in range(2):
        wait(a, lg=lg.need(("k", e)))
        for dp in range(5):
            for kb in range(3):
                a("v_mfma_f32_4x4x4_16b_bf16 %s, %s, %s, %s" % (R(Sx[e] + 4 * kb), R(KK(e, kb) + 2 * dp, 2), R(QR[e] + 2 * dp, 2), "0" if dp == 0 else R(Sx[e] + 4 * kb)))
                if kb == 0: lqpop()
                if not (e == 1 and kb == 0): a("ds_read_b64_tr_b16 %s, v%d offset:%d" % (R(VR(e, kb) + 2 * dp, 2), AV, (8 * kb + 16 * e) * RS + 320 + 8 * dp)); lg.issue(("v", e))
    a("s_nop 3")
    a("s_or_b32 s68, s36, s32"); a("s_cmp_lg_u32 s68, 0"); a("s_cbranch_scc1 K_att_nomask")
    Z = Sx[0] + ZO
    a("v_lshlrev_b32 v%d, 1, v%d" % (Z, VI)); a("v_sub_u32 v%d, v%d, v%d" % (Z, TOK, Z)); a("v_mov_b32 v%d, 0xff800000" % (Z + 1))
    for k in range(1, 8): a("v_cmp_gt_u32 vcc, %d, v%d" % (16 - 2 * k, Z)); a("s_nop 1"); a("v_cndmask_b32 v%d, v%d, v%d, vcc" % (Sx[0] + k, Sx[0] + k, Z + 1))
    a("K_att_nomask:")
    tr.mark()
    a(sflag_load(0))
    def soft(S):
        Z = S + ZO; P = S + 12; o = []; M = lambda k: "s[%d:%d]" % (4 + 2 * k, 5 + 2 * k)
        o += ["v_cndmask_b32 v%d, v%d, v%d, %s" % (S + k, S + k + 8, S + k, M(k)) for k in range(1, 4)]
        o += ["v_max3_f32 v%d, v%d, v%d, v%d" % (Z + 1, S + 4, S + 5, S + 6), "v_max3_f32 v%d, v%d, v%d, v%d" % (Z, S + 1, S + 2, S + 3),
              "v_max3_f32 v%d, v%d, v%d, v%d" % (Z + 1, Z + 1, S + 7, S + 8), "v_max_f32 v%d, v%d, v%d" % (Z, Z, Z + 1), "v_mul_f32 v%d, s39, v%d" % (Z, Z)]
        o += ["v_fma_f32 v%d, v%d, s39, -v%d" % (S + k, S + k, Z) for k in range(1, 9)]
        o += ["v_exp_f32 v%d, v%d" % (S + k, S + k) for k in range(1, 9)]
        o += ["v_add_f32 v%d, v%d, v%d" % (Z, S + 1, S + 2), "v_add_f32 v%d, v%d, v%d" % (Z + 1, S + 3, S + 4), "v_add_f32 v%d, v%d, v%d" % (Z + 2, S + 5, S + 6), "v_add_f32 v%d, v%d, v%d" % (Z + 3, S + 7, S + 8),
              "v_add_f32 v%d, v%d, v%d" % (Z, Z, Z + 1), "v_add_f32 v%d, v%d, v%d" % (Z + 2, Z + 2, Z + 3), "v_add_f32 v%d, v%d, v%d" % (Z, Z, Z + 2), "v_rcp_f32 v%d, v%d" % (Z, Z), "v_mov_b32 v%d, 0" % S]
        o += ["v_mul_f32 v%d, v%d, v%d" % (S + k, S + k, Z) for k in range(1, 9)]
        for k in range(1, 4): o += ["v_cndmask_b32 v%d, v%d, 0, %s" % (S + k + 8, S + k, M(k)), "v_cndmask_b32 v%d, 0, v%d, %s" % (S + k, S + k, M(k))]
        o += ["v_cvt_pk_bf16_f32 v%d, v%d, v%d" % (P + j, S + 2 * j, S + 2 * j + 1) for j in range(6)]
        return o
    for k, (x, y) in enumerate(zip(soft(Sx[0]), soft(Sx[1]))):
        a(x); a(y)
        if k % C.sqp == 0: lqpop()
    a("s_waitcnt lgkmcnt(0)"); a("s_nop 0")
    if C.ea1:
        sc.flush(sflag_check("ATT_fe", 100, 1, 0)[1:])
        while sc.lq and ismem(sc.lq[0][0]): sc.emit(sc.lq.pop(0))
        a0 = []
        for q in range(4): a0 += [("s_add_u32 s14, s32, %d\ns_and_b32 s14, s14, 3\ns_lshl_b32 s14, s14, 10\ns_add_u32 s14, s14, s%d\ns_add_u32 s14, s14, %d" % ((q,) + step_off(0, AB, 4096, RA)), None),
                                  ("buffer_load_dwordx4 %s, v%d, s[28:31], s14 offen sc1" % (R(RA.A[0] + 4 * q), VL), ("vm", ("a", 0)))]
        sc.lq = a0 + sc.lq
    def ocvt(e, dp):
        c = O[e] + 4 * dp
        return ["v_cvt_pk_bf16_f32 v%d, v%d, v%d" % (c, c, c + 1), "v_cvt_pk_bf16_f32 v%d, v%d, v%d" % (c + 1, c + 2, c + 3), "ds_write_b64 v%d, %s offset:%d" % (SO + dp, R(c, 2), 2560 * e)]
    q0 = [x for dp in range(5) for x in ocvt(0, dp)]
    for e in range(2):
        for kb in range(3):
            for dp in range(5):
                a("v_mfma_f32_4x4x4_16b_bf16 %s, %s, %s, %s" % (R(O[e] + 4 * dp), R(VV(e, kb) + 2 * dp, 2), R(Sx[e] + 12 + 2 * kb, 2), "0" if kb == 0 else R(O[e] + 4 * dp)))
                if e == 1 and (kb > 0 or dp > 0): a(q0.pop(0))
                if C.pvq and dp == 4: lqpop()
    for x in q0: a(x)
    for dp in range(5):
        for x in ocvt(1, dp): a(x)
        if C.pvq and dp % 2 == 0: lqpop()
    a("s_waitcnt lgkmcnt(0)")
    for j in range(5): a("ds_read_b128 %s, v%d offset:%d" % (R(100 + 4 * j), VOR, 1024 * j))
    def ostores():
        for j in range(5):
            a("s_waitcnt lgkmcnt(%d)" % (4 - j if C.ea0 else 0)); a("buffer_store_dwordx4 %s, v%d, s[28:31], s61 offen sc1" % (R(100 + 4 * j), GO + j)); vm.issue("ost")
    if C.ea0: ostores()
    tr.mark(); tr.sync(); tr.mark(); tr.flush(41)
    for it in act_voffs(VL): sc.emit(it)
    a("v_mov_b32 v7, v%d" % VL); a("v_add_u32 v2, s1, v2")
    if not C.ea1: sc.flush(sflag_check("ATT_fe", 20, 1, 0))
    left = list(sc.lq); sc.lq = []
    while left and ismem(left[0][0]): sc.emit(left.pop(0))
    for i in range(C.ea1, 2 + C.ea1): sc.flush(act_loads(RA, i))
    if not C.ea0: ostores()
    print("ATT left", len(left))
    lrd = [("WAITVM", "wl"), ("v_add_u32 v22, s12, v7", None)] + [("ds_read_b128 %s, v22 offset:%d" % (R(RA.W[SB] + 4 * k), 1024 * k), None) for k in range(15)]
    for i in (SB, SB + 1): vm.seen.add(("w2", i))
    pend = [(i, act_loads(RA, i)) for i in range(2 + C.ea1, 4)]; grp = []
    for x in left:
        if x[0].startswith("s_add_u32 m0") or x[0].startswith("s_add_u32 s13"): grp.append([])
        grp[-1].append((x[0].replace("v%d," % VL, "v7,"), x[1]))
    for g in grp: pend.append((g[-1][1][1][1] - 0.5 if g[-1][1][1] != "wl" else 5.5, g))
    pend += [(SB + 1.5, w2_parts(RA, SB + 2)[1])] + [(i - 0.5, p) for i in range(SB + 3, 17) for p in w2_parts(RA, i)]
    sc.timed = [(sc.n + C.sda, [("WAITVM", "ost"), (wave_signal(2, 1), ("vm", "sg"))])]
    p2_main(a, sc, RA, pend, [], lrd)

def p2_main(a, sc, r, pend, ep, lrd=()):
    vm = sc.vm; sc.sp = C.sp2; sc.dq = []; sc.fq = list(ep); sc.lq = []
    VL, VX, VR_ = 7, 8, 9; FL = 20; NT = r.NT; H = NT // 2; RB = 3 * NT * 1024; WA = [0, 10, 11, 12]
    XR = r.XF + 4 * NT
    stamp(a, 3)
    tr = Trace(a, 15); tr.lv = VL; tr.mark()
    if C.bs < 0: a("s_barrier")
    xl = [(x, None) for x in ["v_and_b32 v9, 0xf0, v7", "v_mul_u32_u24 v9, 80, v9", "v_lshrrev_b32 v%d, 8, v7" % VX, "v_lshl_add_u32 v%d, v%d, 4, v9" % (VX, VX)]] + \
         [("buffer_load_dwordx4 %s, v%d, s[16:19], s3 offen offset:%d" % (R(XR + 4 * h), VX, 64 * h), ("vm", "xr")) for h in range(H)]
    gate = {4: (2, 0, C.fo if r is RF else C.foa), 8: (1, 16, C.fb), 13: (3, 0, C.fc if r is RF else C.fca)}
    QO = (1, 2, 3, 0)
    def qloads(n):
        out = []
        for i in range(13, 17):
            l = act_loads(r, i); out += [l[0], (l[1 + QO[n]][0], ("vm", ("a", 13 + n)))]
        return out
    work = sorted([(min(w[0], 12.9), w[1]) for w in pend] + [(i, act_loads(r, i)) for i in range(4, 13)] + [(13 + n, qloads(n)) for n in range(4)], key=lambda w: w[0])
    nld = lambda it: sum(1 for x in it if x[0].startswith("buffer"))
    rate = sum(nld(w[1]) for w in work) / float(C.span if r is RF else C.spanA); credit = 0.0
    def blocked(w, i):
        tag = w[1][-1][1][1]
        if tag[0] == "a":
            rel = r.AREL[tag[1] if tag[1] < 13 else 16]
            if rel == "e": rel = 99 if epi else -1
            return rel >= i or any(tag[1] >= f and i < at for f, (ph, off, at) in gate.items())
        return tag[0] == "w2" and r.WREL[tag[1]] >= i
    dw = lambda q_, t_: ("ds_write_b128 v%d, %s offset:%d" % (WA[q_], R(r.acc(q_, t_)), ((q_ - 1) * NT + t_) * 1024), None)
    for i in range(17):
        sc.flush(sc.lq); epi = bool(sc.fq)
        wait(a, vm=vm.need(*([("a", i)] + ([("w2", i)] if i < 13 else [("w2", k) for k in range(13, 17)])))); tr.mark()
        if i == C.st4: stamp(a, 4)
        for f, (ph, off, at) in gate.items():
            if i == at: sc.lq += sflag_check("P2%s_f%d" % (r.n, f), FL, ph, off)
        for f, (ph, off, at) in gate.items():
            if i == max(0, at - (C.fdf if r is RF else C.fd)) and (f > 4 or r is RA): sc.lq += [(sflag_load(off), None)]
        credit = min(credit + rate, rate + 2)
        if r is RA and i <= C.foa and C.boost: credit = C.boost
        for w in list(work):
            if credit < 1.5 and w[0] > i + C.la - 1: break
            if blocked(w, i): continue
            work.remove(w); sc.lq += w[1]; credit -= nld(w[1])
        if i == (C.xsf if r is RF else C.xsa): sc.lq += xl
        order = [(t, (q if not (C.snk and t & 1) else 3 - q), i) for t in range(NT) for q in range(4)] if i < 13 else [(t, QO[i - 13], k) for k in range(13, 17) for t in range(NT)]
        if i == 12:
            sc.fq += [(x, None) for x in ["s_mov_b32 s20, s98", "s_and_b32 s21, s99, 0xffff", "s_mov_b32 s22, 0x%x" % XBYTES, "s_mov_b32 s23, 0x00020000"]]
            for q in range(1, 4): sc.fq += [(x, None) for x in ["s_add_u32 s14, s32, %d" % q, "s_and_b32 s14, s14, 3", "s_mul_i32 s14, s14, %d" % RB, "v_add_u32 v%d, s14, v%d" % (WA[q], VL)]]
        if i == C.bs: sc.fq += [("s_barrier", None)]
        if i == C.lrs: sc.fq += list(lrd[:10])
        if i == C.lrs + 1: sc.fq += list(lrd[10:])
        if i == 10 and lrd: a("s_waitcnt lgkmcnt(0)")
        if i == 15:
            assert not work and not sc.lq and not sc.timed
            sc.fq += [("s_mul_i32 s14, s32, %d" % RB, None), ("v_add_u32 v9, s14, v%d" % VL, None)]
        if i == 16:
            sc.fq += [("WAITVM", "xr")]
            for d in range(2 * NT): sc.fq += [("v_and_b32 v%d, 0xffff0000, v%d" % (r.XF + 2 * d + 1, XR + d), None), ("v_lshlrev_b32 v%d, 16, v%d" % (r.XF + 2 * d, XR + d), None)]
        wq = [dw(QO[i - 14], t) for t in range(NT)] if i >= 14 else []
        for k, (t, q, j) in enumerate(order):
            c = r.acc(q, t)
            a("v_mfma_f32_16x16x32_bf16 %s, %s, %s, %s" % (R(c), R(r.W[j] + 4 * t), R(r.A[j] + 4 * q), "0" if i == 0 else R(c)))
            if wq and k >= 4 and k % 3 == 1: sc.gap([wq.pop(0)], 0)
            else: sc.gap([], (C.esl if epi else 2) - (0 if k < 4 * NT - 1 else 1))
        assert not wq
        if not epi: sc.flush(sc.fq)
    tr.mark()
    a("s_waitcnt lgkmcnt(0)"); tr.mark(); a("s_barrier"); tr.sync(); tr.mark()
    lg = Q(15)
    for t in range(NT):
        for s in range(3): a("ds_read_b128 %s, v%d offset:%d" % (R(r.STG + (t * 3 + s) * 4), VR_, (s * NT + t) * 1024)); lg.issue(t)
    for d in range(2 * NT): a("v_pk_add_f32 %s, %s, %s" % (R(r.acc(0, 0) + 2 * d, 2), R(r.acc(0, 0) + 2 * d, 2), R(r.XF + 2 * d, 2)))
    for t in range(NT):
        wait(a, lg=lg.need(t)); c = r.acc(0, t)
        for s in range(3):
            for k in (0, 2): a("v_pk_add_f32 %s, %s, %s" % (R(c + k, 2), R(c + k, 2), R(r.STG + (t * 3 + s) * 4 + k, 2)))
        a("v_cvt_pk_bf16_f32 v%d, v%d, v%d" % (r.XF + 2 * t, c, c + 1)); a("v_cvt_pk_bf16_f32 v%d, v%d, v%d" % (r.XF + 2 * t + 1, c + 2, c + 3))
        if t & 1: a("buffer_store_dwordx4 %s, v%d, s[20:23], s3 offen offset:%d" % (R(r.XF + 2 * t - 2), VX, 32 * (t - 1)))
    tr.mark()
    if C.st or C.tr: a("s_waitcnt vmcnt(0)")
    stamp(a, 5); tr.sync(); tr.mark(); tr.flush(23, 1 << 20)
    if r is RF: a("s_branch K_fin" if C.st else "s_endpgm")

def gen_all():
    a = Asm(); vm = Q(63)
    prologue(a, vm); vm2 = copy.deepcopy(vm)
    ffn(a, vm); att(a, vm2); a("K_fin:")
    stamp_flush(a, 6)
    a("K_end:"); a("s_endpgm"); emit_spins(a)
    a("ATT_bcast:"); a("v_lshrrev_b32 v212, 2, v2"); a("v_lshlrev_b32 v212, 14, v212"); a("v_and_b32 v213, 3, v2"); a("v_lshl_add_u32 v212, v213, 7, v212"); a("v_mov_b32 v213, s1")
    a("s_mov_b32 s100, %d" % (SYNC_OFF + 1024 + 64)); a("buffer_store_dword v213, v212, s[28:31], s100 offen sc1"); a("buffer_store_dword v213, v212, s[28:31], s100 offen offset:32 sc1"); a("s_branch ATT_bcast_ok"); a("K_last:"); a("s_endpgm")
    return a.text()
if __name__ == "__main__":
    for kv in sys.argv[2:]:
        k, v = kv.split("="); assert hasattr(C, k), k; setattr(C, k, int(v))
    kn = NAME + "_kernel"
    txt = HEADER + "; @launch grid=(256,1,1) block=(256,1,1) lds=162816\n" + '.amdgcn_target "amdgcn-amd-amdhsa--gfx950"\n.text\n' + kernel_head(kn) + gen_all()
    tail = '.section .rodata,"a"\n' + kernel_desc(kn, 512, 102, 256)
    if C.stub:
        import subprocess
        NS = 8
        def calls(role, labs):
            o = ["s_getpc_b64 s[68:69]", "SC_%s:" % role]
            for h in range(2):
                o += ["s_mov_b32 s100, %s-SC_%s" % (labs[4 * h], role)]
                for w in range(1, 4): o += ["s_cmp_eq_u32 s32, %d" % w, "s_cselect_b32 s100, %s-SC_%s, s100" % (labs[4 * h + w], role)]
                o += ["s_add_u32 s100, s68, s100", "s_addc_u32 s101, s69, 0", "s_swappc_b64 s[70:71], s[100:101]"]
            return "\n".join(("" if x.endswith(":") else "    ") + x for x in o)
        def build(ins):
            L = txt.split("\n"); out = []; labs = {"ffn": [], "att": []}; role = "ffn"
            for i, l in enumerate(L):
                if l == "K_att:": role = "att"
                if i in ins:
                    n = "STUB%d" % i; labs[role].append(n); out += ["    s_branch %s_x" % n, n + ":", "    s_setpc_b64 s[70:71]", n + "_x:"]
                out.append(l)
            t = "\n".join(out)
            for r_ in labs:
                lb = (labs[r_] + ["K_ret"] * NS)[:NS]; t = t.replace("    STUBCALLS_" + r_, calls(r_, lb))
            return t.replace("K_last:\n", "K_ret:\n    s_setpc_b64 s[70:71]\nK_last:\n")
        ins = set()
        base = 0x1c00
        while True:
            t = build(ins); L = txt.split("\n")
            marked = "\n".join(("M%d_:\n" % i if l.startswith("    v_mfma") else "") + l for i, l in enumerate(L))
            sv = txt; txt = marked
            idx = {}; k = 0
            for i, l in enumerate(L):
                if l.startswith("    v_mfma"): k += 1
                idx[i] = i + k - (1 if l.startswith("    v_mfma") else 0)
            tm = build({idx[i] for i in ins}); txt = sv
            open("stub.s", "w").write(tm + tail)
            subprocess.run(["clang", "-x", "assembler", "-target", "amdgcn-amd-amdhsa", "-mcpu=gfx950", "-c", "stub.s", "-o", "stub.o"], check=True)
            sy = subprocess.run(["llvm-readelf", "-s", "stub.o"], capture_output=True, text=True).stdout
            ad = sorted((int(x.split()[1], 16) + base - C.sto, int(x.split()[-1][1:-1])) for x in sy.split("\n") if re.search(r" M\d+_$", x))
            done = {a_ >> 12 for a_, i in ad if i in ins}; new = None
            for (a0, i0_), (a1, i1_) in zip(ad, ad[1:]):
                if a1 >> 12 != a0 >> 12 and (a1 >> 12) not in done and i1_ not in ins: new = i1_; break
            if new is None: break
            ins.add(new)
        print("stubs:", len(ins)); txt = build(ins)
    open(sys.argv[1], "w").write(txt + tail)
```

```python
import sys, struct, copy, re, os
from asmlib import *
ACT_OFF = 0; W2P_OFF = 16 << 20; SYNC_OFF = 28 << 20; STAMP_OFF = 128 << 20
WS_BYTES = 256 << 20; XBYTES = 2621440; OOB = 0x7ff00000
class Cfg:
    st = 0; tr = 0; pref = 3; slp = 2; sp = 3; spa = 4; w2n = 16; aw2 = 8; st4 = 8; sd = 40; e1 = 0; e2 = 88; pfc = 20; apc = 13
    sp2 = 2; eps = 8; sg1 = 200; map2 = 0; fk = 230; ldw = 0; nx0 = 2; na0 = 3; pk0 = 3; sl0 = 6; sla = 13; rdf = 1; rda = 0; wpf = 99; pkl = 0; ae0 = 24; ae00 = 26; off = 0; wpn = 1; hack = 0; b1 = 60; b2 = 90; csm = 1; es = 0; tlb = 0; mixcb = 1; sp3 = 2; span = 13; bs = 13; ffp = 3; pke = 0; rf = 2; xb = 6; stsp = 1; sfl = 1; glc = 1; lrs = 7; pk = 1; skipm = 1; nep = 16; epn = 276; qp = 8; sqp = 4; arp = 1; sd2 = 20; pv = 0; sda = 2; aord = 0; hs = 2; jb = 0; foa = 2; boost = 0; qm = 1; pnt = 1; p1 = 1; rz = 65536; snk = 1; xt = 0; xta = 0; lst = 0; stub = 0; sto = 0; q19 = 1; t3u = 1; pvq = 1; fdf = 2; xsf = 10; xsa = 12; fca = 10; ea1 = 1; sfe = 30; pke2 = 1; ssp = 1; lp = 0; psg = 6; ea3 = 0; so = 0x4400; tabF = 0x87653210; m0f = 255; m1f = 0x88; tabA = 0x87653210; ao = 2; ab = 6; ac = 10; pkq = 1; ea0 = 1; npl = 5; eqn = 2; pfold = 0; esl = 4; spanA = 13; la = 4; fo = 0; fb = 5; sgs = 2; fc = 10; fd = 2
C = Cfg()
GA = -2.0 * 0.7978845608028654 * 1.4426950408889634; GB = GA * 0.044715
def f2h(x): return "0x%08x" % struct.unpack("<I", struct.pack("<f", x))[0]
_ref = "cdna_kernels/%s.s.ref" % NAME
HEADER = open(_ref).read().split("; Override")[0] if os.path.exists(_ref) else ""

class Q:
    def __init__(s, cap): s.q = []; s.cap = cap; s.seen = set()
    def issue(s, tag): s.q.append(tag); s.seen.add(tag)
    def need(s, *tags, opt=()):
        for t in tags: assert t in s.seen, ("waiting for something never issued", t)
        tags = tuple(tags) + tuple(opt); idx = -1
        for i, t in enumerate(s.q):
            if t in tags: idx = i
        if idx < 0: return None
        n = min(len(s.q) - 1 - idx, s.cap); s.q = s.q[len(s.q) - n:] if n else []
        return n
    def clear(s): s.q = []
def wait(a, vm=None, lg=None):
    p = []
    if vm is not None: p.append("vmcnt(%d)" % vm)
    if lg is not None: p.append("lgkmcnt(%d)" % lg)
    if p: a("s_waitcnt " + " ".join(p))
def R(n, k=4): return ("a[%d:%d]" % (n - 256, n - 256 + k - 1)) if n >= 256 else ("v[%d:%d]" % (n, n + k - 1))
def cost(ins):
    n = 0
    for l in ins.split("\n"):
        if l.endswith(":") or not l: continue
        n += 1
        if l.startswith("v_exp") or l.startswith("v_rcp"): n += 1
        if l.startswith("ds_write_b128") or l.startswith("buffer_store_dwordx4"): n += 3
        if l.startswith("ds_write_b64"): n += 2
        if l.startswith("buffer_load") or l.startswith("buffer_atomic") or l.startswith("buffer_store_dword "): n += 1
    return n
def ismem(ins): return ins.startswith("ds_") or ins.startswith("buffer_")
def deps(ins):
    if "\n" in ins or not ins.startswith("v_") or "vcc" in ins or " s" in ins: return None
    regs = re.findall(r"[va]\d+", ins.split(" ", 1)[1])
    return {regs[0]}, set(regs[1:])

class Sched:
    def __init__(s, a, vm, lg, sp): s.a = a; s.vm = vm; s.lg = lg; s.fq = []; s.dq = []; s.lq = []; s.since = 99; s.sp = sp; s.n = 0; s.timed = []
    def emit(s, item):
        ins, tag = item[0], item[1]
        if ins == "WAITVM": wait(s.a, vm=s.vm.need(tag)); return
        if ins == "WAITLG": wait(s.a, lg=s.lg.need(tag)); return
        if ins == "LATER": s.timed.append((s.n + tag[0], tag[1])); return
        s.a(ins)
        if tag:
            for _ in range(item[2] if len(item) > 2 else 1): (s.vm if tag[0] == "vm" else s.lg).issue(tag[1])
    def gap(s, must=(), slots=2):
        first = True; s.n += 1; s.since += 1
        while s.timed and s.timed[0][0] <= s.n: s.lq = s.timed.pop(0)[1] + s.lq if not s.lq_open() else s.lq + s.timed.pop(0)[1]
        for it in must: s.emit(it); slots -= cost(it[0]); first = False
        while slots > 0:
            q = s.dq if s.dq else s.lq
            if not q: break
            isb = "buffer_" in q[0][0]; m = ismem(q[0][0])
            if not ((first or (not m and cost(q[0][0]) <= slots)) and (not isb or s.since > s.sp)): break
            it = q.pop(0); s.emit(it); slots -= cost(it[0]); first = False
            if isb: s.since = 0
        lastw = None
        while s.fq and slots > 0:
            pick = None; W = set(); Rr = set()
            for idx, it in enumerate(s.fq[:14]):
                n = cost(it[0]); d = deps(it[0])
                if d is None:
                    if idx == 0 and not (ismem(it[0]) and not first) and (n <= slots or (first and n > 2) or it[0] == "LATER"): pick = 0
                    break
                w, r = d
                if n <= slots and not (r & W) and not (w & W) and not (w & Rr) and not (lastw is not None and lastw in r): pick = idx; break
                W |= w; Rr |= r
            if pick is None: break
            it = s.fq.pop(pick); s.emit(it)
            if it[0] == "LATER": continue
            slots -= cost(it[0]); first = False
            lastw = next(iter(deps(it[0])[0])) if (cost(it[0]) == 2 and deps(it[0])) else None
    m0lock = False
    def lq_open(s): return False
    def fc(s): return sum(cost(it[0]) for it in s.fq if it[0] != "LATER")
    def flush(s, q):
        while q: s.emit(q.pop(0))

def stamp(a, idx):
    if C.st: a("%s s[%d:%d]" % ("s_memtime" if C.st == 2 else "s_memrealtime", 80 + 2 * idx, 81 + 2 * idx))
def stamp_flush(a, n):
    if not C.st: return
    a("s_waitcnt lgkmcnt(0)"); a("s_cmp_lg_u32 s32, 0"); a("s_cbranch_scc1 L_stf"); a("s_mov_b64 exec, 1")
    a("s_mul_i32 s70, s2, %d" % (n * 8)); a("s_add_u32 s70, s70, %d" % STAMP_OFF)
    for j in range(n):
        a("v_mov_b32 v2, s%d" % (80 + 2 * j)); a("v_mov_b32 v3, s%d" % (81 + 2 * j)); a("buffer_store_dwordx2 v[2:3], off, s[28:31], s70 offset:%d" % (8 * j)); a("s_nop 1")
    a("L_stf:")
class Trace:
    def __init__(s, a, v, n=0): s.a = a; s.v = v; s.n = n; s.n0 = n
    def mark(s):
        if not C.tr: return
        if s.n > s.n0: s.a("v_writelane_b32 v%d, s%d, %d" % (s.v, 88 + 2 * ((s.n - 1) & 1), s.n - 1))
        s.a("%s s[%d:%d]" % ("s_memtime" if C.tr == 2 else "s_memrealtime", 88 + 2 * (s.n & 1), 89 + 2 * (s.n & 1))); s.n += 1
    def sync(s):
        if C.tr: s.a("s_waitcnt lgkmcnt(0)"); s.a("v_writelane_b32 v%d, s%d, %d" % (s.v, 88 + 2 * ((s.n - 1) & 1), s.n - 1))
    def flush(s, vt, off=0):
        if not C.tr: return
        s.sync(); s.a("s_lshl_b32 s88, s2, 10"); s.a("s_add_u32 s88, s88, %d" % (STAMP_OFF + off)); s.a("s_lshl_b32 s89, s32, 8"); s.a("s_add_u32 s88, s88, s89"); s.a("v_lshrrev_b32 v%d, 2, v%d" % (vt, s.lv))
        s.a("buffer_store_dword v%d, v%d, s[28:31], s88 offen" % (s.v, vt))

def bfr(a, v): a("v_cvt_pk_bf16_f32 v%d, v%d, v%d" % (v, v, v)); a("v_lshlrev_b32 v%d, 16, v%d" % (v, v))

SPINS = []
def flag_load(vd, soff, srd, off=None):
    if off is None: return "buffer_load_dword v%d, off, s[%d:%d], %s offset:64 sc1" % (vd, srd, srd + 3, soff)
    return "buffer_load_dwordx4 v[%d:%d], off, s[%d:%d], %s offset:%d sc1" % (vd, vd + 3, srd, srd + 3, soff, off)
def flag_read(vd, off, ph):
    o = ["s_add_u32 s100, s1, %d" % ph]
    if off is None: o += ["v_subrev_u32 v%d, s100, v%d" % (vd, vd)]
    else: o += ["v_subrev_u32 v%d, s100, v%d" % (vd + k, vd + k) for k in range(4)] + ["v_max3_u32 v%d, v%d, v%d, v%d" % (vd, vd, vd + 1, vd + 2), "v_max_u32 v%d, v%d, v%d" % (vd, vd, vd + 3)]
    return o + ["v_cmp_lt_u32 vcc, %d, v%d" % (3 - ph, vd)]
def flag_check(name, vd, soff, srd, ph, off=None):
    if (name, vd, soff, srd, ph, off) not in SPINS: SPINS.append((name, vd, soff, srd, ph, off))
    r = flag_read(vd, off, ph)
    return [(x, None) for x in r[:-1]] + [(r[-1] + "\ns_cmp_lg_u64 vcc, 0\ns_cbranch_scc1 %s_spin\n%s_ok:" % (name, name), None)]
SSPINS = []
def sflag_load(off=None):
    g = " glc" if C.glc else ""
    return ("s_buffer_load_dword s56, s[28:31], s35 offset:64" + g) if off is None else ("s_buffer_load_dwordx4 s[56:59], s[28:31], s35 offset:%d" % off + g)
def sflag_check(name, vd, ph, off=None, restore=()):
    if not C.ssp: TSPINS.append((name, [flag_load(vd, "s35", 28, off)], flag_read(vd, off, ph) + list(restore)))
    o = ["s_waitcnt lgkmcnt(0)", "s_add_u32 s100, s1, %d" % ph] + ["s_sub_u32 s%d, s%d, s100" % (56 + k, 56 + k) for k in range(1 if off is None else 4)]
    if off is not None: o += ["s_max_u32 s56, s56, s57", "s_max_u32 s58, s58, s59", "s_max_u32 s56, s56, s58"]
    if C.ssp: SSPINS.append((name, sflag_load(off), o, 3 - ph, [flag_load(vd, "s35", 28, off)], flag_read(vd, off, ph) + list(restore)))
    return [(x, None) for x in o] + [("s_cmp_gt_u32 s56, %d\ns_cbranch_scc1 %s_spin\n%s_ok:" % (3 - ph, name, name), None)]
def spin(a, name, loads, red):
    a("%s_spin:" % name); a("s_mov_b32 s101, 0"); a("%s_lp:" % name); a("s_sleep %d" % C.slp)
    for l in loads: a(l)
    a("s_add_u32 s101, s101, 1"); a("s_waitcnt vmcnt(0)")
    for l in red: a(l)
    a("s_nop 1"); a("s_cmp_eq_u64 vcc, 0"); a("s_cbranch_scc1 %s_ok" % name)
    a("s_cmp_lt_u32 s101, 0x8000"); a("s_cbranch_scc1 %s_lp" % name); a("s_branch %s_ok" % name)
def emit_spins(a):
    for name, vd, soff, srd, ph, off in SPINS: spin(a, name, [flag_load(vd, soff, srd, off)], flag_read(vd, off, ph))
    for name, loads, red in TSPINS: spin(a, name, loads, red)
    for name, ld, o, lim, loads, red in SSPINS:
        a("%s_spin:" % name); a("s_mov_b32 s101, 0"); a("%s_sl:" % name); a("s_sleep 1"); a(ld); a("s_add_u32 s101, s101, 1")
        for l in o: a(l)
        a("s_cmp_le_u32 s56, %d" % lim); a("s_cbranch_scc1 %s_ok" % name); a("s_cmp_lt_u32 s101, 24"); a("s_cbranch_scc1 %s_sl" % name)
        spin(a, name + "v", loads, red); a("%sv_ok:" % name); a("s_branch %s_ok" % name)
def wave_signal(VN, val):
    return "s_mov_b64 exec, %d\nbuffer_store_dword v%d, off, s[28:31], s34 sc1\ns_mov_b64 exec, -1" % (1 << val, VN)
TSPINS = []
def tag_check(name, loads, regs, tmp):
    red = ["v_xor_b32 v%d, s1, v%d" % (tmp, regs[0])] + ["v_bitop3_b32 v%d, v%d, s1, v%d bitop3:0xbe" % (tmp, r, tmp) for r in regs[1:]] + ["v_cmp_ne_u32 vcc, 0, v%d" % tmp]
    TSPINS.append((name, loads, red))
    return [(x, None) for x in red[:-1]] + [(red[-1] + "\ns_cmp_lg_u64 vcc, 0\ns_cbranch_scc1 %s_spin\n%s_ok:" % (name, name), None)]

WB = [92, 93]; AB = [77, 78]; KSB = 40960
class Role: pass
RF = Role(); RF.n = "ffn"; RF.NT = 4
RF.W = [256 + 16 * i for i in range(16)] + [168]; RF.WREL = [-1] * 17
RF.A = [184, 200, 216, 24, 240, 184, 256, 200, 272, 216, 288, 24, 304, 40, 56, 72, 88]; RF.AREL = [-1, -1, -1, -1, -1, 0, 0, 1, 1, 2, 2, 3, 3, "e", "e", "e", "e"]
RF.acc = lambda q, t: 104 + 4 * (q * 4 + t); RF.XF = 200; RF.STG = 40
RA = Role(); RA.n = "att"; RA.NT = 6
RA.W = [256 + 24 * i for i in range(10)] + [120, 144, 168] + [256 + 24 * i for i in range(4)]; RA.WREL = [-1] * 13 + [0, 1, 2, 3]
RA.A = [496, 192, 208, 224, 240, 496, 192, 208, 224, 240, 352, 496, 376, 192, 400, 208, 424]; RA.AREL = [-1, -1, -1, -1, -1, 0, 1, 2, 3, 4, 4, 5, 5, 6, 6, 7, 7]
RA.acc = lambda q, t: 24 + 4 * (q * 6 + t); RA.XF = 120; RA.STG = 144
def role_tables():
    if C.ea3:
        RA.A = [120, 136, 152, 496, 192, 208, 224, 240, 496, 192, 352, 208, 376, 224, 400, 240, 424]; RA.AREL = [-1] * 8 + [3, 4, 4, 5, 5, 6, 6, 7, 7]
        RA.WREL = [-1] * 10 + [1, 2, -1, 0, 1, 2, 3]
def p2_bases(a, dst, unit):
    a("s_mul_i32 s68, s32, %d" % (5 * unit)); a("s_add_u32 s%d, s69, s68" % dst[1])
    a("s_mul_i32 s68, s32, %d" % (12 * unit)); a("s_add_u32 s%d, s69, s68" % dst[0])
def step_off(i, dst, unit, r):
    if r is RA and C.aord: i = ([0, 1, 2, 3, 8, 9, 10, 11, 12, 4, 5, 6, 7] + [13, 14, 15, 16])[i]
    if 8 <= i < 13: return dst[1], (i - 8) * unit
    p, k = (0, i) if i < 4 else ((1, i - 4) if i < 8 else (2, i - 13))
    return dst[0], (20 + 2 * p + 6 * (k >> 1) + (k & 1)) * unit
def w2_parts(r, i, VL=7):
    b, c = step_off(i, WB, KSB, r); h = r.NT if r.NT <= 4 else r.NT // 2; out = []
    for t0 in range(0, r.NT, h):
        out.append([("s_add_u32 s13, s%d, %d" % (b, c + 1024 * t0), None)] + [("buffer_load_dwordx4 %s, v%d, s[28:31], s13 offen offset:%d sc1" % (R(r.W[i] + 4 * (t0 + t)), VL, 1024 * t), ("vm", ("w2", i))) for t in range(h)])
    return out
def w2_loads(r, i, VL): return [x for p in w2_parts(r, i, VL) for x in p]
def w2_lds(i, k, VL, i0):
    b, c = step_off(i, WB, KSB, RA); o = (i - i0) * 6144 + 3072 * k
    return [("s_add_u32 m0, s12, %d" % o, None), ("s_add_u32 s69, s%d, %d" % (b, c + 3072 * k), None)] + [("buffer_load_dwordx4 v%d, s[28:31], s69 offen offset:%d sc1 lds" % (VL, 1024 * t), ("vm", "wl")) for t in range(3)]
def act_voffs(VL): return [("s_add_u32 s14, s32, %d\ns_and_b32 s14, s14, 3" % i, None) if k == 0 else ("s_lshl_b32 s14, s14, 10\nv_add_u32 v%d, s14, v%d" % (3 + i, VL), None) for i in range(4) for k in range(2)]
def act_loads(r, i):
    b, c = step_off(i, AB, 4096, r)
    return [("s_add_u32 s13, s%d, %d" % (b, c), None)] + [("buffer_load_dwordx4 %s, v%d, s[28:31], s13 offen sc1" % (R(r.A[i] + 4 * q), 3 + q), ("vm", ("a", i))) for q in range(4)]

SR = 112

def prologue(a, vm):
    a("s_cmp_ge_u32 s2, 256"); a("s_cbranch_scc1 K_end")
    stamp(a, 0)
    a("s_memrealtime s[94:95]")
    a("s_load_dwordx4 s[4:7], s[0:1], 0"); a("s_load_dwordx4 s[8:11], s[0:1], 32"); a("s_load_dwordx2 s[12:13], s[0:1], 72"); a("s_load_dwordx2 s[24:25], s[0:1], 64")
    a("s_load_dwordx2 s[14:15], s[0:1], 16"); a("s_load_dwordx4 s[96:99], s[0:1], 48")
    a("v_lshrrev_b32 v1, 6, v0"); a("v_and_b32 v2, 63, v0"); a("v_readfirstlane_b32 s32, v1")
    if C.pref >= 2:
        a("s_getpc_b64 s[68:69]"); a("K_pf:"); a("s_cmp_ge_u32 s2, 128"); a("s_cselect_b32 s70, K_att-K_pf, 0")
        if C.pref == 2: a("v_lshl_add_u32 v16, v0, 7, s70")
        else: a("s_bfe_u32 s71, s2, 0x20003"); a("s_lshl_b32 s71, s71, 4"); a("v_lshrrev_b32 v16, 2, v2"); a("v_add_u32 v16, s71, v16"); a("v_lshl_add_u32 v16, v1, 6, v16"); a("v_lshl_add_u32 v16, v16, 7, s70")
        a("v_min_u32 v16, K_last-K_pf, v16"); a("v_mov_b32 v17, s69")
        a("v_add_co_u32 v16, vcc, s68, v16"); a("s_nop 1"); a("v_addc_co_u32 v17, vcc, 0, v17, vcc"); a("global_load_dword a199, v[16:17], off"); vm.issue("pf0")
    a("s_and_b32 s33, s2, 7"); a("s_lshr_b32 s34, s2, 3"); a("s_and_b32 s35, s34, 7"); a("s_lshr_b32 s34, s34, 3")
    a("s_and_b32 s36, s33, 1"); a("s_lshl_b32 s36, s36, 3"); a("s_add_u32 s36, s36, s35")
    a("s_lshr_b32 s76, s33, 1"); a("s_lshl_b32 s76, s76, 2"); a("s_add_u32 s76, s76, s34")
    a("s_and_b32 s37, s33, 6"); a("s_and_b32 s68, s34, 1"); a("s_add_u32 s37, s37, s68")
    a("s_lshl_b32 s38, s34, 2"); a("s_lshr_b32 s38, %d, s38" % C.so); a("s_and_b32 s38, s38, 15"); a("s_lshl_b32 s68, s35, 2"); a("s_cmp_ge_u32 s34, 2"); a("s_mov_b32 s69, %d" % C.tabF); a("s_cselect_b32 s69, %d, s69" % C.tabA); a("s_lshr_b32 s69, s69, s68"); a("s_and_b32 s69, s69, 15"); a("s_add_u32 s38, s38, s69")
    if C.hs: a("s_and_b32 s69, s33, 1"); a("s_mul_i32 s69, s69, %d" % C.hs); a("s_add_u32 s38, s38, s69")
    a("s_sub_u32 s68, s38, 10"); a("s_cmp_ge_u32 s38, 10"); a("s_cselect_b32 s38, s68, s38")
    a("s_cmp_ge_u32 s34, 2"); a("s_movk_i32 s68, 0x780"); a("s_cselect_b32 s69, s68, 0x600")
    for j in range(10):
        a("s_lshl_b32 s%d, s38, 7" % (50 + j)); a("s_mul_i32 s%d, s%d, s69" % (40 + j, 50 + j))
        if j < 9: a("s_add_u32 s38, s38, 1"); a("s_cmp_eq_u32 s38, 10"); a("s_cselect_b32 s38, 0, s38")
    a("s_lshl_b32 s68, s36, 4"); a("s_add_u32 s68, s68, s76"); a("s_mul_i32 s39, s68, 10240")
    a("v_lshrrev_b32 v3, 5, v0"); a("v_mul_u32_u24 v4, 1280, v3"); a("v_and_b32 v5, 31, v2"); a("v_lshl_add_u32 v4, v5, 4, v4")
    a("v_lshlrev_b32 v5, 26, v5"); a("v_and_b32 v5, 0x40000000, v5"); a("v_or_b32 v5, v5, v4")
    a("s_mov_b32 s18, 0x%x" % XBYTES); a("s_mov_b32 s19, 0x00020000"); a("s_mov_b32 s30, 0x%x" % WS_BYTES); a("s_mov_b32 s31, 0x00020000"); a("s_movk_i32 s26, 256"); a("s_mov_b32 s27, 0x00020000")
    a("s_or_b32 s70, s2, s32")
    a("v_lshlrev_b32 v14, 4, v2")
    a("s_waitcnt lgkmcnt(0)")
    a("s_mov_b32 s16, s4"); a("s_and_b32 s17, s5, 0xffff"); a("s_mov_b32 s28, s12"); a("s_and_b32 s29, s13, 0xffff"); a("s_and_b32 s25, s25, 0xffff")
    a("s_cmp_lg_u32 s70, 0"); a("s_cbranch_scc1 K_noinit")
    a("s_lshl_b32 s68, s94, 3"); a("s_or_b32 s68, s68, 4"); a("v_mov_b32 v8, s68"); a("s_mov_b64 exec, 1")
    a("buffer_store_dword v8, off, s[24:27], 0 sc1"); a("s_mov_b64 exec, -1")
    a("K_noinit:")
    if C.lst: a("v_mov_b32 v250, v4"); a("v_mov_b32 v251, v5")
    else: stat_loads(a, vm, SR, 4)
    if C.lp:
        a("s_mov_b32 s20, s6"); a("s_and_b32 s21, s7, 0xffff"); a("s_mov_b32 s22, 2457600"); a("s_mov_b32 s23, 0x00020000")
        a("s_lshl_b32 s68, s2, 2"); a("s_add_u32 s68, s68, s32"); a("s_mul_i32 s69, s68, 2432"); a("v_lshlrev_b32 v8, 7, v2"); a("s_mov_b64 exec, 0x7ffff")
        a("buffer_load_dword a197, v8, s[20:23], s69 offen"); vm.issue("lp")
        if C.lp == 2:
            a("s_mul_i32 s69, s68, 1920"); a("v_mul_u32_u24 v8, 384, v2"); a("s_mov_b64 exec, 31"); a("s_mov_b32 s22, 1966080")
            for p_ in (8, 10): a("s_mov_b32 s20, s%d" % p_); a("s_and_b32 s21, s%d, 0xffff" % (p_ + 1)); a("buffer_load_dword a197, v8, s[20:23], s69 offen"); vm.issue("lp")
        a("s_mov_b64 exec, -1")
    if C.tlb:
        for o in [0, 2, 4, 6, 8, 16, 18, 28]: a("s_mov_b32 s68, %d" % (o << 20)); a("s_buffer_load_dword s100, s[28:31], s68")
        for p, n in ((98, XBYTES), (14, 819200), (96, 1966080)):
            a("s_load_dword s100, s[%d:%d], 0" % (p, p + 1)); a("s_mov_b32 s68, %d" % (n - 4)); a("s_load_dword s100, s[%d:%d], s68" % (p, p + 1))
        if C.tlb == 2:
            a("v_lshlrev_b32 v8, 20, v2"); a("v_cmp_gt_u32 vcc, 30, v2"); a("s_and_saveexec_b64 s[68:69], vcc"); a("buffer_load_dword a198, v8, s[28:31], 0 offen"); a("s_mov_b64 exec, -1"); vm.issue("t")
    a("s_cmp_ge_u32 s34, 2"); a("s_cbranch_scc1 K_att")

def stat_loads(a, vm, dst, v):
    for i in range(3): a("buffer_load_dwordx4 %s, v%d, s[16:19], s39 offen offset:%d" % (R(dst + 4 * i), v if i < 2 else v + 1, 512 * i)); vm.issue("x")
def raise_ready(a, vm, role):
    if C.lst: stat_loads(a, vm, SR if role == "ffn" else 236, 250)
    if C.pref == 1:
        a("s_getpc_b64 s[68:69]"); a("K_pf_%s:" % role)
        a("v_lshlrev_b32 v16, 7, v0"); a("v_min_u32 v16, K_last-K_pf_%s, v16" % role); a("v_mov_b32 v17, s69")
        a("v_add_co_u32 v16, vcc, s68, v16"); a("s_nop 1"); a("v_addc_co_u32 v17, vcc, 0, v17, vcc"); a("global_load_dword a199, v[16:17], off"); vm.issue("pf0")

def common_setup(a, role):
    a("s_lshr_b32 s0, s76, 3"); a("s_mul_i32 s0, s0, 20"); a("s_lshl_b32 s68, s34, 3"); a("s_lshr_b32 s68, 0x0e080400, s68"); a("s_and_b32 s68, s68, 255"); a("s_add_u32 s0, s0, s68")
    a("s_lshl_b32 s70, s36, 1"); a("s_bfe_u32 s71, s76, 0x10002"); a("s_add_u32 s70, s70, s71")
    a("s_lshl_b32 s69, s0, 10"); a("s_add_u32 s69, s69, %d" % W2P_OFF); p2_bases(a, WB, KSB)
    a("s_mul_i32 s69, s70, %d" % (68 * 4096)); p2_bases(a, AB, 4096)
    a("s_mul_i32 s3, s70, %d" % (64 * 1280)); a("s_lshl_b32 s69, s0, 5"); a("s_add_u32 s3, s3, s69"); a("s_mul_i32 s69, s32, %d" % (16 * 1280)); a("s_add_u32 s3, s3, s69")
    a("s_lshr_b32 s35, s70, 1"); a("s_lshl_b32 s35, s35, 14"); a("s_and_b32 s71, s70, 1"); a("s_lshl_b32 s71, s71, 5"); a("s_add_u32 s35, s35, s71")
    a("s_lshl_b32 s71, s32, 7"); a("s_add_u32 s71, s71, %d" % (SYNC_OFF + 1024)); a("s_add_u32 s35, s35, s71")
    a("s_lshl_b32 s79, s36, 14"); a("s_add_u32 s79, s79, %d" % SYNC_OFF)
    a("s_lshr_b32 s69, s76, 2"); a("s_lshl_b32 s69, s69, 7"); a("s_add_u32 s68, s79, s69"); a("s_lshl_b32 s34, s34, 3"); a("s_add_u32 s34, s34, s68"); a("s_add_u32 s34, s34, 1024")
    hi, lo = ("s_and_b32 s68, s32, 1", "s_lshr_b32 s69, s32, 1") if role == "ffn" else ("s_lshr_b32 s68, s32, 1", "s_and_b32 s69, s32, 1")
    a(hi); a(lo); a("s_lshl_b32 s68, s68, 5"); a("s_lshl_b32 s69, s69, 2"); a("s_add_u32 s34, s34, s68"); a("s_add_u32 s34, s34, s69")

def stats(a, vm, S, VO, VN, role, SR=SR):
    s_, q = S, S + 1
    a("s_mov_b32 s33, 0x3f803f80"); a("v_mov_b32 v%d, 0" % s_)
    a("v_lshrrev_b32 v%d, 5, v0" % VO); a("s_lshl_b32 s68, s76, 3"); a("v_add_lshl_u32 v%d, v%d, s68, 3" % (VO, VO))
    a("v_and_b32 v%d, 31, v2" % q); a("v_cmp_eq_u32 vcc, 31, v%d" % q); a("v_mov_b32 v%d, 0x%x" % (q, OOB)); a("s_nop 0"); a("v_cndmask_b32 v%d, v%d, v%d, vcc" % (VO, q, VO))
    a("v_mov_b32 v%d, 0" % q)
    wait(a, vm=vm.need("x"))
    a("s_buffer_load_dword s1, s[24:27], 0")
    for d in range(12): a("v_dot2c_f32_bf16 v%d, s33, v%d" % (s_, SR + d)); a("v_dot2c_f32_bf16 v%d, v%d, v%d" % (q, SR + d, SR + d))
    a("s_nop 0")
    for m in ["quad_perm:[1,0,3,2] row_mask:0xf", "quad_perm:[2,3,0,1] row_mask:0xf", "row_half_mirror row_mask:0xf", "row_mirror row_mask:0xf", "row_bcast:15 row_mask:0xa"]:
        a("s_nop 1")
        for r in (s_, q): a("v_add_f32_dpp v%d, v%d, v%d %s bank_mask:0xf" % (r, r, r, m))
    a("v_mul_f32 v%d, 0xbacccccd, v%d" % (s_, s_)); a("v_mul_f32 v%d, 0x3acccccd, v%d" % (q, q))
    a("v_fma_f32 v%d, -v%d, v%d, v%d" % (q, s_, s_, q)); a("v_max_f32 v%d, 0, v%d" % (q, q))
    bfr(a, q); a("v_add_f32 v%d, 0x3727c5ac, v%d" % (q, q)); bfr(a, q)
    a("v_sqrt_f32 v%d, v%d" % (q, q)); a("s_waitcnt lgkmcnt(0)"); a("v_cvt_pk_bf16_f32 v%d, v%d, v%d" % (s_, s_, q))
    a("s_cmp_eq_u32 s1, 0"); a("s_cbranch_scc1 NON_%s_spin" % role); a("NON_%s_ok:" % role)
    TSPINS.append(("NON_" + role, ["s_sleep 6", "buffer_load_dword v%d, off, s[24:27], 0 sc1" % q], ["v_readfirstlane_b32 s1, v%d" % q, "v_cmp_eq_u32 vcc, 0, v%d" % q]))
    a("v_mov_b32 v%d, s1" % q); a("v_add_u32 v%d, s1, v2" % VN)
    a("buffer_store_dwordx2 v[%d:%d], v%d, s[28:31], s79 offen sc1" % (S, S + 1, VO)); vm.issue("ss")

def ffn(a, vm):
    SL = 16896
    lg = Q(15); sc = Sched(a, vm, lg, C.sp)
    VWO = [3, 4, 5, 6]; VWR, VWR2, VST = 7, 8, 11; VXO = [104, 105, 106, 107]; VXR = [108, 109]
    WF = 16; ACC = [40, 104]; TE = [14, 15]; NM = [0, 9]; KA, KB = 232, 236; KS = [1, 10, 12, 13]; PL = 240; VN = 2; PFR = 255
    def X(j, kk, tt): return (256 + 32 * j if j < 8 else 168 + 32 * (j - 8)) + (kk * 4 + tt) * 4
    a("s_and_b32 s60, s32, 1"); a("s_lshr_b32 s61, s32, 1")
    a("v_mov_b32 v%d, v14" % VST)
    a("v_lshrrev_b32 v13, 3, v2"); a("v_lshl_add_u32 v13, v1, 5, v13"); a("s_lshl_b32 s71, s36, 7"); a("v_add_u32 v13, s71, v13"); a("v_mul_u32_u24 v13, 1280, v13")
    a("v_and_b32 v14, 7, v2"); a("v_lshrrev_b32 v15, 4, v2"); a("v_xor_b32 v15, v14, v15"); a("v_lshl_add_u32 v%d, v15, 4, v13" % VXO[0])
    a("v_xor_b32 v15, 64, v%d" % VXO[0]); a("v_add_u32 v%d, 9216, v15" % VXO[1]); a("v_add_u32 v%d, 18432, v%d" % (VXO[2], VXO[0])); a("v_add_u32 v%d, 18432, v%d" % (VXO[3], VXO[1]))
    a("s_mul_i32 s66, s32, 4224"); a("s_lshl_b32 s67, s32, 12")
    wpos = {}; xpos = {}; freew = []; WI = []
    def dma(n, pos):
        p, j = n // 10, n % 10; wpos[n] = pos
        return [("s_add_u32 m0, s66, %d" % (pos * SL), None), ("s_add_u32 s68, s%d, %d" % (40 + j, 128 * p), None)] + \
               [("buffer_load_dwordx4 v%d, s[20:23], s68 offen offset:%d lds" % (VWO[i], 1056 * i), ("vm", ("w", n))) for i in range(4)]
    def dmax(j, pos):
        xpos[j] = pos
        return [("s_add_u32 m0, s67, %d" % (pos * SL), None), ("s_nop 0", None)] + \
               [("buffer_load_dwordx4 v%d, s[16:19], s%d offen offset:%d lds" % (VXO[i], 50 + j, 1024 * i), ("vm", ("x", j))) for i in range(4)]
    for it in dmax(0, C.xb): sc.emit(it)
    a("s_cmp_eq_u32 s60, 0"); a("s_cselect_b32 s8, s8, s10"); a("s_cselect_b32 s9, s9, s11")
    a.srd(20, 8, 1966080)
    a("v_lshrrev_b32 v13, 5, v2"); a("v_lshlrev_b32 v13, 4, v13"); a("v_bfe_u32 v15, v2, 4, 1"); a("v_lshl_add_u32 v13, v15, 2, v13")
    a("v_bfe_u32 v15, v2, 3, 1"); a("s_lshl_b32 s71, s61, 5"); a("v_add3_u32 v13, v13, v15, s71"); a("v_mul_u32_u24 v13, 3072, v13")
    a("v_lshlrev_b32 v14, 4, v14"); a("s_mul_i32 s71, s37, 384"); a("v_add3_u32 v%d, v13, v14, s71" % VWO[0])
    for i in range(1, 4): a("v_add_u32 v%d, %d, v%d" % (VWO[i], (8 * (i >> 1) + 2 * (i & 1)) * 3072 - 1056 * i, VWO[0]))
    for it in dma(0, 0): sc.emit(it)
    def xtouch(p, v): return [("v_mul_u32_u24 v%d, 192, v%d" % (v, VST), None), ("s_mov_b64 exec, 0xff\nbuffer_load_dword v%d, v%d, s[20:23], s62 offen offset:%d\ns_mov_b64 exec, -1" % (v, v, 128 * p), ("vm", ("xt", p)))]
    if C.xt:
        a("s_lshl_b32 s62, s34, 2"); a("s_lshr_b32 s62, %d, s62" % C.so); a("s_and_b32 s62, s62, 15"); a("s_lshr_b32 s69, s35, 2"); a("s_mul_i32 s69, s69, 5"); a("s_add_u32 s62, s62, s69"); a("s_add_u32 s62, s62, 4")
        a("s_sub_u32 s69, s62, 10"); a("s_cmp_ge_u32 s62, 10"); a("s_cselect_b32 s62, s69, s62"); a("s_lshl_b32 s62, s62, 3"); a("s_and_b32 s69, s35, 3"); a("s_lshl_b32 s69, s69, 1"); a("s_add_u32 s62, s62, s69")
        a("s_add_u32 s62, s62, s61"); a("s_mul_i32 s62, s62, 24576"); a("s_add_u32 s62, s62, s71"); assert not C.hs
    if C.xt & 1: sc.flush(xtouch(0, 140))
    raise_ready(a, vm, "ffn")
    for n in range(1, C.nx0):
        for it in dmax(n, C.xb + n) + dma(n, n): sc.emit(it)
    a("s_lshl_b32 s63, s36, 1"); a("s_add_u32 s63, s63, s60"); a("s_mul_i32 s63, s63, 68")
    a("s_mul_i32 s71, s37, 6"); a("s_add_u32 s63, s63, s71"); a("s_add_u32 s63, s63, s61"); a("s_add_u32 s63, s63, 20"); a("s_lshl_b32 s63, s63, 12")
    a("s_add_u32 s64, s63, 8192"); a("s_add_u32 s65, s63, 16384")
    a("v_bfe_u32 v13, v2, 3, 2"); a("v_mul_u32_u24 v13, 1056, v13")
    a("v_lshrrev_b32 v14, 5, v2"); a("v_lshlrev_b32 v14, 2, v14"); a("v_bfe_u32 v15, v2, 2, 1"); a("v_add_u32 v14, v14, v15"); a("v_lshl_add_u32 v13, v14, 7, v13")
    a("v_and_b32 v14, 3, v2"); a("v_lshlrev_b32 v14, 3, v14"); a("s_lshl_b32 s71, s61, 6")
    a("v_add3_u32 v%d, v13, v14, s71" % VWR); a("v_add_u32 v%d, %d, v%d" % (VWR2, 4 * SL, VWR))
    a("v_bfe_u32 v13, v2, 1, 3"); a("v_lshrrev_b32 v14, 4, v2"); a("v_xor_b32 v13, v13, v14"); a("v_lshlrev_b32 v13, 4, v13"); a("v_and_b32 v14, 15, v2"); a("v_lshl_add_u32 v13, v14, 7, v13")
    a("s_lshl_b32 s71, s60, 13"); a("s_add_u32 s71, s71, %d" % (5 * SL)); a("v_add_u32 v%d, s71, v13" % VXR[0]); a("v_xor_b32 v%d, 64, v%d" % (VXR[1], VXR[0]))
    a("v_lshlrev_b32 v110, 3, v14")
    a("s_mul_i32 s12, s32, 15360"); a("s_add_u32 s12, s12, %d" % (5 * SL))
    a("s_lshl_b32 s72, s33, 1"); a("s_add_u32 s72, s72, s34"); a("s_lshl_b32 s72, s72, 15"); a("s_lshl_b32 s71, s61, 12"); a("s_add_u32 s72, s72, s71"); a("s_add_u32 s72, s72, %d" % (SYNC_OFF + (1 << 20)))
    a("s_lshl_b32 s73, s60, 11"); a("s_add_u32 s73, s73, s72"); a("s_lshr_b32 s71, s35, 1"); a("s_lshl_b32 s71, s71, 8"); a("s_add_u32 s73, s73, s71"); a("s_and_b32 s71, s35, 1"); a("s_lshl_b32 s71, s71, 10"); a("s_add_u32 s73, s73, s71")
    a("s_bitcmp1_b32 %d, s35" % C.m1f); a("s_cselect_b32 s74, 0x3f803f80, 0")
    a("s_cmp_eq_u32 s60, 0"); a("s_cselect_b32 s6, 0x3f803f80, 0"); a("s_cselect_b32 s7, 0, 0x3f803f80"); a("s_and_b32 s10, s6, s74"); a("s_and_b32 s11, s7, s74")
    if C.m0f != 255: a("s_bitcmp1_b32 %d, s35" % C.m0f); a("s_cselect_b32 s6, s6, 0"); a("s_cselect_b32 s7, s7, 0")
    if C.stub: a("STUBCALLS_ffn")
    common_setup(a, "ffn")
    a("s_lshl_b32 s75, s60, 9"); a("s_add_u32 s75, s75, s79")
    a("s_mov_b32 s4, 0x01000100"); a("s_mov_b32 s5, 0x03020302")
    if not C.lst: stats(a, vm, 124, 126, VN, "ffn")
    stamp(a, 1)
    tr = Trace(a, 2, 8); tr.lv = VST; tr.mark()
    wiss = C.nx0; xiss = C.nx0; w2q = list(range(17)); freew[:] = list(range(C.nx0, C.xb)); freex = list(range(C.xb + C.nx0, 9))
    def wreads(g):
        s_, u = g // 8, g % 8; pos = wpos[s_]; kk, wt = u >> 2, u & 3
        vb = VWR if pos < 4 else VWR2; off = (pos % 4) * SL + (kk * 2 + (wt >> 1)) * 4224 + 32 * (wt & 1); b = WF + (g % 6) * 4
        return [("ds_read_b64_tr_b16 %s, v%d offset:%d" % (R(b + 2 * t, 2), vb, off + 256 * t), ("lg", ("w", g // 2))) for t in range(2)]
    def xreads(j):
        return [("ds_read_b128 %s, v%d offset:%d" % (R(X(j, kk, tt)), VXR[kk], (xpos[j] - 5) * SL + 2048 * tt), ("lg", ("x", j, kk, tt))) for kk in range(2) for tt in range(4)]
    def epilogue(p, t=TE):
        out = []; base = ACC[p % 2]; n = len(t)
        for tt in range(4):
            D = base + (8 + tt) * 4
            for a_ in range(2):
                for h in range(0, 4, n):
                    G = [base + (a_ * 4 + tt) * 4 + h + k for k in range(n)]; U = [base + ((2 + a_) * 4 + tt) * 4 + h + k for k in range(n)]
                    for f in (lambda k: "v_mul_f32 v%d, v%d, v%d" % (t[k], G[k], G[k]), lambda k: "v_fma_f32 v%d, v%d, v%d, v%d" % (t[k], t[k], KB + tt, KA + tt),
                              lambda k: "v_mul_f32 v%d, v%d, v%d" % (t[k], t[k], G[k]), lambda k: "v_exp_f32 v%d, v%d" % (t[k], t[k]),
                              lambda k: "v_mul_f32 v%d, v%d, v%d" % (G[k], G[k], U[k]), lambda k: "v_fma_f32 v%d, v%d, v%d, v%d" % (U[k], t[k], KS[tt], KS[tt]),
                              lambda k: "v_rcp_f32 v%d, v%d" % (U[k], U[k]), lambda k: "v_mul_f32 v%d, v%d, v%d" % (G[k], G[k], U[k])):
                        for k in range(n): out.append((f(k), None))
                    for k in range(0, n, 2): out.append(("v_cvt_pk_bf16_f32 v%d, v%d, v%d" % (D + 2 * a_ + (h + k) // 2, G[k], G[k + 1]), None))
            out.append(("buffer_store_dwordx4 %s, v%d, s[28:31], s%d offen offset:%d sc1" % (R(D), VST, 63 + p, 1024 * tt), ("vm", ("st", p))))
        return out
    def epilogue_pk(p, T):
        out = []; base = ACC[p % 2]
        def bc(r): return R(r & ~1, 2), r & 1
        for tt in range(4):
            D = base + (8 + tt) * 4; (A_, sa), (B_, sb), (S_, ss) = bc(KA + tt), bc(KB + tt), bc(KS[tt])
            G = [base + (a_ * 4 + tt) * 4 + h for a_ in range(2) for h in (0, 2)]; U = [g + 32 for g in G]; t = [T + 2 * k for k in range(4)]
            o = ["v_pk_mul_f32 %s, %s, %s" % (R(t[k], 2), R(G[k], 2), R(G[k], 2)) for k in range(4)]
            o += ["v_pk_fma_f32 %s, %s, %s, %s op_sel:[0,%d,%d] op_sel_hi:[1,%d,%d]" % (R(t[k], 2), R(t[k], 2), B_, A_, sb, sa, sb, sa) for k in range(4)]
            o += ["v_pk_mul_f32 %s, %s, %s" % (R(t[k], 2), R(t[k], 2), R(G[k], 2)) for k in range(4)]
            o += ["v_exp_f32 v%d, v%d" % (T + k, T + k) for k in range(8)]
            o += ["v_pk_mul_f32 %s, %s, %s" % (R(G[k], 2), R(G[k], 2), R(U[k], 2)) for k in range(4)]
            o += ["v_pk_fma_f32 %s, %s, %s, %s op_sel:[0,%d,%d] op_sel_hi:[1,%d,%d]" % (R(t[k], 2), R(t[k], 2), S_, S_, ss, ss, ss, ss) for k in range(4)]
            o += ["v_rcp_f32 v%d, v%d" % (T + k, T + k) for k in range(8)]
            o += ["v_pk_mul_f32 %s, %s, %s" % (R(G[k], 2), R(G[k], 2), R(t[k], 2)) for k in range(4)]
            o += ["v_cvt_pk_bf16_f32 v%d, v%d, v%d" % (D + k, G[k], G[k] + 1) for k in range(4)]
            out += [(x, None) for x in o] + [("buffer_store_dwordx4 %s, v%d, s[28:31], s%d offen offset:%d sc1" % (R(D), VST, 63 + p, 1024 * tt), ("vm", ("st", p)))]
        return out
    def sig(p): return [("WAITVM", ("st", p)), (wave_signal(VN, p + 1), ("vm", "sg"))]
    ON = PL; CS = PL + 8 if C.csm else PL + 4
    def cs_out(p):
        o = []
        for k in range(2):
            c = CS + 4 * k
            o += ["v_cvt_pk_bf16_f32 v%d, v%d, v%d" % (c + 1, c, c), "v_lshlrev_b32 v%d, 16, v%d" % (c + 1, c + 1), "v_sub_f32 v%d, v%d, v%d" % (c, c, c + 1), "v_cvt_pk_bf16_f32 v%d, v%d, v%d" % (ON + k, c + 1, c)]
        o += ["v_mov_b32 v%d, s1" % (ON + 2), "s_add_u32 s14, s73, %d" % (8192 * p)]
        return [(x, None) for x in o] + [("s_mov_b64 exec, 0xffff\nbuffer_store_dwordx4 %s, v%d, s[28:31], s14 offen sc1\ns_mov_b64 exec, -1" % (R(ON), VST), ("vm", "cs"))]
    AE = PL; VAE = PL + 15; BP = [PL + 2, PL + 6]
    ae_loads = ["buffer_load_dwordx4 %s, v%d, s[28:31], s15 offen offset:%d sc1" % (R(AE + 4 * w), VST, 1024 * w) for w in range(4)]
    def ae_in(p): return [("s_add_u32 s15, s72, %d" % (8192 * p), None)] + [(l, ("vm", ("ae", p)) if ismem(l) else None) for l in ae_loads]
    def ae_chk(p): return [("WAITVM", ("ae", p))] + tag_check("AE%d" % p, ae_loads, [AE + 2, AE + 6, AE + 10, AE + 14], AE + 7) + [("v_swap_b32 v%d, v%d\n" % (AE + 1, AE + 4), None), ("v_swap_b32 v%d, v%d\n" % (AE + 9, AE + 12), None)]
    st_loads = ["buffer_load_dwordx2 v[%d:%d], v110, s[28:31], s75 offen offset:%d sc1" % (128 + 2 * tt, 129 + 2 * tt, 128 * tt) for tt in range(4)]
    def st_consts():
        o = ["s_mov_b32 s14, 0x05040100", "v_perm_b32 v%d, v130, v128, s14" % NM[0], "v_perm_b32 v%d, v134, v132, s14" % NM[1]]
        for tt in range(4):
            s_ = 128 + 2 * tt
            o += ["v_and_b32 v%d, 0xffff0000, v%d" % (s_, s_), "v_rcp_f32 v%d, v%d" % (KA + tt, s_), "v_mul_f32 v%d, v%d, v%d" % (KS[tt], s_, s_), "v_mul_f32 v%d, v%d, v%d" % (KB + tt, KA + tt, KA + tt),
                  "v_mul_f32 v%d, %s, v%d" % (KA + tt, f2h(GA), KA + tt), "v_mul_f32 v%d, %s, v%d" % (KB + tt, f2h(0.044715), KB + tt), "v_mul_f32 v%d, v%d, v%d" % (KB + tt, KB + tt, KA + tt)]
        return [(x, None) for x in o]
    wpf_items = [(x, None) for x in ["v_and_b32 v137, 0x1f0, v%d" % VST, "v_mul_u32_u24 v137, 192, v137", "v_mov_b32 v138, s40", "v_mov_b32 v139, s41", "v_cmp_gt_u32 vcc, 512, v%d" % VST,
                 "s_mul_i32 s14, s61, 98304", "s_mul_i32 s69, s37, 384", "v_cndmask_b32 v138, v139, v138, vcc", "s_add_u32 s14, s14, s69", "v_add_u32 v137, v137, v138"]] + \
                [("buffer_load_dword v139, v137, s[20:23], s14 offen offset:%d" % (128 * q), ("vm", "wp")) for q in range(1, 1 + C.wpn)]
    def refill(m=2):
        nonlocal wiss, xiss
        n = 0
        while n < m:
            if xiss < 10 and freex and xiss <= wiss: sc.dq += dmax(xiss, freex.pop(0)); xiss += 1
            elif wiss < 30 and freew:
                sc.dq += dma(wiss, freew.pop(0))
                if wiss in (10, 20) and (C.xt >> (wiss // 10)) & 1: sc.dq += xtouch(wiss // 10, 140 if wiss == 10 else PL + 15)
                wiss += 1
            elif xiss < 10 and freex: sc.dq += dmax(xiss, freex.pop(0)); xiss += 1
            else: break
            n += 1
    assert C.sl0 <= 6
    def onset(h, sr): return [("v_mov_b32 v%d, s%d" % (ON + 4 * h + k, sr), None) for k in range(4)]
    for k in range(4): a("v_mov_b32 v%d, 0x3f803f80" % (ON + k))
    if C.csm: sc.flush(onset(0, 6) + onset(1, 7))
    refill(); sc.flush(sc.dq)
    if C.wpf == 0: sc.flush(wpf_items)
    wait(a, vm=vm.need(("w", 0))); a("s_barrier"); tr.mark()
    xq = xreads(0)
    for it in wreads(0) + xq[:4] + wreads(1) + wreads(2) + wreads(3) + xq[4:]: sc.emit(it)
    xq = []
    refill(); sc.sp = 1
    wait(a, lg=lg.need(("w", 0), ("x", 0, 0, 3)))
    for P in range(120):
        s_ = P // 4; p, j = s_ // 10, s_ % 10; kk = (P >> 1) & 1
        Pn = P + 2; bar = Pn < 120 and Pn % 4 == 0; wr = None
        for i in range(8):
            g = 2 * P + (i >> 2); wt = g & 3; tt = (i & 3) if (i < 4 or not C.snk) else 7 - i
            c = ACC[p % 2] + (wt * 4 + tt) * 4; b = WF + (g % 6) * 4
            if i == 0 and bar: sc.flush(sc.dq)
            a("v_mfma_f32_16x16x32_bf16 %s, %s, %s, %s" % (R(c), R(b), R(X(j, kk, tt)), "0" if (j == 0 and kk == 0) else R(c)))
            if i == 0 and bar:
                s2 = Pn // 4; j2 = s2 % 10; p2_ = s2 // 10
                if s2 == C.lst: stats(a, vm, 124, 126, VN, "ffn"); lg.clear()
                wait(a, vm=vm.need(("w", s2), opt=[("x", s2)] + (["wp", ("xt", 1)] if s2 == 10 else []))); a("s_barrier"); tr.mark()
                sc.sp = C.sp
                if s2 - 1 < 10: freex.append(xpos[s2 - 1])
                if xiss == 10 and not C.ldw: freew += [x for x in freex if x < 8]; freex.clear()
                if s2 >= 2: freew.append(wpos[s2 - 2])
                refill({1: {7: 2, 8: 0, 9: 1}, 2: {7: 1, 8: 1, 9: 1, 10: 1}, 3: {7: 2, 8: 0, 9: 0, 10: 2}}.get(C.rf, {}).get(s2, 2) if not ((C.rz >> s2) & 1) else 0); WI.append(wiss)
                if s2 == C.wpf: sc.dq += wpf_items
                if C.stsp and C.sl0 - 3 <= s2 <= C.sl0: sc.dq += [(st_loads[s2 - C.sl0 + 3], ("vm", "stl"))]
                elif s2 == C.sl0: sc.dq += [(l, ("vm", "stl")) for l in st_loads]
                if s2 == C.sl0 + 2 and not C.off & 16: sc.dq += [("WAITVM", "stl")] + tag_check("STF", st_loads, [129, 131, 133, 135], 136) + st_consts()
                if s2 == C.pfc: sc.dq += [(sflag_load(), None)]
                if s2 == C.pfc + 2: sc.dq = sflag_check("FFN_pf", VN, 0, None, ["v_lshrrev_b32 v2, 4, v%d" % VST, "v_add_u32 v2, s1, v2"]) + sc.dq
                if s2 >= max(21, C.pfc + 2):
                    if not sc.dq: sc.sp = C.sp3
                    while len(sc.lq) < C.w2n:
                        ok = [i for i in w2q if 16 * i + 16 <= 32 * (s2 - 21) + 16]
                        if not ok: break
                        w2q.remove(ok[0]); sc.lq += w2_loads(RF, ok[0], VST)
                if s2 == 27: sc.fq += act_voffs(VST)
                if s2 == 28: sc.dq += [(sflag_load(0), None)]
                if s2 < 10: xq = xreads(s2)
                sc.n += 1; sc.since += 1
                continue
            if P % 40 == 0 and i == 4 and p >= 1: sc.fq += epilogue(p - 1) + [("LATER", (C.sd, sig(p - 1)))]
            if wr is None: wr = (wreads(2 * Pn) + wreads(2 * Pn + 1)) if Pn < 120 else []
            must = []
            if wr and (i % 2 == 1): must.append(wr.pop(0))
            elif xq and (i % 4 == 2 or not sc.dq): must.append(xq.pop(0))
            if xq and i == 3 and (Pn % 2) == 0: must.append(xq.pop(0))
            if P % 40 == 8 and i == 4 and not C.off & 2: sc.dq = cs_out(p) + sc.dq
            if C.off & 4: pass
            elif P % 40 == (C.ae0 if p else C.ae00) and i == 1: sc.dq += ae_in(p)
            elif P % 40 == 34 and i == 1: sc.dq = ae_chk(p) + sc.dq
            if P % 40 == 36 and i == 0:
                while any("v_swap" in x[0] for x in sc.dq): sc.emit(sc.dq.pop(0))
            if P == 116 and i == 0:
                assert not sc.fq
                sc.lq = sc.lq[:next((k for k, x in enumerate(sc.lq) if not ismem(x[0])), len(sc.lq))] + sflag_check("FFN_fe", 104, 1, 0) + act_loads(RF, 0) + sc.lq[next((k for k, x in enumerate(sc.lq) if not ismem(x[0])), len(sc.lq)):]
            if j == 9 and i == 4: must += [("v_perm_b32 v%d, v%d, v%d, s%d" % (BP[P & 1] + k, NM[(P & 3) >> 1], NM[(P & 3) >> 1], 4 + (P & 1)), None) for k in range(2)]
            if C.csm:
                q_ = {0: (0, 6), 1: (1, 7), 4: (0, 10), 5: (1, 11)}.get(P % 40)
                if q_ and P >= 2 and i in (0, 2): must += onset(*q_)[i:i + 2]
            elif P % 40 == 4 and i == 0: must += [("v_mov_b32 v%d, s74" % (ON + k), None) for k in range(4)]
            if not C.csm and P % 40 == 0 and i == 0 and p > 0: must += [("v_mov_b32 v%d, 0x3f803f80" % (ON + k), None) for k in range(4)]
            slots = 2
            left = (39 - P % 40) * 8 + 8 - i - (C.e1 if p < 2 else C.e2)
            need_rate = sc.fc() / max(left, 1) + (C.b1 if p < 2 else C.b2) / 100.0
            if need_rate > 2 and p > 0: slots = int(need_rate + 0.99)
            extra = j < 2 or j == 9
            if i == 7 and not (j == 9 or (j < 2 and C.csm)): slots -= 1
            if i == 7 and j < 2 and not C.off & 1 and not C.csm: slots = 0
            sc.gap(must, slots)
        if j < 2 and C.csm:
            for k in range(2):
                a("v_mfma_f32_16x16x32_bf16 %s, %s, %s, %s" % (R(CS + 4 * k), R(ON + 4 * (P & 1)), R(WF + ((2 * P + k) % 6) * 4), "0" if P % 40 == 0 else R(CS + 4 * k)))
                sc.gap([], 2 - k)
        elif j < 2 and not C.off & 1:
            a("s_cmp_lg_u32 s60, %d" % (P & 1)); a("s_cbranch_scc1 CSK%d" % P)
            for k in range(2): a("v_mfma_f32_16x16x32_bf16 %s, %s, %s, %s" % (R(CS + 4 * k), R(ON), R(WF + ((2 * P + k) % 6) * 4), "0" if P % 40 < 2 else R(CS + 4 * k)))
            a("CSK%d:" % P)
        corr = [(w, P & 3, BP[P & 1]) for w in range(4)] if j == 9 else []
        if C.off & 8: corr = []
        for k, (w, t_, bp) in enumerate(corr):
            c = ACC[p % 2] + (w * 4 + t_) * 4
            a("v_mfma_f32_16x16x16_bf16 %s, %s, %s, %s" % (R(c), R(AE + 4 * w, 2), R(bp, 2), R(c)))
            sc.gap([], 2 if k < len(corr) - 1 else 1)
        if P + 1 < 120:
            s3 = (P + 1) // 4
            wait(a, lg=lg.need(("w", P + 1), ("x", s3 % 10, ((P + 1) >> 1) & 1, 3)))
        if P % 40 == 39: assert not sc.fq, (P, len(sc.fq))
    stamp(a, 2); tr.mark(); tr.flush(16)
    sc.flush(sc.dq)
    print("W issued by interval", WI)
    print("FFN after loop: W2 left", w2q, "lq", len(sc.lq), "timed", len(sc.timed))
    a("v_mov_b32 v7, v%d" % VST)
    k0 = next((k for k, x in enumerate(sc.lq) if not ismem(x[0])), len(sc.lq))
    assert ("a", 0) in vm.seen
    rest = sc.lq[:k0]; left = sc.lq[k0:]; sc.lq = []
    pend = [(i, act_loads(RF, i)) for i in range(1, 4)]
    while left: pend.append((left[1][1][1][1] - 0.5, left[:5])); left = left[5:]
    for i in w2q: pend += [(i - 0.5, w2_loads(RF, i, 7))]
    pend.sort(key=lambda w: w[0])
    while pend and sum(1 for x in rest if ismem(x[0])) < C.nep: rest += pend.pop(0)[1]
    nrest = sum(1 for x in rest if ismem(x[0])) + 1
    a("s_nop 7")
    ep = epilogue(2, [16, 17, 18, 19])
    if C.pke2: ep = epilogue_pk(2, 16); C.epn = len(ep)
    for k in range(C.epn):
        sc.emit(ep.pop(0))
        if k % max(2, C.epn // nrest) == 0 and rest:
            while rest and not ismem(rest[0][0]): sc.emit(rest.pop(0))
            sc.emit(rest.pop(0))
        if k == C.epn - C.sfe: a(sflag_load(0))
        if k == C.epn - 10:
            for t in sc.timed:
                for x in t[1]: sc.emit(x)
    sc.flush(rest); sc.timed = []
    p2_main(a, sc, RF, pend, ep + [("LATER", (C.sd2, sig(2)))])

def att(a, vm):
    a("K_att:")
    WSL = 15360; NW = 5; XB = NW * WSL; XSL = 18432; PB = XB + 3 * XSL; RS = 496; OB = 73728
    lg = Q(15); sc = Sched(a, vm, lg, C.spa)
    VWO = [3, 4, 5, 6]; VWR = [7, 8]; VXR = [9, 10]; VXO = [11, 12]; VF1, VL = 13, 14
    TT = 16; PV = 212; PR = 216; FL = 1; FR = [160, 460]; KR_ = 212
    def acc(t, u): return 16 + 4 * (t * 9 + u)
    a("v_lshrrev_b32 v%d, 3, v2" % TT); a("v_mul_u32_u24 v%d, 1280, v%d" % (TT, TT)); a("v_and_b32 v%d, 7, v2" % (TT + 1)); a("v_lshrrev_b32 v%d, 4, v2" % (TT + 2)); a("v_xor_b32 v%d, v%d, v%d" % (TT + 1, TT + 1, TT + 2))
    a("v_lshl_add_u32 v%d, v%d, 4, v%d" % (TT + 8, TT + 1, TT)); a("v_xor_b32 v%d, 64, v%d" % (TT + 9, TT + 8))
    a("s_lshl_b32 s68, s36, 3"); a("s_add_u32 s68, s68, s32"); a("s_mul_i32 s68, s68, 20480"); a("v_add_u32 v%d, s68, v%d" % (VXO[0], TT + 8)); a("s_add_u32 s68, s68, 9216"); a("v_add_u32 v%d, s68, v%d" % (VXO[1], TT + 9))
    a("s_lshl_b32 s66, s32, 12"); a("s_lshl_b32 s65, s32, 11"); a("s_add_u32 s65, s65, %d" % XB)
    def dmaX(gm):
        c, hf = gm >> 1, gm & 1
        return [("s_add_u32 m0, s65, %d" % ((c % 3) * XSL + hf * 8192), None), ("s_add_u32 s69, s%d, %d" % (50 + c, hf * 81920), None)] + \
               [("buffer_load_dwordx4 v%d, s[16:19], s69 offen offset:%d lds" % (VXO[k], 1024 * k), ("vm", ("g", gm))) for k in range(2)]
    def pack_scalars():
        for l in ["s_xor_b32 s71, s32, %d" % 0, "s_sub_u32 s4, s2, 128", "s_mul_i32 s4, s4, %d" % (1 if C.jb else 3), "s_mul_i32 s5, s71, %d" % (128 if C.jb else 1), "s_add_u32 s4, s4, s5", "s_cmp_lt_u32 s71, 3", "s_cselect_b32 s4, s4, 500", "s_lshr_b32 s5, s4, 2", "s_sub_u32 s6, s5, 20",
                  "s_cmp_lt_u32 s5, 20", "s_cselect_b32 s6, s5, s6", "s_cselect_b32 s8, s14, s96", "s_cselect_b32 s9, s15, s97", "s_cselect_b32 s10, 0, 0x118000", "s_cselect_b32 s13, 2, 1", "s_cselect_b32 s14, 1, 4",
                  "s_add_u32 s10, s10, 819200", "s_and_b32 s9, s9, 0xffff", "s_mov_b32 s11, 0x00020000",
                  "s_mul_i32 s6, s6, 40960", "s_and_b32 s7, s4, 3", "s_mul_i32 s12, s7, s13", "s_mul_i32 s12, s12, 5120", "s_add_u32 s6, s6, s12", "s_mul_i32 s14, s14, 5120", "s_add_u32 s14, s14, s6",
                  "s_mul_i32 s5, s5, 40960", "s_lshl_b32 s7, s7, 8", "s_add_u32 s5, s5, s7", "s_add_u32 s5, s5, %d" % W2P_OFF, "s_cmp_lt_u32 s4, 272", "s_cselect_b32 s4, s5, 0x%x" % OOB,
                  "s_mul_i32 s7, s71, 10240", "s_add_u32 s7, s7, %d" % PB, "s_cmp_lt_u32 s71, 3", "s_cselect_b32 s7, s7, 0x30000", "s_mov_b32 s15, %d" % (68 * 5120)]: a(l)
    def pack_ld(tt, o, n):
        return [("s_add_u32 m0, s7, %d" % (5120 * tt + o), None), ("s_add_u32 s12, s%d, %d" % (14 if tt else 6, o), None)] + [("buffer_load_dwordx4 v%d, s[8:11], s12 offen offset:%d%s lds" % (VL, 1024 * i, " nt" if C.pnt else ""), ("vm", "pk")) for i in range(n)]
    V = PV; PH = (256 + 100 - PR) if C.pv else 0
    pack_addr = [(x, None) for x in ["v_lshrrev_b32 v%d, 5, v2" % V, "v_lshlrev_b32 v%d, 6, v%d" % (V, V), "v_bfe_u32 v%d, v2, 4, 1" % (V + 2), "v_lshl_add_u32 v%d, v%d, 3, v%d" % (V, V + 2, V),
                "v_bfe_u32 v%d, v2, 2, 2" % (V + 2), "v_mul_u32_u24 v%d, 1280, v%d" % (V + 2, V + 2), "v_add_u32 v%d, v%d, v%d" % (V, V, V + 2),
                "v_and_b32 v%d, 3, v2" % (V + 2), "v_lshlrev_b32 v%d, 4, v%d" % (V + 2, V + 2), "v_add3_u32 v%d, v%d, v%d, s7" % (V, V, V + 2),
                "v_lshrrev_b32 v%d, 4, v2" % (V + 1), "v_lshlrev_b32 v%d, 10, v%d" % (V + 1, V + 1), "v_and_b32 v%d, 0xf0, v%d" % (V + 2, VL), "v_add_u32 v%d, v%d, v%d" % (V + 1, V + 1, V + 2)]]
    def pack_rd(hf): return [("WAITVM", "pk")] + [("ds_read_b64_tr_b16 %s, v%d offset:%d" % (R(PR + PH * hf + 4 * i + 2 * tt, 2), PV, 128 * (5 * hf + i) + 5120 * tt), None) for i in range(5) for tt in range(2)]
    def pack_st(hf): return [x for i in range(5) for x in (("s_add_u32 s5, s4, %d" % (4096 * (5 * hf + i)), None), ("buffer_store_dwordx4 %s, v%d, s[28:31], s5 offen sc1" % (R(PR + PH * hf + 4 * i), PV + 1), ("vm", "pst")))]
    pack_all = pack_ld(0, 0, 4) + pack_ld(0, 4096, 1) + pack_ld(1, 0, 4) + pack_ld(1, 4096, 1)
    patom = [("v_mov_b32 v%d, 1\ns_lshl_b32 s13, s32, 12" % PV, None), ("s_mov_b64 exec, 1\nbuffer_atomic_add v%d, off, s[24:27], s13 offset:128 sc0 sc1\ns_mov_b64 exec, -1" % PV, ("vm", "pa"))]
    a.srd(20, 6, 2457600)
    if C.pke == 1: pack_scalars(); sc.flush(list(pack_all))
    for it in dmaX(0) + dmaX(1): sc.emit(it)
    for i in range(4):
        a("s_lshl_b32 s68, s32, 8"); a("s_add_u32 s68, s68, %d" % (64 * i)); a("v_add_u32 v%d, s68, v2" % TT)
        a("v_mul_u32_u24 v%d, 2185, v%d" % (TT + 1, TT)); a("v_lshrrev_b32 v%d, 16, v%d" % (TT + 1, TT + 1))
        a("v_mul_u32_u24 v%d, 30, v%d" % (TT + 2, TT + 1)); a("v_sub_u32 v%d, v%d, v%d" % (TT + 2, TT, TT + 2))
        a("v_mul_u32_u24 v%d, 205, v%d" % (TT + 3, TT + 2)); a("v_lshrrev_b32 v%d, 11, v%d" % (TT + 3, TT + 3))
        a("v_mul_u32_u24 v%d, 1120, v%d" % (TT + 3, TT + 3)); a("v_lshl_add_u32 v%d, v%d, 4, v%d" % (TT + 3, TT + 2, TT + 3))
        a("v_bfe_u32 v%d, v%d, 2, 2" % (TT + 4, TT + 1)); a("v_lshlrev_b32 v%d, 3, v%d" % (TT + 4, TT + 4))
        a("v_bfe_u32 v%d, v%d, 4, 1" % (TT + 2, TT + 1)); a("v_lshl_add_u32 v%d, v%d, 2, v%d" % (TT + 4, TT + 2, TT + 4))
        a("v_and_b32 v%d, 3, v%d" % (TT + 2, TT + 1)); a("v_add_u32 v%d, v%d, v%d" % (TT + 4, TT + 4, TT + 2))
        a("v_mul_u32_u24 v%d, 3840, v%d" % (TT + 4, TT + 4)); a("s_mul_i32 s68, s37, 160"); a("s_sub_u32 s68, s68, %d" % (1024 * i if i < 3 else 0))
        a("v_add3_u32 v%d, v%d, v%d, s68" % (VWO[i], TT + 4, TT + 3))
    a("s_mul_i32 s68, s36, 163840"); a("s_sub_u32 s68, s68, 20480"); a("s_cmp_eq_u32 s36, 0"); a("s_cselect_b32 s68, 0x%x, s68" % OOB)
    a("v_add_u32 v%d, s68, v%d" % (TT + 8, TT + 8)); a("s_add_u32 s68, s68, 10240"); a("v_add_u32 v%d, s68, v%d" % (TT + 9, TT + 9))
    a("s_cmp_eq_u32 s32, 3")
    for i in range(3): a("s_cselect_b32 s%d, s%d, s%d" % (72 + i, 16 + i, 20 + i))
    a("s_mov_b32 s75, 0x00020000"); a("s_cselect_b64 vcc, -1, 0"); a("v_cndmask_b32 v%d, v%d, v%d, vcc" % (VF1, VWO[3], TT + 9)); a("v_cndmask_b32 v%d, v%d, v%d, vcc" % (VWO[3], VWO[3], TT + 8))
    def dmaW(gm):
        c, hf = gm >> 1, gm & 1
        return [("s_add_u32 m0, s66, %d" % ((gm % NW) * WSL), None), ("s_add_u32 s68, s%d, %d" % (40 + c, hf * 122880), None)] + \
               [("buffer_load_dwordx4 v%d, s[20:23], s68 offen offset:%d lds" % (VWO[k], 1024 * k), ("vm", ("g", gm))) for k in range(3)] + \
               [("s_add_u32 s69, m0, 3072", None), ("s_cmp_eq_u32 s32, 3\ns_cselect_b32 m0, %d, s69" % (XB + (c % 3) * XSL + 16384 + 1024 * hf), None), ("s_cmp_eq_u32 s32, 3\ns_cselect_b32 s68, s%d, s68" % (50 + c), None),
                ("buffer_load_dwordx4 v%d, s[72:75], s68 offen lds" % (VF1 if hf else VWO[3]), ("vm", ("g", gm)))]
    for it in dmaW(0) + dmaW(1): sc.emit(it)
    if C.xta:
        a("s_lshl_b32 s62, s34, 2"); a("s_lshr_b32 s62, %d, s62" % C.so); a("s_and_b32 s62, s62, 15"); a("s_lshr_b32 s69, s35, 2"); a("s_mul_i32 s69, s69, 5"); a("s_add_u32 s62, s62, s69"); a("s_add_u32 s62, s62, 4")
        a("s_sub_u32 s69, s62, 10"); a("s_cmp_ge_u32 s62, 10"); a("s_cselect_b32 s62, s69, s62"); a("s_lshl_b32 s62, s62, 4"); a("s_and_b32 s69, s35, 3"); a("s_lshl_b32 s69, s69, 2"); a("s_add_u32 s62, s62, s69")
        a("s_add_u32 s62, s62, s32"); a("s_mul_i32 s62, s62, 15360"); a("s_mul_i32 s69, s37, 160"); a("s_add_u32 s62, s62, s69")
        a("v_lshrrev_b32 v%d, 1, v2" % TT); a("v_mul_u32_u24 v%d, 1280, v%d" % (TT, TT)); a("v_and_b32 v%d, 1, v2" % (TT + 1)); a("v_mul_u32_u24 v%d, 156, v%d" % (TT + 1, TT + 1)); a("v_add_u32 v%d, v%d, v%d" % (TT, TT, TT + 1))
        a("s_mov_b64 exec, 0xffffff"); a("buffer_load_dword a198, v%d, s[20:23], s62 offen" % TT); a("s_mov_b64 exec, -1"); vm.issue("xt")
    if C.pke == 2: pack_scalars(); sc.flush(list(pack_all))
    raise_ready(a, vm, "att")
    for gm in range(2, C.na0):
        for it in dmaX(gm) + dmaW(gm): sc.emit(it)
    a("v_lshrrev_b32 v%d, 2, v2" % TT); a("v_mul_u32_u24 v%d, 480, v%d" % (TT, TT)); a("v_and_b32 v%d, 3, v2" % (TT + 1)); a("v_lshl_add_u32 v%d, v%d, 3, v%d" % (TT, TT + 1, TT))
    a("s_lshl_b32 s60, s32, 7"); a("v_add_u32 v%d, s60, v%d" % (VWR[0], TT)); a("v_add_u32 v%d, %d, v%d" % (VWR[1], 3 * WSL, VWR[0]))
    a("v_bfe_u32 v%d, v2, 1, 3" % TT); a("v_lshrrev_b32 v%d, 4, v2" % (TT + 1)); a("v_xor_b32 v%d, v%d, v%d" % (TT, TT, TT + 1)); a("v_lshlrev_b32 v%d, 4, v%d" % (TT, TT))
    a("v_and_b32 v%d, 15, v2" % (TT + 1)); a("v_lshl_add_u32 v%d, v%d, 7, v%d" % (TT, TT + 1, TT)); a("v_add_u32 v%d, %d, v%d" % (VXR[0], XB, TT)); a("v_xor_b32 v%d, 64, v%d" % (VXR[1], VXR[0]))
    a("v_lshlrev_b32 v15, 3, v%d" % (TT + 1))
    if not C.pke: pack_scalars()
    a("s_lshl_b32 s61, s36, 1"); a("s_lshr_b32 s69, s32, 1"); a("s_add_u32 s61, s61, s69"); a("s_mul_i32 s61, s61, %d" % (68 * 4096))
    a("s_and_b32 s69, s32, 1"); a("s_lshl_b32 s69, s69, 11"); a("s_add_u32 s61, s61, s69"); a("s_mov_b32 s39, %s" % f2h(20 ** -0.5 * 1.4426950408889634))
    a("s_mul_i32 s62, s32, %d" % (32 * RS)); a("s_mul_i32 s63, s32, 5120"); a("s_add_u32 s63, s63, %d" % OB); a("s_mul_i32 s64, s37, 10")
    a("s_mov_b32 s94, 0xfffefffe"); a("s_mov_b32 s95, 0xfffefffe")
    if C.stub: a("STUBCALLS_att")
    common_setup(a, "att")
    a("s_sub_u32 s38, s79, %d" % (16384 - 896)); a("s_cmp_eq_u32 s36, 0"); a("s_cselect_b32 s38, s79, s38")
    a("v_mov_b32 v%d, 0x3f803f80" % (FR[0] + 16))
    for k in range(4): a("v_mov_b32 v%d, 0x3f803f80" % (FR[0] + 16 + k)); a("v_accvgpr_write_b32 a%d, v%d" % (FR[1] - 256 + 16 + k, FR[0] + 16))
    if not C.lst: stats(a, vm, 252, 254, 255, "att")
    if C.skipm:
        a("s_cmp_eq_u32 s32, 3"); a("s_cselect_b32 s68, 0x30000, 0"); a("v_add_u32 v252, s68, v%d" % VWR[0]); a("v_add_u32 v253, s68, v%d" % VWR[1])
    stamp(a, 1)
    tr = Trace(a, 0); tr.lv = VL; tr.mark()
    def reads(s_):
        fb = FR[s_ % 2]; pos = s_ % NW; c = s_ >> 1; kh = s_ & 1
        def xr(u):
            l = "ds_read_b128 %s, v%d offset:%d" % (R(fb + 16 + 4 * u), VXR[kh], (c % 3) * XSL + (2048 * (u - 1) if u else 16384))
            return (l if u else "s_mov_b64 exec, s[94:95]\n" + l + "\ns_mov_b64 exec, -1", None)
        def wr(t, tt): return ("ds_read_b64_tr_b16 %s, v%d offset:%d" % (R(fb + 4 * t + 2 * tt, 2), (252 + pos // 3) if (t == 3 and C.skipm) else VWR[pos // 3], (pos % 3) * WSL + 7680 * tt + 32 * t), None)
        out = [wr(0, 0), wr(0, 1)] + [xr(u) for u in range(9)]
        for t in range(1, 4): out += [wr(t, 0), wr(t, 1)]
        return out
    T2 = 232; AQ, AV, VI, VQW, TOK, VOR = T2, T2 + 1, T2 + 2, T2 + 3, T2 + 4, T2 + 5; SO = T2 + 6; GO = T2 + 11; t0, t1, t2, t3 = T2 + 16, T2 + 17, T2 + 18, T2 + 19
    ad = []
    def rowaddr(dst, hh, i):
        ad.extend(["v_bfe_u32 v%d, v2, 4, 1" % TOK, "v_lshlrev_b32 v%d, 3, v%d" % (TOK, TOK), "v_bfe_u32 v%d, v2, 5, 1" % t0, "v_add_u32 v%d, v%d, v%d" % (TOK, TOK, t0),
                   "v_bfe_u32 v%d, v2, %d, 2" % (t0, i), "v_lshl_add_u32 v%d, v%d, 1, v%d" % (TOK, t0, TOK), "v_mul_u32_u24 v%d, %d, v%d" % (t1, RS, TOK),
                   "v_bfe_u32 v%d, v2, %d, 2" % (t0, hh), "v_mul_u32_u24 v%d, 40, v%d" % (t0, t0), "v_add3_u32 v%d, v%d, v%d, s62" % (dst, t1, t0)])
    rowaddr(AV, 0, 2); rowaddr(AQ, 2, 0)
    ad += ["v_and_b32 v%d, 3, v2" % VI, "v_lshrrev_b32 v%d, 3, v%d" % (t0, t0), "v_lshl_add_u32 v%d, v%d, 4, s63" % (t2, TOK), "v_add_u32 v%d, s63, v%d" % (VOR, VL)]
    for dp in range(5):
        ad += ["v_add_u32 v%d, %d, v%d" % (t1, dp, t0), "v_lshrrev_b32 v%d, 1, v%d" % (SO + dp, t1), "v_lshl_add_u32 v%d, v%d, 8, v%d" % (SO + dp, SO + dp, t2),
               "v_and_b32 v%d, 1, v%d" % (t1, t1), "v_lshl_add_u32 v%d, v%d, 3, v%d" % (SO + dp, t1, SO + dp)]
    ad += ["v_lshrrev_b32 v%d, 4, v2" % t0, "v_and_b32 v%d, 15, v2" % t2, "v_mul_u32_u24 v%d, %d, v%d" % (VQW, RS, t2), "v_lshl_add_u32 v%d, v%d, 3, v%d" % (VQW, t0, VQW), "v_add_u32 v%d, s60, v%d" % (VQW, VQW),
           "v_lshlrev_b32 v%d, 4, v%d" % (t2, t2)]
    for j in range(5):
        ad += ["v_add_u32 v%d, %d, v%d" % (t1, 4 * j, t0), "v_mul_u32_u24 v%d, 13, v%d" % (t3, t1), "v_lshrrev_b32 v%d, 7, v%d" % (t3, t3), "v_lshl_add_u32 v%d, v%d, 10, v%d" % (GO + j, t3, t2),
               "v_mul_u32_u24 v%d, 10, v%d" % (t3, t3), "v_sub_u32 v%d, v%d, v%d" % (t1, t1, t3), "v_add_u32 v%d, s64, v%d" % (t1, t1),
               "v_lshrrev_b32 v%d, 2, v%d" % (t3, t1), "v_lshl_add_u32 v%d, v%d, 12, v%d" % (GO + j, t3, GO + j), "v_and_b32 v%d, 3, v%d" % (t3, t1), "v_lshl_add_u32 v%d, v%d, 8, v%d" % (GO + j, t3, GO + j)]
    ad += ["v_cmp_gt_u32 s[%d:%d], %d, v%d" % (4 + 2 * k, 5 + 2 * k, k, VI) for k in range(1, 4)]
    k0 = C.pk0
    st_loads = ["buffer_load_dwordx2 v[%d:%d], v15, s[28:31], s%d offen offset:%d sc1" % (KR_ + 2 * u, KR_ + 2 * u + 1, 79 if u else 38, 128 * (u - 1) if u else 0) for u in range(9)]
    st_c = ["v_and_b32 v%d, 0xffff0000, v%d" % (KR_ + 2 * u + 1, KR_ + 2 * u) for u in range(9)] + ["v_lshlrev_b32 v%d, 16, v%d" % (KR_ + 2 * u, KR_ + 2 * u) for u in range(9)] + ["v_rcp_f32 v%d, v%d" % (KR_ + 2 * u + 1, KR_ + 2 * u + 1) for u in range(9)] + ["v_mul_f32 v%d, v%d, v%d" % (KR_ + 2 * u, KR_ + 2 * u, KR_ + 2 * u + 1) for u in range(9)]
    fex = {2: pack_addr, k0: pack_rd(0), k0 + 1: pack_st(0) + pack_rd(1)[1:], k0 + 2: pack_st(1), k0 + 4: patom,
           k0 + 6: [("WAITVM", "pa"), ("v_readfirstlane_b32 s100, v%d\ns_and_b32 s100, s100, 127\ns_cmp_eq_u32 s100, 127\ns_cbranch_scc1 ATT_bcast\nATT_bcast_ok:" % PV, None)] + [(x, None) for x in ad],
           C.sla + 3: [("WAITVM", "stl")] + tag_check("STA", st_loads, [KR_ + 2 * u + 1 for u in range(9)], 230) + [(x, None) for x in st_c]}
    assert C.sla > k0 + 6
    PSG = k0 + 4
    if C.pv:
        last = fex[k0 + 6]; stq = pack_st(0) + pack_st(1); PSG = k0 + C.psg
        fex = {2: pack_addr, k0: pack_rd(0), k0 + 1: pack_rd(1)[1:] + stq[:4], k0 + 2: stq[4:12], k0 + 3: stq[12:], PSG: patom, PSG + 1: last[2:30] + last[:2] + last[30:], C.sla + 3: fex[C.sla + 3]}
        if C.pv == 1: pack_all = pack_ld(0, 0, 3) + pack_ld(0, 3072, 2) + pack_ld(1, 0, 2) + pack_ld(1, 2048, 3)
    if C.pke:
        k0 = -3; C.pkl = -9; PSG = 1; assert not C.pv
        fex = {1: patom, 3: fex[C.pk0 + 6], C.sla + 3: fex[C.sla + 3]}
        sc.flush(pack_addr + pack_rd(0)); PR = 16; sc.flush(pack_rd(1)[1:]); PR = 216
        a("s_waitcnt lgkmcnt(10)"); sc.flush(pack_st(0)); PR = 16; a("s_waitcnt lgkmcnt(0)"); sc.flush(pack_st(1))
    w2q = list(range(10)); giss = C.na0
    CB = t0
    def wr_tile(t, u, pk=False):
        c = acc(t, u); o = []; K = R(KR_ + 2 * u, 2)
        if u == 0: o += ["v_mov_b32_dpp v%d, v%d row_newbcast:0 row_mask:0xf bank_mask:0xf" % (CB + r, c + r) for r in range(4)]
        if pk: o += ["v_pk_mul_f32 %s, %s, %s op_sel:[0,1] op_sel_hi:[1,1]" % (R(c + r, 2), R(c + r, 2), K) for r in (0, 2)] + ["v_pk_fma_f32 %s, %s, %s, %s op_sel_hi:[1,0,1]" % (R(c + r, 2), R(CB + r, 2), K, R(c + r, 2)) for r in (0, 2)]
        else: o += ["v_mul_f32 v%d, v%d, v%d" % (c + r, c + r, KR_ + 2 * u + 1) for r in range(4)] + ["v_fmac_f32 v%d, v%d, v%d" % (c + r, CB + r, KR_ + 2 * u) for r in range(4)]
        o += ["v_cvt_pk_bf16_f32 v%d, v%d, v%d" % (c, c, c + 1), "v_cvt_pk_bf16_f32 v%d, v%d, v%d" % (c + 1, c + 2, c + 3), "ds_write_b64 v%d, %s offset:%d" % (13 if (t == 3 and C.t3u) else VQW, R(c, 2), 16 * RS * u + 32 * t)]
        return o
    while giss < 4:
        for it in dmaX(giss) + dmaW(giss): sc.emit(it)
        giss += 1
    wait(a, vm=vm.need(("g", 1))); a("s_barrier"); tr.mark()
    for it in reads(0): sc.emit(it)
    sc.dq += dmaX(4) + dmaW(4)
    eq = []
    for s_ in range(20):
        fb = FR[s_ % 2]
        a("s_waitcnt lgkmcnt(0)")
        rq = []
        for i in range(36):
            t, u = i // 9, i % 9
            if C.snk and t & 1 and s_ < 19: u = 8 - u
            c = acc(t, u)
            a("v_mfma_f32_16x16x32_bf16 %s, %s, %s, %s" % (R(c), R(fb + 4 * t), R(fb + 16 + 4 * u), "0" if s_ == 0 else R(c)))
            if i == 0:
                if C.lst and s_ == 1: stats(a, vm, 252, 254, 255, "att", 236)
                if s_ < 19: wait(a, vm=vm.need(*([("g", (s_ + 1) | 1)] + (["pst"] if s_ == PSG else []))))
                a("s_barrier"); tr.mark()
                if s_ < 19: rq = reads(s_ + 1)
                if s_ + NW < 20: sc.dq += dmaX(s_ + NW) + dmaW(s_ + NW)
                sc.sp = C.spa
                if s_ == 0: sc.sp = 1
                if C.pv == 1:
                    if C.pkl <= s_ < C.pkl + 3: sc.dq += [pack_all[:5], pack_all[5:13], pack_all[13:]][s_ - C.pkl]; sc.sp = 2
                else:
                    if s_ == C.pkl: sc.dq += pack_all[:18 if C.p1 else 9]; sc.sp = 1 if C.p1 else 2
                    if s_ == C.pkl + 1 and not C.p1: sc.dq += pack_all[9:]; sc.sp = 2
                if s_ in fex: sc.fq += fex[s_]
                if C.sla <= s_ < C.sla + 3: sc.dq += [(l, ("vm", "stl")) for l in st_loads[3 * (s_ - C.sla):3 * (s_ - C.sla) + 3]]; sc.sp = 2
                if s_ == C.apc: sc.dq += [(flag_load(FL, "s35", 28), ("vm", "pf"))]
                if s_ == C.apc + 2:
                    sc.lq += [("WAITVM", "pf"), ("\n".join(x[0] for x in flag_check("ATT_pf", FL, "s35", 28, 0)), None)]
                    for _ in range(C.aw2): sc.lq += w2_loads(RA, w2q.pop(0), VL)
                if s_ >= 15: sc.sp = 3
                sc.n += 1; sc.since += 1
                continue
            if s_ == 19:
                if i >= 8 and i - 8 < 27: eq += wr_tile((i - 8) // 9, (i - 8) % 9, C.pkq and i - 8 >= C.npl)
                if i < 8 or (C.q19 and i % 4 == 0): sc.gap([], 2); continue
                for _ in range(C.eqn):
                    if eq and not eq[0].startswith("v_pk"): a(eq.pop(0))
                continue
            sc.gap([rq.pop(0)] if (rq and i % 3 != 0) else [], 2 - (1 if i == 35 else 0))
        sc.flush(sc.dq)
        if s_ <= PSG or s_ == 18 or s_ == C.sla - 1: sc.flush(sc.fq)
    stamp(a, 2); tr.mark()
    a("s_mul_i32 s12, s32, 15360"); a("s_add_u32 s12, s12, 94208")
    for i in w2q: sc.lq += w2_loads(RA, i, VL)
    SB = 13 if C.arp else 10
    if C.ea3:
        a(sflag_load(0))
        for q in range(4): a("s_add_u32 s14, s32, %d" % q); a("s_and_b32 s14, s14, 3"); a("s_lshl_b32 s14, s14, 10"); a("s_add_u32 s%d, s14, s%d" % (52 + q, AB[0]))
    for k in range(5): sc.lq += w2_lds(SB + k // 2, k & 1, VL, SB)
    if C.t3u:
        a("s_cmp_eq_u32 s32, 3"); a("s_cselect_b32 s68, 0x30000, 0"); a("v_add_u32 v13, s68, v%d" % VQW)
        for u in range(9): eq += wr_tile(3, u, C.pkq)
    for k, x in enumerate(eq):
        a(x)
        if k % C.qp == 0 and sc.lq:
            while sc.lq and not ismem(sc.lq[0][0]): sc.emit(sc.lq.pop(0))
            sc.emit(sc.lq.pop(0))
    if not C.t3u: a("s_cmp_eq_u32 s32, 3"); a("s_cbranch_scc1 K_att_s3")
    for u in range(0 if C.t3u else 9):
        for x in wr_tile(3, u, C.pkq): a(x)
    a("K_att_s3:")
    a("s_waitcnt lgkmcnt(0)"); tr.mark(); a("s_barrier")
    def act_early(i):
        o = []
        for q in range(4): o += [("s_add_u32 s14, s%d, %d" % (52 + q, step_off(i, AB, 4096, RA)[1]), None), ("buffer_load_dwordx4 %s, v%d, s[28:31], s14 offen sc1" % (R(RA.A[i] + 4 * q), VL), ("vm", ("a", i)))]
        return o
    if C.ea3:
        sc.flush(sflag_check("ATT_fe", 16, 1, 0)[1:])
        while sc.lq and ismem(sc.lq[0][0]): sc.emit(sc.lq.pop(0))
        sc.lq = act_early(0) + act_early(1) + act_early(2) + sc.lq + w2_loads(RA, 12, VL)
    elif C.arp:
        for i in (10, 11, 12): sc.lq += w2_loads(RA, i, VL)
    QR = [80, 150]; Sx = [16, 48]; O = [80, 150]; ZO = 20
    def KR(e, kb): return QR[e] + 10 + 10 * kb
    def VR(e, kb): return QR[e] + 40 + 10 * kb
    if C.arp:
        QR = [60, 496]; Sx = [16, 38]; O = [60, 80]; ZO = 18
        KR = lambda e, kb: 70 + 10 * (2 * e + kb)
        VR = lambda e, kb: [192, 202, 212, 222, 4][2 * e + kb]
    def lqpop(n=1):
        for _ in range(n):
            while sc.lq and not ismem(sc.lq[0][0]): sc.emit(sc.lq.pop(0))
            if sc.lq: sc.emit(sc.lq.pop(0))
    for e in range(2):
        for dp in range(5): a("ds_read_b64 %s, v%d offset:%d" % (R(QR[e] + 2 * dp, 2), AQ, (16 + 16 * e) * RS + 8 * dp)); lg.issue(("k", e))
        for kb in range(3):
            if e == 1 and kb == 0: continue
            for dp in range(5): a("ds_read_b64 %s, v%d offset:%d" % (R(KR(e, kb) + 2 * dp, 2), AQ, (8 * kb + 16 * e) * RS + 160 + 8 * dp)); lg.issue(("k", e))
    def KK(e, kb): return KR(0, 2) if (e == 1 and kb == 0) else KR(e, kb)
    def VV(e, kb): return VR(0, 2) if (e == 1 and kb == 0) else VR(e, kb)
    for e in range(2):
        wait(a, lg=lg.need(("k", e)))
        for dp in range(5):
            for kb in range(3):
                a("v_mfma_f32_4x4x4_16b_bf16 %s, %s, %s, %s" % (R(Sx[e] + 4 * kb), R(KK(e, kb) + 2 * dp, 2), R(QR[e] + 2 * dp, 2), "0" if dp == 0 else R(Sx[e] + 4 * kb)))
                if kb == 0: lqpop()
                if not (e == 1 and kb == 0): a("ds_read_b64_tr_b16 %s, v%d offset:%d" % (R(VR(e, kb) + 2 * dp, 2), AV, (8 * kb + 16 * e) * RS + 320 + 8 * dp)); lg.issue(("v", e))
    a("s_nop 3")
    a("s_or_b32 s68, s36, s32"); a("s_cmp_lg_u32 s68, 0"); a("s_cbranch_scc1 K_att_nomask")
    Z = Sx[0] + ZO
    a("v_lshlrev_b32 v%d, 1, v%d" % (Z, VI)); a("v_sub_u32 v%d, v%d, v%d" % (Z, TOK, Z)); a("v_mov_b32 v%d, 0xff800000" % (Z + 1))
    for k in range(1, 8): a("v_cmp_gt_u32 vcc, %d, v%d" % (16 - 2 * k, Z)); a("s_nop 1"); a("v_cndmask_b32 v%d, v%d, v%d, vcc" % (Sx[0] + k, Sx[0] + k, Z + 1))
    a("K_att_nomask:")
    tr.mark()
    if not C.ea3: a(sflag_load(0))
    else:
        k_ = next((k for k, x in enumerate(sc.lq) if x[0].startswith("s_add_u32 s13") or x[0].startswith("s_add_u32 m0")), len(sc.lq))
        sc.lq = sc.lq[:k_] + act_early(3) + sc.lq[k_:]
    def soft(S):
        Z = S + ZO; P = S + 12; o = []; M = lambda k: "s[%d:%d]" % (4 + 2 * k, 5 + 2 * k)
        o += ["v_cndmask_b32 v%d, v%d, v%d, %s" % (S + k, S + k + 8, S + k, M(k)) for k in range(1, 4)]
        o += ["v_max3_f32 v%d, v%d, v%d, v%d" % (Z + 1, S + 4, S + 5, S + 6), "v_max3_f32 v%d, v%d, v%d, v%d" % (Z, S + 1, S + 2, S + 3),
              "v_max3_f32 v%d, v%d, v%d, v%d" % (Z + 1, Z + 1, S + 7, S + 8), "v_max_f32 v%d, v%d, v%d" % (Z, Z, Z + 1), "v_mul_f32 v%d, s39, v%d" % (Z, Z)]
        o += ["v_fma_f32 v%d, v%d, s39, -v%d" % (S + k, S + k, Z) for k in range(1, 9)]
        o += ["v_exp_f32 v%d, v%d" % (S + k, S + k) for k in range(1, 9)]
        o += ["v_add_f32 v%d, v%d, v%d" % (Z, S + 1, S + 2), "v_add_f32 v%d, v%d, v%d" % (Z + 1, S + 3, S + 4), "v_add_f32 v%d, v%d, v%d" % (Z + 2, S + 5, S + 6), "v_add_f32 v%d, v%d, v%d" % (Z + 3, S + 7, S + 8),
              "v_add_f32 v%d, v%d, v%d" % (Z, Z, Z + 1), "v_add_f32 v%d, v%d, v%d" % (Z + 2, Z + 2, Z + 3), "v_add_f32 v%d, v%d, v%d" % (Z, Z, Z + 2), "v_rcp_f32 v%d, v%d" % (Z, Z), "v_mov_b32 v%d, 0" % S]
        o += ["v_mul_f32 v%d, v%d, v%d" % (S + k, S + k, Z) for k in range(1, 9)]
        for k in range(1, 4): o += ["v_cndmask_b32 v%d, v%d, 0, %s" % (S + k + 8, S + k, M(k)), "v_cndmask_b32 v%d, 0, v%d, %s" % (S + k, S + k, M(k))]
        o += ["v_cvt_pk_bf16_f32 v%d, v%d, v%d" % (P + j, S + 2 * j, S + 2 * j + 1) for j in range(6)]
        return o
    for k, (x, y) in enumerate(zip(soft(Sx[0]), soft(Sx[1]))):
        a(x); a(y)
        if k % C.sqp == 0: lqpop()
    a("s_waitcnt lgkmcnt(0)"); a("s_nop 0")
    if C.ea1 and not C.ea3:
        sc.flush(sflag_check("ATT_fe", 100, 1, 0)[1:])
        while sc.lq and ismem(sc.lq[0][0]): sc.emit(sc.lq.pop(0))
        a0 = []
        for q in range(4): a0 += [("s_add_u32 s14, s32, %d\ns_and_b32 s14, s14, 3\ns_lshl_b32 s14, s14, 10\ns_add_u32 s14, s14, s%d\ns_add_u32 s14, s14, %d" % ((q,) + step_off(0, AB, 4096, RA)), None),
                                  ("buffer_load_dwordx4 %s, v%d, s[28:31], s14 offen sc1" % (R(RA.A[0] + 4 * q), VL), ("vm", ("a", 0)))]
        sc.lq = a0 + sc.lq
    def ocvt(e, dp):
        c = O[e] + 4 * dp
        return ["v_cvt_pk_bf16_f32 v%d, v%d, v%d" % (c, c, c + 1), "v_cvt_pk_bf16_f32 v%d, v%d, v%d" % (c + 1, c + 2, c + 3), "ds_write_b64 v%d, %s offset:%d" % (SO + dp, R(c, 2), 2560 * e)]
    q0 = [x for dp in range(5) for x in ocvt(0, dp)]
    for e in range(2):
        for kb in range(3):
            for dp in range(5):
                a("v_mfma_f32_4x4x4_16b_bf16 %s, %s, %s, %s" % (R(O[e] + 4 * dp), R(VV(e, kb) + 2 * dp, 2), R(Sx[e] + 12 + 2 * kb, 2), "0" if kb == 0 else R(O[e] + 4 * dp)))
                if e == 1 and (kb > 0 or dp > 0): a(q0.pop(0))
                if C.pvq and dp == 4: lqpop()
    for x in q0: a(x)
    for dp in range(5):
        for x in ocvt(1, dp): a(x)
        if C.pvq and dp % 2 == 0: lqpop()
    a("s_waitcnt lgkmcnt(0)")
    for j in range(5): a("ds_read_b128 %s, v%d offset:%d" % (R(100 + 4 * j), VOR, 1024 * j))
    def ostores():
        for j in range(5):
            a("s_waitcnt lgkmcnt(%d)" % (4 - j if C.ea0 else 0)); a("buffer_store_dwordx4 %s, v%d, s[28:31], s61 offen sc1" % (R(100 + 4 * j), GO + j)); vm.issue("ost")
    if C.ea0: ostores()
    tr.mark(); tr.sync(); tr.mark(); tr.flush(41)
    for it in act_voffs(VL): sc.emit(it)
    a("v_mov_b32 v7, v%d" % VL); a("v_add_u32 v2, s1, v2")
    if not C.ea1: sc.flush(sflag_check("ATT_fe", 20, 1, 0))
    left = list(sc.lq); sc.lq = []
    while left and ismem(left[0][0]): sc.emit(left.pop(0))
    for i in range(C.ea1, 2 + C.ea1 if not C.ea3 else 0): sc.flush(act_loads(RA, i))
    assert not any(x[0].startswith('s_add_u32 s14') for x in left)
    if not C.ea0: ostores()
    print("ATT left", len(left))
    lrd = [("WAITVM", "wl"), ("v_add_u32 v22, s12, v7", None)] + [("ds_read_b128 %s, v22 offset:%d" % (R(RA.W[SB] + 4 * k), 1024 * k), None) for k in range(15)]
    for i in (SB, SB + 1): vm.seen.add(("w2", i))
    pend = [(i, act_loads(RA, i)) for i in range(2 + C.ea1, 4 if not C.ea3 else 0)]; grp = []
    if C.ea3: pend += [(i - 0.5, p) for i in (10, 11) for p in w2_parts(RA, i)]
    for x in left:
        if x[0].startswith("s_add_u32 m0") or x[0].startswith("s_add_u32 s13"): grp.append([])
        grp[-1].append((x[0].replace("v%d," % VL, "v7,"), x[1]))
    for g in grp: pend.append((g[-1][1][1][1] - 0.5 if g[-1][1][1] != "wl" else 5.5, g))
    pend += [(SB + 1.5, w2_parts(RA, SB + 2)[1])] + [(i - 0.5, p) for i in range(SB + 3, 17) for p in w2_parts(RA, i)]
    sc.timed = [(sc.n + C.sda, [("WAITVM", "ost"), (wave_signal(2, 1), ("vm", "sg"))])]
    p2_main(a, sc, RA, pend, [], lrd)

def p2_main(a, sc, r, pend, ep, lrd=()):
    vm = sc.vm; sc.sp = C.sp2; sc.dq = []; sc.fq = list(ep); sc.lq = []
    VL, VX, VR_ = 7, 8, 9; FL = 20; NT = r.NT; H = NT // 2; RB = 3 * NT * 1024; WA = [0, 10, 11, 12]
    XR = r.XF + 4 * NT
    stamp(a, 3)
    tr = Trace(a, 15); tr.lv = VL; tr.mark()
    if C.bs < 0: a("s_barrier")
    xl = [(x, None) for x in ["v_and_b32 v9, 0xf0, v7", "v_mul_u32_u24 v9, 80, v9", "v_lshrrev_b32 v%d, 8, v7" % VX, "v_lshl_add_u32 v%d, v%d, 4, v9" % (VX, VX)]] + \
         [("buffer_load_dwordx4 %s, v%d, s[16:19], s3 offen offset:%d" % (R(XR + 4 * h), VX, 64 * h), ("vm", "xr")) for h in range(H)]
    gate = {4: (2, 0, C.fo if r is RF else C.foa), 8: (1, 16, C.fb), 13: (3, 0, C.fc if r is RF else C.fca)}
    QO = (1, 2, 3, 0)
    def qloads(n):
        out = []
        for i in range(13, 17):
            l = act_loads(r, i); out += [l[0], (l[1 + QO[n]][0], ("vm", ("a", 13 + n)))]
        return out
    work = sorted([(min(w[0], 12.9), w[1]) for w in pend] + [(i, act_loads(r, i)) for i in range(4, 13)] + [(13 + n, qloads(n)) for n in range(4)], key=lambda w: w[0])
    nld = lambda it: sum(1 for x in it if x[0].startswith("buffer"))
    rate = sum(nld(w[1]) for w in work) / float(C.span if r is RF else C.spanA); credit = 0.0
    def blocked(w, i):
        tag = w[1][-1][1][1]
        if tag[0] == "a":
            rel = r.AREL[tag[1] if tag[1] < 13 else 16]
            if rel == "e": rel = 99 if epi else -1
            return rel >= i or any(tag[1] >= f and i < at for f, (ph, off, at) in gate.items())
        return tag[0] == "w2" and r.WREL[tag[1]] >= i
    dw = lambda q_, t_: ("ds_write_b128 v%d, %s offset:%d" % (WA[q_], R(r.acc(q_, t_)), ((q_ - 1) * NT + t_) * 1024), None)
    for i in range(17):
        sc.flush(sc.lq); epi = bool(sc.fq)
        wait(a, vm=vm.need(*([("a", i)] + ([("w2", i)] if i < 13 else [("w2", k) for k in range(13, 17)])))); tr.mark()
        if i == C.st4: stamp(a, 4)
        for f, (ph, off, at) in gate.items():
            if i == at: sc.lq += sflag_check("P2%s_f%d" % (r.n, f), FL, ph, off)
        for f, (ph, off, at) in gate.items():
            if i == max(0, at - (C.fdf if r is RF else C.fd)) and (f > 4 or r is RA): sc.lq += [(sflag_load(off), None)]
        credit = min(credit + rate, rate + 2)
        if r is RA and i <= C.foa and C.boost: credit = C.boost
        for w in list(work):
            if credit < 1.5 and w[0] > i + C.la - 1: break
            if blocked(w, i): continue
            work.remove(w); sc.lq += w[1]; credit -= nld(w[1])
        if i == (C.xsf if r is RF else C.xsa): sc.lq += xl
        order = [(t, (q if not (C.snk and t & 1) else 3 - q), i) for t in range(NT) for q in range(4)] if i < 13 else [(t, QO[i - 13], k) for k in range(13, 17) for t in range(NT)]
        if i == 12:
            sc.fq += [(x, None) for x in ["s_mov_b32 s20, s98", "s_and_b32 s21, s99, 0xffff", "s_mov_b32 s22, 0x%x" % XBYTES, "s_mov_b32 s23, 0x00020000"]]
            for q in range(1, 4): sc.fq += [(x, None) for x in ["s_add_u32 s14, s32, %d" % q, "s_and_b32 s14, s14, 3", "s_mul_i32 s14, s14, %d" % RB, "v_add_u32 v%d, s14, v%d" % (WA[q], VL)]]
        if i == C.bs: sc.fq += [("s_barrier", None)]
        if i == C.lrs: sc.fq += list(lrd[:10])
        if i == C.lrs + 1: sc.fq += list(lrd[10:])
        if i == 10 and lrd: a("s_waitcnt lgkmcnt(0)")
        if i == 15:
            assert not work and not sc.lq and not sc.timed
            sc.fq += [("s_mul_i32 s14, s32, %d" % RB, None), ("v_add_u32 v9, s14, v%d" % VL, None)]
        if i == 16:
            sc.fq += [("WAITVM", "xr")]
            for d in range(2 * NT): sc.fq += [("v_and_b32 v%d, 0xffff0000, v%d" % (r.XF + 2 * d + 1, XR + d), None), ("v_lshlrev_b32 v%d, 16, v%d" % (r.XF + 2 * d, XR + d), None)]
        wq = [dw(QO[i - 14], t) for t in range(NT)] if i >= 14 else []
        for k, (t, q, j) in enumerate(order):
            c = r.acc(q, t)
            a("v_mfma_f32_16x16x32_bf16 %s, %s, %s, %s" % (R(c), R(r.W[j] + 4 * t), R(r.A[j] + 4 * q), "0" if i == 0 else R(c)))
            if wq and k >= 4 and k % 3 == 1: sc.gap([wq.pop(0)], 0)
            else: sc.gap([], (C.esl if epi else 2) - (0 if k < 4 * NT - 1 else 1))
        assert not wq
        if not epi: sc.flush(sc.fq)
    tr.mark()
    a("s_waitcnt lgkmcnt(0)"); tr.mark(); a("s_barrier"); tr.sync(); tr.mark()
    lg = Q(15)
    for t in range(NT):
        for s in range(3): a("ds_read_b128 %s, v%d offset:%d" % (R(r.STG + (t * 3 + s) * 4), VR_, (s * NT + t) * 1024)); lg.issue(t)
    for d in range(2 * NT): a("v_pk_add_f32 %s, %s, %s" % (R(r.acc(0, 0) + 2 * d, 2), R(r.acc(0, 0) + 2 * d, 2), R(r.XF + 2 * d, 2)))
    for t in range(NT):
        wait(a, lg=lg.need(t)); c = r.acc(0, t)
        for s in range(3):
            for k in (0, 2): a("v_pk_add_f32 %s, %s, %s" % (R(c + k, 2), R(c + k, 2), R(r.STG + (t * 3 + s) * 4 + k, 2)))
        a("v_cvt_pk_bf16_f32 v%d, v%d, v%d" % (r.XF + 2 * t, c, c + 1)); a("v_cvt_pk_bf16_f32 v%d, v%d, v%d" % (r.XF + 2 * t + 1, c + 2, c + 3))
        if t & 1: a("buffer_store_dwordx4 %s, v%d, s[20:23], s3 offen offset:%d" % (R(r.XF + 2 * t - 2), VX, 32 * (t - 1)))
    tr.mark()
    if C.st or C.tr: a("s_waitcnt vmcnt(0)")
    stamp(a, 5); tr.sync(); tr.mark(); tr.flush(23, 1 << 20)
    if r is RF: a("s_branch K_fin" if C.st else "s_endpgm")

def gen_all():
    a = Asm(); vm = Q(63)
    role_tables(); prologue(a, vm); vm2 = copy.deepcopy(vm)
    ffn(a, vm); att(a, vm2); a("K_fin:")
    stamp_flush(a, 6)
    a("K_end:"); a("s_endpgm"); emit_spins(a)
    a("ATT_bcast:"); a("v_lshrrev_b32 v212, 2, v2"); a("v_lshlrev_b32 v212, 14, v212"); a("v_and_b32 v213, 3, v2"); a("v_lshl_add_u32 v212, v213, 7, v212"); a("v_mov_b32 v213, s1")
    a("s_mov_b32 s100, %d" % (SYNC_OFF + 1024 + 64)); a("buffer_store_dword v213, v212, s[28:31], s100 offen sc1"); a("buffer_store_dword v213, v212, s[28:31], s100 offen offset:32 sc1"); a("s_branch ATT_bcast_ok"); a("K_last:"); a("s_endpgm")
    return a.text()
if __name__ == "__main__":
    for kv in sys.argv[2:]:
        k, v = kv.split("="); assert hasattr(C, k), k; setattr(C, k, int(v))
    kn = NAME + "_kernel"
    txt = HEADER + "; @launch grid=(256,1,1) block=(256,1,1) lds=162816\n" + '.amdgcn_target "amdgcn-amd-amdhsa--gfx950"\n.text\n' + kernel_head(kn) + gen_all()
    tail = '.section .rodata,"a"\n' + kernel_desc(kn, 512, 102, 256)
    if C.stub:
        import subprocess
        NS = 8
        def calls(role, labs):
            o = ["s_getpc_b64 s[68:69]", "SC_%s:" % role]
            for h in range(2):
                o += ["s_mov_b32 s100, %s-SC_%s" % (labs[4 * h], role)]
                for w in range(1, 4): o += ["s_cmp_eq_u32 s32, %d" % w, "s_cselect_b32 s100, %s-SC_%s, s100" % (labs[4 * h + w], role)]
                o += ["s_add_u32 s100, s68, s100", "s_addc_u32 s101, s69, 0", "s_swappc_b64 s[70:71], s[100:101]"]
            return "\n".join(("" if x.endswith(":") else "    ") + x for x in o)
        def build(ins):
            L = txt.split("\n"); out = []; labs = {"ffn": [], "att": []}; role = "ffn"
            for i, l in enumerate(L):
                if l == "K_att:": role = "att"
                if i in ins:
                    n = "STUB%d" % i; labs[role].append(n); out += ["    s_branch %s_x" % n, n + ":", "    s_setpc_b64 s[70:71]", n + "_x:"]
                out.append(l)
            t = "\n".join(out)
            for r_ in labs:
                lb = (labs[r_] + ["K_ret"] * NS)[:NS]; t = t.replace("    STUBCALLS_" + r_, calls(r_, lb))
            return t.replace("K_last:\n", "K_ret:\n    s_setpc_b64 s[70:71]\nK_last:\n")
        ins = set()
        base = 0x1c00
        while True:
            t = build(ins); L = txt.split("\n")
            marked = "\n".join(("M%d_:\n" % i if l.startswith("    v_mfma") else "") + l for i, l in enumerate(L))
            sv = txt; txt = marked
            idx = {}; k = 0
            for i, l in enumerate(L):
                if l.startswith("    v_mfma"): k += 1
                idx[i] = i + k - (1 if l.startswith("    v_mfma") else 0)
            tm = build({idx[i] for i in ins}); txt = sv
            open("stub.s", "w").write(tm + tail)
            subprocess.run(["clang", "-x", "assembler", "-target", "amdgcn-amd-amdhsa", "-mcpu=gfx950", "-c", "stub.s", "-o", "stub.o"], check=True)
            sy = subprocess.run(["llvm-readelf", "-s", "stub.o"], capture_output=True, text=True).stdout
            ad = sorted((int(x.split()[1], 16) + base - C.sto, int(x.split()[-1][1:-1])) for x in sy.split("\n") if re.search(r" M\d+_$", x))
            done = {a_ >> 12 for a_, i in ad if i in ins}; new = None
            for (a0, i0_), (a1, i1_) in zip(ad, ad[1:]):
                if a1 >> 12 != a0 >> 12 and (a1 >> 12) not in done and i1_ not in ins: new = i1_; break
            if new is None: break
            ins.add(new)
        print("stubs:", len(ins)); txt = build(ins)
    open(sys.argv[1], "w").write(txt + tail)
```

```python
import sys, struct, copy, re, os
from asmlib import *
ACT_OFF = 0; W2P_OFF = 16 << 20; SYNC_OFF = 28 << 20; STAMP_OFF = 128 << 20
WS_BYTES = 256 << 20; XBYTES = 2621440; OOB = 0x7ff00000
class Cfg:
    st = 0; tr = 0; pref = 3; slp = 2; sp = 3; spa = 4; w2n = 16; aw2 = 8; st4 = 8; sd = 40; e1 = 0; e2 = 88; pfc = 20; apc = 13
    sp2 = 2; eps = 8; sg1 = 200; map2 = 0; fk = 230; ldw = 0; nx0 = 2; na0 = 3; pk0 = 3; sl0 = 6; sla = 13; rdf = 1; rda = 0; wpf = 99; pkl = 0; ae0 = 24; ae00 = 26; off = 0; wpn = 1; hack = 0; b1 = 60; b2 = 90; csm = 1; es = 0; tlb = 0; mixcb = 1; sp3 = 2; span = 13; bs = 13; ffp = 3; pke = 0; rf = 2; xb = 6; stsp = 1; sfl = 1; glc = 1; lrs = 7; pk = 1; skipm = 1; nep = 16; epn = 276; qp = 8; sqp = 4; arp = 1; sd2 = 20; pv = 0; sda = 2; aord = 0; hs = 2; jb = 0; foa = 2; boost = 0; qm = 1; pnt = 1; p1 = 1; rz = 65536; snk = 1; xt = 0; xta = 0; lst = 0; stub = 0; sto = 0; q19 = 1; t3u = 1; pvq = 1; fdf = 2; xsf = 10; xsa = 12; fca = 10; ea1 = 1; sfe = 30; pke2 = 1; ssp = 1; lp = 0; psg = 6; ea3 = 0; stg = 0; bfi = 1; so = 0x4400; tabF = 0x87653210; m0f = 255; m1f = 0x88; tabA = 0x87653210; ao = 2; ab = 6; ac = 10; pkq = 1; ea0 = 1; npl = 5; eqn = 2; pfold = 0; esl = 4; spanA = 13; la = 4; fo = 0; fb = 5; sgs = 2; fc = 10; fd = 2
C = Cfg()
GA = -2.0 * 0.7978845608028654 * 1.4426950408889634; GB = GA * 0.044715
def f2h(x): return "0x%08x" % struct.unpack("<I", struct.pack("<f", x))[0]
_ref = "cdna_kernels/%s.s.ref" % NAME
HEADER = open(_ref).read().split("; Override")[0] if os.path.exists(_ref) else ""

class Q:
    def __init__(s, cap): s.q = []; s.cap = cap; s.seen = set()
    def issue(s, tag): s.q.append(tag); s.seen.add(tag)
    def need(s, *tags, opt=()):
        for t in tags: assert t in s.seen, ("waiting for something never issued", t)
        tags = tuple(tags) + tuple(opt); idx = -1
        for i, t in enumerate(s.q):
            if t in tags: idx = i
        if idx < 0: return None
        n = min(len(s.q) - 1 - idx, s.cap); s.q = s.q[len(s.q) - n:] if n else []
        return n
    def clear(s): s.q = []
def wait(a, vm=None, lg=None):
    p = []
    if vm is not None: p.append("vmcnt(%d)" % vm)
    if lg is not None: p.append("lgkmcnt(%d)" % lg)
    if p: a("s_waitcnt " + " ".join(p))
def R(n, k=4): return ("a[%d:%d]" % (n - 256, n - 256 + k - 1)) if n >= 256 else ("v[%d:%d]" % (n, n + k - 1))
def cost(ins):
    n = 0
    for l in ins.split("\n"):
        if l.endswith(":") or not l: continue
        n += 1
        if l.startswith("v_exp") or l.startswith("v_rcp"): n += 1
        if l.startswith("ds_write_b128") or l.startswith("buffer_store_dwordx4"): n += 3
        if l.startswith("ds_write_b64"): n += 2
        if l.startswith("buffer_load") or l.startswith("buffer_atomic") or l.startswith("buffer_store_dword "): n += 1
    return n
def ismem(ins): return ins.startswith("ds_") or ins.startswith("buffer_")
def deps(ins):
    if "\n" in ins or not ins.startswith("v_") or "vcc" in ins or " s" in ins: return None
    regs = re.findall(r"[va]\d+", ins.split(" ", 1)[1])
    return {regs[0]}, set(regs[1:])

class Sched:
    def __init__(s, a, vm, lg, sp): s.a = a; s.vm = vm; s.lg = lg; s.fq = []; s.dq = []; s.lq = []; s.since = 99; s.sp = sp; s.n = 0; s.timed = []
    def emit(s, item):
        ins, tag = item[0], item[1]
        if ins == "WAITVM": wait(s.a, vm=s.vm.need(tag)); return
        if ins == "WAITLG": wait(s.a, lg=s.lg.need(tag)); return
        if ins == "LATER": s.timed.append((s.n + tag[0], tag[1])); return
        s.a(ins)
        if tag:
            for _ in range(item[2] if len(item) > 2 else 1): (s.vm if tag[0] == "vm" else s.lg).issue(tag[1])
    def gap(s, must=(), slots=2):
        first = True; s.n += 1; s.since += 1
        while s.timed and s.timed[0][0] <= s.n: s.lq = s.timed.pop(0)[1] + s.lq if not s.lq_open() else s.lq + s.timed.pop(0)[1]
        for it in must: s.emit(it); slots -= cost(it[0]); first = False
        while slots > 0:
            q = s.dq if s.dq else s.lq
            if not q: break
            isb = "buffer_" in q[0][0]; m = ismem(q[0][0])
            if not ((first or (not m and cost(q[0][0]) <= slots)) and (not isb or s.since > s.sp)): break
            it = q.pop(0); s.emit(it); slots -= cost(it[0]); first = False
            if isb: s.since = 0
        lastw = None
        while s.fq and slots > 0:
            pick = None; W = set(); Rr = set()
            for idx, it in enumerate(s.fq[:14]):
                n = cost(it[0]); d = deps(it[0])
                if d is None:
                    if idx == 0 and not (ismem(it[0]) and not first) and (n <= slots or (first and n > 2) or it[0] == "LATER"): pick = 0
                    break
                w, r = d
                if n <= slots and not (r & W) and not (w & W) and not (w & Rr) and not (lastw is not None and lastw in r): pick = idx; break
                W |= w; Rr |= r
            if pick is None: break
            it = s.fq.pop(pick); s.emit(it)
            if it[0] == "LATER": continue
            slots -= cost(it[0]); first = False
            lastw = next(iter(deps(it[0])[0])) if (cost(it[0]) == 2 and deps(it[0])) else None
    m0lock = False
    def lq_open(s): return False
    def fc(s): return sum(cost(it[0]) for it in s.fq if it[0] != "LATER")
    def flush(s, q):
        while q: s.emit(q.pop(0))

def stamp(a, idx):
    if C.st: a("%s s[%d:%d]" % ("s_memtime" if C.st == 2 else "s_memrealtime", 80 + 2 * idx, 81 + 2 * idx))
def stamp_flush(a, n):
    if not C.st: return
    a("s_waitcnt lgkmcnt(0)"); a("s_cmp_lg_u32 s32, 0"); a("s_cbranch_scc1 L_stf"); a("s_mov_b64 exec, 1")
    a("s_mul_i32 s70, s2, %d" % (n * 8)); a("s_add_u32 s70, s70, %d" % STAMP_OFF)
    for j in range(n):
        a("v_mov_b32 v2, s%d" % (80 + 2 * j)); a("v_mov_b32 v3, s%d" % (81 + 2 * j)); a("buffer_store_dwordx2 v[2:3], off, s[28:31], s70 offset:%d" % (8 * j)); a("s_nop 1")
    a("L_stf:")
class Trace:
    def __init__(s, a, v, n=0): s.a = a; s.v = v; s.n = n; s.n0 = n
    def mark(s):
        if not C.tr: return
        if s.n > s.n0: s.a("v_writelane_b32 v%d, s%d, %d" % (s.v, 88 + 2 * ((s.n - 1) & 1), s.n - 1))
        s.a("%s s[%d:%d]" % ("s_memtime" if C.tr == 2 else "s_memrealtime", 88 + 2 * (s.n & 1), 89 + 2 * (s.n & 1))); s.n += 1
    def sync(s):
        if C.tr: s.a("s_waitcnt lgkmcnt(0)"); s.a("v_writelane_b32 v%d, s%d, %d" % (s.v, 88 + 2 * ((s.n - 1) & 1), s.n - 1))
    def flush(s, vt, off=0):
        if not C.tr: return
        s.sync(); s.a("s_lshl_b32 s88, s2, 10"); s.a("s_add_u32 s88, s88, %d" % (STAMP_OFF + off)); s.a("s_lshl_b32 s89, s32, 8"); s.a("s_add_u32 s88, s88, s89"); s.a("v_lshrrev_b32 v%d, 2, v%d" % (vt, s.lv))
        s.a("buffer_store_dword v%d, v%d, s[28:31], s88 offen" % (s.v, vt))

def bfr(a, v): a("v_cvt_pk_bf16_f32 v%d, v%d, v%d" % (v, v, v)); a("v_lshlrev_b32 v%d, 16, v%d" % (v, v))

SPINS = []
def flag_load(vd, soff, srd, off=None):
    if off is None: return "buffer_load_dword v%d, off, s[%d:%d], %s offset:64 sc1" % (vd, srd, srd + 3, soff)
    return "buffer_load_dwordx4 v[%d:%d], off, s[%d:%d], %s offset:%d sc1" % (vd, vd + 3, srd, srd + 3, soff, off)
def flag_read(vd, off, ph):
    o = ["s_add_u32 s100, s1, %d" % ph]
    if off is None: o += ["v_subrev_u32 v%d, s100, v%d" % (vd, vd)]
    else: o += ["v_subrev_u32 v%d, s100, v%d" % (vd + k, vd + k) for k in range(4)] + ["v_max3_u32 v%d, v%d, v%d, v%d" % (vd, vd, vd + 1, vd + 2), "v_max_u32 v%d, v%d, v%d" % (vd, vd, vd + 3)]
    return o + ["v_cmp_lt_u32 vcc, %d, v%d" % (3 - ph, vd)]
def flag_check(name, vd, soff, srd, ph, off=None):
    if (name, vd, soff, srd, ph, off) not in SPINS: SPINS.append((name, vd, soff, srd, ph, off))
    r = flag_read(vd, off, ph)
    return [(x, None) for x in r[:-1]] + [(r[-1] + "\ns_cmp_lg_u64 vcc, 0\ns_cbranch_scc1 %s_spin\n%s_ok:" % (name, name), None)]
SSPINS = []
def sflag_load(off=None):
    g = " glc" if C.glc else ""
    return ("s_buffer_load_dword s56, s[28:31], s35 offset:64" + g) if off is None else ("s_buffer_load_dwordx4 s[56:59], s[28:31], s35 offset:%d" % off + g)
def sflag_check(name, vd, ph, off=None, restore=()):
    if not C.ssp: TSPINS.append((name, [flag_load(vd, "s35", 28, off)], flag_read(vd, off, ph) + list(restore)))
    o = ["s_waitcnt lgkmcnt(0)", "s_add_u32 s100, s1, %d" % ph] + ["s_sub_u32 s%d, s%d, s100" % (56 + k, 56 + k) for k in range(1 if off is None else 4)]
    if off is not None: o += ["s_max_u32 s56, s56, s57", "s_max_u32 s58, s58, s59", "s_max_u32 s56, s56, s58"]
    if C.ssp: SSPINS.append((name, sflag_load(off), o, 3 - ph, [flag_load(vd, "s35", 28, off)], flag_read(vd, off, ph) + list(restore)))
    return [(x, None) for x in o] + [("s_cmp_gt_u32 s56, %d\ns_cbranch_scc1 %s_spin\n%s_ok:" % (3 - ph, name, name), None)]
def spin(a, name, loads, red):
    a("%s_spin:" % name); a("s_mov_b32 s101, 0"); a("%s_lp:" % name); a("s_sleep %d" % C.slp)
    for l in loads: a(l)
    a("s_add_u32 s101, s101, 1"); a("s_waitcnt vmcnt(0)")
    for l in red: a(l)
    a("s_nop 1"); a("s_cmp_eq_u64 vcc, 0"); a("s_cbranch_scc1 %s_ok" % name)
    a("s_cmp_lt_u32 s101, 0x8000"); a("s_cbranch_scc1 %s_lp" % name); a("s_branch %s_ok" % name)
def emit_spins(a):
    for name, vd, soff, srd, ph, off in SPINS: spin(a, name, [flag_load(vd, soff, srd, off)], flag_read(vd, off, ph))
    for name, loads, red in TSPINS: spin(a, name, loads, red)
    for name, ld, o, lim, loads, red in SSPINS:
        a("%s_spin:" % name); a("s_mov_b32 s101, 0"); a("%s_sl:" % name); a("s_sleep 1"); a(ld); a("s_add_u32 s101, s101, 1")
        for l in o: a(l)
        a("s_cmp_le_u32 s56, %d" % lim); a("s_cbranch_scc1 %s_ok" % name); a("s_cmp_lt_u32 s101, 24"); a("s_cbranch_scc1 %s_sl" % name)
        spin(a, name + "v", loads, red); a("%sv_ok:" % name); a("s_branch %s_ok" % name)
def wave_signal(VN, val):
    return "s_mov_b64 exec, %d\nbuffer_store_dword v%d, off, s[28:31], s34 sc1\ns_mov_b64 exec, -1" % (1 << val, VN)
TSPINS = []
def tag_check(name, loads, regs, tmp):
    red = ["v_xor_b32 v%d, s1, v%d" % (tmp, regs[0])] + ["v_bitop3_b32 v%d, v%d, s1, v%d bitop3:0xbe" % (tmp, r, tmp) for r in regs[1:]] + ["v_cmp_ne_u32 vcc, 0, v%d" % tmp]
    TSPINS.append((name, loads, red))
    return [(x, None) for x in red[:-1]] + [(red[-1] + "\ns_cmp_lg_u64 vcc, 0\ns_cbranch_scc1 %s_spin\n%s_ok:" % (name, name), None)]

WB = [92, 93]; AB = [77, 78]; KSB = 40960
class Role: pass
RF = Role(); RF.n = "ffn"; RF.NT = 4
RF.W = [256 + 16 * i for i in range(16)] + [168]; RF.WREL = [-1] * 17
RF.A = [184, 200, 216, 24, 240, 184, 256, 200, 272, 216, 288, 24, 304, 40, 56, 72, 88]; RF.AREL = [-1, -1, -1, -1, -1, 0, 0, 1, 1, 2, 2, 3, 3, "e", "e", "e", "e"]
RF.acc = lambda q, t: 104 + 4 * (q * 4 + t); RF.XF = 200; RF.STG = 40
RA = Role(); RA.n = "att"; RA.NT = 6
RA.W = [256 + 24 * i for i in range(10)] + [120, 144, 168] + [256 + 24 * i for i in range(4)]; RA.WREL = [-1] * 13 + [0, 1, 2, 3]
RA.A = [496, 192, 208, 224, 240, 496, 192, 208, 224, 240, 352, 496, 376, 192, 400, 208, 424]; RA.AREL = [-1, -1, -1, -1, -1, 0, 1, 2, 3, 4, 4, 5, 5, 6, 6, 7, 7]
RA.acc = lambda q, t: 24 + 4 * (q * 6 + t); RA.XF = 120; RA.STG = 144
def role_tables():
    if C.ea3:
        RA.A = [120, 136, 152, 496, 192, 208, 224, 240, 496, 192, 352, 208, 376, 224, 400, 240, 424]; RA.AREL = [-1] * 8 + [3, 4, 4, 5, 5, 6, 6, 7, 7]
        RA.WREL = [-1] * 10 + [1, 2, -1, 0, 1, 2, 3]
def p2_bases(a, dst, unit):
    a("s_mul_i32 s68, s32, %d" % (5 * unit)); a("s_add_u32 s%d, s69, s68" % dst[1])
    a("s_mul_i32 s68, s32, %d" % (12 * unit)); a("s_add_u32 s%d, s69, s68" % dst[0])
def step_off(i, dst, unit, r):
    if r is RA and C.aord: i = ([0, 1, 2, 3, 8, 9, 10, 11, 12, 4, 5, 6, 7] + [13, 14, 15, 16])[i]
    if 8 <= i < 13: return dst[1], (i - 8) * unit
    p, k = (0, i) if i < 4 else ((1, i - 4) if i < 8 else (2, i - 13))
    return dst[0], (20 + 2 * p + 6 * (k >> 1) + (k & 1)) * unit
def w2_parts(r, i, VL=7):
    b, c = step_off(i, WB, KSB, r); h = r.NT if r.NT <= 4 else r.NT // 2; out = []
    for t0 in range(0, r.NT, h):
        out.append([("s_add_u32 s13, s%d, %d" % (b, c + 1024 * t0), None)] + [("buffer_load_dwordx4 %s, v%d, s[28:31], s13 offen offset:%d sc1" % (R(r.W[i] + 4 * (t0 + t)), VL, 1024 * t), ("vm", ("w2", i))) for t in range(h)])
    return out
def w2_loads(r, i, VL): return [x for p in w2_parts(r, i, VL) for x in p]
def w2_lds(i, k, VL, i0):
    b, c = step_off(i, WB, KSB, RA); o = (i - i0) * 6144 + 3072 * k
    return [("s_add_u32 m0, s12, %d" % o, None), ("s_add_u32 s69, s%d, %d" % (b, c + 3072 * k), None)] + [("buffer_load_dwordx4 v%d, s[28:31], s69 offen offset:%d sc1 lds" % (VL, 1024 * t), ("vm", "wl")) for t in range(3)]
def act_voffs(VL): return [("s_add_u32 s14, s32, %d\ns_and_b32 s14, s14, 3" % i, None) if k == 0 else ("s_lshl_b32 s14, s14, 10\nv_add_u32 v%d, s14, v%d" % (3 + i, VL), None) for i in range(4) for k in range(2)]
def act_loads(r, i):
    b, c = step_off(i, AB, 4096, r)
    return [("s_add_u32 s13, s%d, %d" % (b, c), None)] + [("buffer_load_dwordx4 %s, v%d, s[28:31], s13 offen sc1" % (R(r.A[i] + 4 * q), 3 + q), ("vm", ("a", i))) for q in range(4)]

SR = 112

def prologue(a, vm):
    a("s_cmp_ge_u32 s2, 256"); a("s_cbranch_scc1 K_end")
    stamp(a, 0)
    a("s_memrealtime s[94:95]")
    a("s_load_dwordx4 s[4:7], s[0:1], 0"); a("s_load_dwordx4 s[8:11], s[0:1], 32"); a("s_load_dwordx2 s[12:13], s[0:1], 72"); a("s_load_dwordx2 s[24:25], s[0:1], 64")
    a("s_load_dwordx2 s[14:15], s[0:1], 16"); a("s_load_dwordx4 s[96:99], s[0:1], 48")
    a("v_lshrrev_b32 v1, 6, v0"); a("v_and_b32 v2, 63, v0"); a("v_readfirstlane_b32 s32, v1")
    if C.pref >= 2:
        a("s_getpc_b64 s[68:69]"); a("K_pf:"); a("s_cmp_ge_u32 s2, 128"); a("s_cselect_b32 s70, K_att-K_pf, 0")
        if C.pref == 2: a("v_lshl_add_u32 v16, v0, 7, s70")
        else: a("s_bfe_u32 s71, s2, 0x20003"); a("s_lshl_b32 s71, s71, 4"); a("v_lshrrev_b32 v16, 2, v2"); a("v_add_u32 v16, s71, v16"); a("v_lshl_add_u32 v16, v1, 6, v16"); a("v_lshl_add_u32 v16, v16, 7, s70")
        a("v_min_u32 v16, K_last-K_pf, v16"); a("v_mov_b32 v17, s69")
        a("v_add_co_u32 v16, vcc, s68, v16"); a("s_nop 1"); a("v_addc_co_u32 v17, vcc, 0, v17, vcc"); a("global_load_dword a199, v[16:17], off"); vm.issue("pf0")
    a("s_and_b32 s33, s2, 7"); a("s_lshr_b32 s34, s2, 3"); a("s_and_b32 s35, s34, 7"); a("s_lshr_b32 s34, s34, 3")
    a("s_and_b32 s36, s33, 1"); a("s_lshl_b32 s36, s36, 3"); a("s_add_u32 s36, s36, s35")
    a("s_lshr_b32 s76, s33, 1"); a("s_lshl_b32 s76, s76, 2"); a("s_add_u32 s76, s76, s34")
    a("s_and_b32 s37, s33, 6"); a("s_and_b32 s68, s34, 1"); a("s_add_u32 s37, s37, s68")
    a("s_lshl_b32 s38, s34, 2"); a("s_lshr_b32 s38, %d, s38" % C.so); a("s_and_b32 s38, s38, 15"); a("s_lshl_b32 s68, s35, 2"); a("s_cmp_ge_u32 s34, 2"); a("s_mov_b32 s69, %d" % C.tabF); a("s_cselect_b32 s69, %d, s69" % C.tabA); a("s_lshr_b32 s69, s69, s68"); a("s_and_b32 s69, s69, 15"); a("s_add_u32 s38, s38, s69")
    if C.hs: a("s_and_b32 s69, s33, 1"); a("s_mul_i32 s69, s69, %d" % C.hs); a("s_add_u32 s38, s38, s69")
    a("s_sub_u32 s68, s38, 10"); a("s_cmp_ge_u32 s38, 10"); a("s_cselect_b32 s38, s68, s38")
    a("s_cmp_ge_u32 s34, 2"); a("s_movk_i32 s68, 0x780"); a("s_cselect_b32 s69, s68, 0x600")
    for j in range(10):
        a("s_lshl_b32 s%d, s38, 7" % (50 + j)); a("s_mul_i32 s%d, s%d, s69" % (40 + j, 50 + j))
        if j < 9: a("s_add_u32 s38, s38, 1"); a("s_cmp_eq_u32 s38, 10"); a("s_cselect_b32 s38, 0, s38")
    a("s_lshl_b32 s68, s36, 4"); a("s_add_u32 s68, s68, s76"); a("s_mul_i32 s39, s68, 10240")
    a("v_lshrrev_b32 v3, 5, v0"); a("v_mul_u32_u24 v4, 1280, v3"); a("v_and_b32 v5, 31, v2"); a("v_lshl_add_u32 v4, v5, 4, v4")
    a("v_lshlrev_b32 v5, 26, v5"); a("v_and_b32 v5, 0x40000000, v5"); a("v_or_b32 v5, v5, v4")
    a("s_mov_b32 s18, 0x%x" % XBYTES); a("s_mov_b32 s19, 0x00020000"); a("s_mov_b32 s30, 0x%x" % WS_BYTES); a("s_mov_b32 s31, 0x00020000"); a("s_movk_i32 s26, 256"); a("s_mov_b32 s27, 0x00020000")
    a("s_or_b32 s70, s2, s32")
    a("v_lshlrev_b32 v14, 4, v2")
    a("s_waitcnt lgkmcnt(0)")
    a("s_mov_b32 s16, s4"); a("s_and_b32 s17, s5, 0xffff"); a("s_mov_b32 s28, s12"); a("s_and_b32 s29, s13, 0xffff"); a("s_and_b32 s25, s25, 0xffff")
    a("s_cmp_lg_u32 s70, 0"); a("s_cbranch_scc1 K_noinit")
    a("s_lshl_b32 s68, s94, 3"); a("s_or_b32 s68, s68, 4"); a("v_mov_b32 v8, s68"); a("s_mov_b64 exec, 1")
    a("buffer_store_dword v8, off, s[24:27], 0 sc1"); a("s_mov_b64 exec, -1")
    a("K_noinit:")
    if C.lst: a("v_mov_b32 v250, v4"); a("v_mov_b32 v251, v5")
    else: stat_loads(a, vm, SR, 4)
    if C.lp:
        a("s_mov_b32 s20, s6"); a("s_and_b32 s21, s7, 0xffff"); a("s_mov_b32 s22, 2457600"); a("s_mov_b32 s23, 0x00020000")
        a("s_lshl_b32 s68, s2, 2"); a("s_add_u32 s68, s68, s32"); a("s_mul_i32 s69, s68, 2432"); a("v_lshlrev_b32 v8, 7, v2"); a("s_mov_b64 exec, 0x7ffff")
        a("buffer_load_dword a197, v8, s[20:23], s69 offen"); vm.issue("lp")
        if C.lp == 2:
            a("s_mul_i32 s69, s68, 1920"); a("v_mul_u32_u24 v8, 384, v2"); a("s_mov_b64 exec, 31"); a("s_mov_b32 s22, 1966080")
            for p_ in (8, 10): a("s_mov_b32 s20, s%d" % p_); a("s_and_b32 s21, s%d, 0xffff" % (p_ + 1)); a("buffer_load_dword a197, v8, s[20:23], s69 offen"); vm.issue("lp")
        a("s_mov_b64 exec, -1")
    if C.tlb:
        for o in [0, 2, 4, 6, 8, 16, 18, 28]: a("s_mov_b32 s68, %d" % (o << 20)); a("s_buffer_load_dword s100, s[28:31], s68")
        for p, n in ((98, XBYTES), (14, 819200), (96, 1966080)):
            a("s_load_dword s100, s[%d:%d], 0" % (p, p + 1)); a("s_mov_b32 s68, %d" % (n - 4)); a("s_load_dword s100, s[%d:%d], s68" % (p, p + 1))
        if C.tlb == 2:
            a("v_lshlrev_b32 v8, 20, v2"); a("v_cmp_gt_u32 vcc, 30, v2"); a("s_and_saveexec_b64 s[68:69], vcc"); a("buffer_load_dword a198, v8, s[28:31], 0 offen"); a("s_mov_b64 exec, -1"); vm.issue("t")
    a("s_cmp_ge_u32 s34, 2"); a("s_cbranch_scc1 K_att")

def stat_loads(a, vm, dst, v):
    for i in range(3): a("buffer_load_dwordx4 %s, v%d, s[16:19], s39 offen offset:%d" % (R(dst + 4 * i), v if i < 2 else v + 1, 512 * i)); vm.issue("x")
def raise_ready(a, vm, role):
    if C.lst: stat_loads(a, vm, SR if role == "ffn" else 236, 250)
    if C.pref == 1:
        a("s_getpc_b64 s[68:69]"); a("K_pf_%s:" % role)
        a("v_lshlrev_b32 v16, 7, v0"); a("v_min_u32 v16, K_last-K_pf_%s, v16" % role); a("v_mov_b32 v17, s69")
        a("v_add_co_u32 v16, vcc, s68, v16"); a("s_nop 1"); a("v_addc_co_u32 v17, vcc, 0, v17, vcc"); a("global_load_dword a199, v[16:17], off"); vm.issue("pf0")

def common_setup(a, role):
    a("s_lshr_b32 s0, s76, 3"); a("s_mul_i32 s0, s0, 20"); a("s_lshl_b32 s68, s34, 3"); a("s_lshr_b32 s68, 0x0e080400, s68"); a("s_and_b32 s68, s68, 255"); a("s_add_u32 s0, s0, s68")
    a("s_lshl_b32 s70, s36, 1"); a("s_bfe_u32 s71, s76, 0x10002"); a("s_add_u32 s70, s70, s71")
    a("s_lshl_b32 s69, s0, 10"); a("s_add_u32 s69, s69, %d" % W2P_OFF); p2_bases(a, WB, KSB)
    a("s_mul_i32 s69, s70, %d" % (68 * 4096)); p2_bases(a, AB, 4096)
    a("s_mul_i32 s3, s70, %d" % (64 * 1280)); a("s_lshl_b32 s69, s0, 5"); a("s_add_u32 s3, s3, s69"); a("s_mul_i32 s69, s32, %d" % (16 * 1280)); a("s_add_u32 s3, s3, s69")
    a("s_lshr_b32 s35, s70, 1"); a("s_lshl_b32 s35, s35, 14"); a("s_and_b32 s71, s70, 1"); a("s_lshl_b32 s71, s71, 5"); a("s_add_u32 s35, s35, s71")
    a("s_lshl_b32 s71, s32, 7"); a("s_add_u32 s71, s71, %d" % (SYNC_OFF + 1024)); a("s_add_u32 s35, s35, s71")
    a("s_lshl_b32 s79, s36, 14"); a("s_add_u32 s79, s79, %d" % SYNC_OFF)
    a("s_lshr_b32 s69, s76, 2"); a("s_lshl_b32 s69, s69, 7"); a("s_add_u32 s68, s79, s69"); a("s_lshl_b32 s34, s34, 3"); a("s_add_u32 s34, s34, s68"); a("s_add_u32 s34, s34, 1024")
    hi, lo = ("s_and_b32 s68, s32, 1", "s_lshr_b32 s69, s32, 1") if role == "ffn" else ("s_lshr_b32 s68, s32, 1", "s_and_b32 s69, s32, 1")
    a(hi); a(lo); a("s_lshl_b32 s68, s68, 5"); a("s_lshl_b32 s69, s69, 2"); a("s_add_u32 s34, s34, s68"); a("s_add_u32 s34, s34, s69")

def stats(a, vm, S, VO, VN, role, SR=SR):
    s_, q = S, S + 1
    a("s_mov_b32 s33, 0x3f803f80"); a("v_mov_b32 v%d, 0" % s_)
    a("v_lshrrev_b32 v%d, 5, v0" % VO); a("s_lshl_b32 s68, s76, 3"); a("v_add_lshl_u32 v%d, v%d, s68, 3" % (VO, VO))
    a("v_and_b32 v%d, 31, v2" % q); a("v_cmp_eq_u32 vcc, 31, v%d" % q); a("v_mov_b32 v%d, 0x%x" % (q, OOB)); a("s_nop 0"); a("v_cndmask_b32 v%d, v%d, v%d, vcc" % (VO, q, VO))
    a("v_mov_b32 v%d, 0" % q)
    wait(a, vm=vm.need("x"))
    a("s_buffer_load_dword s1, s[24:27], 0")
    for d in range(12): a("v_dot2c_f32_bf16 v%d, s33, v%d" % (s_, SR + d)); a("v_dot2c_f32_bf16 v%d, v%d, v%d" % (q, SR + d, SR + d))
    a("s_nop 0")
    for m in ["quad_perm:[1,0,3,2] row_mask:0xf", "quad_perm:[2,3,0,1] row_mask:0xf", "row_half_mirror row_mask:0xf", "row_mirror row_mask:0xf", "row_bcast:15 row_mask:0xa"]:
        a("s_nop 1")
        for r in (s_, q): a("v_add_f32_dpp v%d, v%d, v%d %s bank_mask:0xf" % (r, r, r, m))
    a("v_mul_f32 v%d, 0xbacccccd, v%d" % (s_, s_)); a("v_mul_f32 v%d, 0x3acccccd, v%d" % (q, q))
    a("v_fma_f32 v%d, -v%d, v%d, v%d" % (q, s_, s_, q)); a("v_max_f32 v%d, 0, v%d" % (q, q))
    bfr(a, q); a("v_add_f32 v%d, 0x3727c5ac, v%d" % (q, q)); bfr(a, q)
    a("v_sqrt_f32 v%d, v%d" % (q, q)); a("s_waitcnt lgkmcnt(0)"); a("v_cvt_pk_bf16_f32 v%d, v%d, v%d" % (s_, s_, q))
    a("s_cmp_eq_u32 s1, 0"); a("s_cbranch_scc1 NON_%s_spin" % role); a("NON_%s_ok:" % role)
    TSPINS.append(("NON_" + role, ["s_sleep 6", "buffer_load_dword v%d, off, s[24:27], 0 sc1" % q], ["v_readfirstlane_b32 s1, v%d" % q, "v_cmp_eq_u32 vcc, 0, v%d" % q]))
    a("v_mov_b32 v%d, s1" % q); a("v_add_u32 v%d, s1, v2" % VN)
    a("buffer_store_dwordx2 v[%d:%d], v%d, s[28:31], s79 offen sc1" % (S, S + 1, VO)); vm.issue("ss")

def ffn(a, vm):
    SL = 16896
    lg = Q(15); sc = Sched(a, vm, lg, C.sp)
    VWO = [3, 4, 5, 6]; VWR, VWR2, VST = 7, 8, 11; VXO = [104, 105, 106, 107]; VXR = [108, 109]
    WF = 16; ACC = [40, 104]; TE = [14, 15]; NM = [0, 9]; KA, KB = 232, 236; KS = [1, 10, 12, 13]; PL = 240; VN = 2; PFR = 255
    def X(j, kk, tt): return (256 + 32 * j if j < 8 else 168 + 32 * (j - 8)) + (kk * 4 + tt) * 4
    a("s_and_b32 s60, s32, 1"); a("s_lshr_b32 s61, s32, 1")
    a("v_mov_b32 v%d, v14" % VST)
    a("v_lshrrev_b32 v13, 3, v2"); a("v_lshl_add_u32 v13, v1, 5, v13"); a("s_lshl_b32 s71, s36, 7"); a("v_add_u32 v13, s71, v13"); a("v_mul_u32_u24 v13, 1280, v13")
    a("v_and_b32 v14, 7, v2"); a("v_lshrrev_b32 v15, 4, v2"); a("v_xor_b32 v15, v14, v15"); a("v_lshl_add_u32 v%d, v15, 4, v13" % VXO[0])
    a("v_xor_b32 v15, 64, v%d" % VXO[0]); a("v_add_u32 v%d, 9216, v15" % VXO[1]); a("v_add_u32 v%d, 18432, v%d" % (VXO[2], VXO[0])); a("v_add_u32 v%d, 18432, v%d" % (VXO[3], VXO[1]))
    a("s_mul_i32 s66, s32, 4224"); a("s_lshl_b32 s67, s32, 12")
    wpos = {}; xpos = {}; freew = []; WI = []
    def dma(n, pos):
        p, j = n // 10, n % 10; wpos[n] = pos
        return [("s_add_u32 m0, s66, %d" % (pos * SL), None), ("s_add_u32 s68, s%d, %d" % (40 + j, 128 * p), None)] + \
               [("buffer_load_dwordx4 v%d, s[20:23], s68 offen offset:%d lds" % (VWO[i], 1056 * i), ("vm", ("w", n))) for i in range(4)]
    def dmax(j, pos):
        xpos[j] = pos
        return [("s_add_u32 m0, s67, %d" % (pos * SL), None), ("s_nop 0", None)] + \
               [("buffer_load_dwordx4 v%d, s[16:19], s%d offen offset:%d lds" % (VXO[i], 50 + j, 1024 * i), ("vm", ("x", j))) for i in range(4)]
    for it in dmax(0, C.xb): sc.emit(it)
    a("s_cmp_eq_u32 s60, 0"); a("s_cselect_b32 s8, s8, s10"); a("s_cselect_b32 s9, s9, s11")
    a.srd(20, 8, 1966080)
    a("v_lshrrev_b32 v13, 5, v2"); a("v_lshlrev_b32 v13, 4, v13"); a("v_bfe_u32 v15, v2, 4, 1"); a("v_lshl_add_u32 v13, v15, 2, v13")
    a("v_bfe_u32 v15, v2, 3, 1"); a("s_lshl_b32 s71, s61, 5"); a("v_add3_u32 v13, v13, v15, s71"); a("v_mul_u32_u24 v13, 3072, v13")
    a("v_lshlrev_b32 v14, 4, v14"); a("s_mul_i32 s71, s37, 384"); a("v_add3_u32 v%d, v13, v14, s71" % VWO[0])
    for i in range(1, 4): a("v_add_u32 v%d, %d, v%d" % (VWO[i], (8 * (i >> 1) + 2 * (i & 1)) * 3072 - 1056 * i, VWO[0]))
    for it in dma(0, 0): sc.emit(it)
    def xtouch(p, v): return [("v_mul_u32_u24 v%d, 192, v%d" % (v, VST), None), ("s_mov_b64 exec, 0xff\nbuffer_load_dword v%d, v%d, s[20:23], s62 offen offset:%d\ns_mov_b64 exec, -1" % (v, v, 128 * p), ("vm", ("xt", p)))]
    if C.xt:
        a("s_lshl_b32 s62, s34, 2"); a("s_lshr_b32 s62, %d, s62" % C.so); a("s_and_b32 s62, s62, 15"); a("s_lshr_b32 s69, s35, 2"); a("s_mul_i32 s69, s69, 5"); a("s_add_u32 s62, s62, s69"); a("s_add_u32 s62, s62, 4")
        a("s_sub_u32 s69, s62, 10"); a("s_cmp_ge_u32 s62, 10"); a("s_cselect_b32 s62, s69, s62"); a("s_lshl_b32 s62, s62, 3"); a("s_and_b32 s69, s35, 3"); a("s_lshl_b32 s69, s69, 1"); a("s_add_u32 s62, s62, s69")
        a("s_add_u32 s62, s62, s61"); a("s_mul_i32 s62, s62, 24576"); a("s_add_u32 s62, s62, s71"); assert not C.hs
    if C.xt & 1: sc.flush(xtouch(0, 140))
    raise_ready(a, vm, "ffn")
    for n in range(1, C.nx0):
        for it in dmax(n, C.xb + n) + dma(n, n): sc.emit(it)
    a("s_lshl_b32 s63, s36, 1"); a("s_add_u32 s63, s63, s60"); a("s_mul_i32 s63, s63, 68")
    a("s_mul_i32 s71, s37, 6"); a("s_add_u32 s63, s63, s71"); a("s_add_u32 s63, s63, s61"); a("s_add_u32 s63, s63, 20"); a("s_lshl_b32 s63, s63, 12")
    a("s_add_u32 s64, s63, 8192"); a("s_add_u32 s65, s63, 16384")
    a("v_bfe_u32 v13, v2, 3, 2"); a("v_mul_u32_u24 v13, 1056, v13")
    a("v_lshrrev_b32 v14, 5, v2"); a("v_lshlrev_b32 v14, 2, v14"); a("v_bfe_u32 v15, v2, 2, 1"); a("v_add_u32 v14, v14, v15"); a("v_lshl_add_u32 v13, v14, 7, v13")
    a("v_and_b32 v14, 3, v2"); a("v_lshlrev_b32 v14, 3, v14"); a("s_lshl_b32 s71, s61, 6")
    a("v_add3_u32 v%d, v13, v14, s71" % VWR); a("v_add_u32 v%d, %d, v%d" % (VWR2, 4 * SL, VWR))
    a("v_bfe_u32 v13, v2, 1, 3"); a("v_lshrrev_b32 v14, 4, v2"); a("v_xor_b32 v13, v13, v14"); a("v_lshlrev_b32 v13, 4, v13"); a("v_and_b32 v14, 15, v2"); a("v_lshl_add_u32 v13, v14, 7, v13")
    a("s_lshl_b32 s71, s60, 13"); a("s_add_u32 s71, s71, %d" % (5 * SL)); a("v_add_u32 v%d, s71, v13" % VXR[0]); a("v_xor_b32 v%d, 64, v%d" % (VXR[1], VXR[0]))
    a("v_lshlrev_b32 v110, 3, v14")
    a("s_mul_i32 s12, s32, 7168"); a("s_add_u32 s12, s12, %d" % (8 * SL))
    a("s_lshl_b32 s72, s33, 1"); a("s_add_u32 s72, s72, s34"); a("s_lshl_b32 s72, s72, 15"); a("s_lshl_b32 s71, s61, 12"); a("s_add_u32 s72, s72, s71"); a("s_add_u32 s72, s72, %d" % (SYNC_OFF + (1 << 20)))
    a("s_lshl_b32 s73, s60, 11"); a("s_add_u32 s73, s73, s72"); a("s_lshr_b32 s71, s35, 1"); a("s_lshl_b32 s71, s71, 8"); a("s_add_u32 s73, s73, s71"); a("s_and_b32 s71, s35, 1"); a("s_lshl_b32 s71, s71, 10"); a("s_add_u32 s73, s73, s71")
    a("s_bitcmp1_b32 %d, s35" % C.m1f); a("s_cselect_b32 s74, 0x3f803f80, 0")
    a("s_cmp_eq_u32 s60, 0"); a("s_cselect_b32 s6, 0x3f803f80, 0"); a("s_cselect_b32 s7, 0, 0x3f803f80"); a("s_and_b32 s10, s6, s74"); a("s_and_b32 s11, s7, s74")
    if C.m0f != 255: a("s_bitcmp1_b32 %d, s35" % C.m0f); a("s_cselect_b32 s6, s6, 0"); a("s_cselect_b32 s7, s7, 0")
    if C.stub: a("STUBCALLS_ffn")
    common_setup(a, "ffn")
    a("s_lshl_b32 s75, s60, 9"); a("s_add_u32 s75, s75, s79")
    a("s_mov_b32 s4, 0x01000100"); a("s_mov_b32 s5, 0x03020302")
    if not C.lst: stats(a, vm, 124, 126, VN, "ffn")
    stamp(a, 1)
    tr = Trace(a, 2, 8); tr.lv = VST; tr.mark()
    wiss = C.nx0; xiss = C.nx0; w2q = list(range(17)); freew[:] = list(range(C.nx0, C.xb)); freex = list(range(C.xb + C.nx0, 9))
    def wreads(g):
        s_, u = g // 8, g % 8; pos = wpos[s_]; kk, wt = u >> 2, u & 3
        vb = VWR if pos < 4 else VWR2; off = (pos % 4) * SL + (kk * 2 + (wt >> 1)) * 4224 + 32 * (wt & 1); b = WF + (g % 6) * 4
        return [("ds_read_b64_tr_b16 %s, v%d offset:%d" % (R(b + 2 * t, 2), vb, off + 256 * t), ("lg", ("w", g // 2))) for t in range(2)]
    def xreads(j):
        return [("ds_read_b128 %s, v%d offset:%d" % (R(X(j, kk, tt)), VXR[kk], (xpos[j] - 5) * SL + 2048 * tt), ("lg", ("x", j, kk, tt))) for kk in range(2) for tt in range(4)]
    def epilogue(p, t=TE):
        out = []; base = ACC[p % 2]; n = len(t)
        for tt in range(4):
            D = base + (8 + tt) * 4
            for a_ in range(2):
                for h in range(0, 4, n):
                    G = [base + (a_ * 4 + tt) * 4 + h + k for k in range(n)]; U = [base + ((2 + a_) * 4 + tt) * 4 + h + k for k in range(n)]
                    for f in (lambda k: "v_mul_f32 v%d, v%d, v%d" % (t[k], G[k], G[k]), lambda k: "v_fma_f32 v%d, v%d, v%d, v%d" % (t[k], t[k], KB + tt, KA + tt),
                              lambda k: "v_mul_f32 v%d, v%d, v%d" % (t[k], t[k], G[k]), lambda k: "v_exp_f32 v%d, v%d" % (t[k], t[k]),
                              lambda k: "v_mul_f32 v%d, v%d, v%d" % (G[k], G[k], U[k]), lambda k: "v_fma_f32 v%d, v%d, v%d, v%d" % (U[k], t[k], KS[tt], KS[tt]),
                              lambda k: "v_rcp_f32 v%d, v%d" % (U[k], U[k]), lambda k: "v_mul_f32 v%d, v%d, v%d" % (G[k], G[k], U[k])):
                        for k in range(n): out.append((f(k), None))
                    for k in range(0, n, 2): out.append(("v_cvt_pk_bf16_f32 v%d, v%d, v%d" % (D + 2 * a_ + (h + k) // 2, G[k], G[k + 1]), None))
            out.append(("buffer_store_dwordx4 %s, v%d, s[28:31], s%d offen offset:%d sc1" % (R(D), VST, 63 + p, 1024 * tt), ("vm", ("st", p))))
        return out
    def epilogue_pk(p, T):
        out = []; base = ACC[p % 2]
        def bc(r): return R(r & ~1, 2), r & 1
        for tt in range(4):
            D = base + (8 + tt) * 4; (A_, sa), (B_, sb), (S_, ss) = bc(KA + tt), bc(KB + tt), bc(KS[tt])
            G = [base + (a_ * 4 + tt) * 4 + h for a_ in range(2) for h in (0, 2)]; U = [g + 32 for g in G]; t = [T + 2 * k for k in range(4)]
            o = ["v_pk_mul_f32 %s, %s, %s" % (R(t[k], 2), R(G[k], 2), R(G[k], 2)) for k in range(4)]
            o += ["v_pk_fma_f32 %s, %s, %s, %s op_sel:[0,%d,%d] op_sel_hi:[1,%d,%d]" % (R(t[k], 2), R(t[k], 2), B_, A_, sb, sa, sb, sa) for k in range(4)]
            o += ["v_pk_mul_f32 %s, %s, %s" % (R(t[k], 2), R(t[k], 2), R(G[k], 2)) for k in range(4)]
            o += ["v_exp_f32 v%d, v%d" % (T + k, T + k) for k in range(8)]
            o += ["v_pk_mul_f32 %s, %s, %s" % (R(G[k], 2), R(G[k], 2), R(U[k], 2)) for k in range(4)]
            o += ["v_pk_fma_f32 %s, %s, %s, %s op_sel:[0,%d,%d] op_sel_hi:[1,%d,%d]" % (R(t[k], 2), R(t[k], 2), S_, S_, ss, ss, ss, ss) for k in range(4)]
            o += ["v_rcp_f32 v%d, v%d" % (T + k, T + k) for k in range(8)]
            o += ["v_pk_mul_f32 %s, %s, %s" % (R(G[k], 2), R(G[k], 2), R(t[k], 2)) for k in range(4)]
            o += ["v_cvt_pk_bf16_f32 v%d, v%d, v%d" % (D + k, G[k], G[k] + 1) for k in range(4)]
            out += [(x, None) for x in o] + [("buffer_store_dwordx4 %s, v%d, s[28:31], s%d offen offset:%d sc1" % (R(D), VST, 63 + p, 1024 * tt), ("vm", ("st", p)))]
        return out
    def sig(p): return [("WAITVM", ("st", p)), (wave_signal(VN, p + 1), ("vm", "sg"))]
    ON = PL; CS = PL + 8 if C.csm else PL + 4
    def cs_out(p):
        o = []
        for k in range(2):
            c = CS + 4 * k
            o += ["v_cvt_pk_bf16_f32 v%d, v%d, v%d" % (c + 1, c, c), "v_lshlrev_b32 v%d, 16, v%d" % (c + 1, c + 1), "v_sub_f32 v%d, v%d, v%d" % (c, c, c + 1), "v_cvt_pk_bf16_f32 v%d, v%d, v%d" % (ON + k, c + 1, c)]
        o += ["v_mov_b32 v%d, s1" % (ON + 2), "s_add_u32 s14, s73, %d" % (8192 * p)]
        return [(x, None) for x in o] + [("s_mov_b64 exec, 0xffff\nbuffer_store_dwordx4 %s, v%d, s[28:31], s14 offen sc1\ns_mov_b64 exec, -1" % (R(ON), VST), ("vm", "cs"))]
    AE = PL; VAE = PL + 15; BP = [PL + 2, PL + 6]
    ae_loads = ["buffer_load_dwordx4 %s, v%d, s[28:31], s15 offen offset:%d sc1" % (R(AE + 4 * w), VST, 1024 * w) for w in range(4)]
    def ae_in(p): return [("s_add_u32 s15, s72, %d" % (8192 * p), None)] + [(l, ("vm", ("ae", p)) if ismem(l) else None) for l in ae_loads]
    def ae_chk(p): return [("WAITVM", ("ae", p))] + tag_check("AE%d" % p, ae_loads, [AE + 2, AE + 6, AE + 10, AE + 14], AE + 7) + [("v_swap_b32 v%d, v%d\n" % (AE + 1, AE + 4), None), ("v_swap_b32 v%d, v%d\n" % (AE + 9, AE + 12), None)]
    st_loads = ["buffer_load_dwordx2 v[%d:%d], v110, s[28:31], s75 offen offset:%d sc1" % (128 + 2 * tt, 129 + 2 * tt, 128 * tt) for tt in range(4)]
    def st_consts():
        o = ["s_mov_b32 s14, 0x05040100", "v_perm_b32 v%d, v130, v128, s14" % NM[0], "v_perm_b32 v%d, v134, v132, s14" % NM[1]]
        for tt in range(4):
            s_ = 128 + 2 * tt
            o += ["v_and_b32 v%d, 0xffff0000, v%d" % (s_, s_), "v_rcp_f32 v%d, v%d" % (KA + tt, s_), "v_mul_f32 v%d, v%d, v%d" % (KS[tt], s_, s_), "v_mul_f32 v%d, v%d, v%d" % (KB + tt, KA + tt, KA + tt),
                  "v_mul_f32 v%d, %s, v%d" % (KA + tt, f2h(GA), KA + tt), "v_mul_f32 v%d, %s, v%d" % (KB + tt, f2h(0.044715), KB + tt), "v_mul_f32 v%d, v%d, v%d" % (KB + tt, KB + tt, KA + tt)]
        return [(x, None) for x in o]
    wpf_items = [(x, None) for x in ["v_and_b32 v137, 0x1f0, v%d" % VST, "v_mul_u32_u24 v137, 192, v137", "v_mov_b32 v138, s40", "v_mov_b32 v139, s41", "v_cmp_gt_u32 vcc, 512, v%d" % VST,
                 "s_mul_i32 s14, s61, 98304", "s_mul_i32 s69, s37, 384", "v_cndmask_b32 v138, v139, v138, vcc", "s_add_u32 s14, s14, s69", "v_add_u32 v137, v137, v138"]] + \
                [("buffer_load_dword v139, v137, s[20:23], s14 offen offset:%d" % (128 * q), ("vm", "wp")) for q in range(1, 1 + C.wpn)]
    def refill(m=2):
        nonlocal wiss, xiss
        n = 0
        while n < m:
            if xiss < 10 and freex and xiss <= wiss: sc.dq += dmax(xiss, freex.pop(0)); xiss += 1
            elif wiss < 30 and freew:
                sc.dq += dma(wiss, freew.pop(0))
                if wiss in (10, 20) and (C.xt >> (wiss // 10)) & 1: sc.dq += xtouch(wiss // 10, 140 if wiss == 10 else PL + 15)
                wiss += 1
            elif xiss < 10 and freex: sc.dq += dmax(xiss, freex.pop(0)); xiss += 1
            else: break
            n += 1
    assert C.sl0 <= 6
    def onset(h, sr): return [("v_mov_b32 v%d, s%d" % (ON + 4 * h + k, sr), None) for k in range(4)]
    for k in range(4): a("v_mov_b32 v%d, 0x3f803f80" % (ON + k))
    if C.csm: sc.flush(onset(0, 6) + onset(1, 7))
    refill(); sc.flush(sc.dq)
    if C.wpf == 0: sc.flush(wpf_items)
    wait(a, vm=vm.need(("w", 0))); a("s_barrier"); tr.mark()
    xq = xreads(0)
    for it in wreads(0) + xq[:4] + wreads(1) + wreads(2) + wreads(3) + xq[4:]: sc.emit(it)
    xq = []
    refill(); sc.sp = 1
    wait(a, lg=lg.need(("w", 0), ("x", 0, 0, 3)))
    for P in range(120):
        s_ = P // 4; p, j = s_ // 10, s_ % 10; kk = (P >> 1) & 1
        Pn = P + 2; bar = Pn < 120 and Pn % 4 == 0; wr = None
        for i in range(8):
            g = 2 * P + (i >> 2); wt = g & 3; tt = (i & 3) if (i < 4 or not C.snk) else 7 - i
            c = ACC[p % 2] + (wt * 4 + tt) * 4; b = WF + (g % 6) * 4
            if i == 0 and bar: sc.flush(sc.dq)
            a("v_mfma_f32_16x16x32_bf16 %s, %s, %s, %s" % (R(c), R(b), R(X(j, kk, tt)), "0" if (j == 0 and kk == 0) else R(c)))
            if i == 0 and bar:
                s2 = Pn // 4; j2 = s2 % 10; p2_ = s2 // 10
                if s2 == C.lst: stats(a, vm, 124, 126, VN, "ffn"); lg.clear()
                wait(a, vm=vm.need(("w", s2), opt=[("x", s2)] + (["wp", ("xt", 1)] if s2 == 10 else []))); a("s_barrier"); tr.mark()
                sc.sp = C.sp
                if s2 - 1 < 10: freex.append(xpos[s2 - 1])
                if xiss == 10 and not C.ldw: freew += [x for x in freex if x < 8]; freex.clear()
                if s2 >= 2: freew.append(wpos[s2 - 2])
                refill({1: {7: 2, 8: 0, 9: 1}, 2: {7: 1, 8: 1, 9: 1, 10: 1}, 3: {7: 2, 8: 0, 9: 0, 10: 2}}.get(C.rf, {}).get(s2, 2) if not ((C.rz >> s2) & 1) else 0); WI.append(wiss)
                if s2 == C.wpf: sc.dq += wpf_items
                if C.stsp and C.sl0 - 3 <= s2 <= C.sl0: sc.dq += [(st_loads[s2 - C.sl0 + 3], ("vm", "stl"))]
                elif s2 == C.sl0: sc.dq += [(l, ("vm", "stl")) for l in st_loads]
                if s2 == C.sl0 + 2 and not C.off & 16: sc.dq += [("WAITVM", "stl")] + tag_check("STF", st_loads, [129, 131, 133, 135], 136) + st_consts()
                if s2 == C.pfc: sc.dq += [(sflag_load(), None)]
                if s2 == C.pfc + 2: sc.dq = sflag_check("FFN_pf", VN, 0, None, ["v_lshrrev_b32 v2, 4, v%d" % VST, "v_add_u32 v2, s1, v2"]) + sc.dq
                if C.stg and s2 in (C.pfc + 2, C.pfc + 3):
                    i_ = 16 - (s2 - C.pfc - 2); b_, c_ = step_off(i_, WB, KSB, RF); w2q.remove(i_)
                    sc.dq += [("s_add_u32 m0, s12, %d" % (4096 * (16 - i_)), None), ("s_add_u32 s68, s%d, %d" % (b_, c_), None)] + \
                             [("buffer_load_dwordx4 v%d, s[28:31], s68 offen offset:%d sc1 lds" % (VST, 1024 * t), ("vm", "wl")) for t in range(4 if i_ == 16 else 3)]
                if s2 >= max(21, C.pfc + 2):
                    if not sc.dq: sc.sp = C.sp3
                    while len(sc.lq) < C.w2n:
                        ok = [i for i in w2q if 16 * i + 16 <= 32 * (s2 - 21) + 16]
                        if not ok: break
                        w2q.remove(ok[0]); sc.lq += w2_loads(RF, ok[0], VST)
                if s2 == 27: sc.fq += act_voffs(VST)
                if s2 == 28: sc.dq += [(sflag_load(0), None)]
                if s2 < 10: xq = xreads(s2)
                sc.n += 1; sc.since += 1
                continue
            if P % 40 == 0 and i == 4 and p >= 1: sc.fq += epilogue(p - 1) + [("LATER", (C.sd, sig(p - 1)))]
            if wr is None: wr = (wreads(2 * Pn) + wreads(2 * Pn + 1)) if Pn < 120 else []
            must = []
            if wr and (i % 2 == 1): must.append(wr.pop(0))
            elif xq and (i % 4 == 2 or not sc.dq): must.append(xq.pop(0))
            if xq and i == 3 and (Pn % 2) == 0: must.append(xq.pop(0))
            if P % 40 == 8 and i == 4 and not C.off & 2: sc.dq = cs_out(p) + sc.dq
            if C.off & 4: pass
            elif P % 40 == (C.ae0 if p else C.ae00) and i == 1: sc.dq += ae_in(p)
            elif P % 40 == 34 and i == 1: sc.dq = ae_chk(p) + sc.dq
            if P % 40 == 36 and i == 0:
                while any("v_swap" in x[0] for x in sc.dq): sc.emit(sc.dq.pop(0))
            if P == 116 and i == 0:
                assert not sc.fq
                sc.lq = sc.lq[:next((k for k, x in enumerate(sc.lq) if not ismem(x[0])), len(sc.lq))] + sflag_check("FFN_fe", 104, 1, 0) + act_loads(RF, 0) + sc.lq[next((k for k, x in enumerate(sc.lq) if not ismem(x[0])), len(sc.lq)):]
            if j == 9 and i == 4: must += [("v_perm_b32 v%d, v%d, v%d, s%d" % (BP[P & 1] + k, NM[(P & 3) >> 1], NM[(P & 3) >> 1], 4 + (P & 1)), None) for k in range(2)]
            if C.csm:
                q_ = {0: (0, 6), 1: (1, 7), 4: (0, 10), 5: (1, 11)}.get(P % 40)
                if q_ and P >= 2 and i in (0, 2): must += onset(*q_)[i:i + 2]
            elif P % 40 == 4 and i == 0: must += [("v_mov_b32 v%d, s74" % (ON + k), None) for k in range(4)]
            if not C.csm and P % 40 == 0 and i == 0 and p > 0: must += [("v_mov_b32 v%d, 0x3f803f80" % (ON + k), None) for k in range(4)]
            slots = 2
            left = (39 - P % 40) * 8 + 8 - i - (C.e1 if p < 2 else C.e2)
            need_rate = sc.fc() / max(left, 1) + (C.b1 if p < 2 else C.b2) / 100.0
            if need_rate > 2 and p > 0: slots = int(need_rate + 0.99)
            extra = j < 2 or j == 9
            if i == 7 and not (j == 9 or (j < 2 and C.csm)): slots -= 1
            if i == 7 and j < 2 and not C.off & 1 and not C.csm: slots = 0
            sc.gap(must, slots)
        if j < 2 and C.csm:
            for k in range(2):
                a("v_mfma_f32_16x16x32_bf16 %s, %s, %s, %s" % (R(CS + 4 * k), R(ON + 4 * (P & 1)), R(WF + ((2 * P + k) % 6) * 4), "0" if P % 40 == 0 else R(CS + 4 * k)))
                sc.gap([], 2 - k)
        elif j < 2 and not C.off & 1:
            a("s_cmp_lg_u32 s60, %d" % (P & 1)); a("s_cbranch_scc1 CSK%d" % P)
            for k in range(2): a("v_mfma_f32_16x16x32_bf16 %s, %s, %s, %s" % (R(CS + 4 * k), R(ON), R(WF + ((2 * P + k) % 6) * 4), "0" if P % 40 < 2 else R(CS + 4 * k)))
            a("CSK%d:" % P)
        corr = [(w, P & 3, BP[P & 1]) for w in range(4)] if j == 9 else []
        if C.off & 8: corr = []
        for k, (w, t_, bp) in enumerate(corr):
            c = ACC[p % 2] + (w * 4 + t_) * 4
            a("v_mfma_f32_16x16x16_bf16 %s, %s, %s, %s" % (R(c), R(AE + 4 * w, 2), R(bp, 2), R(c)))
            sc.gap([], 2 if k < len(corr) - 1 else 1)
        if P + 1 < 120:
            s3 = (P + 1) // 4
            wait(a, lg=lg.need(("w", P + 1), ("x", s3 % 10, ((P + 1) >> 1) & 1, 3)))
        if P % 40 == 39: assert not sc.fq, (P, len(sc.fq))
    stamp(a, 2); tr.mark(); tr.flush(16)
    sc.flush(sc.dq)
    print("W issued by interval", WI)
    print("FFN after loop: W2 left", w2q, "lq", len(sc.lq), "timed", len(sc.timed))
    a("v_mov_b32 v7, v%d" % VST)
    k0 = next((k for k, x in enumerate(sc.lq) if not ismem(x[0])), len(sc.lq))
    assert ("a", 0) in vm.seen
    rest = sc.lq[:k0]; left = sc.lq[k0:]; sc.lq = []
    pend = [(i, act_loads(RF, i)) for i in range(1, 4)]
    while left: pend.append((left[1][1][1][1] - 0.5, left[:5])); left = left[5:]
    for i in w2q: pend += [(i - 0.5, w2_loads(RF, i, 7))]
    lrd = []
    if C.stg:
        w_ = w2_loads(RF, 15, 7); pend += [(14.5, [w_[0], w_[4]])]; vm.seen.add(("w2", 16))
        lrd = [("WAITVM", "wl"), ("v_add_u32 v22, s12, v7", None)] + [("ds_read_b128 %s, v22 offset:%d" % (R(RF.W[16] + 4 * k if k < 4 else RF.W[15] + 4 * (k - 4)), 1024 * k), None) for k in range(7)]
    pend.sort(key=lambda w: w[0])
    while pend and sum(1 for x in rest if ismem(x[0])) < C.nep: rest += pend.pop(0)[1]
    nrest = sum(1 for x in rest if ismem(x[0])) + 1
    a("s_nop 7")
    ep = epilogue(2, [16, 17, 18, 19])
    if C.pke2: ep = epilogue_pk(2, 16); C.epn = len(ep)
    for k in range(C.epn):
        sc.emit(ep.pop(0))
        if k % max(2, C.epn // nrest) == 0 and rest:
            while rest and not ismem(rest[0][0]): sc.emit(rest.pop(0))
            sc.emit(rest.pop(0))
        if k == C.epn - C.sfe: a(sflag_load(0))
        if k == C.epn - 10:
            for t in sc.timed:
                for x in t[1]: sc.emit(x)
    sc.flush(rest); sc.timed = []
    p2_main(a, sc, RF, pend, ep + [("LATER", (C.sd2, sig(2)))], lrd)

def att(a, vm):
    a("K_att:")
    WSL = 15360; NW = 5; XB = NW * WSL; XSL = 18432; PB = XB + 3 * XSL; RS = 496; OB = 73728
    lg = Q(15); sc = Sched(a, vm, lg, C.spa)
    VWO = [3, 4, 5, 6]; VWR = [7, 8]; VXR = [9, 10]; VXO = [11, 12]; VF1, VL = 13, 14
    TT = 16; PV = 212; PR = 216; FL = 1; FR = [160, 460]; KR_ = 212
    def acc(t, u): return 16 + 4 * (t * 9 + u)
    a("v_lshrrev_b32 v%d, 3, v2" % TT); a("v_mul_u32_u24 v%d, 1280, v%d" % (TT, TT)); a("v_and_b32 v%d, 7, v2" % (TT + 1)); a("v_lshrrev_b32 v%d, 4, v2" % (TT + 2)); a("v_xor_b32 v%d, v%d, v%d" % (TT + 1, TT + 1, TT + 2))
    a("v_lshl_add_u32 v%d, v%d, 4, v%d" % (TT + 8, TT + 1, TT)); a("v_xor_b32 v%d, 64, v%d" % (TT + 9, TT + 8))
    a("s_lshl_b32 s68, s36, 3"); a("s_add_u32 s68, s68, s32"); a("s_mul_i32 s68, s68, 20480"); a("v_add_u32 v%d, s68, v%d" % (VXO[0], TT + 8)); a("s_add_u32 s68, s68, 9216"); a("v_add_u32 v%d, s68, v%d" % (VXO[1], TT + 9))
    a("s_lshl_b32 s66, s32, 12"); a("s_lshl_b32 s65, s32, 11"); a("s_add_u32 s65, s65, %d" % XB)
    def dmaX(gm):
        c, hf = gm >> 1, gm & 1
        return [("s_add_u32 m0, s65, %d" % ((c % 3) * XSL + hf * 8192), None), ("s_add_u32 s69, s%d, %d" % (50 + c, hf * 81920), None)] + \
               [("buffer_load_dwordx4 v%d, s[16:19], s69 offen offset:%d lds" % (VXO[k], 1024 * k), ("vm", ("g", gm))) for k in range(2)]
    def pack_scalars():
        for l in ["s_xor_b32 s71, s32, %d" % 0, "s_sub_u32 s4, s2, 128", "s_mul_i32 s4, s4, %d" % (1 if C.jb else 3), "s_mul_i32 s5, s71, %d" % (128 if C.jb else 1), "s_add_u32 s4, s4, s5", "s_cmp_lt_u32 s71, 3", "s_cselect_b32 s4, s4, 500", "s_lshr_b32 s5, s4, 2", "s_sub_u32 s6, s5, 20",
                  "s_cmp_lt_u32 s5, 20", "s_cselect_b32 s6, s5, s6", "s_cselect_b32 s8, s14, s96", "s_cselect_b32 s9, s15, s97", "s_cselect_b32 s10, 0, 0x118000", "s_cselect_b32 s13, 2, 1", "s_cselect_b32 s14, 1, 4",
                  "s_add_u32 s10, s10, 819200", "s_and_b32 s9, s9, 0xffff", "s_mov_b32 s11, 0x00020000",
                  "s_mul_i32 s6, s6, 40960", "s_and_b32 s7, s4, 3", "s_mul_i32 s12, s7, s13", "s_mul_i32 s12, s12, 5120", "s_add_u32 s6, s6, s12", "s_mul_i32 s14, s14, 5120", "s_add_u32 s14, s14, s6",
                  "s_mul_i32 s5, s5, 40960", "s_lshl_b32 s7, s7, 8", "s_add_u32 s5, s5, s7", "s_add_u32 s5, s5, %d" % W2P_OFF, "s_cmp_lt_u32 s4, 272", "s_cselect_b32 s4, s5, 0x%x" % OOB,
                  "s_mul_i32 s7, s71, 10240", "s_add_u32 s7, s7, %d" % PB, "s_cmp_lt_u32 s71, 3", "s_cselect_b32 s7, s7, 0x30000", "s_mov_b32 s15, %d" % (68 * 5120)]: a(l)
    def pack_ld(tt, o, n):
        return [("s_add_u32 m0, s7, %d" % (5120 * tt + o), None), ("s_add_u32 s12, s%d, %d" % (14 if tt else 6, o), None)] + [("buffer_load_dwordx4 v%d, s[8:11], s12 offen offset:%d%s lds" % (VL, 1024 * i, " nt" if C.pnt else ""), ("vm", "pk")) for i in range(n)]
    V = PV; PH = (256 + 100 - PR) if C.pv else 0
    pack_addr = [(x, None) for x in ["v_lshrrev_b32 v%d, 5, v2" % V, "v_lshlrev_b32 v%d, 6, v%d" % (V, V), "v_bfe_u32 v%d, v2, 4, 1" % (V + 2), "v_lshl_add_u32 v%d, v%d, 3, v%d" % (V, V + 2, V),
                "v_bfe_u32 v%d, v2, 2, 2" % (V + 2), "v_mul_u32_u24 v%d, 1280, v%d" % (V + 2, V + 2), "v_add_u32 v%d, v%d, v%d" % (V, V, V + 2),
                "v_and_b32 v%d, 3, v2" % (V + 2), "v_lshlrev_b32 v%d, 4, v%d" % (V + 2, V + 2), "v_add3_u32 v%d, v%d, v%d, s7" % (V, V, V + 2),
                "v_lshrrev_b32 v%d, 4, v2" % (V + 1), "v_lshlrev_b32 v%d, 10, v%d" % (V + 1, V + 1), "v_and_b32 v%d, 0xf0, v%d" % (V + 2, VL), "v_add_u32 v%d, v%d, v%d" % (V + 1, V + 1, V + 2)]]
    def pack_rd(hf): return [("WAITVM", "pk")] + [("ds_read_b64_tr_b16 %s, v%d offset:%d" % (R(PR + PH * hf + 4 * i + 2 * tt, 2), PV, 128 * (5 * hf + i) + 5120 * tt), None) for i in range(5) for tt in range(2)]
    def pack_st(hf): return [x for i in range(5) for x in (("s_add_u32 s5, s4, %d" % (4096 * (5 * hf + i)), None), ("buffer_store_dwordx4 %s, v%d, s[28:31], s5 offen sc1" % (R(PR + PH * hf + 4 * i), PV + 1), ("vm", "pst")))]
    pack_all = pack_ld(0, 0, 4) + pack_ld(0, 4096, 1) + pack_ld(1, 0, 4) + pack_ld(1, 4096, 1)
    patom = [("v_mov_b32 v%d, 1\ns_lshl_b32 s13, s32, 12" % PV, None), ("s_mov_b64 exec, 1\nbuffer_atomic_add v%d, off, s[24:27], s13 offset:128 sc0 sc1\ns_mov_b64 exec, -1" % PV, ("vm", "pa"))]
    a.srd(20, 6, 2457600)
    if C.pke == 1: pack_scalars(); sc.flush(list(pack_all))
    for it in dmaX(0) + dmaX(1): sc.emit(it)
    for i in range(4):
        a("s_lshl_b32 s68, s32, 8"); a("s_add_u32 s68, s68, %d" % (64 * i)); a("v_add_u32 v%d, s68, v2" % TT)
        a("v_mul_u32_u24 v%d, 2185, v%d" % (TT + 1, TT)); a("v_lshrrev_b32 v%d, 16, v%d" % (TT + 1, TT + 1))
        a("v_mul_u32_u24 v%d, 30, v%d" % (TT + 2, TT + 1)); a("v_sub_u32 v%d, v%d, v%d" % (TT + 2, TT, TT + 2))
        a("v_mul_u32_u24 v%d, 205, v%d" % (TT + 3, TT + 2)); a("v_lshrrev_b32 v%d, 11, v%d" % (TT + 3, TT + 3))
        a("v_mul_u32_u24 v%d, 1120, v%d" % (TT + 3, TT + 3)); a("v_lshl_add_u32 v%d, v%d, 4, v%d" % (TT + 3, TT + 2, TT + 3))
        a("v_bfe_u32 v%d, v%d, 2, 2" % (TT + 4, TT + 1)); a("v_lshlrev_b32 v%d, 3, v%d" % (TT + 4, TT + 4))
        a("v_bfe_u32 v%d, v%d, 4, 1" % (TT + 2, TT + 1)); a("v_lshl_add_u32 v%d, v%d, 2, v%d" % (TT + 4, TT + 2, TT + 4))
        a("v_and_b32 v%d, 3, v%d" % (TT + 2, TT + 1)); a("v_add_u32 v%d, v%d, v%d" % (TT + 4, TT + 4, TT + 2))
        a("v_mul_u32_u24 v%d, 3840, v%d" % (TT + 4, TT + 4)); a("s_mul_i32 s68, s37, 160"); a("s_sub_u32 s68, s68, %d" % (1024 * i if i < 3 else 0))
        a("v_add3_u32 v%d, v%d, v%d, s68" % (VWO[i], TT + 4, TT + 3))
    a("s_mul_i32 s68, s36, 163840"); a("s_sub_u32 s68, s68, 20480"); a("s_cmp_eq_u32 s36, 0"); a("s_cselect_b32 s68, 0x%x, s68" % OOB)
    a("v_add_u32 v%d, s68, v%d" % (TT + 8, TT + 8)); a("s_add_u32 s68, s68, 10240"); a("v_add_u32 v%d, s68, v%d" % (TT + 9, TT + 9))
    a("s_cmp_eq_u32 s32, 3")
    for i in range(3): a("s_cselect_b32 s%d, s%d, s%d" % (72 + i, 16 + i, 20 + i))
    a("s_mov_b32 s75, 0x00020000"); a("s_cselect_b64 vcc, -1, 0"); a("v_cndmask_b32 v%d, v%d, v%d, vcc" % (VF1, VWO[3], TT + 9)); a("v_cndmask_b32 v%d, v%d, v%d, vcc" % (VWO[3], VWO[3], TT + 8))
    def dmaW(gm):
        c, hf = gm >> 1, gm & 1
        return [("s_add_u32 m0, s66, %d" % ((gm % NW) * WSL), None), ("s_add_u32 s68, s%d, %d" % (40 + c, hf * 122880), None)] + \
               [("buffer_load_dwordx4 v%d, s[20:23], s68 offen offset:%d lds" % (VWO[k], 1024 * k), ("vm", ("g", gm))) for k in range(3)] + \
               [("s_add_u32 s69, m0, 3072", None), ("s_cmp_eq_u32 s32, 3\ns_cselect_b32 m0, %d, s69" % (XB + (c % 3) * XSL + 16384 + 1024 * hf), None), ("s_cmp_eq_u32 s32, 3\ns_cselect_b32 s68, s%d, s68" % (50 + c), None),
                ("buffer_load_dwordx4 v%d, s[72:75], s68 offen lds" % (VF1 if hf else VWO[3]), ("vm", ("g", gm)))]
    for it in dmaW(0) + dmaW(1): sc.emit(it)
    if C.xta:
        a("s_lshl_b32 s62, s34, 2"); a("s_lshr_b32 s62, %d, s62" % C.so); a("s_and_b32 s62, s62, 15"); a("s_lshr_b32 s69, s35, 2"); a("s_mul_i32 s69, s69, 5"); a("s_add_u32 s62, s62, s69"); a("s_add_u32 s62, s62, 4")
        a("s_sub_u32 s69, s62, 10"); a("s_cmp_ge_u32 s62, 10"); a("s_cselect_b32 s62, s69, s62"); a("s_lshl_b32 s62, s62, 4"); a("s_and_b32 s69, s35, 3"); a("s_lshl_b32 s69, s69, 2"); a("s_add_u32 s62, s62, s69")
        a("s_add_u32 s62, s62, s32"); a("s_mul_i32 s62, s62, 15360"); a("s_mul_i32 s69, s37, 160"); a("s_add_u32 s62, s62, s69")
        a("v_lshrrev_b32 v%d, 1, v2" % TT); a("v_mul_u32_u24 v%d, 1280, v%d" % (TT, TT)); a("v_and_b32 v%d, 1, v2" % (TT + 1)); a("v_mul_u32_u24 v%d, 156, v%d" % (TT + 1, TT + 1)); a("v_add_u32 v%d, v%d, v%d" % (TT, TT, TT + 1))
        a("s_mov_b64 exec, 0xffffff"); a("buffer_load_dword a198, v%d, s[20:23], s62 offen" % TT); a("s_mov_b64 exec, -1"); vm.issue("xt")
    if C.pke == 2: pack_scalars(); sc.flush(list(pack_all))
    raise_ready(a, vm, "att")
    for gm in range(2, C.na0):
        for it in dmaX(gm) + dmaW(gm): sc.emit(it)
    a("v_lshrrev_b32 v%d, 2, v2" % TT); a("v_mul_u32_u24 v%d, 480, v%d" % (TT, TT)); a("v_and_b32 v%d, 3, v2" % (TT + 1)); a("v_lshl_add_u32 v%d, v%d, 3, v%d" % (TT, TT + 1, TT))
    a("s_lshl_b32 s60, s32, 7"); a("v_add_u32 v%d, s60, v%d" % (VWR[0], TT)); a("v_add_u32 v%d, %d, v%d" % (VWR[1], 3 * WSL, VWR[0]))
    a("v_bfe_u32 v%d, v2, 1, 3" % TT); a("v_lshrrev_b32 v%d, 4, v2" % (TT + 1)); a("v_xor_b32 v%d, v%d, v%d" % (TT, TT, TT + 1)); a("v_lshlrev_b32 v%d, 4, v%d" % (TT, TT))
    a("v_and_b32 v%d, 15, v2" % (TT + 1)); a("v_lshl_add_u32 v%d, v%d, 7, v%d" % (TT, TT + 1, TT)); a("v_add_u32 v%d, %d, v%d" % (VXR[0], XB, TT)); a("v_xor_b32 v%d, 64, v%d" % (VXR[1], VXR[0]))
    a("v_lshlrev_b32 v15, 3, v%d" % (TT + 1))
    if not C.pke: pack_scalars()
    a("s_lshl_b32 s61, s36, 1"); a("s_lshr_b32 s69, s32, 1"); a("s_add_u32 s61, s61, s69"); a("s_mul_i32 s61, s61, %d" % (68 * 4096))
    a("s_and_b32 s69, s32, 1"); a("s_lshl_b32 s69, s69, 11"); a("s_add_u32 s61, s61, s69"); a("s_mov_b32 s39, %s" % f2h(20 ** -0.5 * 1.4426950408889634))
    a("s_mul_i32 s62, s32, %d" % (32 * RS)); a("s_mul_i32 s63, s32, 5120"); a("s_add_u32 s63, s63, %d" % OB); a("s_mul_i32 s64, s37, 10")
    a("s_mov_b32 s94, 0xfffefffe"); a("s_mov_b32 s95, 0xfffefffe")
    if C.stub: a("STUBCALLS_att")
    common_setup(a, "att")
    a("s_sub_u32 s38, s79, %d" % (16384 - 896)); a("s_cmp_eq_u32 s36, 0"); a("s_cselect_b32 s38, s79, s38")
    a("v_mov_b32 v%d, 0x3f803f80" % (FR[0] + 16))
    for k in range(4): a("v_mov_b32 v%d, 0x3f803f80" % (FR[0] + 16 + k)); a("v_accvgpr_write_b32 a%d, v%d" % (FR[1] - 256 + 16 + k, FR[0] + 16))
    if not C.lst: stats(a, vm, 252, 254, 255, "att")
    if C.skipm:
        a("s_cmp_eq_u32 s32, 3"); a("s_cselect_b32 s68, 0x30000, 0"); a("v_add_u32 v252, s68, v%d" % VWR[0]); a("v_add_u32 v253, s68, v%d" % VWR[1])
    stamp(a, 1)
    tr = Trace(a, 0); tr.lv = VL; tr.mark()
    def reads(s_):
        fb = FR[s_ % 2]; pos = s_ % NW; c = s_ >> 1; kh = s_ & 1
        def xr(u):
            l = "ds_read_b128 %s, v%d offset:%d" % (R(fb + 16 + 4 * u), VXR[kh], (c % 3) * XSL + (2048 * (u - 1) if u else 16384))
            return (l if u else "s_mov_b64 exec, s[94:95]\n" + l + "\ns_mov_b64 exec, -1", None)
        def wr(t, tt): return ("ds_read_b64_tr_b16 %s, v%d offset:%d" % (R(fb + 4 * t + 2 * tt, 2), (252 + pos // 3) if (t == 3 and C.skipm) else VWR[pos // 3], (pos % 3) * WSL + 7680 * tt + 32 * t), None)
        out = [wr(0, 0), wr(0, 1)] + [xr(u) for u in range(9)]
        for t in range(1, 4): out += [wr(t, 0), wr(t, 1)]
        return out
    T2 = 232; AQ, AV, VI, VQW, TOK, VOR = T2, T2 + 1, T2 + 2, T2 + 3, T2 + 4, T2 + 5; SO = T2 + 6; GO = T2 + 11; t0, t1, t2, t3 = T2 + 16, T2 + 17, T2 + 18, T2 + 19
    ad = []
    def rowaddr(dst, hh, i):
        ad.extend(["v_bfe_u32 v%d, v2, 4, 1" % TOK, "v_lshlrev_b32 v%d, 3, v%d" % (TOK, TOK), "v_bfe_u32 v%d, v2, 5, 1" % t0, "v_add_u32 v%d, v%d, v%d" % (TOK, TOK, t0),
                   "v_bfe_u32 v%d, v2, %d, 2" % (t0, i), "v_lshl_add_u32 v%d, v%d, 1, v%d" % (TOK, t0, TOK), "v_mul_u32_u24 v%d, %d, v%d" % (t1, RS, TOK),
                   "v_bfe_u32 v%d, v2, %d, 2" % (t0, hh), "v_mul_u32_u24 v%d, 40, v%d" % (t0, t0), "v_add3_u32 v%d, v%d, v%d, s62" % (dst, t1, t0)])
    rowaddr(AV, 0, 2); rowaddr(AQ, 2, 0)
    ad += ["v_and_b32 v%d, 3, v2" % VI, "v_lshrrev_b32 v%d, 3, v%d" % (t0, t0), "v_lshl_add_u32 v%d, v%d, 4, s63" % (t2, TOK), "v_add_u32 v%d, s63, v%d" % (VOR, VL)]
    for dp in range(5):
        ad += ["v_add_u32 v%d, %d, v%d" % (t1, dp, t0), "v_lshrrev_b32 v%d, 1, v%d" % (SO + dp, t1), "v_lshl_add_u32 v%d, v%d, 8, v%d" % (SO + dp, SO + dp, t2),
               "v_and_b32 v%d, 1, v%d" % (t1, t1), "v_lshl_add_u32 v%d, v%d, 3, v%d" % (SO + dp, t1, SO + dp)]
    ad += ["v_lshrrev_b32 v%d, 4, v2" % t0, "v_and_b32 v%d, 15, v2" % t2, "v_mul_u32_u24 v%d, %d, v%d" % (VQW, RS, t2), "v_lshl_add_u32 v%d, v%d, 3, v%d" % (VQW, t0, VQW), "v_add_u32 v%d, s60, v%d" % (VQW, VQW),
           "v_lshlrev_b32 v%d, 4, v%d" % (t2, t2)]
    for j in range(5):
        ad += ["v_add_u32 v%d, %d, v%d" % (t1, 4 * j, t0), "v_mul_u32_u24 v%d, 13, v%d" % (t3, t1), "v_lshrrev_b32 v%d, 7, v%d" % (t3, t3), "v_lshl_add_u32 v%d, v%d, 10, v%d" % (GO + j, t3, t2),
               "v_mul_u32_u24 v%d, 10, v%d" % (t3, t3), "v_sub_u32 v%d, v%d, v%d" % (t1, t1, t3), "v_add_u32 v%d, s64, v%d" % (t1, t1),
               "v_lshrrev_b32 v%d, 2, v%d" % (t3, t1), "v_lshl_add_u32 v%d, v%d, 12, v%d" % (GO + j, t3, GO + j), "v_and_b32 v%d, 3, v%d" % (t3, t1), "v_lshl_add_u32 v%d, v%d, 8, v%d" % (GO + j, t3, GO + j)]
    ad += ["v_cmp_gt_u32 s[%d:%d], %d, v%d" % (4 + 2 * k, 5 + 2 * k, k, VI) for k in range(1, 4)]
    k0 = C.pk0
    st_loads = ["buffer_load_dwordx2 v[%d:%d], v15, s[28:31], s%d offen offset:%d sc1" % (KR_ + 2 * u, KR_ + 2 * u + 1, 79 if u else 38, 128 * (u - 1) if u else 0) for u in range(9)]
    st_c = ["v_and_b32 v%d, 0xffff0000, v%d" % (KR_ + 2 * u + 1, KR_ + 2 * u) for u in range(9)] + ["v_lshlrev_b32 v%d, 16, v%d" % (KR_ + 2 * u, KR_ + 2 * u) for u in range(9)] + ["v_rcp_f32 v%d, v%d" % (KR_ + 2 * u + 1, KR_ + 2 * u + 1) for u in range(9)] + ["v_mul_f32 v%d, v%d, v%d" % (KR_ + 2 * u, KR_ + 2 * u, KR_ + 2 * u + 1) for u in range(9)]
    fex = {2: pack_addr, k0: pack_rd(0), k0 + 1: pack_st(0) + pack_rd(1)[1:], k0 + 2: pack_st(1), k0 + 4: patom,
           k0 + 6: [("WAITVM", "pa"), ("v_readfirstlane_b32 s100, v%d\ns_and_b32 s100, s100, 127\ns_cmp_eq_u32 s100, 127\ns_cbranch_scc1 ATT_bcast\nATT_bcast_ok:" % PV, None)] + [(x, None) for x in ad],
           C.sla + 3: [("WAITVM", "stl")] + tag_check("STA", st_loads, [KR_ + 2 * u + 1 for u in range(9)], 230) + [(x, None) for x in st_c]}
    assert C.sla > k0 + 6
    PSG = k0 + 4
    if C.pv:
        last = fex[k0 + 6]; stq = pack_st(0) + pack_st(1); PSG = k0 + C.psg
        fex = {2: pack_addr, k0: pack_rd(0), k0 + 1: pack_rd(1)[1:] + stq[:4], k0 + 2: stq[4:12], k0 + 3: stq[12:], PSG: patom, PSG + 1: last[2:30] + last[:2] + last[30:], C.sla + 3: fex[C.sla + 3]}
        if C.pv == 1: pack_all = pack_ld(0, 0, 3) + pack_ld(0, 3072, 2) + pack_ld(1, 0, 2) + pack_ld(1, 2048, 3)
    if C.pke:
        k0 = -3; C.pkl = -9; PSG = 1; assert not C.pv
        fex = {1: patom, 3: fex[C.pk0 + 6], C.sla + 3: fex[C.sla + 3]}
        sc.flush(pack_addr + pack_rd(0)); PR = 16; sc.flush(pack_rd(1)[1:]); PR = 216
        a("s_waitcnt lgkmcnt(10)"); sc.flush(pack_st(0)); PR = 16; a("s_waitcnt lgkmcnt(0)"); sc.flush(pack_st(1))
    w2q = list(range(10)); giss = C.na0
    CB = t0
    def wr_tile(t, u, pk=False):
        c = acc(t, u); o = []; K = R(KR_ + 2 * u, 2)
        if u == 0: o += ["v_mov_b32_dpp v%d, v%d row_newbcast:0 row_mask:0xf bank_mask:0xf" % (CB + r, c + r) for r in range(4)]
        if pk: o += ["v_pk_mul_f32 %s, %s, %s op_sel:[0,1] op_sel_hi:[1,1]" % (R(c + r, 2), R(c + r, 2), K) for r in (0, 2)] + ["v_pk_fma_f32 %s, %s, %s, %s op_sel_hi:[1,0,1]" % (R(c + r, 2), R(CB + r, 2), K, R(c + r, 2)) for r in (0, 2)]
        else: o += ["v_mul_f32 v%d, v%d, v%d" % (c + r, c + r, KR_ + 2 * u + 1) for r in range(4)] + ["v_fmac_f32 v%d, v%d, v%d" % (c + r, CB + r, KR_ + 2 * u) for r in range(4)]
        o += ["v_cvt_pk_bf16_f32 v%d, v%d, v%d" % (c, c, c + 1), "v_cvt_pk_bf16_f32 v%d, v%d, v%d" % (c + 1, c + 2, c + 3), "ds_write_b64 v%d, %s offset:%d" % (13 if (t == 3 and C.t3u) else VQW, R(c, 2), 16 * RS * u + 32 * t)]
        return o
    while giss < 4:
        for it in dmaX(giss) + dmaW(giss): sc.emit(it)
        giss += 1
    wait(a, vm=vm.need(("g", 1))); a("s_barrier"); tr.mark()
    for it in reads(0): sc.emit(it)
    sc.dq += dmaX(4) + dmaW(4)
    eq = []
    for s_ in range(20):
        fb = FR[s_ % 2]
        a("s_waitcnt lgkmcnt(0)")
        rq = []
        for i in range(36):
            t, u = i // 9, i % 9
            if C.snk and t & 1 and s_ < 19: u = 8 - u
            c = acc(t, u)
            a("v_mfma_f32_16x16x32_bf16 %s, %s, %s, %s" % (R(c), R(fb + 4 * t), R(fb + 16 + 4 * u), "0" if s_ == 0 else R(c)))
            if i == 0:
                if C.lst and s_ == 1: stats(a, vm, 252, 254, 255, "att", 236)
                if s_ < 19: wait(a, vm=vm.need(*([("g", (s_ + 1) | 1)] + (["pst"] if s_ == PSG else []))))
                a("s_barrier"); tr.mark()
                if s_ < 19: rq = reads(s_ + 1)
                if s_ + NW < 20: sc.dq += dmaX(s_ + NW) + dmaW(s_ + NW)
                sc.sp = C.spa
                if s_ == 0: sc.sp = 1
                if C.pv == 1:
                    if C.pkl <= s_ < C.pkl + 3: sc.dq += [pack_all[:5], pack_all[5:13], pack_all[13:]][s_ - C.pkl]; sc.sp = 2
                else:
                    if s_ == C.pkl: sc.dq += pack_all[:18 if C.p1 else 9]; sc.sp = 1 if C.p1 else 2
                    if s_ == C.pkl + 1 and not C.p1: sc.dq += pack_all[9:]; sc.sp = 2
                if s_ in fex: sc.fq += fex[s_]
                if C.sla <= s_ < C.sla + 3: sc.dq += [(l, ("vm", "stl")) for l in st_loads[3 * (s_ - C.sla):3 * (s_ - C.sla) + 3]]; sc.sp = 2
                if s_ == C.apc: sc.dq += [(flag_load(FL, "s35", 28), ("vm", "pf"))]
                if s_ == C.apc + 2:
                    sc.lq += [("WAITVM", "pf"), ("\n".join(x[0] for x in flag_check("ATT_pf", FL, "s35", 28, 0)), None)]
                    for _ in range(C.aw2): sc.lq += w2_loads(RA, w2q.pop(0), VL)
                if s_ == 18 and C.bfi: sc.fq += [(x, None) for k, m in ((1, 254), (2, 255), (3, 1)) for x in ("v_subrev_u32 v%d, %d, v%d" % (m, k, VI), "v_ashrrev_i32 v%d, 31, v%d" % (m, m))]
                if s_ >= 15: sc.sp = 3
                sc.n += 1; sc.since += 1
                continue
            if s_ == 19:
                if i >= 8 and i - 8 < 27: eq += wr_tile((i - 8) // 9, (i - 8) % 9, C.pkq and i - 8 >= C.npl)
                if i < 8 or (C.q19 and i % 4 == 0): sc.gap([], 2); continue
                for _ in range(C.eqn):
                    if eq and not eq[0].startswith("v_pk"): a(eq.pop(0))
                continue
            sc.gap([rq.pop(0)] if (rq and i % 3 != 0) else [], 2 - (1 if i == 35 else 0))
        sc.flush(sc.dq)
        if s_ <= PSG or s_ == 18 or s_ == C.sla - 1: sc.flush(sc.fq)
    stamp(a, 2); tr.mark()
    a("s_mul_i32 s12, s32, 15360"); a("s_add_u32 s12, s12, 94208")
    for i in w2q: sc.lq += w2_loads(RA, i, VL)
    SB = 13 if C.arp else 10
    if C.ea3:
        a(sflag_load(0))
        for q in range(4): a("s_add_u32 s14, s32, %d" % q); a("s_and_b32 s14, s14, 3"); a("s_lshl_b32 s14, s14, 10"); a("s_add_u32 s%d, s14, s%d" % (52 + q, AB[0]))
    for k in range(5): sc.lq += w2_lds(SB + k // 2, k & 1, VL, SB)
    if C.t3u:
        a("s_cmp_eq_u32 s32, 3"); a("s_cselect_b32 s68, 0x30000, 0"); a("v_add_u32 v13, s68, v%d" % VQW)
        for u in range(9): eq += wr_tile(3, u, C.pkq)
    for k, x in enumerate(eq):
        a(x)
        if k % C.qp == 0 and sc.lq:
            while sc.lq and not ismem(sc.lq[0][0]): sc.emit(sc.lq.pop(0))
            sc.emit(sc.lq.pop(0))
    if not C.t3u: a("s_cmp_eq_u32 s32, 3"); a("s_cbranch_scc1 K_att_s3")
    for u in range(0 if C.t3u else 9):
        for x in wr_tile(3, u, C.pkq): a(x)
    a("K_att_s3:")
    a("s_waitcnt lgkmcnt(0)"); tr.mark(); a("s_barrier")
    def act_early(i):
        o = []
        for q in range(4): o += [("s_add_u32 s14, s%d, %d" % (52 + q, step_off(i, AB, 4096, RA)[1]), None), ("buffer_load_dwordx4 %s, v%d, s[28:31], s14 offen sc1" % (R(RA.A[i] + 4 * q), VL), ("vm", ("a", i)))]
        return o
    if C.ea3:
        sc.flush(sflag_check("ATT_fe", 16, 1, 0)[1:])
        while sc.lq and ismem(sc.lq[0][0]): sc.emit(sc.lq.pop(0))
        sc.lq = act_early(0) + act_early(1) + act_early(2) + sc.lq + w2_loads(RA, 12, VL)
    elif C.arp:
        for i in (10, 11, 12): sc.lq += w2_loads(RA, i, VL)
    QR = [80, 150]; Sx = [16, 48]; O = [80, 150]; ZO = 20
    def KR(e, kb): return QR[e] + 10 + 10 * kb
    def VR(e, kb): return QR[e] + 40 + 10 * kb
    if C.arp:
        QR = [60, 496]; Sx = [16, 38]; O = [60, 80]; ZO = 18
        KR = lambda e, kb: 70 + 10 * (2 * e + kb)
        VR = lambda e, kb: [192, 202, 212, 222, 4][2 * e + kb]
    def lqpop(n=1):
        for _ in range(n):
            while sc.lq and not ismem(sc.lq[0][0]): sc.emit(sc.lq.pop(0))
            if sc.lq: sc.emit(sc.lq.pop(0))
    for e in range(2):
        for dp in range(5): a("ds_read_b64 %s, v%d offset:%d" % (R(QR[e] + 2 * dp, 2), AQ, (16 + 16 * e) * RS + 8 * dp)); lg.issue(("k", e))
        for kb in range(3):
            if e == 1 and kb == 0: continue
            for dp in range(5): a("ds_read_b64 %s, v%d offset:%d" % (R(KR(e, kb) + 2 * dp, 2), AQ, (8 * kb + 16 * e) * RS + 160 + 8 * dp)); lg.issue(("k", e))
    def KK(e, kb): return KR(0, 2) if (e == 1 and kb == 0) else KR(e, kb)
    def VV(e, kb): return VR(0, 2) if (e == 1 and kb == 0) else VR(e, kb)
    for e in range(2):
        wait(a, lg=lg.need(("k", e)))
        for dp in range(5):
            for kb in range(3):
                a("v_mfma_f32_4x4x4_16b_bf16 %s, %s, %s, %s" % (R(Sx[e] + 4 * kb), R(KK(e, kb) + 2 * dp, 2), R(QR[e] + 2 * dp, 2), "0" if dp == 0 else R(Sx[e] + 4 * kb)))
                if kb == 0: lqpop()
                if not (e == 1 and kb == 0): a("ds_read_b64_tr_b16 %s, v%d offset:%d" % (R(VR(e, kb) + 2 * dp, 2), AV, (8 * kb + 16 * e) * RS + 320 + 8 * dp)); lg.issue(("v", e))
    a("s_nop 3")
    a("s_or_b32 s68, s36, s32"); a("s_cmp_lg_u32 s68, 0"); a("s_cbranch_scc1 K_att_nomask")
    Z = Sx[0] + ZO
    a("v_lshlrev_b32 v%d, 1, v%d" % (Z, VI)); a("v_sub_u32 v%d, v%d, v%d" % (Z, TOK, Z)); a("v_mov_b32 v%d, 0xff800000" % (Z + 1))
    for k in range(1, 8): a("v_cmp_gt_u32 vcc, %d, v%d" % (16 - 2 * k, Z)); a("s_nop 1"); a("v_cndmask_b32 v%d, v%d, v%d, vcc" % (Sx[0] + k, Sx[0] + k, Z + 1))
    a("K_att_nomask:")
    tr.mark()
    if not C.ea3: a(sflag_load(0))
    else:
        k_ = next((k for k, x in enumerate(sc.lq) if x[0].startswith("s_add_u32 s13") or x[0].startswith("s_add_u32 m0")), len(sc.lq))
        sc.lq = sc.lq[:k_] + act_early(3) + sc.lq[k_:]
    def soft(S):
        Z = S + ZO; P = S + 12; o = []; M = lambda k: "s[%d:%d]" % (4 + 2 * k, 5 + 2 * k)
        MV = [0, 254, 255, 1]
        if C.bfi: o += ["v_bfi_b32 v%d, v%d, v%d, v%d" % (S + k, MV[k], S + k, S + k + 8) for k in range(1, 4)]
        else: o += ["v_cndmask_b32 v%d, v%d, v%d, %s" % (S + k, S + k + 8, S + k, M(k)) for k in range(1, 4)]
        o += ["v_max3_f32 v%d, v%d, v%d, v%d" % (Z + 1, S + 4, S + 5, S + 6), "v_max3_f32 v%d, v%d, v%d, v%d" % (Z, S + 1, S + 2, S + 3),
              "v_max3_f32 v%d, v%d, v%d, v%d" % (Z + 1, Z + 1, S + 7, S + 8), "v_max_f32 v%d, v%d, v%d" % (Z, Z, Z + 1), "v_mul_f32 v%d, s39, v%d" % (Z, Z)]
        o += ["v_fma_f32 v%d, v%d, s39, -v%d" % (S + k, S + k, Z) for k in range(1, 9)]
        o += ["v_exp_f32 v%d, v%d" % (S + k, S + k) for k in range(1, 9)]
        o += ["v_add_f32 v%d, v%d, v%d" % (Z, S + 1, S + 2), "v_add_f32 v%d, v%d, v%d" % (Z + 1, S + 3, S + 4), "v_add_f32 v%d, v%d, v%d" % (Z + 2, S + 5, S + 6), "v_add_f32 v%d, v%d, v%d" % (Z + 3, S + 7, S + 8),
              "v_add_f32 v%d, v%d, v%d" % (Z, Z, Z + 1), "v_add_f32 v%d, v%d, v%d" % (Z + 2, Z + 2, Z + 3), "v_add_f32 v%d, v%d, v%d" % (Z, Z, Z + 2), "v_rcp_f32 v%d, v%d" % (Z, Z), "v_mov_b32 v%d, 0" % S]
        o += ["v_mul_f32 v%d, v%d, v%d" % (S + k, S + k, Z) for k in range(1, 9)]
        for k in range(1, 4):
            if C.bfi: o += ["v_bfi_b32 v%d, v%d, 0, v%d" % (S + k + 8, MV[k], S + k), "v_and_b32 v%d, v%d, v%d" % (S + k, MV[k], S + k)]
            else: o += ["v_cndmask_b32 v%d, v%d, 0, %s" % (S + k + 8, S + k, M(k)), "v_cndmask_b32 v%d, 0, v%d, %s" % (S + k, S + k, M(k))]
        o += ["v_cvt_pk_bf16_f32 v%d, v%d, v%d" % (P + j, S + 2 * j, S + 2 * j + 1) for j in range(6)]
        return o
    for k, (x, y) in enumerate(zip(soft(Sx[0]), soft(Sx[1]))):
        a(x); a(y)
        if k % C.sqp == 0: lqpop()
    a("s_waitcnt lgkmcnt(0)"); a("s_nop 0")
    if C.ea1 and not C.ea3:
        sc.flush(sflag_check("ATT_fe", 100, 1, 0)[1:])
        while sc.lq and ismem(sc.lq[0][0]): sc.emit(sc.lq.pop(0))
        a0 = []
        for q in range(4): a0 += [("s_add_u32 s14, s32, %d\ns_and_b32 s14, s14, 3\ns_lshl_b32 s14, s14, 10\ns_add_u32 s14, s14, s%d\ns_add_u32 s14, s14, %d" % ((q,) + step_off(0, AB, 4096, RA)), None),
                                  ("buffer_load_dwordx4 %s, v%d, s[28:31], s14 offen sc1" % (R(RA.A[0] + 4 * q), VL), ("vm", ("a", 0)))]
        sc.lq = a0 + sc.lq
    def ocvt(e, dp):
        c = O[e] + 4 * dp
        return ["v_cvt_pk_bf16_f32 v%d, v%d, v%d" % (c, c, c + 1), "v_cvt_pk_bf16_f32 v%d, v%d, v%d" % (c + 1, c + 2, c + 3), "ds_write_b64 v%d, %s offset:%d" % (SO + dp, R(c, 2), 2560 * e)]
    q0 = [x for dp in range(5) for x in ocvt(0, dp)]
    for e in range(2):
        for kb in range(3):
            for dp in range(5):
                a("v_mfma_f32_4x4x4_16b_bf16 %s, %s, %s, %s" % (R(O[e] + 4 * dp), R(VV(e, kb) + 2 * dp, 2), R(Sx[e] + 12 + 2 * kb, 2), "0" if kb == 0 else R(O[e] + 4 * dp)))
                if e == 1 and (kb > 0 or dp > 0): a(q0.pop(0))
                if C.pvq and dp == 4: lqpop()
    for x in q0: a(x)
    for dp in range(5):
        for x in ocvt(1, dp): a(x)
        if C.pvq and dp % 2 == 0: lqpop()
    a("s_waitcnt lgkmcnt(0)")
    for j in range(5): a("ds_read_b128 %s, v%d offset:%d" % (R(100 + 4 * j), VOR, 1024 * j))
    def ostores():
        for j in range(5):
            a("s_waitcnt lgkmcnt(%d)" % (4 - j if C.ea0 else 0)); a("buffer_store_dwordx4 %s, v%d, s[28:31], s61 offen sc1" % (R(100 + 4 * j), GO + j)); vm.issue("ost")
    if C.ea0: ostores()
    tr.mark(); tr.sync(); tr.mark(); tr.flush(41)
    for it in act_voffs(VL): sc.emit(it)
    a("v_mov_b32 v7, v%d" % VL); a("v_add_u32 v2, s1, v2")
    if not C.ea1: sc.flush(sflag_check("ATT_fe", 20, 1, 0))
    left = list(sc.lq); sc.lq = []
    while left and ismem(left[0][0]): sc.emit(left.pop(0))
    for i in range(C.ea1, 2 + C.ea1 if not C.ea3 else 0): sc.flush(act_loads(RA, i))
    assert not any(x[0].startswith('s_add_u32 s14') for x in left)
    if not C.ea0: ostores()
    print("ATT left", len(left))
    lrd = [("WAITVM", "wl"), ("v_add_u32 v22, s12, v7", None)] + [("ds_read_b128 %s, v22 offset:%d" % (R(RA.W[SB] + 4 * k), 1024 * k), None) for k in range(15)]
    for i in (SB, SB + 1): vm.seen.add(("w2", i))
    pend = [(i, act_loads(RA, i)) for i in range(2 + C.ea1, 4 if not C.ea3 else 0)]; grp = []
    if C.ea3: pend += [(i - 0.5, p) for i in (10, 11) for p in w2_parts(RA, i)]
    for x in left:
        if x[0].startswith("s_add_u32 m0") or x[0].startswith("s_add_u32 s13"): grp.append([])
        grp[-1].append((x[0].replace("v%d," % VL, "v7,"), x[1]))
    for g in grp: pend.append((g[-1][1][1][1] - 0.5 if g[-1][1][1] != "wl" else 5.5, g))
    pend += [(SB + 1.5, w2_parts(RA, SB + 2)[1])] + [(i - 0.5, p) for i in range(SB + 3, 17) for p in w2_parts(RA, i)]
    sc.timed = [(sc.n + C.sda, [("WAITVM", "ost"), (wave_signal(2, 1), ("vm", "sg"))])]
    p2_main(a, sc, RA, pend, [], lrd)

def p2_main(a, sc, r, pend, ep, lrd=()):
    vm = sc.vm; sc.sp = C.sp2; sc.dq = []; sc.fq = list(ep); sc.lq = []
    VL, VX, VR_ = 7, 8, 9; FL = 20; NT = r.NT; H = NT // 2; RB = 3 * NT * 1024; WA = [0, 10, 11, 12]
    XR = r.XF + 4 * NT
    stamp(a, 3)
    tr = Trace(a, 15); tr.lv = VL; tr.mark()
    if C.bs < 0: a("s_barrier")
    xl = [(x, None) for x in ["v_and_b32 v9, 0xf0, v7", "v_mul_u32_u24 v9, 80, v9", "v_lshrrev_b32 v%d, 8, v7" % VX, "v_lshl_add_u32 v%d, v%d, 4, v9" % (VX, VX)]] + \
         [("buffer_load_dwordx4 %s, v%d, s[16:19], s3 offen offset:%d" % (R(XR + 4 * h), VX, 64 * h), ("vm", "xr")) for h in range(H)]
    gate = {4: (2, 0, C.fo if r is RF else C.foa), 8: (1, 16, C.fb), 13: (3, 0, C.fc if r is RF else C.fca)}
    QO = (1, 2, 3, 0)
    def qloads(n):
        out = []
        for i in range(13, 17):
            l = act_loads(r, i); out += [l[0], (l[1 + QO[n]][0], ("vm", ("a", 13 + n)))]
        return out
    work = sorted([(min(w[0], 12.9), w[1]) for w in pend] + [(i, act_loads(r, i)) for i in range(4, 13)] + [(13 + n, qloads(n)) for n in range(4)], key=lambda w: w[0])
    nld = lambda it: sum(1 for x in it if x[0].startswith("buffer"))
    rate = sum(nld(w[1]) for w in work) / float(C.span if r is RF else C.spanA); credit = 0.0
    def blocked(w, i):
        tag = w[1][-1][1][1]
        if tag[0] == "a":
            rel = r.AREL[tag[1] if tag[1] < 13 else 16]
            if rel == "e": rel = 99 if epi else -1
            return rel >= i or any(tag[1] >= f and i < at for f, (ph, off, at) in gate.items())
        return tag[0] == "w2" and r.WREL[tag[1]] >= i
    dw = lambda q_, t_: ("ds_write_b128 v%d, %s offset:%d" % (WA[q_], R(r.acc(q_, t_)), ((q_ - 1) * NT + t_) * 1024), None)
    for i in range(17):
        sc.flush(sc.lq); epi = bool(sc.fq)
        wait(a, vm=vm.need(*([("a", i)] + ([("w2", i)] if i < 13 else [("w2", k) for k in range(13, 17)])))); tr.mark()
        if i == C.st4: stamp(a, 4)
        for f, (ph, off, at) in gate.items():
            if i == at: sc.lq += sflag_check("P2%s_f%d" % (r.n, f), FL, ph, off)
        for f, (ph, off, at) in gate.items():
            if i == max(0, at - (C.fdf if r is RF else C.fd)) and (f > 4 or r is RA): sc.lq += [(sflag_load(off), None)]
        credit = min(credit + rate, rate + 2)
        if r is RA and i <= C.foa and C.boost: credit = C.boost
        for w in list(work):
            if credit < 1.5 and w[0] > i + C.la - 1: break
            if blocked(w, i): continue
            work.remove(w); sc.lq += w[1]; credit -= nld(w[1])
        if i == (C.xsf if r is RF else C.xsa): sc.lq += xl
        order = [(t, (q if not (C.snk and t & 1) else 3 - q), i) for t in range(NT) for q in range(4)] if i < 13 else [(t, QO[i - 13], k) for k in range(13, 17) for t in range(NT)]
        if i == 12:
            sc.fq += [(x, None) for x in ["s_mov_b32 s20, s98", "s_and_b32 s21, s99, 0xffff", "s_mov_b32 s22, 0x%x" % XBYTES, "s_mov_b32 s23, 0x00020000"]]
            for q in range(1, 4): sc.fq += [(x, None) for x in ["s_add_u32 s14, s32, %d" % q, "s_and_b32 s14, s14, 3", "s_mul_i32 s14, s14, %d" % RB, "v_add_u32 v%d, s14, v%d" % (WA[q], VL)]]
        if i == C.bs: sc.fq += [("s_barrier", None)]
        if i == C.lrs: sc.fq += list(lrd[:10])
        if i == C.lrs + 1: sc.fq += list(lrd[10:])
        if i == 10 and lrd: a("s_waitcnt lgkmcnt(0)")
        if i == 15:
            assert not work and not sc.lq and not sc.timed
            sc.fq += [("s_mul_i32 s14, s32, %d" % RB, None), ("v_add_u32 v9, s14, v%d" % VL, None)]
        if i == 16:
            sc.fq += [("WAITVM", "xr")]
            for d in range(2 * NT): sc.fq += [("v_and_b32 v%d, 0xffff0000, v%d" % (r.XF + 2 * d + 1, XR + d), None), ("v_lshlrev_b32 v%d, 16, v%d" % (r.XF + 2 * d, XR + d), None)]
        wq = [dw(QO[i - 14], t) for t in range(NT)] if i >= 14 else []
        for k, (t, q, j) in enumerate(order):
            c = r.acc(q, t)
            a("v_mfma_f32_16x16x32_bf16 %s, %s, %s, %s" % (R(c), R(r.W[j] + 4 * t), R(r.A[j] + 4 * q), "0" if i == 0 else R(c)))
            if wq and k >= 4 and k % 3 == 1: sc.gap([wq.pop(0)], 0)
            else: sc.gap([], (C.esl if epi else 2) - (0 if k < 4 * NT - 1 else 1))
        assert not wq
        if not epi: sc.flush(sc.fq)
    tr.mark()
    a("s_waitcnt lgkmcnt(0)"); tr.mark(); a("s_barrier"); tr.sync(); tr.mark()
    lg = Q(15)
    for t in range(NT):
        for s in range(3): a("ds_read_b128 %s, v%d offset:%d" % (R(r.STG + (t * 3 + s) * 4), VR_, (s * NT + t) * 1024)); lg.issue(t)
    for d in range(2 * NT): a("v_pk_add_f32 %s, %s, %s" % (R(r.acc(0, 0) + 2 * d, 2), R(r.acc(0, 0) + 2 * d, 2), R(r.XF + 2 * d, 2)))
    for t in range(NT):
        wait(a, lg=lg.need(t)); c = r.acc(0, t)
        for s in range(3):
            for k in (0, 2): a("v_pk_add_f32 %s, %s, %s" % (R(c + k, 2), R(c + k, 2), R(r.STG + (t * 3 + s) * 4 + k, 2)))
        a("v_cvt_pk_bf16_f32 v%d, v%d, v%d" % (r.XF + 2 * t, c, c + 1)); a("v_cvt_pk_bf16_f32 v%d, v%d, v%d" % (r.XF + 2 * t + 1, c + 2, c + 3))
        if t & 1: a("buffer_store_dwordx4 %s, v%d, s[20:23], s3 offen offset:%d" % (R(r.XF + 2 * t - 2), VX, 32 * (t - 1)))
    tr.mark()
    if C.st or C.tr: a("s_waitcnt vmcnt(0)")
    stamp(a, 5); tr.sync(); tr.mark(); tr.flush(23, 1 << 20)
    if r is RF: a("s_branch K_fin" if C.st else "s_endpgm")

DOC = '; ---------------------------------------------------------------------------------------------------------------\n; ---------------------------------------------------------------------------------------------------------------\n'
def gen_all():
    a = Asm(); vm = Q(63)
    role_tables(); prologue(a, vm); vm2 = copy.deepcopy(vm)
    ffn(a, vm); att(a, vm2); a("K_fin:")
    stamp_flush(a, 6)
    a("K_end:"); a("s_endpgm"); emit_spins(a)
    a("ATT_bcast:"); a("v_lshrrev_b32 v212, 2, v2"); a("v_lshlrev_b32 v212, 14, v212"); a("v_and_b32 v213, 3, v2"); a("v_lshl_add_u32 v212, v213, 7, v212"); a("v_mov_b32 v213, s1")
    a("s_mov_b32 s100, %d" % (SYNC_OFF + 1024 + 64)); a("buffer_store_dword v213, v212, s[28:31], s100 offen sc1"); a("buffer_store_dword v213, v212, s[28:31], s100 offen offset:32 sc1"); a("s_branch ATT_bcast_ok"); a("K_last:"); a("s_endpgm")
    return a.text()
if __name__ == "__main__":
    for kv in sys.argv[2:]:
        k, v = kv.split("="); assert hasattr(C, k), k; setattr(C, k, int(v))
    kn = NAME + "_kernel"
    txt = HEADER + "; @launch grid=(256,1,1) block=(256,1,1) lds=162816\n" + '.amdgcn_target "amdgcn-amd-amdhsa--gfx950"\n' + DOC + '.text\n' + kernel_head(kn) + gen_all()
    tail = '.section .rodata,"a"\n' + kernel_desc(kn, 512, 102, 256)
    if C.stub:
        import subprocess
        NS = 8
        def calls(role, labs):
            o = ["s_getpc_b64 s[68:69]", "SC_%s:" % role]
            for h in range(2):
                o += ["s_mov_b32 s100, %s-SC_%s" % (labs[4 * h], role)]
                for w in range(1, 4): o += ["s_cmp_eq_u32 s32, %d" % w, "s_cselect_b32 s100, %s-SC_%s, s100" % (labs[4 * h + w], role)]
                o += ["s_add_u32 s100, s68, s100", "s_addc_u32 s101, s69, 0", "s_swappc_b64 s[70:71], s[100:101]"]
            return "\n".join(("" if x.endswith(":") else "    ") + x for x in o)
        def build(ins):
            L = txt.split("\n"); out = []; labs = {"ffn": [], "att": []}; role = "ffn"
            for i, l in enumerate(L):
                if l == "K_att:": role = "att"
                if i in ins:
                    n = "STUB%d" % i; labs[role].append(n); out += ["    s_branch %s_x" % n, n + ":", "    s_setpc_b64 s[70:71]", n + "_x:"]
                out.append(l)
            t = "\n".join(out)
            for r_ in labs:
                lb = (labs[r_] + ["K_ret"] * NS)[:NS]; t = t.replace("    STUBCALLS_" + r_, calls(r_, lb))
            return t.replace("K_last:\n", "K_ret:\n    s_setpc_b64 s[70:71]\nK_last:\n")
        ins = set()
        base = 0x1c00
        while True:
            t = build(ins); L = txt.split("\n")
            marked = "\n".join(("M%d_:\n" % i if l.startswith("    v_mfma") else "") + l for i, l in enumerate(L))
            sv = txt; txt = marked
            idx = {}; k = 0
            for i, l in enumerate(L):
                if l.startswith("    v_mfma"): k += 1
                idx[i] = i + k - (1 if l.startswith("    v_mfma") else 0)
            tm = build({idx[i] for i in ins}); txt = sv
            open("stub.s", "w").write(tm + tail)
            subprocess.run(["clang", "-x", "assembler", "-target", "amdgcn-amd-amdhsa", "-mcpu=gfx950", "-c", "stub.s", "-o", "stub.o"], check=True)
            sy = subprocess.run(["llvm-readelf", "-s", "stub.o"], capture_output=True, text=True).stdout
            ad = sorted((int(x.split()[1], 16) + base - C.sto, int(x.split()[-1][1:-1])) for x in sy.split("\n") if re.search(r" M\d+_$", x))
            done = {a_ >> 12 for a_, i in ad if i in ins}; new = None
            for (a0, i0_), (a1, i1_) in zip(ad, ad[1:]):
                if a1 >> 12 != a0 >> 12 and (a1 >> 12) not in done and i1_ not in ins: new = i1_; break
            if new is None: break
            ins.add(new)
        print("stubs:", len(ins)); txt = build(ins)
    open(sys.argv[1], "w").write(txt + tail)
```
